```python
import torch

def _softmax(x, axis=-1):
    return torch.softmax(x, dim=axis)
def _gelu(x):
    return torch.nn.functional.gelu(x, approximate="tanh")
def _silu(x):
    return torch.nn.functional.silu(x)
def _sigmoid(x):
    return torch.sigmoid(x)
def _layernorm(x, axis=-1, eps=1e-5):
    m = x.mean(dim=axis, keepdim=True)
    v = x.var(dim=axis, keepdim=True, unbiased=False)
    return (x - m) / torch.sqrt(v + eps)
def _scatter_add(tgt, idx, src, axis=0):
    return tgt.clone().index_add_(axis, idx, src)
def _segment_sum(src, seg, n):
    out = torch.zeros((n,) + src.shape[1:], dtype=src.dtype)
    return out.index_add_(0, seg, src)
def _pad(x, pw):
    flat = tuple(v for pair in reversed(pw) for v in pair)
    return torch.nn.functional.pad(x, flat)

kernel_name = 'gated_mix__ssm_conv_s4d__mixer_channel_mlp__prompt'

def setup_inputs():

    _w = (lambda a: (lambda t: t.to(torch.bfloat16) if t.is_floating_point() else t)(torch.as_tensor(a)))
    def _A_setup():
        Bsz, L, D, N = 1, 2048, 512, 128
        return {
            "u": _w((lambda *s: torch.randn(*s, dtype=torch.bfloat16) * 0.05)(Bsz, L, D)),
            "log_A_real": _w((lambda *s: torch.randn(*s, dtype=torch.bfloat16) * 3.2)(D, N) * 0.5),
            "A_imag": _w((lambda *s: torch.randn(*s, dtype=torch.bfloat16) * 0.1)(D, N) * 3.14),
            "C_real": _w((lambda *s: torch.randn(*s, dtype=torch.bfloat16) * 0.8)(D, N) / N ** 0.5),
            "C_imag": _w((lambda *s: torch.randn(*s, dtype=torch.bfloat16) * 0.8)(D, N) / N ** 0.5),
            "log_dt": _w((lambda *s: torch.randn(*s, dtype=torch.bfloat16) * 0.1)(D) * 0.5 - 4.0),
            "D_skip": _w((lambda *s: torch.randn(*s, dtype=torch.bfloat16) * 0.1)(D)),
        }
    _A_in = _A_setup()

    def _B_setup():
        B, S, D, F = 1, 2048, 512, 1792
        return {
            "x": _w((lambda *s: torch.randn(*s, dtype=torch.bfloat16) * 0.05)(B, S, D)),
            "w1": _w((lambda *s: torch.randn(*s, dtype=torch.bfloat16) * 0.8)(D, F) * (D ** -0.5)),
            "b1": _w((lambda *s: torch.randn(*s, dtype=torch.bfloat16) * 0.4)(F)),
            "w2": _w((lambda *s: torch.randn(*s, dtype=torch.bfloat16) * 0.05)(F, D) * (F ** -0.5)),
            "b2": _w((lambda *s: torch.randn(*s, dtype=torch.bfloat16) * 0.05)(D)),
        }
    _B_in = _B_setup()

    return {
        "A_u": _A_in["u"],
        "A_log_A_real": _A_in["log_A_real"],
        "A_A_imag": _A_in["A_imag"],
        "A_C_real": _A_in["C_real"],
        "A_C_imag": _A_in["C_imag"],
        "A_log_dt": _A_in["log_dt"],
        "A_D_skip": _A_in["D_skip"],
        "B_x": _B_in["x"],
        "B_w1": _B_in["w1"],
        "B_b1": _B_in["b1"],
        "B_w2": _B_in["w2"],
        "B_b2": _B_in["b2"],
        "gate_w": _w((lambda *s: torch.randn(*s, dtype=torch.bfloat16) * 0.05)(512) * 16.0),
    }

def reference(A_u, A_log_A_real, A_A_imag, A_C_real, A_C_imag, A_log_dt, A_D_skip, B_x, B_w1, B_b1, B_w2, B_b2, gate_w):
    def _A_ref(u, log_A_real, A_imag, C_real, C_imag, log_dt, D_skip):
        L = u.shape[1]
        dt = torch.exp(log_dt)
        A = -torch.exp(log_A_real) + 1j * A_imag
        C = (C_real + 1j * C_imag) * dt[:, None]
        pos = (lambda x, dt: x.to(dt))(torch.arange(L), log_dt.dtype)
        P = torch.exp((A * dt[:, None])[:, :, None] * pos[None, None, :])
        K = 2.0 * torch.einsum("dn,dnl->dl", C, P).real
        L2 = 2 * L
        u_t = (lambda x, *d: x.permute(*d))(u, 0, 2, 1)
        Kf = (lambda x, *a, **k: torch.fft.rfft(x.float(), *a, **k))(K, L2)
        Uf = (lambda x, *a, **k: torch.fft.rfft(x.float(), *a, **k))(u_t, L2)
        y = (lambda x, *a, **k: torch.fft.irfft(x, *a, **k).to(torch.bfloat16))(Uf * Kf[None, :, :], L2)[:, :, :L]
        y = (lambda x, *d: x.permute(*d))(y, 0, 2, 1)
        return y + u * D_skip[None, None, :]

    def _B_ref(x, w1, b1, w2, b2):
        y = _layernorm(x, axis=-1)
        h = _gelu(torch.einsum("bsd,df->bsf", y, w1) + b1)
        return torch.einsum("bsf,fd->bsd", h, w2) + b2

    x = A_u
    g = _sigmoid((x * gate_w).sum(-1, keepdims=True))
    a = _A_ref(x, A_log_A_real, A_A_imag, A_C_real, A_C_imag, A_log_dt, A_D_skip)
    b = _B_ref(x, B_w1, B_b1, B_w2, B_b2)
    return g * a + (1 - g) * b
```

```python
import re

REG_RE = re.compile(r'^(?:-|\|)?(?:abs\(|neg\()?([vas])(?:(\d+)|\[(\d+):(\d+)\])\)?\|?$')
TRANS = ('v_exp_f32', 'v_log_f32', 'v_rcp_f32', 'v_rsq_f32', 'v_sqrt_f32', 'v_sin_f32', 'v_cos_f32')


def regs_of(op):
    op = op.strip()
    if op in ('vcc', 'exec'):
        return [op]
    if op in ('vcc_lo', 'vcc_hi'):
        return ['vcc']
    if op in ('exec_lo', 'exec_hi'):
        return ['exec']
    if op == 'm0':
        return ['m0']
    m = REG_RE.match(op)
    if not m:
        return []
    k = m.group(1)
    if m.group(2) is not None:
        return [k + m.group(2)]
    return [k + str(i) for i in range(int(m.group(3)), int(m.group(4)) + 1)]


class Ins:
    __slots__ = ('text', 'tag', 'kind', 'mn', 'dst', 'src', 'a', 'b', 'c', 'passes', 'vm', 'lgkm', 'wide_store',
                 'data', 'pre', 'wait_tags', 'nvm', 'nlgkm', 'hot')

    def __init__(self, text, tag=None):
        self.text = text.strip()
        self.tag = tag
        self.pre = 0
        self.nvm = None
        self.nlgkm = None
        self.wait_tags = None
        self.dst, self.src = [], []
        self.a = self.b = self.c = None
        self.passes = 0
        self.vm = self.lgkm = False
        self.wide_store = False
        self.data = []
        t = self.text.split(';')[0].strip()
        if t == '' or t.endswith(':') or t.startswith('.'):
            self.kind = 'meta'
            self.mn = ''
            return
        parts = t.split(None, 1)
        mn = parts[0]
        for suf in ('_e32', '_e64', '_dpp', '_sdwa'):
            if mn.endswith(suf):
                mn = mn[:-len(suf)]
        self.mn = mn
        rest = parts[1] if len(parts) > 1 else ''
        ops, depth, cur = [], 0, ''
        for ch in rest:
            if ch == '[':
                depth += 1
            if ch == ']':
                depth -= 1
            if ch == ',' and depth == 0:
                ops.append(cur.strip())
                cur = ''
            else:
                cur += ch
        if cur.strip():
            ops.append(cur.strip())
        mods = ''
        if ops:
            last = ops[-1].split(None, 1)
            ops[-1] = last[0]
            mods = last[1] if len(last) > 1 else ''
        R = [regs_of(o) for o in ops]
        flat = lambda l: [r for x in l for r in x]
        if mn.startswith('v_mfma'):
            self.kind = 'mfma'
            self.dst = R[0]
            self.a, self.b, self.c = R[1], R[2], R[3]
            self.src = R[1] + R[2] + R[3]
            self.passes = 8 if '32x32' in mn else 4
        elif mn.startswith('v_'):
            self.kind = 'valu'
            self.dst = R[0]
            self.src = flat(R[1:])
            if mn.startswith(('v_fmac', 'v_dot2c', 'v_pk_fmac', 'v_writelane')) or 'dpp' in parts[0] or 'row_' in mods or 'quad_perm' in mods:
                self.src += R[0]
            if mn.startswith(('v_swap', 'v_permlane16_swap', 'v_permlane32_swap')):
                self.dst = R[0] + R[1]
                self.src = R[0] + R[1]
            if mn.startswith(('v_add_co', 'v_sub_co', 'v_addc_co', 'v_subb_co')):
                self.dst = R[0] + R[1]
                self.src = flat(R[2:])
            if 'row_' in mods or 'quad_perm' in mods or 'wave_' in mods:
                self.kind = 'valu'
                self.data = ['dpp']
        elif mn.startswith('ds_'):
            self.kind = 'ds'
            self.lgkm = True
            if mn.startswith(('ds_read', 'ds_bpermute', 'ds_permute', 'ds_swizzle')):
                self.dst = R[0]
                self.src = flat(R[1:])
                if 'd16' in mn:
                    self.src += R[0]
            else:
                self.src = flat(R)
        elif mn.startswith(('buffer_', 'global_')):
            self.kind = 'vmem'
            self.vm = True
            islds = 'lds' in mods.split() or '_lds_' in mn
            if 'load' in mn and not islds:
                self.dst = R[0]
                self.src = flat(R[1:])
                if 'd16' in mn:
                    self.src += R[0]
            else:
                self.src = flat(R)
                if islds:
                    self.src.append('m0')
                if 'store' in mn and ('x4' in mn or 'x3' in mn):
                    self.wide_store = True
                    self.data = R[0] if mn.startswith('buffer_') else R[1]
        elif mn.startswith('s_'):
            self.kind = 'salu'
            if mn.startswith(('s_load', 's_memtime', 's_memrealtime', 's_buffer_load')):
                self.kind = 'smem'
                self.dst = R[0]
                self.src = flat(R[1:])
            elif mn.startswith(('s_cmp', 's_cbranch', 's_branch', 's_waitcnt', 's_barrier', 's_nop', 's_sleep',
                                's_endpgm', 's_setprio', 's_bitcmp')):
                self.src = flat(R)
            else:
                self.dst = R[0]
                self.src = flat(R[1:])
                if 'saveexec' in mn:
                    self.dst = self.dst + ['exec']
        else:
            raise ValueError('unknown instr: ' + text)

    def states(self):
        n = self.pre
        if self.nvm is not None or self.nlgkm is not None:
            n += 1
        if self.kind == 'meta':
            return n
        if self.mn == 's_nop':
            return n + int(self.text.split()[1]) + 1
        return n + 1


class Wait(Ins):
    def __init__(self, tags):
        super().__init__('; wait ' + ' '.join(tags))
        self.wait_tags = list(tags)


class Seq:
    def __init__(self):
        self.l = []

    def __call__(self, text, tag=None):
        for ln in text.strip('\n').split('\n'):
            if ln.strip() == '':
                continue
            self.l.append(Ins(ln, tag))
        return self

    def wait(self, *tags):
        self.l.append(Wait(tags))
        return self

    def add(self, other):
        self.l.extend(other.l if isinstance(other, Seq) else other)
        return self

    def __len__(self):
        return len(self.l)


def sprinkle(main, groups, start=0, end=None):
    items = main.l
    end = len(items) if end is None else end
    n = len(groups)
    out = Seq()
    pos = [start + (end - start) * k // n for k in range(n)] if n else []
    k = 0
    for i, it in enumerate(items):
        while k < n and pos[k] == i:
            out.add(groups[k])
            k += 1
        out.l.append(it)
    while k < n:
        out.add(groups[k])
        k += 1
    return out


def resolve_waits(path):
    vmq, lq = [], []
    smem = []

    def need(it, nvm=None, nl=None):
        if nvm is not None:
            nvm = min(nvm, 63)
            it.nvm = nvm if it.nvm is None else min(it.nvm, nvm)
        if nl is not None:
            nl = min(nl, 15)
            it.nlgkm = nl if it.nlgkm is None else min(it.nlgkm, nl)

    seen_tags = set()
    for it in path:
        touched = set(it.dst) | set(it.src)
        if it.wait_tags is not None:
            for t in it.wait_tags:
                if t == '*vm':
                    if vmq:
                        need(it, nvm=0)
                    continue
                if t == '*lgkm':
                    if lq or smem:
                        need(it, nl=0)
                    continue
                opt = t.endswith('?')
                t = t.rstrip('?')
                assert opt or t in seen_tags, 'wait on unknown tag ' + t
                for q, isvm in ((vmq, True), (lq, False)):
                    idx = [i for i, o in enumerate(q) if o.tag == t]
                    if idx:
                        n = len(q) - 1 - idx[-1]
                        need(it, nvm=n) if isvm else need(it, nl=n)
        elif touched:
            if any(set(o.dst) & touched for o in smem):
                need(it, nl=0)
            for q, isvm in ((vmq, True), (lq, False)):
                idx = [i for i, o in enumerate(q) if set(o.dst) & touched]
                if idx and ((it.vm and isvm) or (it.lgkm and not isvm)):
                    idx = [i for i in idx if set(q[i].dst) & set(it.src)]
                if idx:
                    n = len(q) - 1 - idx[-1]
                    need(it, nvm=n) if isvm else need(it, nl=n)
        nvm, nl = it.nvm, it.nlgkm
        if it.mn == 's_waitcnt':
            m = re.search(r'vmcnt\((\d+)\)', it.text)
            if m:
                nvm = int(m.group(1)) if nvm is None else min(nvm, int(m.group(1)))
            m = re.search(r'lgkmcnt\((\d+)\)', it.text)
            if m:
                nl = int(m.group(1)) if nl is None else min(nl, int(m.group(1)))
        if nvm is not None:
            del vmq[:max(0, len(vmq) - nvm)]
        if nl is not None:
            del lq[:max(0, len(lq) - nl)]
            if nl == 0:
                smem.clear()
        if it.tag:
            seen_tags.add(it.tag)
        if it.vm:
            vmq.append(it)
        if it.lgkm:
            lq.append(it)
        if it.kind == 'smem':
            smem.append(it)


def fix_hazards(path):
    hist = []

    def dist_needed(p, c):
        pd, cs, cd = set(p.dst), set(c.src), set(c.dst)
        n = 0
        if p.kind == 'valu':
            vd = {r for r in pd if r[0] in 'va' and r != 'vcc'}
            sd = pd - vd
            if c.kind == 'mfma' and vd & cs:
                n = max(n, 2)
            if c.kind == 'valu':
                if p.mn in TRANS and vd & cs:
                    n = max(n, 1)
                if c.mn in ('v_readfirstlane_b32', 'v_readlane_b32') and vd & cs:
                    n = max(n, 1)
                if (c.data == ['dpp'] or c.mn.startswith('v_permlane')) and vd & cs:
                    n = max(n, 2)
                if sd & cs:
                    n = max(n, 4 if c.mn in ('v_readlane_b32', 'v_writelane_b32') else 2)
            if c.kind == 'vmem' and sd & cs:
                n = max(n, 5)
            if c.kind in ('salu', 'smem') and sd & cs:
                n = max(n, 2)
            if 'exec' in pd:
                n = max(n, 5)
        if p.kind == 'salu' and 'm0' in pd and 'm0' in cs and c.kind in ('vmem', 'ds'):
            n = max(n, 1)
        if p.kind == 'mfma':
            big = {4: 8, 8: 12}[p.passes]
            if c.kind == 'mfma':
                if pd & (set(c.a) | set(c.b)):
                    n = max(n, big)
                if pd & set(c.c):
                    if not (p.dst == c.c and p.passes == c.passes):
                        n = max(n, big - 2)
                elif pd & cd:
                    n = max(n, big)
            elif c.kind in ('valu', 'vmem', 'ds'):
                if pd & (cs | cd):
                    n = max(n, big)
                if set(p.c) & cd:
                    n = max(n, {4: 3, 8: 7}[p.passes])
        if p.wide_store and set(p.data) & cd:
            n = max(n, 2)
        return n

    for it in path:
        if it.kind != 'meta':
            d = it.pre + (1 if (it.nvm is not None or it.nlgkm is not None) else 0)
            short = 0
            for p in reversed(hist):
                if d >= 12:
                    break
                if p.kind != 'meta':
                    short = max(short, dist_needed(p, it) - d)
                d += p.states()
            if short > 0:
                it.pre += short
        hist.append(it)
        if len(hist) > 40:
            del hist[0]


def render(items):
    out = []
    for it in items:
        n = it.pre
        while n > 0:
            k = min(n, 16)
            out.append('    s_nop %d' % (k - 1))
            n -= k
        w = []
        if it.nvm is not None:
            w.append('vmcnt(%d)' % it.nvm)
        if it.nlgkm is not None:
            w.append('lgkmcnt(%d)' % it.nlgkm)
        if w:
            out.append('    s_waitcnt ' + ' '.join(w))
        if it.wait_tags is not None:
            continue
        out.append(it.text if (it.kind == 'meta' and it.text.endswith(':')) else '    ' + it.text)
    return '\n'.join(out) + '\n'


class Regs:
    def __init__(self, kind, lo, hi):
        self.kind = kind
        self.free = set(range(lo, hi))
        self.hw = lo

    def alloc(self, n=1, align=None):
        align = align or (1 if n == 1 else 2 if n == 2 else 4 if self.kind == 's' else 2)
        for b in sorted(self.free):
            if b % align == 0 and all(b + i in self.free for i in range(n)):
                for i in range(n):
                    self.free.remove(b + i)
                self.hw = max(self.hw, b + n)
                return b
        raise RuntimeError('out of %s registers (need %d)' % (self.kind, n))

    def release(self, b, n=1):
        for i in range(n):
            assert b + i not in self.free, 'double free %d' % (b + i)
            self.free.add(b + i)


def vr(b, n=1, k='v'):
    return '%s%d' % (k, b) if n == 1 else '%s[%d:%d]' % (k, b, b + n - 1)


def ar(b, n=1):
    return vr(b, n, 'a')


def sr(b, n=1):
    return vr(b, n, 's')
```

```python
import sys, struct, math
from asmlib import *

NAME = 'gated_mix__ssm_conv_s4d__mixer_channel_mlp__prompt_kernel'
OPT = dict(stamps=0, rot=1)
for a in sys.argv[2:]:
    k, v = a.split('=')
    OPT[k] = int(v)


def f32(x):
    return '0x%08x' % struct.unpack('<I', struct.pack('<f', x))[0]


WS_FL = 0x0
FA, FU, FW, FH, FC, FDUMMY = 0, 32, 64, 960, 1856, 2880
WS_TP = 0x80000
WS_TS = 0x88000
WS_G = 0x90000
WS_FP = 0x98000
WS_ST = 0xA0000
WS_UT = 0x200000
WS_AT = 0x400000
WS_W2T = 0x600000
WS_H = 0x800000
WS_SIZE = 0x10000000
L_X, L_W = 0, 65536
L_R = 131072
L_TB = 148480
TBP = 3088
RP = 4224
L_U, UP = 0, 4640
L_AT = 20480
L_CB, CBP = 32768, 1088
L_PB = 69632
LDS_SIZE = 156672

P_U, P_LA, P_AI, P_CR, P_CI, P_DT, P_DS, P_BX, P_W1, P_B1, P_W2, P_B2, P_GW, P_OUT, P_DBG, P_WS = [4 + 2 * i for i in range(16)]
SX, SW1, SW2, SWS, SOUT = 36, 40, 44, 48, 52
sXCD, sJ, sWV, sNON = 56, 57, 58, 59
sT0, sT1, sT2, sT3 = 60, 61, 62, 63
sM, sXb, sWb, sKC, sXk, sWk = 64, 65, 66, 67, 68, 69
sFW, sW2o, sHst, sFH, sTB1, sCB1 = 70, 71, 72, 73, 74, 75
sSEL0, sSEL1, sW2l, sHl, sCNT, sTB2, sNB = 76, 77, 78, 79, 80, 81, 82
sCH, sBH, sT4, sT5 = 83, 84, 85, 86
sSTAMP = 88
srd = lambda b: 's[%d:%d]' % (b, b + 3)
ptr = lambda b: 's[%d:%d]' % (b, b + 1)

V = Regs('v', 0, 256)
vTID, vL, vL16, vZ, vST = [V.alloc() for _ in range(5)]
vN, vG = V.alloc(), V.alloc()
vNON = V.alloc()
vT = V.alloc(8, 4)
vPF, vPA, vPF2, vPA2 = [V.alloc() for _ in range(4)]

outline = []
nstamp = [0]
stamp_names = []


def stamp(s, name):
    if not OPT['stamps']:
        return
    if name not in stamp_names:
        stamp_names.append(name)
    k = stamp_names.index(name)
    s(f's_memtime s[{sSTAMP}:{sSTAMP+1}]')
    s(f'v_writelane_b32 v{vST}, s{sSTAMP}, {k}')


npoll = [0]


def poll_issue(s, vflag, vaddr, soff):
    s(f'buffer_load_dword v{vflag}, v{vaddr}, {srd(SWS)}, {soff} offen sc1')


def poll_check(s, vflag, vaddr, soff):
    k = npoll[0]
    npoll[0] += 1
    s(f'v_cmp_ne_u32 vcc, s{sNON}, v{vflag}')
    s(f's_cbranch_vccnz Lretry{k}')
    s(f'Lback{k}:')
    outline.append(f'''Lretry{k}:
    s_mov_b32 s{sCNT}, 0x40000
Lloop{k}:
    buffer_load_dword v{vflag}, v{vaddr}, {srd(SWS)}, {soff} offen sc1
    s_waitcnt vmcnt(0)
    v_cmp_ne_u32 vcc, s{sNON}, v{vflag}
    s_cbranch_vccz Lback{k}
    s_sub_u32 s{sCNT}, s{sCNT}, 1
    s_cbranch_scc0 Lloop{k}
    s_branch Lback{k}
''')


def nonce_issue(s, v):
    s(f'global_load_dword v{v}, v{vZ}, {ptr(P_DBG)} sc1')


def nonce_check(s, v):
    k = npoll[0]
    npoll[0] += 1
    s(f'v_readfirstlane_b32 s{sNON}, v{v}')
    s(f's_cmp_eq_u32 s{sNON}, 0')
    s(f's_cbranch_scc1 Lretry{k}')
    s(f'Lback{k}:')
    outline.append(f'''Lretry{k}:
    s_mov_b32 s{sCNT}, 0x40000
Lloop{k}:
    global_load_dword v{v}, v{vZ}, {ptr(P_DBG)} sc1
    s_waitcnt vmcnt(0)
    v_readfirstlane_b32 s{sNON}, v{v}
    s_nop 3
    s_cmp_lg_u32 s{sNON}, 0
    s_cbranch_scc1 Lback{k}
    s_sub_u32 s{sCNT}, s{sCNT}, 1
    s_cbranch_scc0 Lloop{k}
    s_branch Lback{k}
''')


def flag_store(s, vnon, soff):
    s(f'buffer_store_dword v{vnon}, v{vZ}, {srd(SWS)}, {soff} offen sc1')


pro = Seq()
vPAR = V.alloc(6, 1)
pro(f'''
s_cmp_ge_u32 s2, 0x100
s_cbranch_scc1 Lend
s_load_dwordx16 s[4:19], s[0:1], 0
s_load_dwordx16 s[20:35], s[0:1], 64
s_getpc_b64 s[{sT2}:{sT3}]
Lpc:
v_lshrrev_b32 v{vT}, 6, v{vTID}
v_and_b32 v{vL}, 63, v{vTID}
v_readfirstlane_b32 s{sWV}, v{vT}
v_mov_b32 v{vZ}, 0
s_and_b32 s{sXCD}, s2, 7
s_lshr_b32 s{sJ}, s2, 3
s_lshl2_add_u32 s{sT0}, s{sJ}, s{sWV}
s_lshl_b32 s{sT0}, s{sT0}, 8
v_and_b32 v{vT+1}, 1, v{vL}
v_lshl_add_u32 v{vT+1}, v{vT+1}, 7, s{sT0}
v_min_u32 v{vT+1}, Lcode_end-Lpc-4, v{vT+1}
global_load_dword v{vT+7}, v{vT+1}, s[{sT2}:{sT3}]
s_lshl_b32 s{sT0}, s2, 9
v_lshl_add_u32 v{vT+2}, v{vTID}, 1, s{sT0}
v_lshrrev_b32 v{vT+3}, 7, v{vTID}
s_lshl_b32 s{sT0}, s2, 2
v_lshl_add_u32 v{vT+3}, v{vT+3}, 1, s{sT0}
v_lshlrev_b32 v{vL16}, 4, v{vL}
v_and_b32 v{vN}, 15, v{vL}
v_lshrrev_b32 v{vG}, 4, v{vL}
s_or_b32 s{sT0}, s2, s{sWV}
s_waitcnt lgkmcnt(0)
s_cmp_eq_u32 s{sT0}, 0
s_cbranch_scc1 Lnonce
Lnonce_back:
global_load_ushort v{vPAR+0}, v{vT+2}, {ptr(P_LA)}
global_load_ushort v{vPAR+4}, v{vT+3}, {ptr(P_DT)}
global_load_ushort v{vPAR+1}, v{vT+2}, {ptr(P_AI)}
global_load_ushort v{vPAR+2}, v{vT+2}, {ptr(P_CR)}
global_load_ushort v{vPAR+3}, v{vT+2}, {ptr(P_CI)}
global_load_ushort v{vPAR+5}, v{vT+3}, {ptr(P_DS)}
''')
outline.append(f'''Lnonce:
    s_memrealtime s[{sT0}:{sT1}]
    s_waitcnt lgkmcnt(0)
    s_or_b32 s{sT0}, s{sT0}, 1
    v_mov_b32 v{vT+6}, s{sT0}
    global_store_dword v{vZ}, v{vT+6}, {ptr(P_DBG)} sc1
    s_branch Lnonce_back
''')
if OPT['stamps']:
    pro(f'v_mov_b32 v{vST}, 0')
    pro(f's_memrealtime s[{sSTAMP}:{sSTAMP+1}]')
    pro(f'v_writelane_b32 v{vST}, s{sSTAMP}, 62')
stamp(pro, 'start')
for b, p, n in ((SX, P_U, 0x200000), (SW1, P_W1, 512 * 3584), (SW2, P_W2, 1792 * 1024), (SWS, P_WS, WS_SIZE), (SOUT, P_OUT, 0x200000)):
    pro(f'''
s_mov_b32 s{b}, s{p}
s_mov_b32 s{b+1}, s{p+1}
s_mov_b32 s{b+2}, {n}
s_mov_b32 s{b+3}, 0x20000''')
pro(f'''
s_lshl_b32 s{sM}, s{sWV}, 10
s_mov_b32 s{sSEL0}, 0x05040100
s_mov_b32 s{sSEL1}, 0x07060302
s_cmp_ge_u32 s{sJ}, 28
s_cbranch_scc1 Lspare
''')


vGA = V.alloc(9, 1)
vTA = V.alloc(4, 1)
vRW = V.alloc(4, 1)
vRR = V.alloc()


def idle_setup():
    s = Seq()
    t = vT
    s(f'''
v_mov_b32 v{t}, 0
v_mov_b32 v{t+1}, 0
v_mov_b32 v{t+2}, 0
v_mov_b32 v{t+3}, 0
v_lshlrev_b32 v{t+4}, 4, v{vTID}
v_add_u32 v{t+4}, {L_TB}, v{t+4}
ds_write_b128 v{t+4}, v[{t}:{t+3}]
ds_write_b128 v{t+4}, v[{t}:{t+3}] offset:4096
''')
    s(f'''
v_lshlrev_b32 v{t+4}, 3, v{vTID}
s_movk_i32 s{sT0}, 128
s_mov_b32 s{sT1}, {L_TB + 16}
''')
    for i in range(9):
        g = vGA + i
        s(f'v_sub_u32 v{g}, {2047 - i}, v{t+4}')
        if i == 8:
            s(f'v_max_i32 v{t+5}, 0, v{g}')
            s(f'v_cvt_f32_u32 v{t+5}, v{t+5}')
        else:
            s(f'v_cvt_f32_u32 v{t+5}, v{g}')
        s(f'''
v_cvt_pk_bf16_f32 v{t+5}, v{t+5}, v{vZ}
v_add_u32 v{t+5}, {128 - 0x4300}, v{t+5}
v_med3_i32 v{g}, v{t+5}, v{g}, s{sT0}
v_lshl_add_u32 v{g}, v{g}, 2, s{sT1}''')
    s(f'''
s_lshr_b32 s{sCH}, s{sWV}, 1
s_and_b32 s{sBH}, s{sWV}, 1
s_mul_i32 s{sT0}, s{sCH}, {TBP}
s_add_u32 s{sT0}, s{sT0}, {L_TB + 16}
v_lshrrev_b32 v{t}, 1, v{vG}
v_and_b32 v{t+1}, 1, v{vG}
v_lshlrev_b32 v{t+2}, 9, v{t}
v_lshl_add_u32 v{t+2}, v{t+1}, 4, v{t+2}
v_lshl_add_u32 v{t+2}, v{vN}, 5, v{t+2}
v_add_u32 v{vTA}, s{sT0}, v{t+2}
v_sub_u32 v{t+3}, 4, v{t}
v_lshlrev_b32 v{t+3}, v{t+3}, v{vN}
v_lshl_add_u32 v{t+3}, v{vG}, 8, v{t+3}
v_add_u32 v{t+3}, 1024, v{t+3}
v_add_u32 v{vTA+1}, s{sT0}, v{t+3}
v_mul_u32_u24 v{t+3}, 120, v{t}
v_add3_u32 v{vTA+2}, v{vTA+1}, v{t+3}, 8
v_lshlrev_b32 v{t+3}, 8, v{vG}
v_lshl_add_u32 v{t+3}, v{vN}, 2, v{t+3}
v_add_u32 v{t+3}, 2048, v{t+3}
v_add_u32 v{vTA+3}, s{sT0}, v{t+3}
s_mul_i32 s{sT0}, s{sWV}, 4352
s_add_u32 s{sT0}, s{sT0}, {L_R}
v_lshl_add_u32 v{vRW}, v{vL}, 2, s{sT0}
v_add_u32 v{vRW+1}, 1088, v{vRW}
v_add_u32 v{vRW+2}, 2176, v{vRW}
v_add_u32 v{vRW+3}, 3264, v{vRW}
v_mul_u32_u24 v{vRR}, 272, v{vN}
v_lshl_add_u32 v{vRR}, v{vG}, 4, v{vRR}
v_add_u32 v{vRR}, s{sT0}, v{vRR}
''')
    s(f'''
s_lshr_b32 s{sT0}, s{sJ}, 3
s_lshl2_add_u32 s{sTB2}, s{sXCD}, s{sT0}
s_and_b32 s{sNB}, s{sJ}, 7
s_mul_i32 s{sT0}, s{sNB}, 56
s_mul_i32 s{sT1}, s{sWV}, 14
s_add_u32 s{sT0}, s{sT0}, s{sT1}
s_lshl_b32 s{sW2l}, s{sT0}, 12
s_add_u32 s{sW2l}, s{sW2l}, {WS_W2T}
s_lshl_b32 s{sFW}, s{sT0}, 8
s_add_u32 s{sFW}, s{sFW}, {WS_FL + FW * 128}
s_lshl_b32 s{sCH}, s2, 1
s_lshr_b32 s{sT0}, s{sWV}, 1
s_add_u32 s{sCH}, s{sCH}, s{sT0}
''')
    s.wait('*lgkm')
    s('s_barrier')
    return s


def kgen():
    s = Seq()
    al = []

    def A(n=1, align=None):
        b = V.alloc(n, align)
        al.append((b, n))
        return b

    la, ai, cr, ci, ld, dsk = [vPAR + i for i in range(6)]
    t = vT
    LOG2E, LOG2E_LO, LN2 = 0x3fb8aa3b, 0x32a5705f, 0x3f317218
    s(f's_mov_b32 s{sT0}, {LOG2E:#x}')
    for x in (la, ld):
        s(f'v_lshlrev_b32 v{x}, 16, v{x}')
    for k, x in enumerate((la, ld)):
        s(f'v_mul_f32 v{t+2*k}, s{sT0}, v{x}')
    for k, x in enumerate((la, ld)):
        s(f'v_fma_f32 v{t+2*k+1}, v{x}, s{sT0}, -v{t+2*k}')
    for k, x in enumerate((la, ld)):
        s(f'v_exp_f32 v{t+2*k}, v{t+2*k}')
    for k, x in enumerate((la, ld)):
        s(f'v_fmamk_f32 v{t+2*k+1}, v{x}, {LOG2E_LO:#x}, v{t+2*k+1}')
    for k, x in enumerate((la, ld)):
        s(f'v_mul_f32 v{t+2*k+1}, {LN2:#x}, v{t+2*k+1}')
    for k, x in enumerate((la, ld)):
        s(f'v_fma_f32 v{t+2*k}, v{t+2*k}, v{t+2*k+1}, v{t+2*k}')
    for x in (ai, cr, ci, dsk):
        s(f'v_lshlrev_b32 v{x}, 16, v{x}')
    s(f'''
v_cvt_pk_bf16_f32 v{t}, v{t}, v{t+2}
v_and_b32 v{ld}, 0xffff0000, v{t}
v_lshlrev_b32 v{la}, 16, v{t}
''')
    val = {}
    val['c0'] = A(2)
    s(f'''
v_mul_f32 v{la}, v{la}, v{ld}
v_mul_f32 v{ai}, v{ai}, v{ld}
v_add_f32 v{ld}, v{ld}, v{ld}
v_mul_f32 v{la}, {f32(-1.4426950408889634)}, v{la}
v_mul_f32 v{ai}, 0.15915494, v{ai}
v_mul_f32 v{val['c0']}, v{cr}, v{ld}
v_mul_f32 v{val['c0']+1}, v{ci}, v{ld}
''')
    zs = (('z8', 8.0), ('z1', 1.0), ('z128', 128.0))
    for k, (nm, p) in enumerate(zs):
        val[nm] = A(2)
        s(f'v_mul_f32 v{t+2*k}, {f32(p)}, v{la}')
        s(f'v_mul_f32 v{t+2*k+1}, {f32(p)}, v{ai}')
    for k, (nm, p) in enumerate(zs):
        s(f'v_fract_f32 v{t+2*k+1}, v{t+2*k+1}')
        s(f'v_exp_f32 v{t+2*k}, v{t+2*k}')
    for k, (nm, p) in enumerate(zs):
        s(f'v_cos_f32 v{val[nm]}, v{t+2*k+1}')
        s(f'v_sin_f32 v{val[nm]+1}, v{t+2*k+1}')
    for k, (nm, p) in enumerate(zs):
        s(f'v_pk_mul_f32 {vr(val[nm],2)}, {vr(val[nm],2)}, {vr(t+2*k,2)} op_sel_hi:[1,0]')
    acc = A(12, 4)
    s(f'''
s_lshl_b32 s{sT0}, s{sBH}, 6
s_sub_u32 s{sT0}, 64, s{sT0}
v_cmp_eq_u32 vcc, s{sT0}, v{vL}
v_mov_b32 v{acc+1}, 0
v_mov_b32 v{acc+2}, 0
v_cndmask_b32 v{acc}, 0, v{dsk}, vcc
v_mov_b32 v{acc+3}, 0
''')
    pk = {}

    def pack(nm, lo):
        pk[nm] = A()
        s(f'v_cvt_pk_bf16_f32 v{pk[nm]}, v{val[nm]}, {"-" if lo else ""}v{val[nm]+1}')

    def mults(lst):
        for d, a, b in lst:
            val[d] = A(2)
            s(f'v_pk_mul_f32 {vr(val[d],2)}, {vr(val[a],2)}, {vr(val[b],2)} op_sel_hi:[1,0]')
        for d, a, b in lst:
            s(f'v_pk_fma_f32 {vr(val[d],2)}, {vr(val[a],2)}, {vr(val[b],2)}, {vr(val[d],2)} op_sel:[1,1,0] op_sel_hi:[0,1,1] neg_lo:[1,0,0]')

    late = []

    def wr(row, a, b=None):
        base, r = vRW + row // 4, row % 4
        if b is None:
            s(f'ds_write_b32 v{base}, v{pk[a]} offset:{272*r}')
        else:
            s(f'ds_write2_b32 v{base}, v{pk[a]}, v{pk[b]} offset0:{68*r} offset1:{68*(r+1)}')
        late.extend([pk[a]] + ([pk[b]] if b else []))
        while len(late) > 6:
            x = late.pop(0)
            al.remove((x, 1))
            V.release(x)

    def rd(dst):
        for ks in range(4):
            s(f'ds_read_b128 {vr(dst+4*ks,4)}, v{vRR} offset:{64*ks}')

    fB, fA0, fA1 = A(16, 4), A(16, 4), A(16, 4)
    pk['z0'] = A()
    s(f'v_mov_b32 v{pk["z0"]}, 0x3f80')
    pack('z8', 1)
    pack('c0', 0)
    wr(0, 'z0', 'z8')
    lo_rounds = [[('z16', 'z8', 'z8'), ('z256', 'z128', 'z128')],
                 [('z24', 'z16', 'z8'), ('z32', 'z16', 'z16')],
                 [('z40', 'z8', 'z32'), ('z48', 'z16', 'z32')],
                 [('z56', 'z24', 'z32'), ('z64', 'z32', 'z32')],
                 [('z72', 'z40', 'z32'), ('z80', 'z48', 'z32')],
                 [('z88', 'z56', 'z32'), ('z96', 'z64', 'z32')],
                 [('z104', 'z72', 'z32'), ('z112', 'z80', 'z32')]]
    for r, lst in enumerate(lo_rounds):
        lst = lst + [(f'c{r+1}', f'c{r}', 'z1')]
        mults(lst)
        for d, _, _ in lst:
            if d != 'z256':
                pack(d, d[0] == 'z')
        if r >= 1:
            wr(2 * r, f'z{16*r}', f'z{16*r+8}')
    mults([('z120', 'z88', 'z32'), ('z512', 'z256', 'z256')] + [(f'c{128+o}', f'c{o}', 'z128') for o in range(2)])
    pack('z120', 1)
    wr(14, 'z112', 'z120')
    rd(fB)
    for k in ['z1'] + [f'z{8*b}' for b in range(1, 16)]:
        al.remove((val[k], 2))
        V.release(val[k], 2)
    for o in range(0, 8, 2):
        wr(o, f'c{o}', f'c{o+1}')
    pack('c128', 0)
    pack('c129', 0)
    wr(8, 'c128', 'c129')
    for o0 in (2, 5):
        lst = [(f'c{128+o}', f'c{o}', 'z128') for o in range(o0, o0 + 3)]
        mults(lst)
        for d, _, _ in lst:
            pack(d, 0)
        if o0 == 2:
            wr(10, 'c130', 'c131')
    wr(12, 'c132', 'c133')
    wr(14, 'c134', 'c135')
    rd(fA0)
    t1 = [[(f'c{256+o}', f'c{o}', 'z256') for o in (0, 2, 4, 6)],
          [(f'c{384+o}', f'c{128+o}', 'z256') for o in (0, 2, 4, 6)],
          [(f'c{h+256}', f'c{h}', 'z256') for h in (256, 260, 384, 388)],
          [(f'c{h+512}', f'c{h}', 'z512') for h in (256, 260, 384, 388)]]
    for r, lst in enumerate(t1):
        mults(lst)
        for d, _, _ in lst:
            pack(d, 0)
        wr(4 * r, lst[0][0], lst[1][0])
        wr(4 * r + 2, lst[2][0], lst[3][0])
        s(f'v_mfma_f32_16x16x32_bf16 {vr(acc,4)}, {vr(fA0+4*r,4)}, {vr(fB+4*r,4)}, {vr(acc,4)}')
    rd(fA1)
    t2 = [[(f'c{h+512}', f'c{h}', 'z512') for h in (512, 640, 768, 896)],
          [(f'c{h+512}', f'c{h}', 'z512') for h in (1024, 1152, 1280, 1408)]]
    for r, lst in enumerate(t2):
        mults(lst)
        for d, _, _ in lst:
            pack(d, 0)
        wr(4 * r, lst[0][0], lst[1][0])
        wr(4 * r + 2, lst[2][0], lst[3][0])
        for ks in (2 * r, 2 * r + 1):
            s(f'v_mfma_f32_16x16x32_bf16 {vr(acc+4,4)}, {vr(fA1+4*ks,4)}, {vr(fB+4*ks,4)}, {vr(acc+4,4) if ks else 0}')
    mults([('c2048', 'c1536', 'z512')])
    for i in range(4):
        s(f'ds_add_f32 v{vTA}, v{acc+i} offset:{4*i}')
    pack('c2048', 0)
    wr(8, 'c2048')
    rd(fA0)
    for i in range(4):
        s(f'ds_add_f32 v{vTA+1+i//2}, v{acc+4+i} offset:{4*(i%2)}')
    for ks in range(4):
        s(f'v_mfma_f32_16x16x32_bf16 {vr(acc+8,4)}, {vr(fA0+4*ks,4)}, {vr(fB+4*ks,4)}, {vr(acc+8,4) if ks else 0}')
    s(f'''
v_lshlrev_b32 v{t}, 4, v{vTID}
v_add_u32 v{t}, {L_R}, v{t}
v_bfe_u32 v{t+1}, v{vL}, 2, 2
v_mul_u32_u24 v{t+1}, {RP}, v{t+1}
v_and_b32 v{t+2}, 3, v{vL}
v_lshl_add_u32 v{t+1}, v{t+2}, 4, v{t+1}
v_add_u32 v{t+1}, {L_R + 4096}, v{t+1}
v_mov_b32 v{t+4}, 0
v_mov_b32 v{t+5}, 0
v_mov_b32 v{t+6}, 0
v_mov_b32 v{t+7}, 0
''')
    for i in range(4):
        s(f'ds_add_f32 v{vTA+3}, v{acc+8+i} offset:{64*i}')
    s.wait('*lgkm')
    s('s_barrier')
    n_main = len(s)
    gv = fB
    assert fA0 == fB + 16
    ov = fA1
    for c in range(2):
        for i in range(9):
            s(f'ds_read_b32 v{gv+9*c+i}, v{vGA+i} offset:{TBP*c}')
    s(f'ds_write_b128 v{t+1}, {vr(t+4,4)}')
    for c in range(2):
        for o in (1, 0):
            d = ov + 8 * c + 4 * o
            for k in range(4):
                a = gv + 9 * c + 2 * k + (1 - o)
                s(f'v_cvt_pk_bf16_f32 v{d+k}, v{a}, v{a+1}')
            s(f'ds_write_b128 v{t}, {vr(d,4)} offset:{(2*c+o)*RP}')
    for b, n in al:
        V.release(b, n)
    return s


def w2t_poll_issue():
    s = Seq()
    s(f'''
v_min_u32 v{vPA}, 27, v{vL}
v_lshlrev_b32 v{vPA}, 7, v{vPA}''')
    poll_issue(s, vPF, vPA, f's{sFW}')
    return s


def w2t_loads():
    g = []
    for ks in range(14):
        for j in range(4):
            s = Seq()
            s(f'buffer_load_dwordx4 {ar(16*ks+4*j,4)}, v{vL16}, {srd(SWS)}, s{sW2l} offen offset:{1024*j} sc1')
            if j == 3:
                s(f's_add_u32 s{sW2l}, s{sW2l}, 4096')
            g.append(s)
    return g


def u_poll_issue():
    s = Seq()
    s(f'''
v_and_b32 v{vPA2}, 31, v{vL}
v_lshlrev_b32 v{vPA2}, 7, v{vPA2}
s_mov_b32 s{sT4}, {WS_FL + FU * 128}''')
    poll_issue(s, vPF2, vPA2, f's{sT4}')
    return s


def u_dma():
    s = Seq()
    poll_check(s, vPF2, vPA2, f's{sT4}')
    s(f'''
s_lshl_b32 s{sT0}, s{sCH}, 12
s_lshl_b32 s{sT1}, s{sBH}, 2
s_sub_u32 s{sT0}, s{sT0}, s{sT1}
s_add_u32 s{sT0}, s{sT0}, {WS_UT}
s_mul_i32 s{sT1}, s{sWV}, {UP}
s_add_u32 m0, s{sT1}, {L_U + 512}
''')
    for i in range(4):
        s(f'buffer_load_dwordx4 v{vL16}, {srd(SWS)}, s{sT0} offen offset:{1024*i} sc1 lds', tag='udma')
    return s


main = Seq()
vXs = V.alloc(4, 1)
vWs = V.alloc(4, 1)
vW2 = V.alloc(8, 4)
vW2o = V.alloc(8, 4)
t = vT
main(f'''
s_cmp_ge_u32 s{sJ}, 14
s_cselect_b32 s{sT0}, 1, 0
s_mul_i32 s{sT1}, s{sT0}, 14
s_sub_u32 s{sT1}, s{sJ}, s{sT1}
s_lshl1_add_u32 s{sT0}, s{sXCD}, s{sT0}
s_and_b32 s{sT2}, s{sWV}, 1
s_lshr_b32 s{sT3}, s{sWV}, 1
s_lshl1_add_u32 s{sTB1}, s{sT0}, s{sT2}
s_lshl1_add_u32 s{sCB1}, s{sT1}, s{sT3}
s_lshl4_add_u32 s{sXb}, s{sT0}, s{sWV}
s_lshl_b32 s{sXb}, s{sXb}, 13
s_mul_i32 s{sWb}, s{sWV}, {4*3584}
s_lshl_b32 s{sT1}, s{sT1}, 8
s_add_u32 s{sWb}, s{sWb}, s{sT1}
''')
main(f'''
s_mul_i32 s{sT0}, s{sXCD}, 28
s_add_u32 s{sT0}, s{sT0}, s{sJ}
s_lshl1_add_u32 s{sT0}, s{sT0}, s{sT3}
s_lshr_b32 s{sT1}, s{sT0}, 3
s_and_b32 s{sT0}, s{sT0}, 7
s_mul_i32 s{sT4}, s{sT0}, 56
s_add_u32 s{sT4}, s{sT4}, s{sT1}
s_lshl1_add_u32 s{sT4}, s{sT4}, s{sT2}
s_lshl_b32 s{sW2o}, s{sT4}, 11
s_add_u32 s{sW2o}, s{sW2o}, {WS_W2T}
s_lshl_b32 s{sT5}, s{sT4}, 7
s_add_u32 s{sT5}, s{sT5}, {WS_FL + FW * 128}
s_lshl_b32 s{sT1}, s{sT1}, 15
s_lshl_b32 s{sT0}, s{sT0}, 7
s_add_u32 s{sT0}, s{sT0}, s{sT1}
s_lshl2_add_u32 s{sT0}, s{sT2}, s{sT0}
s_add_u32 s{sT1}, s{sT0}, 8192
v_lshrrev_b32 v{t}, 1, v{vG}
v_and_b32 v{t+1}, 1, v{vG}
v_lshlrev_b32 v{t}, 14, v{t}
v_lshl_add_u32 v{t}, v{t+1}, 12, v{t}
v_lshl_add_u32 v{t}, v{vN}, 3, v{t}
''')
for jj in range(8):
    main(f'buffer_load_dword v{vW2+jj}, v{t}, {srd(SW2)}, s{sT0 + jj//4} offen offset:{1024*(jj%4)}')
main(f'''
v_lshl_add_u32 v{t}, s{sT2}, 2, v{vG}
v_and_b32 v{t+1}, 7, v{vL}
v_xor_b32 v{t}, v{t}, v{t+1}
v_lshrrev_b32 v{t+1}, 3, v{vL}
v_lshlrev_b32 v{t+1}, 10, v{t+1}
v_lshl_add_u32 v{vXs}, v{t}, 4, v{t+1}
v_lshlrev_b32 v{t}, 2, v{vG}
v_xor_b32 v{t}, v{t}, v{vN}
v_mul_u32_u24 v{t+1}, 3584, v{vG}
v_lshl_add_u32 v{vWs}, v{t}, 4, v{t+1}
''')
for i in range(1, 4):
    main(f'v_add_u32 v{vXs+i}, {32768*i}, v{vXs}')
    main(f'v_add_u32 v{vWs+i}, {16*3584*i}, v{vWs}')
main(f's_mov_b32 s{sKC}, s{sXCD}' if OPT['rot'] else f's_mov_b32 s{sKC}, 0')


def stage_loads(st):
    g = []
    slot = st & 3
    for i in range(4):
        for isw in (0, 1):
            s = Seq()
            if i == 0 and not isw:
                s(f'''
s_lshl_b32 s{sXk}, s{sKC}, 7
s_add_u32 s{sXk}, s{sXk}, s{sXb}
s_mul_i32 s{sWk}, s{sKC}, {64*3584}
s_add_u32 s{sWk}, s{sWk}, s{sWb}
s_add_u32 s{sKC}, s{sKC}, 1
s_and_b32 s{sKC}, s{sKC}, 7''')
            s(f's_add_u32 m0, s{sM}, {(L_W if isw else L_X) + slot*16384 + i*4096}')
            if isw:
                s(f'buffer_load_dwordx4 v{vWs+i}, {srd(SW1)}, s{sWk} offen lds', tag=f'st{st}')
            else:
                s(f'buffer_load_dwordx4 v{vXs+i}, {srd(SX)}, s{sXk} offen lds', tag=f'st{st}')
            g.append(s)
    return g


ld = [stage_loads(st) for st in range(8)]
early = ld[0] + ld[1][:4]
for g in early:
    main.add(g)
main.add(idle_setup())
vXr = V.alloc(4, 1)
vWr = V.alloc(2, 1)
main(f'''
v_and_b32 v{t}, 31, v{vL}
v_bfe_u32 v{t+1}, v{vL}, 1, 3
v_lshrrev_b32 v{t+2}, 5, v{vL}
v_xor_b32 v{t+1}, v{t+1}, v{t+2}
s_and_b32 s{sT0}, s{sWV}, 1
s_lshl_b32 s{sT0}, s{sT0}, 13
v_lshl_add_u32 v{t}, v{t}, 7, s{sT0}
''')
for ks in range(4):
    main(f'v_xor_b32 v{t+3}, {2*ks}, v{t+1}')
    main(f'v_lshl_add_u32 v{vXr+ks}, v{t+3}, 4, v{t}')
main(f'''
v_bfe_u32 v{t}, v{vL}, 2, 2
v_lshl_add_u32 v{t+1}, v{t+2}, 3, v{t}
v_lshlrev_b32 v{t+1}, 8, v{t+1}
v_and_b32 v{t+2}, 1, v{vG}
v_lshl_add_u32 v{t+1}, v{t+2}, 5, v{t+1}
v_and_b32 v{t+2}, 3, v{vL}
v_lshl_add_u32 v{t+1}, v{t+2}, 3, v{t+1}
v_add_u32 v{t+1}, {L_W}, v{t+1}
s_and_b32 s{sT0}, s{sWV}, 2
v_xor_b32 v{t}, s{sT0}, v{t}
v_lshl_add_u32 v{vWr}, v{t}, 6, v{t+1}
v_xor_b32 v{t}, 1, v{t}
v_lshl_add_u32 v{vWr+1}, v{t}, 6, v{t+1}
''')
stamp(main, 'setup')
for jb in range(2):
    for d in range(4):
        main(f'v_perm_b32 v{vW2o+4*jb+d}, v{vW2+2*d+1}, v{vW2+2*d}, s{sSEL0+jb}')
stamp(main, 'par')
for jb in range(2):
    main(f'buffer_store_dwordx4 {vr(vW2o+4*jb,4)}, v{vL16}, {srd(SWS)}, s{sW2o} offen offset:{1024*jb} sc1', tag='w2st')
nonce_issue(main, vNON)
kg = kgen()
main.add(sprinkle(kg, ld[1][4:] + ld[2] + ld[3], 8, len(kg) - 30))
V.release(vW2, 8)
V.release(vW2o, 8)
stamp(main, 'kgen')
nonce_check(main, vNON)
flag_store(main, vNON, f's{sT5}')

vACC = V.alloc(64, 4)
vFR = V.alloc(32, 4)
vTP = V.alloc(24, 4)


def g1_reads(st, ks):
    slot = st & 3
    b = vFR + 16 * (ks & 1)
    r = []
    for k in range(2):
        for hh in range(2):
            r.append(f'ds_read_b64_tr_b16 {vr(b+4*k+2*hh,2)}, v{vWr+k} offset:{slot*16384 + ks*4096 + hh*1024}')
        r.append(f'ds_read_b128 {vr(b+8+4*k,4)}, v{vXr+ks} offset:{slot*16384 + k*4096}')
    return r


def g1_mfma(st, ks):
    b = vFR + 16 * (ks & 1)
    r = []
    for ft, tt in ((0, 0), (1, 0), (0, 1), (1, 1)):
        a = vACC + 32 * ft + 16 * tt
        c = '0' if (st == 0 and ks == 0) else vr(a, 16)
        r.append(f'v_mfma_f32_32x32x16_bf16 {vr(a,16)}, {vr(b+4*ft,4)}, {vr(b+8+4*tt,4)}, {c}')
    return r


w2g = w2t_loads()
main.wait('st0', '*lgkm')
main('s_barrier')
for x in g1_reads(0, 0):
    main(x)
extra = {st: list(ld[st + 4]) for st in range(4)}
fa = Seq()
fa(f'''
v_mov_b32 v{vPA2}, s{sTB1}
v_mov_b32 v{t}, s{sCB1}
v_cmp_gt_u32 vcc, 32, v{vL}
s_mov_b32 s{sT4}, {WS_FL + FA * 128}
v_cndmask_b32 v{vPA2}, v{t}, v{vPA2}, vcc
v_lshlrev_b32 v{vPA2}, 7, v{vPA2}''')
poll_issue(fa, vPF2, vPA2, f's{sT4}')
extra[3] = extra[3] + [w2t_poll_issue(), fa]
NW2_G1 = 0
for st in range(8):
    pend = extra.get(st - 1, [])
    for ks in range(4):
        m = g1_mfma(st, ks)
        if ks < 3:
            r = g1_reads(st, ks + 1)
            share = pend[len(pend) * ks // 3: len(pend) * (ks + 1) // 3]
            for k in range(4):
                main(m[k])
                for x in r[2 * k: 2 * k + 2]:
                    main(x)
                for g in share[len(share) * k // 4: len(share) * (k + 1) // 4]:
                    main.add(g)
        else:
            main.wait('*lgkm')
            main(m[0])
            if st < 7:
                main.wait(f'st{st+1}')
                main('s_barrier')
                r = g1_reads(st + 1, 0)
                for k in range(1, 4):
                    for x in r[2 * k - 2: 2 * k]:
                        main(x)
                    main(m[k])
            else:
                for k in range(1, 4):
                    main(m[k])
    if st == 6:
        chk = Seq()
        poll_check(chk, vPF2, vPA2, f's{sT4}')
        chk(f'''
v_and_b32 v{t}, 31, v{vL}
v_lshlrev_b32 v{t}, 4, v{t}
v_cmp_gt_u32 vcc, 32, v{vL}
v_mov_b32 v{t+1}, 0x7ff00000
s_lshl_b32 s{sT0}, s{sCB1}, 10
s_add_u32 s{sT0}, s{sT0}, {WS_FP}
v_cndmask_b32 v{t+1}, v{t+1}, v{t}, vcc
s_lshl_b32 s{sT1}, s{sTB1}, 10
s_add_u32 s{sT2}, s{sT1}, {WS_TS}
s_add_u32 s{sT1}, s{sT1}, {WS_TP}''')
        for k in range(2):
            chk(f'buffer_load_dwordx4 {vr(vTP+4*k,4)}, v{t}, {srd(SWS)}, s{sT0} offen offset:{512*k} sc1')
            chk(f'buffer_load_dwordx4 {vr(vTP+8+4*k,4)}, v{t+1}, {srd(SWS)}, s{sT1} offen offset:{512*k} sc1')
        for k in range(2):
            chk(f'buffer_load_dwordx4 {vr(vTP+16+4*k,4)}, v{t}, {srd(SWS)}, s{sT2} offen offset:{512*k} sc1')
        chk.add(u_poll_issue())
        chk2 = Seq()
        poll_check(chk2, vPF, vPA, f's{sFW}')
        NW2_G1 = 8
        extra[6] = [chk, chk2] + w2g[:NW2_G1]
    stamp(main, f'g1s{st}')
for ft, tt in ((0, 0), (1, 0), (0, 1), (1, 1)):
    a = vACC + 32 * ft + 16 * tt
    main(f'v_mfma_f32_32x32x16_bf16 {vr(a,16)}, {vr(vTP+4*ft,4)}, {vr(vTP+8+4*tt,4)}, {vr(a,16)}')
vHa = V.alloc()
main(f'''
v_and_b32 v{t}, 1, v{vG}
v_mul_u32_u24 v{t}, {56*1024}, v{t}
v_lshrrev_b32 v{t+1}, 5, v{vL}
v_lshl_add_u32 v{t}, v{t+1}, 8, v{t}
v_lshl_add_u32 v{vHa}, v{vN}, 4, v{t}
s_mul_i32 s{sHst}, s{sTB1}, {4*56}
s_lshl1_add_u32 s{sHst}, s{sCB1}, s{sHst}
s_lshl_b32 s{sHst}, s{sHst}, 10
s_add_u32 s{sHst}, s{sHst}, {WS_H}
s_add_u32 s{sT5}, s{sHst}, {2*56*1024}
s_mul_i32 s{sFH}, s{sTB1}, 28
s_add_u32 s{sFH}, s{sFH}, s{sCB1}
s_lshl_b32 s{sFH}, s{sFH}, 7
s_add_u32 s{sFH}, s{sFH}, {WS_FL + FH * 128}
''')
main.add(u_dma())
gel = Seq()
q = vFR
for ti, (ft, tt) in enumerate(((0, 0), (1, 0), (0, 1), (1, 1))):
    P = vTP + 16 + 4 * tt
    for hh in range(2):
        a = vACC + 32 * ft + 16 * tt + 8 * hh
        o = vFR + 8 + 4 * ((2 * ti + hh) % 4)
        for k in range(4):
            gel(f'v_pk_mul_f32 {vr(q+2*k,2)}, {vr(a+2*k,2)}, {vr(a+2*k,2)}')
        for k in range(4):
            gel(f'v_pk_fma_f32 {vr(q+2*k,2)}, {vr(q+2*k,2)}, {vr(P,2)}, {vr(P,2)} op_sel:[0,1,0] op_sel_hi:[1,1,0]')
        for k in range(4):
            gel(f'v_pk_mul_f32 {vr(q+2*k,2)}, {vr(q+2*k,2)}, {vr(a+2*k,2)}')
        for k in range(8):
            gel(f'v_exp_f32 v{q+k}, v{q+k}')
        for k in range(4):
            gel(f'v_pk_fma_f32 {vr(q+2*k,2)}, {vr(q+2*k,2)}, {vr(P+2,2)}, {vr(P+2,2)} op_sel_hi:[1,0,0]')
        for k in range(8):
            gel(f'v_rcp_f32 v{q+k}, v{q+k}')
        for k in range(4):
            gel(f'v_pk_mul_f32 {vr(q+2*k,2)}, {vr(q+2*k,2)}, {vr(a+2*k,2)}')
        for k in range(4):
            gel(f'v_cvt_pk_bf16_f32 v{o+k}, v{q+2*k}, v{q+2*k+1}')
        gel(f'buffer_store_dwordx4 {vr(o,4)}, v{vHa}, {srd(SWS)}, s{sT5 if tt else sHst} offen offset:{1024*ft + 512*hh} sc1', tag='hst')
NW2_GE = 22
main.add(sprinkle(gel, w2g[NW2_G1:NW2_G1 + NW2_GE], 0, len(gel) - 20))
NW2_PRE = NW2_G1 + NW2_GE
stamp(main, 'gelu')
for b, n in ((vXs, 4), (vWs, 4), (vXr, 4), (vWr, 2), (vACC, 64), (vFR, 32), (vTP, 24), (vHa, 1)):
    V.release(b, n)

sp = Seq()
sp('Lspare:')
vS = V.alloc(4, 1)
vB1 = V.alloc()
sp(f'''
s_sub_u32 s{sT0}, s{sJ}, 28
s_lshl2_add_u32 s{sTB1}, s{sXCD}, s{sT0}
s_min_u32 s{sCB1}, s{sTB1}, 27
s_lshl2_add_u32 s{sXb}, s{sTB1}, s{sWV}
s_lshl_b32 s{sXb}, s{sXb}, 14
s_lshl_b32 s{sT0}, s{sWV}, 2
v_xor_b32 v{t}, s{sT0}, v{vL}
v_lshlrev_b32 v{vS}, 4, v{t}
v_xor_b32 v{vS+1}, 32, v{vS}
s_lshl_b32 s{sT1}, s{sWV}, 14
''')
for i in range(4):
    sp(f's_add_u32 m0, s{sT1}, {L_X + 4096*i}')
    sp(f's_add_u32 s{sT0}, s{sXb}, {4096*i}')
    for r in range(4):
        sp(f'buffer_load_dwordx4 v{vS + i//2}, {srd(SX)}, s{sT0} offen offset:{1024*r} lds', tag='spx')
sp(f'''
s_mov_b32 m0, {L_R}
s_lshl_b32 s{sT2}, s{sCB1}, 7
global_load_lds_dwordx4 v{vL16}, {ptr(P_GW)}
''', tag='spx')
sp(f'''
s_lshl_b32 s{sT0}, s{sWV}, 5
s_add_u32 s{sT0}, s{sT0}, s{sT2}
v_lshl_add_u32 v{t}, v{vN}, 1, s{sT0}
global_load_ushort v{vB1}, v{t}, {ptr(P_B1)}
v_lshlrev_b32 v{t}, 1, v{vG}
v_and_b32 v{t+1}, 7, v{vL}
v_xor_b32 v{t}, v{t}, v{t+1}
v_lshrrev_b32 v{t+1}, 3, v{vL}
v_mul_u32_u24 v{t+1}, 3584, v{t+1}
v_lshl_add_u32 v{vS+2}, v{t}, 4, v{t+1}
s_mul_i32 s{sWb}, s{sWV}, {128*3584}
s_add_u32 s{sWb}, s{sWb}, s{sT2}
''')
for i in range(16):
    sp(f's_add_u32 m0, s{sT1}, {L_W + 1024*i}')
    sp(f'buffer_load_dwordx4 v{vS+2}, {srd(SW1)}, s{sWb} offen lds', tag='spw')
    sp(f's_add_u32 s{sWb}, s{sWb}, {8*3584}')
nonce_issue(sp, vNON)
sp.add(idle_setup())
sp(f's_mov_b32 s{sFH}, {WS_FL + FDUMMY * 128}')
vF = V.alloc(128, 4)
vD = V.alloc(16, 4)
vONE = V.alloc(4, 4)
vTOK = V.alloc()
sp(f'''
v_and_b32 v{t}, 7, v{vN}
v_lshrrev_b32 v{t+1}, 3, v{vN}
v_lshl_add_u32 v{t+1}, v{t}, 3, v{t+1}
s_lshl_b32 s{sT0}, s{sWV}, 1
v_add_u32 v{vTOK}, s{sT0}, v{t+1}
v_lshlrev_b32 v{t}, 1, v{t}
v_xor_b32 v{t}, v{t}, v{vG}
v_lshlrev_b32 v{t+1}, 10, v{vTOK}
v_lshlrev_b32 v{t+6}, 4, v{vG}
v_add_u32 v{t+6}, {L_R}, v{t+6}
''')
for k in range(4):
    sp(f'v_xor_b32 v{t+2+k}, {4*k}, v{t}')
    sp(f'v_lshl_add_u32 v{t+2+k}, v{t+2+k}, 4, v{t+1}')
    sp(f'v_mov_b32 v{vONE+k}, 0x3f803f80')
sp.wait('spx')
sp('s_barrier')
stamp(sp, 'par')
for s_ in range(16):
    sp(f'ds_read_b128 {vr(vF+8*s_,4)}, v{t+2+s_%4} offset:{256*(s_//4)}')
    sp(f'ds_read_b128 {vr(vF+8*s_+4,4)}, v{t+6} offset:{64*s_}')
for s_ in range(16):
    x, gw = vr(vF + 8 * s_, 4), vr(vF + 8 * s_ + 4, 4)
    for k, a in enumerate((x, vr(vONE, 4), gw)):
        sp(f'v_mfma_f32_16x16x32_bf16 {vr(vD+4*k,4)}, {a}, {x}, {vr(vD+4*k,4) if s_ else 0}')
C0 = -2.0 * math.sqrt(2.0 / math.pi) * math.log2(math.e)
C1 = C0 * 0.044715
o = vF
sp(f'''
v_and_b32 v{t}, 1, v{vL}
v_cmp_eq_u32 vcc, 1, v{t}
v_and_b32 v{t}, 2, v{vL}
v_cmp_eq_u32 s[{sT0}:{sT1}], 2, v{t}
v_cndmask_b32 v{vD}, v{vD}, v{vD+1}, vcc
v_cndmask_b32 v{vD+2}, v{vD+2}, v{vD+3}, vcc
v_cndmask_b32 v{vD}, v{vD}, v{vD+2}, s[{sT0}:{sT1}]
v_mul_f32 v{vD+4}, {f32(1/512)}, v{vD+4}
v_mul_f32 v{vD}, {f32(1/512)}, v{vD}
v_mul_f32 v{vD+8}, {f32(-math.log2(math.e))}, v{vD+8}
v_fma_f32 v{vD}, -v{vD+4}, v{vD+4}, v{vD}
v_exp_f32 v{vD+8}, v{vD+8}
v_max_f32 v{vD}, 0, v{vD}
v_add_f32 v{vD}, {f32(1e-5)}, v{vD}
v_add_f32 v{vD+8}, 1.0, v{vD+8}
v_sqrt_f32 v{o+6}, v{vD}
v_rsq_f32 v{vD+1}, v{vD}
v_rcp_f32 v{o+7}, v{vD+8}
v_mul_f32 v{o+4}, {f32(C0)}, v{vD+1}
v_mul_f32 v{vD+2}, v{vD+1}, v{vD+1}
v_mul_f32 v{o+5}, {f32(C1)}, v{vD+1}
v_mul_f32 v{o+5}, v{o+5}, v{vD+2}
v_cvt_pk_bf16_f32 v{o}, -v{vD+4}, -v{vD+4}
v_cvt_pk_bf16_f32 v{vD+5}, v{o+6}, v{o+6}
v_and_b32 v{vD+6}, 0xffff0000, v{o}
v_and_b32 v{vD+5}, 0xffff0000, v{vD+5}
v_add_f32 v{vD+6}, v{vD+6}, v{vD+4}
v_sub_f32 v{vD+7}, v{o+6}, v{vD+5}
v_cvt_pk_bf16_f32 v{o+1}, -v{vD+6}, v{vD+5}
v_cvt_pk_bf16_f32 v{o+2}, v{vD+7}, v{vZ}
v_mov_b32 v{o+3}, 0
v_lshrrev_b32 v{t}, 2, v{vN}
v_cmp_eq_u32 vcc, v{t}, v{vG}
v_lshlrev_b32 v{t}, 4, v{vTOK}
v_lshlrev_b32 v{t+1}, 2, v{vTOK}
v_mov_b32 v{t+2}, 0x7ff00000
v_cndmask_b32 v{t}, v{t+2}, v{t}, vcc
v_cndmask_b32 v{t+1}, v{t+2}, v{t+1}, vcc
s_lshl_b32 s{sT0}, s{sTB1}, 10
s_add_u32 s{sT1}, s{sT0}, {WS_TS}
s_add_u32 s{sT0}, s{sT0}, {WS_TP}
s_lshl_b32 s{sT2}, s{sTB1}, 8
s_add_u32 s{sT2}, s{sT2}, {WS_G}
buffer_store_dwordx4 {vr(o,4)}, v{t}, {srd(SWS)}, s{sT0} offen sc1
buffer_store_dwordx4 {vr(o+4,4)}, v{t}, {srd(SWS)}, s{sT1} offen sc1
buffer_store_dword v{o+7}, v{t+1}, {srd(SWS)}, s{sT2} offen sc1
''')
sp(f'''
v_lshrrev_b32 v{t}, 2, v{vL}
v_bfe_u32 v{t+1}, v{vL}, 3, 2
v_xor_b32 v{t+1}, s{sWV}, v{t+1}
v_lshlrev_b32 v{t}, 7, v{t}
v_lshl_add_u32 v{t}, v{t+1}, 5, v{t}
v_and_b32 v{t+1}, 3, v{vL}
v_lshl_add_u32 v{t}, v{t+1}, 3, v{t}
v_add_u32 v{t}, {L_W}, v{t}
''')
sp.wait('spw')
sp('s_barrier')
for s_ in range(32):
    sp(f'ds_read_b64_tr_b16 {vr(vF+16+2*s_,2)}, v{t} offset:{2048*s_}')
for s_ in range(16):
    sp(f'v_mfma_f32_16x16x32_bf16 {vr(vD+12,4)}, {vr(vONE,4)}, {vr(vF+16+4*s_,4)}, {vr(vD+12,4) if s_ else 0}')
o = vF + 8
sp(f'''
v_cmp_gt_u32 vcc, 16, v{vL}
v_mov_b32 v{t+2}, 0x7ff00000
s_lshl2_add_u32 s{sT0}, s{sCB1}, s{sWV}
s_lshl_b32 s{sT0}, s{sT0}, 8
s_add_u32 s{sT0}, s{sT0}, {WS_FP}
v_cndmask_b32 v{t}, v{t+2}, v{vL16}, vcc
v_mov_b32 v{o+2}, v{vB1}
v_mov_b32 v{o+3}, 0
v_cvt_pk_bf16_f32 v{o+1}, v{vD+12}, v{vZ}
v_lshlrev_b32 v{t+3}, 16, v{o+1}
v_lshl_or_b32 v{o+1}, v{vB1}, 16, v{o+1}
v_sub_f32 v{t+4}, v{vD+12}, v{t+3}
v_cvt_pk_bf16_f32 v{o}, v{t+3}, v{t+4}
''')
sp(f'buffer_store_dwordx4 {vr(o,4)}, v{t}, {srd(SWS)}, s{sT0} offen sc1', tag='fpst')
nonce_check(sp, vNON)
sp(f'''
v_and_b32 v{t}, 7, v{vL}
v_lshrrev_b32 v{t+1}, 3, v{vL}
v_lshlrev_b32 v{t+2}, 1, v{t}
v_xor_b32 v{t+2}, v{t+2}, v{t+1}
v_lshlrev_b32 v{t+3}, 13, v{t}
s_lshl_b32 s{sT0}, s{sWV}, 8
v_lshl_add_u32 v{t+2}, v{t+2}, 4, v{t+3}
v_add_u32 v{t+2}, s{sT0}, v{t+2}
v_xor_b32 v{t+3}, 128, v{t+2}
v_lshlrev_b32 v{t+1}, 15, v{t+1}
v_lshl_add_u32 v{t+1}, v{t}, 4, v{t+1}
s_lshl_b32 s{sT0}, s{sWV}, 19
s_lshl_b32 s{sT1}, s{sTB1}, 7
s_add_u32 s{sT0}, s{sT0}, s{sT1}
s_add_u32 s{sT0}, s{sT0}, {WS_UT}
s_add_u32 s{sT5}, s{sT1}, {WS_FL + FA * 128}
''')
fin, fout = vF + 16, vF + 16 + 64
for h in range(2):
    for tk in range(8):
        sp(f'ds_read_b128 {vr(fin+32*h+4*tk,4)}, v{t+2+h} offset:{1024*tk}')
sp.wait('fpst')
sp('s_barrier')
flag_store(sp, vNON, f's{sT5}')
stamp(sp, 'kgen')
for h in range(2):
    for c in range(8):
        d = fout + 4 * ((8 * h + c) % 8)
        for k in range(4):
            sp(f'v_perm_b32 v{d+k}, v{fin+32*h+4*(2*k+1)+c//2}, v{fin+32*h+4*(2*k)+c//2}, s{sSEL0 + c%2}')
        sp(f's_add_u32 s{sT1}, s{sT0}, {(64*h + c)*4096}')
        sp(f'buffer_store_dwordx4 {vr(d,4)}, v{t+1}, {srd(SWS)}, s{sT1} offen sc1', tag='utst')
for b, n in ((vS, 4), (vB1, 1), (vF, 128), (vD, 16), (vONE, 4), (vTOK, 1)):
    V.release(b, n)
sp(f's_add_u32 s{sT5}, s{sT5}, {(FU - FA) * 128}')
sp.wait('utst')
sp('s_barrier')
flag_store(sp, vNON, f's{sT5}')
stamp(sp, 'g1s0')
sp.add(w2t_poll_issue())
sp.add(kgen())
poll_check(sp, vPF, vPA, f's{sFW}')
sp.add(u_poll_issue())
for g in w2t_loads()[:NW2_PRE]:
    sp.add(g)
sp.add(u_dma())
stamp(sp, 'gelu')
sp('s_branch Ljoin')
for b, n in ((vGA, 9), (vTA, 4), (vRW, 4), (vRR, 1), (vPAR, 6)):
    V.release(b, n)

com = Seq()
com('Ljoin:')
vFa, vGa = V.alloc(), V.alloc()
vCF = V.alloc(128, 4)
aC = 224
com(f'''
s_mul_i32 s{sT0}, s{sWV}, {UP}
v_lshl_add_u32 v{t}, v{vL}, 3, s{sT0}
v_mov_b32 v{t+2}, 0
v_mov_b32 v{t+3}, 0
ds_write_b64 v{t}, {vr(t+2,2)} offset:{L_U}
s_lshl2_add_u32 s{sT0}, s{sBH}, s{sT0}
s_add_u32 s{sT0}, s{sT0}, {L_U + 508}
v_mov_b32 v{t+1}, s{sT0}
v_and_b32 v{t+4}, 1, v{vL}
v_lshrrev_b32 v{t+5}, 1, v{vN}
s_and_b32 s{sT0}, s{sWV}, 2
s_mul_i32 s{sT1}, s{sT0}, {RP}
s_lshl_b32 s{sT2}, s{sBH}, 8
s_sub_u32 s{sT1}, s{sT1}, s{sT2}
s_add_u32 s{sT1}, s{sT1}, {L_R + 56 + 256}
v_mul_u32_u24 v{vFa}, {RP}, v{t+4}
v_lshl_add_u32 v{vFa}, v{vG}, 4, v{vFa}
v_lshlrev_b32 v{t+6}, 3, v{t+5}
v_sub_u32 v{vFa}, v{vFa}, v{t+6}
v_add_u32 v{vFa}, s{sT1}, v{vFa}
s_mul_i32 s{sT1}, s{sT0}, {UP}
s_sub_u32 s{sT1}, s{sT1}, s{sT2}
s_add_u32 s{sT1}, s{sT1}, {L_U + 512 - 192}
v_mul_u32_u24 v{vGa}, {UP}, v{t+4}
v_lshl_add_u32 v{vGa}, v{vG}, 4, v{vGa}
v_lshl_add_u32 v{vGa}, v{t+5}, 6, v{vGa}
v_add_u32 v{vGa}, s{sT1}, v{vGa}
''')
com.wait('udma')
com(f'ds_write_b32 v{t+1}, v{vZ}')
com.wait('*lgkm')
com('s_barrier')
stamp(com, 'cv0')


def cv_reads(bb):
    b = vCF + 64 * (bb & 1)
    r = []
    for a in range(8):
        r.append(f'ds_read_b128 {vr(b+32+4*a,4)}, v{vGa} offset:{512*a + 64*(3-bb)}')
        for hh in range(2):
            r.append(f'ds_read_b64 {vr(b+4*a+2*hh,2)}, v{vFa} offset:{64*(59-8*a-bb) + 8*hh}')
    return r


def cv_mfma(bb):
    b = vCF + 64 * (bb & 1)
    r, first = [], set()
    order = sorted(((a, d) for a in range(8) for d in range(8 - a)), key=lambda x: (max(x), x[0] + x[1]))
    for a, d in order:
        c = aC + 4 * (a + d)
        cc = '0' if (bb == 0 and a + d not in first) else ar(c, 4)
        first.add(a + d)
        r.append(f'v_mfma_f32_16x16x32_bf16 {ar(c,4)}, {vr(b+4*a,4)}, {vr(b+32+4*d,4)}, {cc}')
    return r


rest = w2g[NW2_PRE:]
hflag = Seq()
hflag.wait('hst?')
flag_store(hflag, vNON, f's{sFH}')
cvs = Seq()
for x in cv_reads(0):
    cvs(x)
for bb in range(4):
    m = cv_mfma(bb)
    r = cv_reads(bb + 1) if bb < 3 else []
    for k in range(36):
        cvs(m[k])
        if k < len(r):
            cvs(r[k])
n0 = 24 + 30
com.add(sprinkle(cvs, rest[:6] + [hflag] + rest[6:], 26, len(cvs) - 20))
stamp(com, 'cv1')
com(f'''
v_min_u32 v{vPA}, 6, v{vL}
v_lshlrev_b32 v{vPA}, 7, v{vPA}
s_mul_i32 s{sT0}, s{sTB2}, 28
s_mul_i32 s{sT1}, s{sWV}, 7
s_add_u32 s{sT0}, s{sT0}, s{sT1}
s_lshl_b32 s{sT4}, s{sT0}, 7
s_add_u32 s{sT4}, s{sT4}, {WS_FL + FH * 128}''')
poll_issue(com, vPF, vPA, f's{sT4}')
com(f'''
s_mul_i32 s{sT0}, s{sWV}, {8*CBP}
s_add_u32 s{sT0}, s{sT0}, {L_CB}
v_lshl_add_u32 v{t}, v{vG}, 4, v{vL16}
v_add_u32 v{t}, s{sT0}, v{t}
v_lshrrev_b32 v{t+1}, 5, v{vL}
v_mul_u32_u24 v{t+1}, {CBP}, v{t+1}
v_and_b32 v{t+2}, 3, v{vL}
v_mul_u32_u24 v{t+2}, 272, v{t+2}
v_bfe_u32 v{t+3}, v{vL}, 2, 3
v_lshl_add_u32 v{t+1}, v{t+3}, 5, v{t+1}
s_and_b32 s{sT0}, s{sWV}, 2
s_lshl1_add_u32 s{sT0}, s{sT0}, s{sBH}
s_mul_i32 s{sT0}, s{sT0}, {4*CBP}
s_add_u32 s{sT0}, s{sT0}, {L_CB}
v_add3_u32 v{t+1}, v{t+1}, v{t+2}, s{sT0}
''')
for c in range(8):
    com(f'ds_write_b128 v{t}, {ar(aC+4*c,4)} offset:{CBP*c}')
com(f'''
s_lshl1_add_u32 s{sT0}, s{sCH}, s{sBH}
s_lshl_b32 s{sT5}, s{sT0}, 7
s_add_u32 s{sT5}, s{sT5}, {WS_FL + FC * 128}
s_lshl_b32 s{sT0}, s{sT0}, 11
s_add_u32 s{sT0}, s{sT0}, {WS_AT}
''')
com.wait('*lgkm')
com('s_barrier')
q = vCF
for si in range(2):
    for e in range(2):
        for p in range(2):
            com(f'ds_read_b128 {vr(q+16*si+8*e+4*p,4)}, v{t+1} offset:{2*CBP*si + 16*e + 8*CBP*p}')
for si in range(2):
    b = q + 16 * si
    for e in range(2):
        for k in range(2):
            com(f'v_pk_add_f32 {vr(b+8*e+2*k,2)}, {vr(b+8*e+2*k,2)}, {vr(b+8*e+4+2*k,2)}')
    o = q + 32 + 4 * si
    for k in range(2):
        com(f'v_cvt_pk_bf16_f32 v{o+2*k}, v{b+8+2*k}, v{b+8+2*k+1}')
        com(f'v_cvt_pk_bf16_f32 v{o+2*k+1}, v{b+2*k}, v{b+2*k+1}')
    com(f'buffer_store_dwordx4 {vr(o,4)}, v{vL16}, {srd(SWS)}, s{sT0} offen offset:{1024*si} sc1', tag='atst')
stamp(com, 'cv2')
V.release(vCF, 128)
V.release(vFa)
V.release(vGa)

vH = V.alloc(112, 4)
vA2 = V.alloc(32, 4)
vP = V.alloc(48, 4)
vE = V.alloc(24, 4)
vPW, vPR, vAr, vOa = V.alloc(), V.alloc(), V.alloc(), V.alloc()
poll_check(com, vPF, vPA, f's{sT4}')
stamp(com, 'hok')


def h_loads(sg):
    g = []
    for ks in range(14):
        s = Seq()
        if ks == 0:
            s(f'''
s_add_u32 s{sT0}, s{sWV}, {sg + 1}
s_and_b32 s{sT0}, s{sT0}, 3
s_lshl2_add_u32 s{sT0}, s{sTB2}, s{sT0}
s_mul_i32 s{sT0}, s{sT0}, 56
s_mul_i32 s{sT1}, s{sWV}, 14
s_add_u32 s{sT0}, s{sT0}, s{sT1}
s_lshl_b32 s{sHl}, s{sT0}, 10
s_add_u32 s{sHl}, s{sHl}, {WS_H}''')
        s(f'buffer_load_dwordx4 {vr(vH+56*(sg&1)+4*ks,4)}, v{vL16}, {srd(SWS)}, s{sHl} offen offset:{1024*(ks%4)} sc1')
        if ks % 4 == 3:
            s(f's_add_u32 s{sHl}, s{sHl}, 4096')
        g.append(s)
    return g


for g in h_loads(0):
    com.add(g)
com.wait('atst')
flag_store(com, vNON, f's{sT5}')
hl1 = h_loads(1)
com(f'''
s_mul_i32 s{sT0}, s{sWV}, {3*4096}
s_add_u32 s{sT0}, s{sT0}, {L_PB}
v_add_u32 v{vPR}, s{sT0}, v{vL16}
v_lshrrev_b32 v{t}, 1, v{vN}
v_lshrrev_b32 v{t+1}, 1, v{vG}
s_lshl_b32 s{sT0}, s{sWV}, 1
v_or_b32 v{t+1}, s{sT0}, v{t+1}
v_xor_b32 v{t}, v{t}, v{t+1}
v_lshlrev_b32 v{t}, 4, v{t}
v_lshl_add_u32 v{t}, v{vN}, 7, v{t}
v_and_b32 v{t+1}, 1, v{vG}
v_lshl_add_u32 v{t}, v{t+1}, 3, v{t}
v_add_u32 v{vAr}, {L_AT}, v{t}
v_lshlrev_b32 v{t}, 12, v{vG}
v_lshl_add_u32 v{vOa}, v{vN}, 3, v{t}
''')
apoll = Seq()
apoll(f'''
v_lshlrev_b32 v{vPA}, 10, v{vN}
s_lshl_b32 s{sT2}, s{sNB}, 6
s_add_u32 s{sT2}, s{sT2}, s{sWV}
s_lshr_b32 s{sT3}, s{sTB2}, 4
s_lshl1_add_u32 s{sT4}, s{sT2}, s{sT3}
s_lshl_b32 s{sT4}, s{sT4}, 7
s_add_u32 s{sT4}, s{sT4}, {WS_FL + FC * 128}''')
poll_issue(apoll, vPF, vPA, f's{sT4}')
adma = Seq()
poll_check(adma, vPF, vPA, f's{sT4}')
adma(f'''
v_lshrrev_b32 v{t}, 3, v{vL}
v_and_b32 v{t+1}, 7, v{vL}
v_xor_b32 v{t+1}, v{t+1}, v{vG}
v_lshlrev_b32 v{t}, 14, v{t}
v_lshl_add_u32 v{t}, v{t+1}, 4, v{t}
v_xor_b32 v{t+1}, 64, v{t}
s_lshl_b32 s{sT2}, s{sNB}, 6
s_add_u32 s{sT2}, s{sT2}, s{sWV}
s_lshl_b32 s{sT2}, s{sT2}, 12
s_lshl_b32 s{sT3}, s{sTB2}, 7
s_add_u32 s{sT2}, s{sT2}, s{sT3}
s_add_u32 s{sT2}, s{sT2}, {WS_AT}
s_add_u32 s{sT3}, s{sT2}, {8*16384}
s_lshl_b32 s{sT5}, s{sWV}, 11
s_add_u32 m0, s{sT5}, {L_AT}''')
adma(f'buffer_load_dwordx4 v{t}, {srd(SWS)}, s{sT2} offen sc1 lds', tag='adma')
adma(f's_add_u32 m0, s{sT5}, {L_AT + 1024}')
adma(f'buffer_load_dwordx4 v{t+1}, {srd(SWS)}, s{sT3} offen sc1 lds', tag='adma')
adma(f'''
v_lshlrev_b32 v{t+2}, 4, v{vG}
s_lshl2_add_u32 s{sT2}, s{sTB2}, s{sWV}
s_lshl_b32 s{sT2}, s{sT2}, 6
s_add_u32 s{sT2}, s{sT2}, {WS_G}
buffer_load_dwordx4 {vr(vE,4)}, v{t+2}, {srd(SWS)}, s{sT2} offen sc1
s_lshl_b32 s{sT3}, s{sNB}, 7
v_lshl_add_u32 v{t+3}, v{vN}, 3, s{sT3}
global_load_dwordx2 {vr(vE+4,2)}, v{t+3}, {ptr(P_B2)}''')


def part_write(sg):
    s = Seq()
    s(f'''
s_add_u32 s{sT2}, s{sWV}, {sg + 1}
s_and_b32 s{sT2}, s{sT2}, 3
s_mul_i32 s{sT2}, s{sT2}, {3*4096}
s_add_u32 s{sT2}, s{sT2}, {L_PB + 4096*sg}
v_add_u32 v{vPW}, s{sT2}, v{vL16}''')
    g = [s]
    for j in range(4):
        s = Seq()
        s(f'ds_write_b128 v{vPW}, {vr(vA2+16*(sg&1)+4*j,4)} offset:{1024*j}')
        g.append(s)
    return g


fin = []
s = Seq()
s.wait('adma', '*lgkm')
s('s_barrier')
fin.append(s)
for k in range(12):
    fin.append(Seq()(f'ds_read_b128 {vr(vP+4*k,4)}, v{vPR} offset:{1024*k}'))
for j in range(4):
    fin.append(Seq()(f'ds_read_b64 {vr(vE+8+2*j,2)}, v{vAr} offset:{2048*j}'))
for j in range(4):
    src = vE + 4 + j // 2
    fin.append(Seq()(f'v_and_b32 v{vE+16+j}, 0xffff0000, v{src}' if j % 2 else f'v_lshlrev_b32 v{vE+16+j}, 16, v{src}'))
for i in range(4):
    fin.append(Seq()(f'v_sub_f32 v{vE+20+i}, 1.0, v{vE+i}'))
for j in range(4):
    for i in range(4):
        p = vP + 4 * j + i
        src = vE + 8 + 2 * j + i // 2
        s = Seq()
        s(f'v_add_f32 v{p}, v{p}, v{p+16}')
        s(f'v_add_f32 v{p+32}, v{p+32}, v{vE+16+j}')
        s(f'v_and_b32 v{p+16}, 0xffff0000, v{src}' if i % 2 else f'v_lshlrev_b32 v{p+16}, 16, v{src}')
        fin.append(s)
        s = Seq()
        s(f'v_add_f32 v{p}, v{p}, v{p+32}')
        s(f'v_mul_f32 v{p+16}, v{vE+i}, v{p+16}')
        s(f'v_fma_f32 v{p}, v{p}, v{vE+20+i}, v{p+16}')
        fin.append(s)

for g in hl1:
    com.add(g)
for sg in range(4):
    seg = Seq()
    nxt = h_loads(sg + 2) if sg < 2 else []
    for ks in range(14):
        for j in range(4):
            a = vA2 + 16 * (sg & 1) + 4 * j
            seg(f'v_mfma_f32_16x16x32_bf16 {vr(a,4)}, {vr(vH+56*(sg&1)+4*ks,4)}, {ar(16*ks+4*j,4)}, {vr(a,4) if ks else 0}')
        if nxt:
            seg.add(nxt[ks])
    ex = part_write(sg - 1) if sg else []
    if sg == 1:
        seg.add(apoll)
    if sg == 2:
        ex = ex + [adma]
    if sg == 3:
        com.add(sprinkle(seg, ex + fin, 6, len(seg) - 2))
    else:
        com.add(sprinkle(seg, ex, 6, 30))
    stamp(com, f'g2s{sg}')
com(f'''
s_lshl2_add_u32 s{sT0}, s{sTB2}, s{sWV}
s_lshl_b32 s{sT0}, s{sT0}, 14
s_lshl_b32 s{sT1}, s{sNB}, 7
s_add_u32 s{sT0}, s{sT0}, s{sT1}
''')
for i in range(4):
    for j in range(4):
        com(f'v_fma_f32 v{vP+4*j+i}, v{vA2+16+4*j+i}, v{vE+20+i}, v{vP+4*j+i}')
    com(f'v_cvt_pk_bf16_f32 v{vP+32+2*i}, v{vP+i}, v{vP+4+i}')
    com(f'v_cvt_pk_bf16_f32 v{vP+33+2*i}, v{vP+8+i}, v{vP+12+i}')
    com(f'buffer_store_dwordx2 {vr(vP+32+2*i,2)}, v{vOa}, {srd(SOUT)}, s{sT0} offen offset:{1024*i}')
if OPT['stamps']:
    com.wait('*vm')
    stamp(com, 'end')
    com(f'''
s_memrealtime s[{sSTAMP}:{sSTAMP+1}]
v_writelane_b32 v{vST}, s{sSTAMP}, 63
s_lshl2_add_u32 s{sT0}, s2, s{sWV}
s_lshl_b32 s{sT0}, s{sT0}, 8
s_add_u32 s{sT0}, s{sT0}, {WS_ST}
v_lshlrev_b32 v{t}, 2, v{vL}
buffer_store_dword v{vST}, v{t}, {srd(SWS)}, s{sT0} offen''')
com('Lend:')
com('s_endpgm')

paths = (pro.l + main.l + com.l, pro.l + sp.l + com.l)
for p in paths:
    resolve_waits(p)
for p in paths:
    resolve_waits(p)
for p in paths:
    fix_hazards(p)

ref = open('gated_mix__ssm_conv_s4d__mixer_channel_mlp__prompt.s.ref').read().split('\n')
head = [l for l in ref if l.startswith(';') and '@launch' not in l]
txt = '\n'.join(head) + f'\n; @launch grid=(256,1,1) block=(256,1,1) lds={LDS_SIZE}\n'
txt += f'''.amdgcn_target "amdgcn-amd-amdhsa--gfx950"
.text
.globl {NAME}
.p2align 8
.type {NAME},@function
{NAME}:
'''
txt += render(pro.l) + render(main.l) + render(com.l) + render(sp.l) + ''.join(outline)
txt += f'''Lcode_end:
    s_endpgm
.section .rodata,"a"
.p2align 6
.amdhsa_kernel {NAME}
  .amdhsa_next_free_vgpr 512
  .amdhsa_next_free_sgpr 102
  .amdhsa_accum_offset 256
  .amdhsa_group_segment_fixed_size 0
  .amdhsa_kernarg_size 128
  .amdhsa_user_sgpr_count 2
  .amdhsa_user_sgpr_kernarg_segment_ptr 1
  .amdhsa_system_sgpr_workgroup_id_x 1
.end_amdhsa_kernel
'''
open(sys.argv[1], 'w').write(txt)
if OPT['stamps']:
    open(sys.argv[1] + '.stamps', 'w').write(' '.join(stamp_names))
print('vgpr high water', V.hw, 'instr', sum(1 for p in (pro, main, com, sp) for i in p.l if i.kind != 'meta'))
```

```python
import sys, struct, math
from asmlib import *

NAME = 'gated_mix__ssm_conv_s4d__mixer_channel_mlp__prompt_kernel'
OPT = dict(stamps=0, rot=1)
for a in sys.argv[2:]:
    k, v = a.split('=')
    OPT[k] = int(v)


def f32(x):
    return '0x%08x' % struct.unpack('<I', struct.pack('<f', x))[0]


WS_FL = 0x0
FA, FU, FW, FH, FC, FDUMMY = 0, 32, 64, 960, 1856, 2880
WS_TP = 0x80000
WS_TS = 0x88000
WS_G = 0x90000
WS_FP = 0x98000
WS_ST = 0xA0000
WS_UT = 0x200000
WS_AT = 0x400000
WS_W2T = 0x600000
WS_H = 0x800000
WS_SIZE = 0x10000000
L_X, L_W = 0, 65536
L_R = 131072
L_TB = 148480
TBP = 3328
RP = 4224
L_U, UP = 0, 4640
L_AT = 20480
L_CB, CBP = 32768, 1088
L_PB = 69632
LDS_SIZE = 161792

P_U, P_LA, P_AI, P_CR, P_CI, P_DT, P_DS, P_BX, P_W1, P_B1, P_W2, P_B2, P_GW, P_OUT, P_DBG, P_WS = [4 + 2 * i for i in range(16)]
SX, SW1, SW2, SWS, SOUT = 36, 40, 44, 48, 52
sXCD, sJ, sWV, sNON = 56, 57, 58, 59
sT0, sT1, sT2, sT3 = 60, 61, 62, 63
sM, sXb, sWb, sKC, sXk, sWk = 64, 65, 66, 67, 68, 69
sFW, sW2o, sHst, sFH, sTB1, sCB1 = 70, 71, 72, 73, 74, 75
sSEL0, sSEL1, sW2l, sHl, sCNT, sTB2, sNB = 76, 77, 78, 79, 80, 81, 82
sCH, sBH, sT4, sT5 = 83, 84, 85, 86
sSTAMP = 88
srd = lambda b: 's[%d:%d]' % (b, b + 3)
ptr = lambda b: 's[%d:%d]' % (b, b + 1)

V = Regs('v', 0, 256)
vTID, vL, vL16, vZ, vST = [V.alloc() for _ in range(5)]
vN, vG = V.alloc(), V.alloc()
vNON = V.alloc()
vT = V.alloc(8, 4)
vPF, vPA, vPF2, vPA2 = [V.alloc() for _ in range(4)]

outline = []
nstamp = [0]
stamp_names = []


def stamp(s, name):
    if not OPT['stamps']:
        return
    if name not in stamp_names:
        stamp_names.append(name)
    k = stamp_names.index(name)
    s(f's_memtime s[{sSTAMP}:{sSTAMP+1}]')
    s(f'v_writelane_b32 v{vST}, s{sSTAMP}, {k}')


npoll = [0]


def poll_issue(s, vflag, vaddr, soff):
    s(f'buffer_load_dword v{vflag}, v{vaddr}, {srd(SWS)}, {soff} offen sc1')


def poll_check(s, vflag, vaddr, soff):
    k = npoll[0]
    npoll[0] += 1
    s(f'v_cmp_ne_u32 vcc, s{sNON}, v{vflag}')
    s(f's_cbranch_vccnz Lretry{k}')
    s(f'Lback{k}:')
    outline.append(f'''Lretry{k}:
    s_mov_b32 s{sCNT}, 0x40000
Lloop{k}:
    buffer_load_dword v{vflag}, v{vaddr}, {srd(SWS)}, {soff} offen sc1
    s_waitcnt vmcnt(0)
    v_cmp_ne_u32 vcc, s{sNON}, v{vflag}
    s_cbranch_vccz Lback{k}
    s_sub_u32 s{sCNT}, s{sCNT}, 1
    s_cbranch_scc0 Lloop{k}
    s_branch Lback{k}
''')


def nonce_issue(s, v):
    s(f'global_load_dword v{v}, v{vZ}, {ptr(P_DBG)} sc1')


def nonce_check(s, v):
    k = npoll[0]
    npoll[0] += 1
    s(f'v_readfirstlane_b32 s{sNON}, v{v}')
    s(f's_cmp_eq_u32 s{sNON}, 0')
    s(f's_cbranch_scc1 Lretry{k}')
    s(f'Lback{k}:')
    outline.append(f'''Lretry{k}:
    s_mov_b32 s{sCNT}, 0x40000
Lloop{k}:
    global_load_dword v{v}, v{vZ}, {ptr(P_DBG)} sc1
    s_waitcnt vmcnt(0)
    v_readfirstlane_b32 s{sNON}, v{v}
    s_nop 3
    s_cmp_lg_u32 s{sNON}, 0
    s_cbranch_scc1 Lback{k}
    s_sub_u32 s{sCNT}, s{sCNT}, 1
    s_cbranch_scc0 Lloop{k}
    s_branch Lback{k}
''')


def flag_store(s, vnon, soff):
    s(f'buffer_store_dword v{vnon}, v{vZ}, {srd(SWS)}, {soff} offen sc1')


pro = Seq()
vPAR = V.alloc(6, 1)
pro(f'''
s_cmp_ge_u32 s2, 0x100
s_cbranch_scc1 Lend
s_load_dwordx16 s[4:19], s[0:1], 0
s_load_dwordx16 s[20:35], s[0:1], 64
s_getpc_b64 s[{sT2}:{sT3}]
Lpc:
v_lshrrev_b32 v{vT}, 6, v{vTID}
v_and_b32 v{vL}, 63, v{vTID}
v_readfirstlane_b32 s{sWV}, v{vT}
v_mov_b32 v{vZ}, 0
s_and_b32 s{sXCD}, s2, 7
s_lshr_b32 s{sJ}, s2, 3
s_lshl2_add_u32 s{sT0}, s{sJ}, s{sWV}
s_lshl_b32 s{sT0}, s{sT0}, 8
v_and_b32 v{vT+1}, 1, v{vL}
v_lshl_add_u32 v{vT+1}, v{vT+1}, 7, s{sT0}
v_min_u32 v{vT+1}, Lcode_end-Lpc-4, v{vT+1}
global_load_dword v{vT+7}, v{vT+1}, s[{sT2}:{sT3}]
s_lshl_b32 s{sT0}, s2, 9
v_lshl_add_u32 v{vT+2}, v{vTID}, 1, s{sT0}
v_lshrrev_b32 v{vT+3}, 7, v{vTID}
s_lshl_b32 s{sT0}, s2, 2
v_lshl_add_u32 v{vT+3}, v{vT+3}, 1, s{sT0}
v_lshlrev_b32 v{vL16}, 4, v{vL}
v_and_b32 v{vN}, 15, v{vL}
v_lshrrev_b32 v{vG}, 4, v{vL}
s_or_b32 s{sT0}, s2, s{sWV}
s_waitcnt lgkmcnt(0)
s_cmp_eq_u32 s{sT0}, 0
s_cbranch_scc1 Lnonce
Lnonce_back:
global_load_ushort v{vPAR+0}, v{vT+2}, {ptr(P_LA)}
global_load_ushort v{vPAR+4}, v{vT+3}, {ptr(P_DT)}
global_load_ushort v{vPAR+1}, v{vT+2}, {ptr(P_AI)}
global_load_ushort v{vPAR+2}, v{vT+2}, {ptr(P_CR)}
global_load_ushort v{vPAR+3}, v{vT+2}, {ptr(P_CI)}
global_load_ushort v{vPAR+5}, v{vT+3}, {ptr(P_DS)}
''')
outline.append(f'''Lnonce:
    s_memrealtime s[{sT0}:{sT1}]
    s_waitcnt lgkmcnt(0)
    s_or_b32 s{sT0}, s{sT0}, 1
    v_mov_b32 v{vT+6}, s{sT0}
    global_store_dword v{vZ}, v{vT+6}, {ptr(P_DBG)} sc1
    s_branch Lnonce_back
''')
if OPT['stamps']:
    pro(f'v_mov_b32 v{vST}, 0')
    pro(f's_memrealtime s[{sSTAMP}:{sSTAMP+1}]')
    pro(f'v_writelane_b32 v{vST}, s{sSTAMP}, 62')
stamp(pro, 'start')
for b, p, n in ((SX, P_U, 0x200000), (SW1, P_W1, 512 * 3584), (SW2, P_W2, 1792 * 1024), (SWS, P_WS, WS_SIZE), (SOUT, P_OUT, 0x200000)):
    pro(f'''
s_mov_b32 s{b}, s{p}
s_mov_b32 s{b+1}, s{p+1}
s_mov_b32 s{b+2}, {n}
s_mov_b32 s{b+3}, 0x20000''')
pro(f'''
s_lshl_b32 s{sM}, s{sWV}, 10
s_mov_b32 s{sSEL0}, 0x05040100
s_mov_b32 s{sSEL1}, 0x07060302
s_cmp_ge_u32 s{sJ}, 28
s_cbranch_scc1 Lspare
''')


vGA = V.alloc(9, 1)
vTA = V.alloc(4, 1)
vRW = V.alloc(4, 1)
vRR = V.alloc()


def idle_setup():
    s = Seq()
    t = vT
    s(f'''
v_lshlrev_b32 v{t+4}, 3, v{vTID}
s_movk_i32 s{sT0}, 128
s_mov_b32 s{sT1}, {L_TB + 16}
''')
    for i in range(9):
        g = vGA + i
        s(f'v_sub_u32 v{g}, {2047 - i}, v{t+4}')
        if i == 8:
            s(f'v_max_i32 v{t+5}, 0, v{g}')
            s(f'v_cvt_f32_u32 v{t+5}, v{t+5}')
        else:
            s(f'v_cvt_f32_u32 v{t+5}, v{g}')
        s(f'''
v_cvt_pk_bf16_f32 v{t+5}, v{t+5}, v{vZ}
v_add_u32 v{t+5}, {128 - 0x4300}, v{t+5}
v_med3_i32 v{g}, v{t+5}, v{g}, s{sT0}
v_lshl_add_u32 v{g}, v{g}, 2, s{sT1}''')
    s(f'''
s_and_b32 s{sBH}, s{sWV}, 1
s_mul_i32 s{sT0}, s{sWV}, {TBP}
s_add_u32 s{sT0}, s{sT0}, {L_TB}
v_mov_b32 v{t}, s{sT0}
s_add_u32 s{sT0}, s{sT0}, 16
ds_write_b32 v{t}, v{vZ} offset:12
v_lshrrev_b32 v{t}, 1, v{vG}
v_and_b32 v{t+1}, 1, v{vG}
v_lshlrev_b32 v{t+2}, 9, v{t}
v_lshl_add_u32 v{t+2}, v{t+1}, 4, v{t+2}
v_lshl_add_u32 v{t+2}, v{vN}, 5, v{t+2}
v_add_u32 v{vTA}, s{sT0}, v{t+2}
v_sub_u32 v{t+3}, 4, v{t}
v_lshlrev_b32 v{t+3}, v{t+3}, v{vN}
v_lshl_add_u32 v{t+3}, v{vG}, 8, v{t+3}
v_add_u32 v{t+3}, 1024, v{t+3}
v_add_u32 v{vTA+1}, s{sT0}, v{t+3}
v_mul_u32_u24 v{t+3}, 120, v{t}
v_add3_u32 v{vTA+2}, v{vTA+1}, v{t+3}, 8
v_lshlrev_b32 v{t+3}, 8, v{vG}
v_lshl_add_u32 v{t+3}, v{vN}, 2, v{t+3}
v_add_u32 v{t+3}, 2048, v{t+3}
v_add_u32 v{vTA+3}, s{sT0}, v{t+3}
s_mul_i32 s{sT0}, s{sWV}, 4352
s_add_u32 s{sT0}, s{sT0}, {L_R}
v_lshl_add_u32 v{vRW}, v{vL}, 2, s{sT0}
v_add_u32 v{vRW+1}, 1088, v{vRW}
v_add_u32 v{vRW+2}, 2176, v{vRW}
v_add_u32 v{vRW+3}, 3264, v{vRW}
v_mul_u32_u24 v{vRR}, 272, v{vN}
v_lshl_add_u32 v{vRR}, v{vG}, 4, v{vRR}
v_add_u32 v{vRR}, s{sT0}, v{vRR}
''')
    s(f'''
s_lshr_b32 s{sT0}, s{sJ}, 3
s_lshl2_add_u32 s{sTB2}, s{sXCD}, s{sT0}
s_and_b32 s{sNB}, s{sJ}, 7
s_mul_i32 s{sT0}, s{sNB}, 56
s_mul_i32 s{sT1}, s{sWV}, 14
s_add_u32 s{sT0}, s{sT0}, s{sT1}
s_lshl_b32 s{sW2l}, s{sT0}, 12
s_add_u32 s{sW2l}, s{sW2l}, {WS_W2T}
s_lshl_b32 s{sFW}, s{sT0}, 8
s_add_u32 s{sFW}, s{sFW}, {WS_FL + FW * 128}
s_lshl_b32 s{sCH}, s2, 1
s_lshr_b32 s{sT0}, s{sWV}, 1
s_add_u32 s{sCH}, s{sCH}, s{sT0}
''')
    return s


def kgen():
    s = Seq()
    al = []

    def A(n=1, align=None):
        b = V.alloc(n, align)
        al.append((b, n))
        return b

    la, ai, cr, ci, ld, dsk = [vPAR + i for i in range(6)]
    t = vT
    LOG2E, LOG2E_LO, LN2 = 0x3fb8aa3b, 0x32a5705f, 0x3f317218
    s(f's_mov_b32 s{sT0}, {LOG2E:#x}')
    for x in (la, ld):
        s(f'v_lshlrev_b32 v{x}, 16, v{x}')
    for k, x in enumerate((la, ld)):
        s(f'v_mul_f32 v{t+2*k}, s{sT0}, v{x}')
    for k, x in enumerate((la, ld)):
        s(f'v_fma_f32 v{t+2*k+1}, v{x}, s{sT0}, -v{t+2*k}')
    for k, x in enumerate((la, ld)):
        s(f'v_exp_f32 v{t+2*k}, v{t+2*k}')
    for k, x in enumerate((la, ld)):
        s(f'v_fmamk_f32 v{t+2*k+1}, v{x}, {LOG2E_LO:#x}, v{t+2*k+1}')
    for k, x in enumerate((la, ld)):
        s(f'v_mul_f32 v{t+2*k+1}, {LN2:#x}, v{t+2*k+1}')
    for k, x in enumerate((la, ld)):
        s(f'v_fma_f32 v{t+2*k}, v{t+2*k}, v{t+2*k+1}, v{t+2*k}')
    for x in (ai, cr, ci, dsk):
        s(f'v_lshlrev_b32 v{x}, 16, v{x}')
    s(f'''
v_cvt_pk_bf16_f32 v{t}, v{t}, v{t+2}
v_and_b32 v{ld}, 0xffff0000, v{t}
v_lshlrev_b32 v{la}, 16, v{t}
''')
    val = {}
    val['c0'] = A(2)
    s(f'''
v_mul_f32 v{la}, v{la}, v{ld}
v_mul_f32 v{ai}, v{ai}, v{ld}
v_add_f32 v{ld}, v{ld}, v{ld}
v_mul_f32 v{la}, {f32(-1.4426950408889634)}, v{la}
v_mul_f32 v{ai}, 0.15915494, v{ai}
v_mul_f32 v{val['c0']}, v{cr}, v{ld}
v_mul_f32 v{val['c0']+1}, v{ci}, v{ld}
''')
    zs = (('z8', 8.0), ('z1', 1.0), ('z128', 128.0))
    for k, (nm, p) in enumerate(zs):
        val[nm] = A(2)
        s(f'v_mul_f32 v{t+2*k}, {f32(p)}, v{la}')
        s(f'v_mul_f32 v{t+2*k+1}, {f32(p)}, v{ai}')
    for k, (nm, p) in enumerate(zs):
        s(f'v_fract_f32 v{t+2*k+1}, v{t+2*k+1}')
        s(f'v_exp_f32 v{t+2*k}, v{t+2*k}')
    for k, (nm, p) in enumerate(zs):
        s(f'v_cos_f32 v{val[nm]}, v{t+2*k+1}')
        s(f'v_sin_f32 v{val[nm]+1}, v{t+2*k+1}')
    for k, (nm, p) in enumerate(zs):
        s(f'v_pk_mul_f32 {vr(val[nm],2)}, {vr(val[nm],2)}, {vr(t+2*k,2)} op_sel_hi:[1,0]')
    acc = A(12, 4)
    s(f'''
s_lshl_b32 s{sT0}, s{sBH}, 6
s_sub_u32 s{sT0}, 64, s{sT0}
v_cmp_eq_u32 vcc, s{sT0}, v{vL}
v_mov_b32 v{acc+1}, 0
v_mov_b32 v{acc+2}, 0
v_cndmask_b32 v{acc}, 0, v{dsk}, vcc
v_mov_b32 v{acc+3}, 0
''')
    pk = {}

    def pack(nm, lo):
        pk[nm] = A()
        s(f'v_cvt_pk_bf16_f32 v{pk[nm]}, v{val[nm]}, {"-" if lo else ""}v{val[nm]+1}')

    def mults(lst):
        for d, a, b in lst:
            val[d] = A(2)
            s(f'v_pk_mul_f32 {vr(val[d],2)}, {vr(val[a],2)}, {vr(val[b],2)} op_sel_hi:[1,0]')
        for d, a, b in lst:
            s(f'v_pk_fma_f32 {vr(val[d],2)}, {vr(val[a],2)}, {vr(val[b],2)}, {vr(val[d],2)} op_sel:[1,1,0] op_sel_hi:[0,1,1] neg_lo:[1,0,0]')

    late = []

    def wr(row, a, b=None):
        base, r = vRW + row // 4, row % 4
        if b is None:
            s(f'ds_write_b32 v{base}, v{pk[a]} offset:{272*r}')
        else:
            s(f'ds_write2_b32 v{base}, v{pk[a]}, v{pk[b]} offset0:{68*r} offset1:{68*(r+1)}')
        late.extend([pk[a]] + ([pk[b]] if b else []))
        while len(late) > 6:
            x = late.pop(0)
            al.remove((x, 1))
            V.release(x)

    def rd(dst):
        for ks in range(4):
            s(f'ds_read_b128 {vr(dst+4*ks,4)}, v{vRR} offset:{64*ks}')

    fB, fA0, fA1 = A(16, 4), A(16, 4), A(16, 4)
    pk['z0'] = A()
    s(f'v_mov_b32 v{pk["z0"]}, 0x3f80')
    pack('z8', 1)
    pack('c0', 0)
    wr(0, 'z0', 'z8')
    lo_rounds = [[('z16', 'z8', 'z8'), ('z256', 'z128', 'z128')],
                 [('z24', 'z16', 'z8'), ('z32', 'z16', 'z16')],
                 [('z40', 'z8', 'z32'), ('z48', 'z16', 'z32')],
                 [('z56', 'z24', 'z32'), ('z64', 'z32', 'z32')],
                 [('z72', 'z40', 'z32'), ('z80', 'z48', 'z32')],
                 [('z88', 'z56', 'z32'), ('z96', 'z64', 'z32')],
                 [('z104', 'z72', 'z32'), ('z112', 'z80', 'z32')]]
    for r, lst in enumerate(lo_rounds):
        lst = lst + [(f'c{r+1}', f'c{r}', 'z1')]
        mults(lst)
        for d, _, _ in lst:
            if d != 'z256':
                pack(d, d[0] == 'z')
        if r >= 1:
            wr(2 * r, f'z{16*r}', f'z{16*r+8}')
    mults([('z120', 'z88', 'z32'), ('z512', 'z256', 'z256')] + [(f'c{128+o}', f'c{o}', 'z128') for o in range(2)])
    pack('z120', 1)
    wr(14, 'z112', 'z120')
    rd(fB)
    for k in ['z1'] + [f'z{8*b}' for b in range(1, 16)]:
        al.remove((val[k], 2))
        V.release(val[k], 2)
    for o in range(0, 8, 2):
        wr(o, f'c{o}', f'c{o+1}')
    pack('c128', 0)
    pack('c129', 0)
    wr(8, 'c128', 'c129')
    for o0 in (2, 5):
        lst = [(f'c{128+o}', f'c{o}', 'z128') for o in range(o0, o0 + 3)]
        mults(lst)
        for d, _, _ in lst:
            pack(d, 0)
        if o0 == 2:
            wr(10, 'c130', 'c131')
    wr(12, 'c132', 'c133')
    wr(14, 'c134', 'c135')
    rd(fA0)
    t1 = [[(f'c{256+o}', f'c{o}', 'z256') for o in (0, 2, 4, 6)],
          [(f'c{384+o}', f'c{128+o}', 'z256') for o in (0, 2, 4, 6)],
          [(f'c{h+256}', f'c{h}', 'z256') for h in (256, 260, 384, 388)],
          [(f'c{h+512}', f'c{h}', 'z512') for h in (256, 260, 384, 388)]]
    for r, lst in enumerate(t1):
        mults(lst)
        for d, _, _ in lst:
            pack(d, 0)
        wr(4 * r, lst[0][0], lst[1][0])
        wr(4 * r + 2, lst[2][0], lst[3][0])
        s(f'v_mfma_f32_16x16x32_bf16 {vr(acc,4)}, {vr(fA0+4*r,4)}, {vr(fB+4*r,4)}, {vr(acc,4)}')
    rd(fA1)
    t2 = [[(f'c{h+512}', f'c{h}', 'z512') for h in (512, 640, 768, 896)],
          [(f'c{h+512}', f'c{h}', 'z512') for h in (1024, 1152, 1280, 1408)]]
    for r, lst in enumerate(t2):
        mults(lst)
        for d, _, _ in lst:
            pack(d, 0)
        wr(4 * r, lst[0][0], lst[1][0])
        wr(4 * r + 2, lst[2][0], lst[3][0])
        for ks in (2 * r, 2 * r + 1):
            s(f'v_mfma_f32_16x16x32_bf16 {vr(acc+4,4)}, {vr(fA1+4*ks,4)}, {vr(fB+4*ks,4)}, {vr(acc+4,4) if ks else 0}')
    mults([('c2048', 'c1536', 'z512')])
    s(f'ds_write_b128 v{vTA}, {vr(acc,4)}')
    pack('c2048', 0)
    wr(8, 'c2048')
    rd(fA0)
    for i in range(2):
        s(f'ds_write_b64 v{vTA+1+i}, {vr(acc+4+2*i,2)}')
    for ks in range(4):
        s(f'v_mfma_f32_16x16x32_bf16 {vr(acc+8,4)}, {vr(fA0+4*ks,4)}, {vr(fB+4*ks,4)}, {vr(acc+8,4) if ks else 0}')
    s(f'''
v_lshlrev_b32 v{t}, 4, v{vTID}
v_add_u32 v{t}, {L_R}, v{t}
v_bfe_u32 v{t+1}, v{vL}, 2, 2
v_mul_u32_u24 v{t+1}, {RP}, v{t+1}
v_and_b32 v{t+2}, 3, v{vL}
v_lshl_add_u32 v{t+1}, v{t+2}, 4, v{t+1}
v_add_u32 v{t+1}, {L_R + 4096}, v{t+1}
v_mov_b32 v{t+4}, 0
v_mov_b32 v{t+5}, 0
v_mov_b32 v{t+6}, 0
v_mov_b32 v{t+7}, 0
''')
    for i in range(2):
        s(f'ds_write2_b32 v{vTA+3}, v{acc+8+2*i}, v{acc+9+2*i} offset0:{32*i} offset1:{32*i+16}')
    s.wait('*lgkm')
    s('s_barrier')
    n_main = len(s)
    gv = fB
    assert fA0 == fB + 16 and fA1 == fB + 32
    ov = A(16, 4)
    for i in range(9):
        for p in range(2):
            s(f'ds_read2st64_b32 {vr(gv+4*i+2*p,2)}, v{vGA+i} offset0:{13*p} offset1:{13*(2+p)}')
    s(f'ds_write_b128 v{t+1}, {vr(t+4,4)}')
    for i in range(9):
        s(f'v_pk_add_f32 {vr(gv+4*i,2)}, {vr(gv+4*i,2)}, {vr(gv+4*i+2,2)}')
    for c in range(2):
        for o in (1, 0):
            d = ov + 8 * c + 4 * o
            for k in range(4):
                a = gv + 4 * (2 * k + (1 - o)) + c
                s(f'v_cvt_pk_bf16_f32 v{d+k}, v{a}, v{a+4}')
            s(f'ds_write_b128 v{t}, {vr(d,4)} offset:{(2*c+o)*RP}')
    for b, n in al:
        V.release(b, n)
    return s


def w2t_poll_issue():
    s = Seq()
    s(f'''
v_min_u32 v{vPA}, 27, v{vL}
v_lshlrev_b32 v{vPA}, 7, v{vPA}''')
    poll_issue(s, vPF, vPA, f's{sFW}')
    return s


def w2t_loads():
    g = []
    for ks in range(14):
        for j in range(4):
            s = Seq()
            s(f'buffer_load_dwordx4 {ar(16*ks+4*j,4)}, v{vL16}, {srd(SWS)}, s{sW2l} offen offset:{1024*j} sc1')
            if j == 3:
                s(f's_add_u32 s{sW2l}, s{sW2l}, 4096')
            g.append(s)
    return g


def u_poll_issue():
    s = Seq()
    s(f'''
v_and_b32 v{vPA2}, 31, v{vL}
v_lshlrev_b32 v{vPA2}, 7, v{vPA2}
s_mov_b32 s{sT4}, {WS_FL + FU * 128}''')
    poll_issue(s, vPF2, vPA2, f's{sT4}')
    return s


def u_dma():
    s = Seq()
    poll_check(s, vPF2, vPA2, f's{sT4}')
    s(f'''
s_lshl_b32 s{sT0}, s{sCH}, 12
s_lshl_b32 s{sT1}, s{sBH}, 2
s_sub_u32 s{sT0}, s{sT0}, s{sT1}
s_add_u32 s{sT0}, s{sT0}, {WS_UT}
s_mul_i32 s{sT1}, s{sWV}, {UP}
s_add_u32 m0, s{sT1}, {L_U + 512}
''')
    for i in range(4):
        s(f'buffer_load_dwordx4 v{vL16}, {srd(SWS)}, s{sT0} offen offset:{1024*i} sc1 lds', tag='udma')
    return s


main = Seq()
vXs = V.alloc(4, 1)
vWs = V.alloc(4, 1)
vW2 = V.alloc(8, 4)
vW2o = V.alloc(8, 4)
t = vT
main(f'''
s_cmp_ge_u32 s{sJ}, 14
s_cselect_b32 s{sT0}, 1, 0
s_mul_i32 s{sT1}, s{sT0}, 14
s_sub_u32 s{sT1}, s{sJ}, s{sT1}
s_lshl1_add_u32 s{sT0}, s{sXCD}, s{sT0}
s_and_b32 s{sT2}, s{sWV}, 1
s_lshr_b32 s{sT3}, s{sWV}, 1
s_lshl1_add_u32 s{sTB1}, s{sT0}, s{sT2}
s_lshl1_add_u32 s{sCB1}, s{sT1}, s{sT3}
s_lshl4_add_u32 s{sXb}, s{sT0}, s{sWV}
s_lshl_b32 s{sXb}, s{sXb}, 13
s_mul_i32 s{sWb}, s{sWV}, {4*3584}
s_lshl_b32 s{sT1}, s{sT1}, 8
s_add_u32 s{sWb}, s{sWb}, s{sT1}
''')
main(f'''
s_mul_i32 s{sT0}, s{sXCD}, 28
s_add_u32 s{sT0}, s{sT0}, s{sJ}
s_lshl1_add_u32 s{sT0}, s{sT0}, s{sT3}
s_lshr_b32 s{sT1}, s{sT0}, 3
s_and_b32 s{sT0}, s{sT0}, 7
s_mul_i32 s{sT4}, s{sT0}, 56
s_add_u32 s{sT4}, s{sT4}, s{sT1}
s_lshl1_add_u32 s{sT4}, s{sT4}, s{sT2}
s_lshl_b32 s{sW2o}, s{sT4}, 11
s_add_u32 s{sW2o}, s{sW2o}, {WS_W2T}
s_lshl_b32 s{sT5}, s{sT4}, 7
s_add_u32 s{sT5}, s{sT5}, {WS_FL + FW * 128}
s_lshl_b32 s{sT1}, s{sT1}, 15
s_lshl_b32 s{sT0}, s{sT0}, 7
s_add_u32 s{sT0}, s{sT0}, s{sT1}
s_lshl2_add_u32 s{sT0}, s{sT2}, s{sT0}
s_add_u32 s{sT1}, s{sT0}, 8192
v_lshrrev_b32 v{t}, 1, v{vG}
v_and_b32 v{t+1}, 1, v{vG}
v_lshlrev_b32 v{t}, 14, v{t}
v_lshl_add_u32 v{t}, v{t+1}, 12, v{t}
v_lshl_add_u32 v{t}, v{vN}, 3, v{t}
''')
for jj in range(8):
    main(f'buffer_load_dword v{vW2+jj}, v{t}, {srd(SW2)}, s{sT0 + jj//4} offen offset:{1024*(jj%4)}')
main(f'''
v_lshl_add_u32 v{t}, s{sT2}, 2, v{vG}
v_and_b32 v{t+1}, 7, v{vL}
v_xor_b32 v{t}, v{t}, v{t+1}
v_lshrrev_b32 v{t+1}, 3, v{vL}
v_lshlrev_b32 v{t+1}, 10, v{t+1}
v_lshl_add_u32 v{vXs}, v{t}, 4, v{t+1}
v_lshlrev_b32 v{t}, 2, v{vG}
v_xor_b32 v{t}, v{t}, v{vN}
v_mul_u32_u24 v{t+1}, 3584, v{vG}
v_lshl_add_u32 v{vWs}, v{t}, 4, v{t+1}
''')
for i in range(1, 4):
    main(f'v_add_u32 v{vXs+i}, {32768*i}, v{vXs}')
    main(f'v_add_u32 v{vWs+i}, {16*3584*i}, v{vWs}')
main(f's_mov_b32 s{sKC}, s{sXCD}' if OPT['rot'] else f's_mov_b32 s{sKC}, 0')


def stage_loads(st):
    g = []
    slot = st & 3
    for i in range(4):
        for isw in (0, 1):
            s = Seq()
            if i == 0 and not isw:
                s(f'''
s_lshl_b32 s{sXk}, s{sKC}, 7
s_add_u32 s{sXk}, s{sXk}, s{sXb}
s_mul_i32 s{sWk}, s{sKC}, {64*3584}
s_add_u32 s{sWk}, s{sWk}, s{sWb}
s_add_u32 s{sKC}, s{sKC}, 1
s_and_b32 s{sKC}, s{sKC}, 7''')
            s(f's_add_u32 m0, s{sM}, {(L_W if isw else L_X) + slot*16384 + i*4096}')
            if isw:
                s(f'buffer_load_dwordx4 v{vWs+i}, {srd(SW1)}, s{sWk} offen lds', tag=f'st{st}')
            else:
                s(f'buffer_load_dwordx4 v{vXs+i}, {srd(SX)}, s{sXk} offen lds', tag=f'st{st}')
            g.append(s)
    return g


ld = [stage_loads(st) for st in range(8)]
early = ld[0] + ld[1][:4]
stamp(main, 'pre')
for g in early:
    main.add(g)
stamp(main, 'dma')
main.add(idle_setup())
vXr = V.alloc(4, 1)
vWr = V.alloc(2, 1)
main(f'''
v_and_b32 v{t}, 31, v{vL}
v_bfe_u32 v{t+1}, v{vL}, 1, 3
v_lshrrev_b32 v{t+2}, 5, v{vL}
v_xor_b32 v{t+1}, v{t+1}, v{t+2}
s_and_b32 s{sT0}, s{sWV}, 1
s_lshl_b32 s{sT0}, s{sT0}, 13
v_lshl_add_u32 v{t}, v{t}, 7, s{sT0}
''')
for ks in range(4):
    main(f'v_xor_b32 v{t+3}, {2*ks}, v{t+1}')
    main(f'v_lshl_add_u32 v{vXr+ks}, v{t+3}, 4, v{t}')
main(f'''
v_bfe_u32 v{t}, v{vL}, 2, 2
v_lshl_add_u32 v{t+1}, v{t+2}, 3, v{t}
v_lshlrev_b32 v{t+1}, 8, v{t+1}
v_and_b32 v{t+2}, 1, v{vG}
v_lshl_add_u32 v{t+1}, v{t+2}, 5, v{t+1}
v_and_b32 v{t+2}, 3, v{vL}
v_lshl_add_u32 v{t+1}, v{t+2}, 3, v{t+1}
v_add_u32 v{t+1}, {L_W}, v{t+1}
s_and_b32 s{sT0}, s{sWV}, 2
v_xor_b32 v{t}, s{sT0}, v{t}
v_lshl_add_u32 v{vWr}, v{t}, 6, v{t+1}
v_xor_b32 v{t}, 1, v{t}
v_lshl_add_u32 v{vWr+1}, v{t}, 6, v{t+1}
''')
stamp(main, 'setup')
for jb in range(2):
    for d in range(4):
        main(f'v_perm_b32 v{vW2o+4*jb+d}, v{vW2+2*d+1}, v{vW2+2*d}, s{sSEL0+jb}')
stamp(main, 'par')
for jb in range(2):
    main(f'buffer_store_dwordx4 {vr(vW2o+4*jb,4)}, v{vL16}, {srd(SWS)}, s{sW2o} offen offset:{1024*jb} sc1', tag='w2st')
nonce_issue(main, vNON)
kg = kgen()
main.add(sprinkle(kg, ld[1][4:] + ld[2] + ld[3], 8, len(kg) - 30))
V.release(vW2, 8)
V.release(vW2o, 8)
stamp(main, 'kgen')
nonce_check(main, vNON)
flag_store(main, vNON, f's{sT5}')

vACC = V.alloc(64, 4)
vFR = V.alloc(32, 4)
vTP = V.alloc(24, 4)


def g1_reads(st, ks):
    slot = st & 3
    b = vFR + 16 * (ks & 1)
    r = []
    for k in range(2):
        for hh in range(2):
            r.append(f'ds_read_b64_tr_b16 {vr(b+4*k+2*hh,2)}, v{vWr+k} offset:{slot*16384 + ks*4096 + hh*1024}')
        r.append(f'ds_read_b128 {vr(b+8+4*k,4)}, v{vXr+ks} offset:{slot*16384 + k*4096}')
    return r


def g1_mfma(st, ks):
    b = vFR + 16 * (ks & 1)
    r = []
    for ft, tt in ((0, 0), (1, 0), (0, 1), (1, 1)):
        a = vACC + 32 * ft + 16 * tt
        c = '0' if (st == 0 and ks == 0) else vr(a, 16)
        r.append(f'v_mfma_f32_32x32x16_bf16 {vr(a,16)}, {vr(b+4*ft,4)}, {vr(b+8+4*tt,4)}, {c}')
    return r


w2g = w2t_loads()
main.wait('st0', '*lgkm')
main('s_barrier')
for x in g1_reads(0, 0):
    main(x)
extra = {st: list(ld[st + 4]) for st in range(4)}
fa = Seq()
fa(f'''
v_mov_b32 v{vPA2}, s{sTB1}
v_mov_b32 v{t}, s{sCB1}
v_cmp_gt_u32 vcc, 32, v{vL}
s_mov_b32 s{sT4}, {WS_FL + FA * 128}
v_cndmask_b32 v{vPA2}, v{t}, v{vPA2}, vcc
v_lshlrev_b32 v{vPA2}, 7, v{vPA2}''')
poll_issue(fa, vPF2, vPA2, f's{sT4}')
extra[3] = extra[3] + [w2t_poll_issue(), fa]
NW2_G1 = 0
for st in range(8):
    pend = extra.get(st - 1, [])
    for ks in range(4):
        m = g1_mfma(st, ks)
        if ks < 3:
            r = g1_reads(st, ks + 1)
            share = pend[len(pend) * ks // 3: len(pend) * (ks + 1) // 3]
            for k in range(4):
                main(m[k])
                for x in r[2 * k: 2 * k + 2]:
                    main(x)
                for g in share[len(share) * k // 4: len(share) * (k + 1) // 4]:
                    main.add(g)
        else:
            main.wait('*lgkm')
            main(m[0])
            if st < 7:
                main.wait(f'st{st+1}')
                main('s_barrier')
                r = g1_reads(st + 1, 0)
                for k in range(1, 4):
                    for x in r[2 * k - 2: 2 * k]:
                        main(x)
                    main(m[k])
            else:
                for k in range(1, 4):
                    main(m[k])
    if st == 6:
        chk = Seq()
        poll_check(chk, vPF2, vPA2, f's{sT4}')
        chk(f'''
v_and_b32 v{t}, 31, v{vL}
v_lshlrev_b32 v{t}, 4, v{t}
v_cmp_gt_u32 vcc, 32, v{vL}
v_mov_b32 v{t+1}, 0x7ff00000
s_lshl_b32 s{sT0}, s{sCB1}, 10
s_add_u32 s{sT0}, s{sT0}, {WS_FP}
v_cndmask_b32 v{t+1}, v{t+1}, v{t}, vcc
s_lshl_b32 s{sT1}, s{sTB1}, 10
s_add_u32 s{sT2}, s{sT1}, {WS_TS}
s_add_u32 s{sT1}, s{sT1}, {WS_TP}''')
        for k in range(2):
            chk(f'buffer_load_dwordx4 {vr(vTP+4*k,4)}, v{t}, {srd(SWS)}, s{sT0} offen offset:{512*k} sc1')
            chk(f'buffer_load_dwordx4 {vr(vTP+8+4*k,4)}, v{t+1}, {srd(SWS)}, s{sT1} offen offset:{512*k} sc1')
        for k in range(2):
            chk(f'buffer_load_dwordx4 {vr(vTP+16+4*k,4)}, v{t}, {srd(SWS)}, s{sT2} offen offset:{512*k} sc1')
        chk.add(u_poll_issue())
        chk2 = Seq()
        poll_check(chk2, vPF, vPA, f's{sFW}')
        NW2_G1 = 8
        extra[6] = [chk, chk2] + w2g[:NW2_G1]
    stamp(main, f'g1s{st}')
for ft, tt in ((0, 0), (1, 0), (0, 1), (1, 1)):
    a = vACC + 32 * ft + 16 * tt
    main(f'v_mfma_f32_32x32x16_bf16 {vr(a,16)}, {vr(vTP+4*ft,4)}, {vr(vTP+8+4*tt,4)}, {vr(a,16)}')
vHa = V.alloc()
main(f'''
v_and_b32 v{t}, 1, v{vG}
v_mul_u32_u24 v{t}, {56*1024}, v{t}
v_lshrrev_b32 v{t+1}, 5, v{vL}
v_lshl_add_u32 v{t}, v{t+1}, 8, v{t}
v_lshl_add_u32 v{vHa}, v{vN}, 4, v{t}
s_mul_i32 s{sHst}, s{sTB1}, {4*56}
s_lshl1_add_u32 s{sHst}, s{sCB1}, s{sHst}
s_lshl_b32 s{sHst}, s{sHst}, 10
s_add_u32 s{sHst}, s{sHst}, {WS_H}
s_add_u32 s{sT5}, s{sHst}, {2*56*1024}
s_mul_i32 s{sFH}, s{sTB1}, 28
s_add_u32 s{sFH}, s{sFH}, s{sCB1}
s_lshl_b32 s{sFH}, s{sFH}, 7
s_add_u32 s{sFH}, s{sFH}, {WS_FL + FH * 128}
''')
main.add(u_dma())
gel = Seq()
q = vFR
for ti, (ft, tt) in enumerate(((0, 0), (1, 0), (0, 1), (1, 1))):
    P = vTP + 16 + 4 * tt
    for hh in range(2):
        a = vACC + 32 * ft + 16 * tt + 8 * hh
        o = vFR + 8 + 4 * ((2 * ti + hh) % 4)
        for k in range(4):
            gel(f'v_pk_mul_f32 {vr(q+2*k,2)}, {vr(a+2*k,2)}, {vr(a+2*k,2)}')
        for k in range(4):
            gel(f'v_pk_fma_f32 {vr(q+2*k,2)}, {vr(q+2*k,2)}, {vr(P,2)}, {vr(P,2)} op_sel:[0,1,0] op_sel_hi:[1,1,0]')
        for k in range(4):
            gel(f'v_pk_mul_f32 {vr(q+2*k,2)}, {vr(q+2*k,2)}, {vr(a+2*k,2)}')
        for k in range(8):
            gel(f'v_exp_f32 v{q+k}, v{q+k}')
        for k in range(4):
            gel(f'v_pk_fma_f32 {vr(q+2*k,2)}, {vr(q+2*k,2)}, {vr(P+2,2)}, {vr(P+2,2)} op_sel_hi:[1,0,0]')
        for k in range(8):
            gel(f'v_rcp_f32 v{q+k}, v{q+k}')
        for k in range(4):
            gel(f'v_pk_mul_f32 {vr(q+2*k,2)}, {vr(q+2*k,2)}, {vr(a+2*k,2)}')
        for k in range(4):
            gel(f'v_cvt_pk_bf16_f32 v{o+k}, v{q+2*k}, v{q+2*k+1}')
        gel(f'buffer_store_dwordx4 {vr(o,4)}, v{vHa}, {srd(SWS)}, s{sT5 if tt else sHst} offen offset:{1024*ft + 512*hh} sc1', tag='hst')
NW2_GE = 22
main.add(sprinkle(gel, w2g[NW2_G1:NW2_G1 + NW2_GE], 0, len(gel) - 20))
NW2_PRE = NW2_G1 + NW2_GE
stamp(main, 'gelu')
for b, n in ((vXs, 4), (vWs, 4), (vXr, 4), (vWr, 2), (vACC, 64), (vFR, 32), (vTP, 24), (vHa, 1)):
    V.release(b, n)

sp = Seq()
sp('Lspare:')
vS = V.alloc(4, 1)
vB1 = V.alloc()
sp(f'''
s_sub_u32 s{sT0}, s{sJ}, 28
s_lshl2_add_u32 s{sTB1}, s{sXCD}, s{sT0}
s_min_u32 s{sCB1}, s{sTB1}, 27
s_lshl2_add_u32 s{sXb}, s{sTB1}, s{sWV}
s_lshl_b32 s{sXb}, s{sXb}, 14
s_lshl_b32 s{sT0}, s{sWV}, 2
v_xor_b32 v{t}, s{sT0}, v{vL}
v_lshlrev_b32 v{vS}, 4, v{t}
v_xor_b32 v{vS+1}, 32, v{vS}
s_lshl_b32 s{sT1}, s{sWV}, 14
''')
for i in range(4):
    sp(f's_add_u32 m0, s{sT1}, {L_X + 4096*i}')
    sp(f's_add_u32 s{sT0}, s{sXb}, {4096*i}')
    for r in range(4):
        sp(f'buffer_load_dwordx4 v{vS + i//2}, {srd(SX)}, s{sT0} offen offset:{1024*r} lds', tag='spx')
sp(f'''
s_mov_b32 m0, {L_R}
s_lshl_b32 s{sT2}, s{sCB1}, 7
global_load_lds_dwordx4 v{vL16}, {ptr(P_GW)}
''', tag='spx')
sp(f'''
s_lshl_b32 s{sT0}, s{sWV}, 5
s_add_u32 s{sT0}, s{sT0}, s{sT2}
v_lshl_add_u32 v{t}, v{vN}, 1, s{sT0}
global_load_ushort v{vB1}, v{t}, {ptr(P_B1)}
v_lshlrev_b32 v{t}, 1, v{vG}
v_and_b32 v{t+1}, 7, v{vL}
v_xor_b32 v{t}, v{t}, v{t+1}
v_lshrrev_b32 v{t+1}, 3, v{vL}
v_mul_u32_u24 v{t+1}, 3584, v{t+1}
v_lshl_add_u32 v{vS+2}, v{t}, 4, v{t+1}
s_mul_i32 s{sWb}, s{sWV}, {128*3584}
s_add_u32 s{sWb}, s{sWb}, s{sT2}
''')
for i in range(16):
    sp(f's_add_u32 m0, s{sT1}, {L_W + 1024*i}')
    sp(f'buffer_load_dwordx4 v{vS+2}, {srd(SW1)}, s{sWb} offen lds', tag='spw')
    sp(f's_add_u32 s{sWb}, s{sWb}, {8*3584}')
nonce_issue(sp, vNON)
sp.add(idle_setup())
sp(f's_mov_b32 s{sFH}, {WS_FL + FDUMMY * 128}')
vF = V.alloc(128, 4)
vD = V.alloc(16, 4)
vONE = V.alloc(4, 4)
vTOK = V.alloc()
sp(f'''
v_and_b32 v{t}, 7, v{vN}
v_lshrrev_b32 v{t+1}, 3, v{vN}
v_lshl_add_u32 v{t+1}, v{t}, 3, v{t+1}
s_lshl_b32 s{sT0}, s{sWV}, 1
v_add_u32 v{vTOK}, s{sT0}, v{t+1}
v_lshlrev_b32 v{t}, 1, v{t}
v_xor_b32 v{t}, v{t}, v{vG}
v_lshlrev_b32 v{t+1}, 10, v{vTOK}
v_lshlrev_b32 v{t+6}, 4, v{vG}
v_add_u32 v{t+6}, {L_R}, v{t+6}
''')
for k in range(4):
    sp(f'v_xor_b32 v{t+2+k}, {4*k}, v{t}')
    sp(f'v_lshl_add_u32 v{t+2+k}, v{t+2+k}, 4, v{t+1}')
    sp(f'v_mov_b32 v{vONE+k}, 0x3f803f80')
sp.wait('spx')
sp('s_barrier')
stamp(sp, 'par')
for s_ in range(16):
    sp(f'ds_read_b128 {vr(vF+8*s_,4)}, v{t+2+s_%4} offset:{256*(s_//4)}')
    sp(f'ds_read_b128 {vr(vF+8*s_+4,4)}, v{t+6} offset:{64*s_}')
for s_ in range(16):
    x, gw = vr(vF + 8 * s_, 4), vr(vF + 8 * s_ + 4, 4)
    for k, a in enumerate((x, vr(vONE, 4), gw)):
        sp(f'v_mfma_f32_16x16x32_bf16 {vr(vD+4*k,4)}, {a}, {x}, {vr(vD+4*k,4) if s_ else 0}')
C0 = -2.0 * math.sqrt(2.0 / math.pi) * math.log2(math.e)
C1 = C0 * 0.044715
o = vF
sp(f'''
v_and_b32 v{t}, 1, v{vL}
v_cmp_eq_u32 vcc, 1, v{t}
v_and_b32 v{t}, 2, v{vL}
v_cmp_eq_u32 s[{sT0}:{sT1}], 2, v{t}
v_cndmask_b32 v{vD}, v{vD}, v{vD+1}, vcc
v_cndmask_b32 v{vD+2}, v{vD+2}, v{vD+3}, vcc
v_cndmask_b32 v{vD}, v{vD}, v{vD+2}, s[{sT0}:{sT1}]
v_mul_f32 v{vD+4}, {f32(1/512)}, v{vD+4}
v_mul_f32 v{vD}, {f32(1/512)}, v{vD}
v_mul_f32 v{vD+8}, {f32(-math.log2(math.e))}, v{vD+8}
v_fma_f32 v{vD}, -v{vD+4}, v{vD+4}, v{vD}
v_exp_f32 v{vD+8}, v{vD+8}
v_max_f32 v{vD}, 0, v{vD}
v_add_f32 v{vD}, {f32(1e-5)}, v{vD}
v_add_f32 v{vD+8}, 1.0, v{vD+8}
v_sqrt_f32 v{o+6}, v{vD}
v_rsq_f32 v{vD+1}, v{vD}
v_rcp_f32 v{o+7}, v{vD+8}
v_mul_f32 v{o+4}, {f32(C0)}, v{vD+1}
v_mul_f32 v{vD+2}, v{vD+1}, v{vD+1}
v_mul_f32 v{o+5}, {f32(C1)}, v{vD+1}
v_mul_f32 v{o+5}, v{o+5}, v{vD+2}
v_cvt_pk_bf16_f32 v{o}, -v{vD+4}, -v{vD+4}
v_cvt_pk_bf16_f32 v{vD+5}, v{o+6}, v{o+6}
v_and_b32 v{vD+6}, 0xffff0000, v{o}
v_and_b32 v{vD+5}, 0xffff0000, v{vD+5}
v_add_f32 v{vD+6}, v{vD+6}, v{vD+4}
v_sub_f32 v{vD+7}, v{o+6}, v{vD+5}
v_cvt_pk_bf16_f32 v{o+1}, -v{vD+6}, v{vD+5}
v_cvt_pk_bf16_f32 v{o+2}, v{vD+7}, v{vZ}
v_mov_b32 v{o+3}, 0
v_lshrrev_b32 v{t}, 2, v{vN}
v_cmp_eq_u32 vcc, v{t}, v{vG}
v_lshlrev_b32 v{t}, 4, v{vTOK}
v_lshlrev_b32 v{t+1}, 2, v{vTOK}
v_mov_b32 v{t+2}, 0x7ff00000
v_cndmask_b32 v{t}, v{t+2}, v{t}, vcc
v_cndmask_b32 v{t+1}, v{t+2}, v{t+1}, vcc
s_lshl_b32 s{sT0}, s{sTB1}, 10
s_add_u32 s{sT1}, s{sT0}, {WS_TS}
s_add_u32 s{sT0}, s{sT0}, {WS_TP}
s_lshl_b32 s{sT2}, s{sTB1}, 8
s_add_u32 s{sT2}, s{sT2}, {WS_G}
buffer_store_dwordx4 {vr(o,4)}, v{t}, {srd(SWS)}, s{sT0} offen sc1
buffer_store_dwordx4 {vr(o+4,4)}, v{t}, {srd(SWS)}, s{sT1} offen sc1
buffer_store_dword v{o+7}, v{t+1}, {srd(SWS)}, s{sT2} offen sc1
''')
sp(f'''
v_lshrrev_b32 v{t}, 2, v{vL}
v_bfe_u32 v{t+1}, v{vL}, 3, 2
v_xor_b32 v{t+1}, s{sWV}, v{t+1}
v_lshlrev_b32 v{t}, 7, v{t}
v_lshl_add_u32 v{t}, v{t+1}, 5, v{t}
v_and_b32 v{t+1}, 3, v{vL}
v_lshl_add_u32 v{t}, v{t+1}, 3, v{t}
v_add_u32 v{t}, {L_W}, v{t}
''')
sp.wait('spw')
sp('s_barrier')
for s_ in range(32):
    sp(f'ds_read_b64_tr_b16 {vr(vF+16+2*s_,2)}, v{t} offset:{2048*s_}')
for s_ in range(16):
    sp(f'v_mfma_f32_16x16x32_bf16 {vr(vD+12,4)}, {vr(vONE,4)}, {vr(vF+16+4*s_,4)}, {vr(vD+12,4) if s_ else 0}')
o = vF + 8
sp(f'''
v_cmp_gt_u32 vcc, 16, v{vL}
v_mov_b32 v{t+2}, 0x7ff00000
s_lshl2_add_u32 s{sT0}, s{sCB1}, s{sWV}
s_lshl_b32 s{sT0}, s{sT0}, 8
s_add_u32 s{sT0}, s{sT0}, {WS_FP}
v_cndmask_b32 v{t}, v{t+2}, v{vL16}, vcc
v_mov_b32 v{o+2}, v{vB1}
v_mov_b32 v{o+3}, 0
v_cvt_pk_bf16_f32 v{o+1}, v{vD+12}, v{vZ}
v_lshlrev_b32 v{t+3}, 16, v{o+1}
v_lshl_or_b32 v{o+1}, v{vB1}, 16, v{o+1}
v_sub_f32 v{t+4}, v{vD+12}, v{t+3}
v_cvt_pk_bf16_f32 v{o}, v{t+3}, v{t+4}
''')
sp(f'buffer_store_dwordx4 {vr(o,4)}, v{t}, {srd(SWS)}, s{sT0} offen sc1', tag='fpst')
nonce_check(sp, vNON)
sp(f'''
v_and_b32 v{t}, 7, v{vL}
v_lshrrev_b32 v{t+1}, 3, v{vL}
v_lshlrev_b32 v{t+2}, 1, v{t}
v_xor_b32 v{t+2}, v{t+2}, v{t+1}
v_lshlrev_b32 v{t+3}, 13, v{t}
s_lshl_b32 s{sT0}, s{sWV}, 8
v_lshl_add_u32 v{t+2}, v{t+2}, 4, v{t+3}
v_add_u32 v{t+2}, s{sT0}, v{t+2}
v_xor_b32 v{t+3}, 128, v{t+2}
v_lshlrev_b32 v{t+1}, 15, v{t+1}
v_lshl_add_u32 v{t+1}, v{t}, 4, v{t+1}
s_lshl_b32 s{sT0}, s{sWV}, 19
s_lshl_b32 s{sT1}, s{sTB1}, 7
s_add_u32 s{sT0}, s{sT0}, s{sT1}
s_add_u32 s{sT0}, s{sT0}, {WS_UT}
s_add_u32 s{sT5}, s{sT1}, {WS_FL + FA * 128}
''')
fin, fout = vF + 16, vF + 16 + 64
for h in range(2):
    for tk in range(8):
        sp(f'ds_read_b128 {vr(fin+32*h+4*tk,4)}, v{t+2+h} offset:{1024*tk}')
sp.wait('fpst')
sp('s_barrier')
flag_store(sp, vNON, f's{sT5}')
stamp(sp, 'kgen')
for h in range(2):
    for c in range(8):
        d = fout + 4 * ((8 * h + c) % 8)
        for k in range(4):
            sp(f'v_perm_b32 v{d+k}, v{fin+32*h+4*(2*k+1)+c//2}, v{fin+32*h+4*(2*k)+c//2}, s{sSEL0 + c%2}')
        sp(f's_add_u32 s{sT1}, s{sT0}, {(64*h + c)*4096}')
        sp(f'buffer_store_dwordx4 {vr(d,4)}, v{t+1}, {srd(SWS)}, s{sT1} offen sc1', tag='utst')
for b, n in ((vS, 4), (vB1, 1), (vF, 128), (vD, 16), (vONE, 4), (vTOK, 1)):
    V.release(b, n)
sp(f's_add_u32 s{sT5}, s{sT5}, {(FU - FA) * 128}')
sp.wait('utst')
sp('s_barrier')
flag_store(sp, vNON, f's{sT5}')
stamp(sp, 'g1s0')
sp.add(w2t_poll_issue())
sp.add(kgen())
poll_check(sp, vPF, vPA, f's{sFW}')
sp.add(u_poll_issue())
for g in w2t_loads()[:NW2_PRE]:
    sp.add(g)
sp.add(u_dma())
stamp(sp, 'gelu')
sp('s_branch Ljoin')
for b, n in ((vGA, 9), (vTA, 4), (vRW, 4), (vRR, 1), (vPAR, 6)):
    V.release(b, n)

com = Seq()
com('Ljoin:')
vFa, vGa = V.alloc(), V.alloc()
vCF = V.alloc(128, 4)
aC = 224
com(f'''
s_mul_i32 s{sT0}, s{sWV}, {UP}
v_lshl_add_u32 v{t}, v{vL}, 3, s{sT0}
v_mov_b32 v{t+2}, 0
v_mov_b32 v{t+3}, 0
ds_write_b64 v{t}, {vr(t+2,2)} offset:{L_U}
s_lshl2_add_u32 s{sT0}, s{sBH}, s{sT0}
s_add_u32 s{sT0}, s{sT0}, {L_U + 508}
v_mov_b32 v{t+1}, s{sT0}
v_and_b32 v{t+4}, 1, v{vL}
v_lshrrev_b32 v{t+5}, 1, v{vN}
s_and_b32 s{sT0}, s{sWV}, 2
s_mul_i32 s{sT1}, s{sT0}, {RP}
s_lshl_b32 s{sT2}, s{sBH}, 8
s_sub_u32 s{sT1}, s{sT1}, s{sT2}
s_add_u32 s{sT1}, s{sT1}, {L_R + 56 + 256}
v_mul_u32_u24 v{vFa}, {RP}, v{t+4}
v_lshl_add_u32 v{vFa}, v{vG}, 4, v{vFa}
v_lshlrev_b32 v{t+6}, 3, v{t+5}
v_sub_u32 v{vFa}, v{vFa}, v{t+6}
v_add_u32 v{vFa}, s{sT1}, v{vFa}
s_mul_i32 s{sT1}, s{sT0}, {UP}
s_sub_u32 s{sT1}, s{sT1}, s{sT2}
s_add_u32 s{sT1}, s{sT1}, {L_U + 512 - 192}
v_mul_u32_u24 v{vGa}, {UP}, v{t+4}
v_lshl_add_u32 v{vGa}, v{vG}, 4, v{vGa}
v_lshl_add_u32 v{vGa}, v{t+5}, 6, v{vGa}
v_add_u32 v{vGa}, s{sT1}, v{vGa}
''')
com.wait('udma')
com(f'ds_write_b32 v{t+1}, v{vZ}')
com.wait('*lgkm')
com('s_barrier')
stamp(com, 'cv0')


def cv_reads(bb):
    b = vCF + 64 * (bb & 1)
    r = []
    for a in range(8):
        r.append(f'ds_read_b128 {vr(b+32+4*a,4)}, v{vGa} offset:{512*a + 64*(3-bb)}')
        for hh in range(2):
            r.append(f'ds_read_b64 {vr(b+4*a+2*hh,2)}, v{vFa} offset:{64*(59-8*a-bb) + 8*hh}')
    return r


def cv_mfma(bb):
    b = vCF + 64 * (bb & 1)
    r, first = [], set()
    order = sorted(((a, d) for a in range(8) for d in range(8 - a)), key=lambda x: (max(x), x[0] + x[1]))
    for a, d in order:
        c = aC + 4 * (a + d)
        cc = '0' if (bb == 0 and a + d not in first) else ar(c, 4)
        first.add(a + d)
        r.append(f'v_mfma_f32_16x16x32_bf16 {ar(c,4)}, {vr(b+4*a,4)}, {vr(b+32+4*d,4)}, {cc}')
    return r


rest = w2g[NW2_PRE:]
hflag = Seq()
hflag.wait('hst?')
flag_store(hflag, vNON, f's{sFH}')
cvs = Seq()
for x in cv_reads(0):
    cvs(x)
for bb in range(4):
    m = cv_mfma(bb)
    r = cv_reads(bb + 1) if bb < 3 else []
    for k in range(36):
        cvs(m[k])
        if k < len(r):
            cvs(r[k])
n0 = 24 + 30
com.add(sprinkle(cvs, rest[:6] + [hflag] + rest[6:], 26, len(cvs) - 20))
stamp(com, 'cv1')
com(f'''
v_min_u32 v{vPA}, 6, v{vL}
v_lshlrev_b32 v{vPA}, 7, v{vPA}
s_mul_i32 s{sT0}, s{sTB2}, 28
s_mul_i32 s{sT1}, s{sWV}, 7
s_add_u32 s{sT0}, s{sT0}, s{sT1}
s_lshl_b32 s{sT4}, s{sT0}, 7
s_add_u32 s{sT4}, s{sT4}, {WS_FL + FH * 128}''')
poll_issue(com, vPF, vPA, f's{sT4}')
com(f'''
s_mul_i32 s{sT0}, s{sWV}, {8*CBP}
s_add_u32 s{sT0}, s{sT0}, {L_CB}
v_lshl_add_u32 v{t}, v{vG}, 4, v{vL16}
v_add_u32 v{t}, s{sT0}, v{t}
v_lshrrev_b32 v{t+1}, 5, v{vL}
v_mul_u32_u24 v{t+1}, {CBP}, v{t+1}
v_and_b32 v{t+2}, 3, v{vL}
v_mul_u32_u24 v{t+2}, 272, v{t+2}
v_bfe_u32 v{t+3}, v{vL}, 2, 3
v_lshl_add_u32 v{t+1}, v{t+3}, 5, v{t+1}
s_and_b32 s{sT0}, s{sWV}, 2
s_lshl1_add_u32 s{sT0}, s{sT0}, s{sBH}
s_mul_i32 s{sT0}, s{sT0}, {4*CBP}
s_add_u32 s{sT0}, s{sT0}, {L_CB}
v_add3_u32 v{t+1}, v{t+1}, v{t+2}, s{sT0}
''')
for c in range(8):
    com(f'ds_write_b128 v{t}, {ar(aC+4*c,4)} offset:{CBP*c}')
com(f'''
s_lshl1_add_u32 s{sT0}, s{sCH}, s{sBH}
s_lshl_b32 s{sT5}, s{sT0}, 7
s_add_u32 s{sT5}, s{sT5}, {WS_FL + FC * 128}
s_lshl_b32 s{sT0}, s{sT0}, 11
s_add_u32 s{sT0}, s{sT0}, {WS_AT}
''')
com.wait('*lgkm')
com('s_barrier')
q = vCF
for si in range(2):
    for e in range(2):
        for p in range(2):
            com(f'ds_read_b128 {vr(q+16*si+8*e+4*p,4)}, v{t+1} offset:{2*CBP*si + 16*e + 8*CBP*p}')
for si in range(2):
    b = q + 16 * si
    for e in range(2):
        for k in range(2):
            com(f'v_pk_add_f32 {vr(b+8*e+2*k,2)}, {vr(b+8*e+2*k,2)}, {vr(b+8*e+4+2*k,2)}')
    o = q + 32 + 4 * si
    for k in range(2):
        com(f'v_cvt_pk_bf16_f32 v{o+2*k}, v{b+8+2*k}, v{b+8+2*k+1}')
        com(f'v_cvt_pk_bf16_f32 v{o+2*k+1}, v{b+2*k}, v{b+2*k+1}')
    com(f'buffer_store_dwordx4 {vr(o,4)}, v{vL16}, {srd(SWS)}, s{sT0} offen offset:{1024*si} sc1', tag='atst')
stamp(com, 'cv2')
V.release(vCF, 128)
V.release(vFa)
V.release(vGa)

vH = V.alloc(112, 4)
vA2 = V.alloc(32, 4)
vP = V.alloc(48, 4)
vE = V.alloc(24, 4)
vPW, vPR, vAr, vOa = V.alloc(), V.alloc(), V.alloc(), V.alloc()
poll_check(com, vPF, vPA, f's{sT4}')
stamp(com, 'hok')


def h_loads(sg):
    g = []
    for ks in range(14):
        s = Seq()
        if ks == 0:
            s(f'''
s_add_u32 s{sT0}, s{sWV}, {sg + 1}
s_and_b32 s{sT0}, s{sT0}, 3
s_lshl2_add_u32 s{sT0}, s{sTB2}, s{sT0}
s_mul_i32 s{sT0}, s{sT0}, 56
s_mul_i32 s{sT1}, s{sWV}, 14
s_add_u32 s{sT0}, s{sT0}, s{sT1}
s_lshl_b32 s{sHl}, s{sT0}, 10
s_add_u32 s{sHl}, s{sHl}, {WS_H}''')
        s(f'buffer_load_dwordx4 {vr(vH+56*(sg&1)+4*ks,4)}, v{vL16}, {srd(SWS)}, s{sHl} offen offset:{1024*(ks%4)} sc1')
        if ks % 4 == 3:
            s(f's_add_u32 s{sHl}, s{sHl}, 4096')
        g.append(s)
    return g


for g in h_loads(0):
    com.add(g)
com.wait('atst')
flag_store(com, vNON, f's{sT5}')
hl1 = h_loads(1)
com(f'''
s_mul_i32 s{sT0}, s{sWV}, {3*4096}
s_add_u32 s{sT0}, s{sT0}, {L_PB}
v_add_u32 v{vPR}, s{sT0}, v{vL16}
v_lshrrev_b32 v{t}, 1, v{vN}
v_lshrrev_b32 v{t+1}, 1, v{vG}
s_lshl_b32 s{sT0}, s{sWV}, 1
v_or_b32 v{t+1}, s{sT0}, v{t+1}
v_xor_b32 v{t}, v{t}, v{t+1}
v_lshlrev_b32 v{t}, 4, v{t}
v_lshl_add_u32 v{t}, v{vN}, 7, v{t}
v_and_b32 v{t+1}, 1, v{vG}
v_lshl_add_u32 v{t}, v{t+1}, 3, v{t}
v_add_u32 v{vAr}, {L_AT}, v{t}
v_lshlrev_b32 v{t}, 12, v{vG}
v_lshl_add_u32 v{vOa}, v{vN}, 3, v{t}
''')
apoll = Seq()
apoll(f'''
v_lshlrev_b32 v{vPA}, 10, v{vN}
s_lshl_b32 s{sT2}, s{sNB}, 6
s_add_u32 s{sT2}, s{sT2}, s{sWV}
s_lshr_b32 s{sT3}, s{sTB2}, 4
s_lshl1_add_u32 s{sT4}, s{sT2}, s{sT3}
s_lshl_b32 s{sT4}, s{sT4}, 7
s_add_u32 s{sT4}, s{sT4}, {WS_FL + FC * 128}''')
poll_issue(apoll, vPF, vPA, f's{sT4}')
adma = Seq()
poll_check(adma, vPF, vPA, f's{sT4}')
adma(f'''
v_lshrrev_b32 v{t}, 3, v{vL}
v_and_b32 v{t+1}, 7, v{vL}
v_xor_b32 v{t+1}, v{t+1}, v{vG}
v_lshlrev_b32 v{t}, 14, v{t}
v_lshl_add_u32 v{t}, v{t+1}, 4, v{t}
v_xor_b32 v{t+1}, 64, v{t}
s_lshl_b32 s{sT2}, s{sNB}, 6
s_add_u32 s{sT2}, s{sT2}, s{sWV}
s_lshl_b32 s{sT2}, s{sT2}, 12
s_lshl_b32 s{sT3}, s{sTB2}, 7
s_add_u32 s{sT2}, s{sT2}, s{sT3}
s_add_u32 s{sT2}, s{sT2}, {WS_AT}
s_add_u32 s{sT3}, s{sT2}, {8*16384}
s_lshl_b32 s{sT5}, s{sWV}, 11
s_add_u32 m0, s{sT5}, {L_AT}''')
adma(f'buffer_load_dwordx4 v{t}, {srd(SWS)}, s{sT2} offen sc1 lds', tag='adma')
adma(f's_add_u32 m0, s{sT5}, {L_AT + 1024}')
adma(f'buffer_load_dwordx4 v{t+1}, {srd(SWS)}, s{sT3} offen sc1 lds', tag='adma')
adma(f'''
v_lshlrev_b32 v{t+2}, 4, v{vG}
s_lshl2_add_u32 s{sT2}, s{sTB2}, s{sWV}
s_lshl_b32 s{sT2}, s{sT2}, 6
s_add_u32 s{sT2}, s{sT2}, {WS_G}
buffer_load_dwordx4 {vr(vE,4)}, v{t+2}, {srd(SWS)}, s{sT2} offen sc1
s_lshl_b32 s{sT3}, s{sNB}, 7
v_lshl_add_u32 v{t+3}, v{vN}, 3, s{sT3}
global_load_dwordx2 {vr(vE+4,2)}, v{t+3}, {ptr(P_B2)}''')


def part_write(sg):
    s = Seq()
    s(f'''
s_add_u32 s{sT2}, s{sWV}, {sg + 1}
s_and_b32 s{sT2}, s{sT2}, 3
s_mul_i32 s{sT2}, s{sT2}, {3*4096}
s_add_u32 s{sT2}, s{sT2}, {L_PB + 4096*sg}
v_add_u32 v{vPW}, s{sT2}, v{vL16}''')
    g = [s]
    for j in range(4):
        s = Seq()
        s(f'ds_write_b128 v{vPW}, {vr(vA2+16*(sg&1)+4*j,4)} offset:{1024*j}')
        g.append(s)
    return g


fin = []
s = Seq()
s.wait('adma', '*lgkm')
s('s_barrier')
fin.append(s)
for k in range(12):
    fin.append(Seq()(f'ds_read_b128 {vr(vP+4*k,4)}, v{vPR} offset:{1024*k}'))
for j in range(4):
    fin.append(Seq()(f'ds_read_b64 {vr(vE+8+2*j,2)}, v{vAr} offset:{2048*j}'))
for j in range(4):
    src = vE + 4 + j // 2
    fin.append(Seq()(f'v_and_b32 v{vE+16+j}, 0xffff0000, v{src}' if j % 2 else f'v_lshlrev_b32 v{vE+16+j}, 16, v{src}'))
for i in range(4):
    fin.append(Seq()(f'v_sub_f32 v{vE+20+i}, 1.0, v{vE+i}'))
for j in range(4):
    for i in range(4):
        p = vP + 4 * j + i
        src = vE + 8 + 2 * j + i // 2
        s = Seq()
        s(f'v_add_f32 v{p}, v{p}, v{p+16}')
        s(f'v_add_f32 v{p+32}, v{p+32}, v{vE+16+j}')
        s(f'v_and_b32 v{p+16}, 0xffff0000, v{src}' if i % 2 else f'v_lshlrev_b32 v{p+16}, 16, v{src}')
        fin.append(s)
        s = Seq()
        s(f'v_add_f32 v{p}, v{p}, v{p+32}')
        s(f'v_mul_f32 v{p+16}, v{vE+i}, v{p+16}')
        s(f'v_fma_f32 v{p}, v{p}, v{vE+20+i}, v{p+16}')
        fin.append(s)

for g in hl1:
    com.add(g)
for sg in range(4):
    seg = Seq()
    nxt = h_loads(sg + 2) if sg < 2 else []
    for ks in range(14):
        for j in range(4):
            a = vA2 + 16 * (sg & 1) + 4 * j
            seg(f'v_mfma_f32_16x16x32_bf16 {vr(a,4)}, {vr(vH+56*(sg&1)+4*ks,4)}, {ar(16*ks+4*j,4)}, {vr(a,4) if ks else 0}')
        if nxt:
            seg.add(nxt[ks])
    ex = part_write(sg - 1) if sg else []
    if sg == 1:
        seg.add(apoll)
    if sg == 2:
        ex = ex + [adma]
    if sg == 3:
        com.add(sprinkle(seg, ex + fin, 6, len(seg) - 2))
    else:
        com.add(sprinkle(seg, ex, 6, 30))
    stamp(com, f'g2s{sg}')
com(f'''
s_lshl2_add_u32 s{sT0}, s{sTB2}, s{sWV}
s_lshl_b32 s{sT0}, s{sT0}, 14
s_lshl_b32 s{sT1}, s{sNB}, 7
s_add_u32 s{sT0}, s{sT0}, s{sT1}
''')
for i in range(4):
    for j in range(4):
        com(f'v_fma_f32 v{vP+4*j+i}, v{vA2+16+4*j+i}, v{vE+20+i}, v{vP+4*j+i}')
    com(f'v_cvt_pk_bf16_f32 v{vP+32+2*i}, v{vP+i}, v{vP+4+i}')
    com(f'v_cvt_pk_bf16_f32 v{vP+33+2*i}, v{vP+8+i}, v{vP+12+i}')
    com(f'buffer_store_dwordx2 {vr(vP+32+2*i,2)}, v{vOa}, {srd(SOUT)}, s{sT0} offen offset:{1024*i}')
if OPT['stamps']:
    com.wait('*vm')
    stamp(com, 'end')
    com(f'''
s_memrealtime s[{sSTAMP}:{sSTAMP+1}]
v_writelane_b32 v{vST}, s{sSTAMP}, 63
s_lshl2_add_u32 s{sT0}, s2, s{sWV}
s_lshl_b32 s{sT0}, s{sT0}, 8
s_add_u32 s{sT0}, s{sT0}, {WS_ST}
v_lshlrev_b32 v{t}, 2, v{vL}
buffer_store_dword v{vST}, v{t}, {srd(SWS)}, s{sT0} offen''')
com('Lend:')
com('s_endpgm')

paths = (pro.l + main.l + com.l, pro.l + sp.l + com.l)
for p in paths:
    resolve_waits(p)
for p in paths:
    resolve_waits(p)
for p in paths:
    fix_hazards(p)

ref = open('gated_mix__ssm_conv_s4d__mixer_channel_mlp__prompt.s.ref').read().split('\n')
head = [l for l in ref if l.startswith(';') and '@launch' not in l]
txt = '\n'.join(head) + f'\n; @launch grid=(256,1,1) block=(256,1,1) lds={LDS_SIZE}\n'
txt += f'''.amdgcn_target "amdgcn-amd-amdhsa--gfx950"
.text
.globl {NAME}
.p2align 8
.type {NAME},@function
{NAME}:
'''
txt += render(pro.l) + render(main.l) + render(com.l) + render(sp.l) + ''.join(outline)
txt += f'''Lcode_end:
    s_endpgm
.section .rodata,"a"
.p2align 6
.amdhsa_kernel {NAME}
  .amdhsa_next_free_vgpr 512
  .amdhsa_next_free_sgpr 102
  .amdhsa_accum_offset 256
  .amdhsa_group_segment_fixed_size 0
  .amdhsa_kernarg_size 128
  .amdhsa_user_sgpr_count 2
  .amdhsa_user_sgpr_kernarg_segment_ptr 1
  .amdhsa_system_sgpr_workgroup_id_x 1
.end_amdhsa_kernel
'''
open(sys.argv[1], 'w').write(txt)
if OPT['stamps']:
    open(sys.argv[1] + '.stamps', 'w').write(' '.join(stamp_names))
print('vgpr high water', V.hw, 'instr', sum(1 for p in (pro, main, com, sp) for i in p.l if i.kind != 'meta'))
```

```python
import sys, struct, math
from asmlib import *

NAME = 'gated_mix__ssm_conv_s4d__mixer_channel_mlp__prompt_kernel'
OPT = dict(stamps=0, rot=1, nokgen=0, x=0, probe=-1)
for a in sys.argv[2:]:
    k, v = a.split('=')
    OPT[k] = int(v)


def f32(x):
    return '0x%08x' % struct.unpack('<I', struct.pack('<f', x))[0]


WS_FL = 0x0
FA, FU, FW, FH, FC, FDUMMY = 0, 32, 64, 960, 1856, 2880
WS_TP = 0x80000
WS_TS = 0x88000
WS_G = 0x90000
WS_FP = 0x98000
WS_ST = 0xA0000
WS_UT = 0x200000
WS_AT = 0x400000
WS_W2T = 0x600000
WS_H = 0x800000
WS_SIZE = 0x10000000
L_X, L_W = 0, 65536
L_R = 131072
L_TB = 148480
TBP = 3328
RP = 4224
L_U, UP = 0, 4640
L_AT = 20480
L_CB, CBP = 32768, 1088
L_PB = 69632
LDS_SIZE = 161792

P_U, P_LA, P_AI, P_CR, P_CI, P_DT, P_DS, P_BX, P_W1, P_B1, P_W2, P_B2, P_GW, P_OUT, P_DBG, P_WS = [4 + 2 * i for i in range(16)]
SX, SW1, SW2, SWS, SOUT = 36, 40, 44, 48, 52
sXCD, sJ, sWV, sNON = 56, 57, 58, 59
sT0, sT1, sT2, sT3 = 60, 61, 62, 63
sM, sXb, sWb, sKC, sXk, sWk = 64, 65, 66, 67, 68, 69
sFW, sW2o, sHst, sFH, sTB1, sCB1 = 70, 71, 72, 73, 74, 75
sSEL0, sSEL1, sW2l, sHl, sCNT, sTB2, sNB = 76, 77, 78, 79, 80, 81, 82
sCH, sBH, sT4, sT5 = 83, 84, 85, 86
sSTAMP = 88
srd = lambda b: 's[%d:%d]' % (b, b + 3)
ptr = lambda b: 's[%d:%d]' % (b, b + 1)

V = Regs('v', 0, 256)
vTID, vL, vL16, vZ, vST = [V.alloc() for _ in range(5)]
vN, vG = V.alloc(), V.alloc()
vNON = V.alloc()
vT = V.alloc(8, 4)
vPF, vPA, vPF2, vPA2 = [V.alloc() for _ in range(4)]

outline = []
nstamp = [0]
stamp_names = []


def stamp(s, name):
    if not OPT['stamps']:
        return
    if name not in stamp_names:
        stamp_names.append(name)
    k = stamp_names.index(name)
    s(f's_memtime s[{sSTAMP}:{sSTAMP+1}]')
    s(f'v_writelane_b32 v{vST}, s{sSTAMP}, {k}')


npoll = [0]


def poll_issue(s, vflag, vaddr, soff):
    s(f'buffer_load_dword v{vflag}, v{vaddr}, {srd(SWS)}, {soff} offen sc1')


def poll_check(s, vflag, vaddr, soff):
    k = npoll[0]
    npoll[0] += 1
    s(f'v_cmp_ne_u32 vcc, s{sNON}, v{vflag}')
    s(f's_cbranch_vccnz Lretry{k}')
    s(f'Lback{k}:')
    outline.append(f'''Lretry{k}:
    s_mov_b32 s{sCNT}, 0x40000
Lloop{k}:
    buffer_load_dword v{vflag}, v{vaddr}, {srd(SWS)}, {soff} offen sc1
    s_waitcnt vmcnt(0)
    v_cmp_ne_u32 vcc, s{sNON}, v{vflag}
    s_cbranch_vccz Lback{k}
    s_sub_u32 s{sCNT}, s{sCNT}, 1
    s_cbranch_scc0 Lloop{k}
    s_branch Lback{k}
''')


def nonce_issue(s, v):
    s(f'global_load_dword v{v}, v{vZ}, {ptr(P_DBG)} sc1')


def nonce_check(s, v):
    k = npoll[0]
    npoll[0] += 1
    s(f'v_readfirstlane_b32 s{sNON}, v{v}')
    s(f's_cmp_eq_u32 s{sNON}, 0')
    s(f's_cbranch_scc1 Lretry{k}')
    s(f'Lback{k}:')
    outline.append(f'''Lretry{k}:
    s_mov_b32 s{sCNT}, 0x40000
Lloop{k}:
    global_load_dword v{v}, v{vZ}, {ptr(P_DBG)} sc1
    s_waitcnt vmcnt(0)
    v_readfirstlane_b32 s{sNON}, v{v}
    s_nop 3
    s_cmp_lg_u32 s{sNON}, 0
    s_cbranch_scc1 Lback{k}
    s_sub_u32 s{sCNT}, s{sCNT}, 1
    s_cbranch_scc0 Lloop{k}
    s_branch Lback{k}
''')


def flag_store(s, vnon, soff):
    s(f'buffer_store_dword v{vnon}, v{vZ}, {srd(SWS)}, {soff} offen sc1')


pro = Seq()
vPAR = V.alloc(6, 1)
pro(f'''
s_cmp_ge_u32 s2, 0x100
s_cbranch_scc1 Lend
s_load_dwordx16 s[4:19], s[0:1], 0
s_load_dwordx16 s[20:35], s[0:1], 64
s_getpc_b64 s[{sT2}:{sT3}]
Lpc:
v_lshrrev_b32 v{vT}, 6, v{vTID}
v_and_b32 v{vL}, 63, v{vTID}
v_readfirstlane_b32 s{sWV}, v{vT}
v_mov_b32 v{vZ}, 0
s_and_b32 s{sXCD}, s2, 7
s_lshr_b32 s{sJ}, s2, 3
s_lshl2_add_u32 s{sT0}, s{sJ}, s{sWV}
s_lshl_b32 s{sT0}, s{sT0}, 8
v_and_b32 v{vT+1}, 1, v{vL}
v_lshl_add_u32 v{vT+1}, v{vT+1}, 7, s{sT0}
v_min_u32 v{vT+1}, Lcode_end-Lpc-4, v{vT+1}
global_load_dword v{vT+7}, v{vT+1}, s[{sT2}:{sT3}]
s_lshl_b32 s{sT0}, s2, 9
v_lshl_add_u32 v{vT+2}, v{vTID}, 1, s{sT0}
v_lshrrev_b32 v{vT+3}, 7, v{vTID}
s_lshl_b32 s{sT0}, s2, 2
v_lshl_add_u32 v{vT+3}, v{vT+3}, 1, s{sT0}
v_lshlrev_b32 v{vL16}, 4, v{vL}
v_and_b32 v{vN}, 15, v{vL}
v_lshrrev_b32 v{vG}, 4, v{vL}
s_or_b32 s{sT0}, s2, s{sWV}
s_waitcnt lgkmcnt(0)
s_cmp_eq_u32 s{sT0}, 0
s_cbranch_scc1 Lnonce
Lnonce_back:
global_load_ushort v{vPAR+0}, v{vT+2}, {ptr(P_LA)}
global_load_ushort v{vPAR+4}, v{vT+3}, {ptr(P_DT)}
global_load_ushort v{vPAR+1}, v{vT+2}, {ptr(P_AI)}
global_load_ushort v{vPAR+2}, v{vT+2}, {ptr(P_CR)}
global_load_ushort v{vPAR+3}, v{vT+2}, {ptr(P_CI)}
global_load_ushort v{vPAR+5}, v{vT+3}, {ptr(P_DS)}
''')
outline.append(f'''Lnonce:
    s_memrealtime s[{sT0}:{sT1}]
    s_waitcnt lgkmcnt(0)
    s_or_b32 s{sT0}, s{sT0}, 1
    v_mov_b32 v{vT+6}, s{sT0}
    global_store_dword v{vZ}, v{vT+6}, {ptr(P_DBG)} sc1
    s_branch Lnonce_back
''')
if OPT['stamps']:
    pro(f'v_mov_b32 v{vST}, 0')
    pro(f's_memrealtime s[{sSTAMP}:{sSTAMP+1}]')
    pro(f'v_writelane_b32 v{vST}, s{sSTAMP}, 62')
stamp(pro, 'start')
for b, p, n in ((SX, P_U, 0x200000), (SW1, P_W1, 512 * 3584), (SW2, P_W2, 1792 * 1024), (SWS, P_WS, WS_SIZE), (SOUT, P_OUT, 0x200000)):
    pro(f'''
s_mov_b32 s{b}, s{p}
s_mov_b32 s{b+1}, s{p+1}
s_mov_b32 s{b+2}, {n}
s_mov_b32 s{b+3}, 0x20000''')
if OPT['probe'] >= 0:
    if OPT['probe'] == 999:
        pro(f'''
s_lshl_b32 s{sT0}, s2, 13
v_lshl_add_u32 v{vT}, v{vTID}, 4, s{sT0}
global_load_dwordx4 v[100:103], v{vT}, {ptr(P_BX)}
v_add_u32 v{vT}, 4096, v{vT}
global_load_dwordx4 v[104:107], v{vT}, {ptr(P_BX)}
s_waitcnt vmcnt(0)''')
    elif OPT['probe'] == 998:
        pro('s_waitcnt vmcnt(0)')
    else:
        pro(f'''
s_lshl_b32 s{sT0}, s2, 15
s_add_u32 s{sT0}, s{sT0}, {OPT['probe'] << 20}
v_lshlrev_b32 v{vT}, 4, v{vTID}''')
        for i in range(8):
            pro(f'buffer_load_dwordx4 v[{100+4*i}:{103+4*i}], v{vT}, {srd(SWS)}, s{sT0} offen')
            pro(f's_add_u32 s{sT0}, s{sT0}, 4096')
        pro('s_waitcnt vmcnt(0)')
pro(f'''
s_lshl_b32 s{sM}, s{sWV}, 10
s_mov_b32 s{sSEL0}, 0x05040100
s_mov_b32 s{sSEL1}, 0x07060302
s_cmp_ge_u32 s{sJ}, 28
s_cbranch_scc1 Lspare
''')


vGA = V.alloc(9, 1)
vTA = V.alloc(4, 1)
vRW = V.alloc(4, 1)
vRR = V.alloc()


def idle_setup():
    s = Seq()
    t = vT
    s(f'''
v_lshlrev_b32 v{t+4}, 3, v{vTID}
s_movk_i32 s{sT0}, 128
s_mov_b32 s{sT1}, {L_TB + 16}
''')
    for i in range(9):
        g = vGA + i
        s(f'v_sub_u32 v{g}, {2047 - i}, v{t+4}')
        if i == 8:
            s(f'v_max_i32 v{t+5}, 0, v{g}')
            s(f'v_cvt_f32_u32 v{t+5}, v{t+5}')
        else:
            s(f'v_cvt_f32_u32 v{t+5}, v{g}')
        s(f'''
v_cvt_pk_bf16_f32 v{t+5}, v{t+5}, v{vZ}
v_add_u32 v{t+5}, {128 - 0x4300}, v{t+5}
v_med3_i32 v{g}, v{t+5}, v{g}, s{sT0}
v_lshl_add_u32 v{g}, v{g}, 2, s{sT1}''')
    s(f'''
s_and_b32 s{sBH}, s{sWV}, 1
s_mul_i32 s{sT0}, s{sWV}, {TBP}
s_add_u32 s{sT0}, s{sT0}, {L_TB}
v_mov_b32 v{t}, s{sT0}
s_add_u32 s{sT0}, s{sT0}, 16
ds_write_b32 v{t}, v{vZ} offset:12
v_lshrrev_b32 v{t}, 1, v{vG}
v_and_b32 v{t+1}, 1, v{vG}
v_lshlrev_b32 v{t+2}, 9, v{t}
v_lshl_add_u32 v{t+2}, v{t+1}, 4, v{t+2}
v_lshl_add_u32 v{t+2}, v{vN}, 5, v{t+2}
v_add_u32 v{vTA}, s{sT0}, v{t+2}
v_sub_u32 v{t+3}, 4, v{t}
v_lshlrev_b32 v{t+3}, v{t+3}, v{vN}
v_lshl_add_u32 v{t+3}, v{vG}, 8, v{t+3}
v_add_u32 v{t+3}, 1024, v{t+3}
v_add_u32 v{vTA+1}, s{sT0}, v{t+3}
v_mul_u32_u24 v{t+3}, 120, v{t}
v_add3_u32 v{vTA+2}, v{vTA+1}, v{t+3}, 8
v_lshlrev_b32 v{t+3}, 8, v{vG}
v_lshl_add_u32 v{t+3}, v{vN}, 2, v{t+3}
v_add_u32 v{t+3}, 2048, v{t+3}
v_add_u32 v{vTA+3}, s{sT0}, v{t+3}
s_mul_i32 s{sT0}, s{sWV}, 4352
s_add_u32 s{sT0}, s{sT0}, {L_R}
v_lshl_add_u32 v{vRW}, v{vL}, 2, s{sT0}
v_add_u32 v{vRW+1}, 1088, v{vRW}
v_add_u32 v{vRW+2}, 2176, v{vRW}
v_add_u32 v{vRW+3}, 3264, v{vRW}
v_mul_u32_u24 v{vRR}, 272, v{vN}
v_lshl_add_u32 v{vRR}, v{vG}, 4, v{vRR}
v_add_u32 v{vRR}, s{sT0}, v{vRR}
''')
    s(f'''
s_lshr_b32 s{sT0}, s{sJ}, 3
s_lshl2_add_u32 s{sTB2}, s{sXCD}, s{sT0}
s_and_b32 s{sNB}, s{sJ}, 7
s_mul_i32 s{sT0}, s{sNB}, 56
s_mul_i32 s{sT1}, s{sWV}, 14
s_add_u32 s{sT0}, s{sT0}, s{sT1}
s_lshl_b32 s{sW2l}, s{sT0}, 12
s_add_u32 s{sW2l}, s{sW2l}, {WS_W2T}
s_lshl_b32 s{sFW}, s{sT0}, 8
s_add_u32 s{sFW}, s{sFW}, {WS_FL + FW * 128}
s_lshl_b32 s{sCH}, s2, 1
s_lshr_b32 s{sT0}, s{sWV}, 1
s_add_u32 s{sCH}, s{sCH}, s{sT0}
''')
    return s


def kgen():
    s = Seq()
    al = []

    def A(n=1, align=None):
        b = V.alloc(n, align)
        al.append((b, n))
        return b

    la, ai, cr, ci, ld, dsk = [vPAR + i for i in range(6)]
    t = vT
    LOG2E, LOG2E_LO, LN2 = 0x3fb8aa3b, 0x32a5705f, 0x3f317218
    s(f's_mov_b32 s{sT0}, {LOG2E:#x}')
    for x in (la, ld):
        s(f'v_lshlrev_b32 v{x}, 16, v{x}')
    for k, x in enumerate((la, ld)):
        s(f'v_mul_f32 v{t+2*k}, s{sT0}, v{x}')
    for k, x in enumerate((la, ld)):
        s(f'v_fma_f32 v{t+2*k+1}, v{x}, s{sT0}, -v{t+2*k}')
    for k, x in enumerate((la, ld)):
        s(f'v_exp_f32 v{t+2*k}, v{t+2*k}')
    for k, x in enumerate((la, ld)):
        s(f'v_fmamk_f32 v{t+2*k+1}, v{x}, {LOG2E_LO:#x}, v{t+2*k+1}')
    for k, x in enumerate((la, ld)):
        s(f'v_mul_f32 v{t+2*k+1}, {LN2:#x}, v{t+2*k+1}')
    for k, x in enumerate((la, ld)):
        s(f'v_fma_f32 v{t+2*k}, v{t+2*k}, v{t+2*k+1}, v{t+2*k}')
    for x in (ai, cr, ci, dsk):
        s(f'v_lshlrev_b32 v{x}, 16, v{x}')
    s(f'''
v_cvt_pk_bf16_f32 v{t}, v{t}, v{t+2}
v_and_b32 v{ld}, 0xffff0000, v{t}
v_lshlrev_b32 v{la}, 16, v{t}
''')
    val = {}
    val['c0'] = A(2)
    s(f'''
v_mul_f32 v{la}, v{la}, v{ld}
v_mul_f32 v{ai}, v{ai}, v{ld}
v_add_f32 v{ld}, v{ld}, v{ld}
v_mul_f32 v{la}, {f32(-1.4426950408889634)}, v{la}
v_mul_f32 v{ai}, 0.15915494, v{ai}
v_mul_f32 v{val['c0']}, v{cr}, v{ld}
v_mul_f32 v{val['c0']+1}, v{ci}, v{ld}
''')
    zs = (('z8', 8.0), ('z1', 1.0), ('z128', 128.0))
    for k, (nm, p) in enumerate(zs):
        val[nm] = A(2)
        s(f'v_mul_f32 v{t+2*k}, {f32(p)}, v{la}')
        s(f'v_mul_f32 v{t+2*k+1}, {f32(p)}, v{ai}')
    for k, (nm, p) in enumerate(zs):
        s(f'v_fract_f32 v{t+2*k+1}, v{t+2*k+1}')
        s(f'v_exp_f32 v{t+2*k}, v{t+2*k}')
    for k, (nm, p) in enumerate(zs):
        s(f'v_cos_f32 v{val[nm]}, v{t+2*k+1}')
        s(f'v_sin_f32 v{val[nm]+1}, v{t+2*k+1}')
    for k, (nm, p) in enumerate(zs):
        s(f'v_pk_mul_f32 {vr(val[nm],2)}, {vr(val[nm],2)}, {vr(t+2*k,2)} op_sel_hi:[1,0]')
    acc = A(12, 4)
    s(f'''
s_lshl_b32 s{sT0}, s{sBH}, 6
s_sub_u32 s{sT0}, 64, s{sT0}
v_cmp_eq_u32 vcc, s{sT0}, v{vL}
v_mov_b32 v{acc+1}, 0
v_mov_b32 v{acc+2}, 0
v_cndmask_b32 v{acc}, 0, v{dsk}, vcc
v_mov_b32 v{acc+3}, 0
''')
    pk = {}

    def pack(nm, lo):
        pk[nm] = A()
        s(f'v_cvt_pk_bf16_f32 v{pk[nm]}, v{val[nm]}, {"-" if lo else ""}v{val[nm]+1}')

    def mults(lst):
        for d, a, b in lst:
            val[d] = A(2)
            s(f'v_pk_mul_f32 {vr(val[d],2)}, {vr(val[a],2)}, {vr(val[b],2)} op_sel_hi:[1,0]')
        for d, a, b in lst:
            s(f'v_pk_fma_f32 {vr(val[d],2)}, {vr(val[a],2)}, {vr(val[b],2)}, {vr(val[d],2)} op_sel:[1,1,0] op_sel_hi:[0,1,1] neg_lo:[1,0,0]')

    late = []

    def wr(row, a, b=None):
        base, r = vRW + row // 4, row % 4
        if b is None:
            s(f'ds_write_b32 v{base}, v{pk[a]} offset:{272*r}')
        else:
            s(f'ds_write2_b32 v{base}, v{pk[a]}, v{pk[b]} offset0:{68*r} offset1:{68*(r+1)}')
        late.extend([pk[a]] + ([pk[b]] if b else []))
        while len(late) > 6:
            x = late.pop(0)
            al.remove((x, 1))
            V.release(x)

    def rd(dst):
        for ks in range(4):
            s(f'ds_read_b128 {vr(dst+4*ks,4)}, v{vRR} offset:{64*ks}')

    fB, fA0, fA1 = A(16, 4), A(16, 4), A(16, 4)
    if OPT['stamps'] > 1:
        stamp(s, 'k0')
    pk['z0'] = A()
    s(f'v_mov_b32 v{pk["z0"]}, 0x3f80')
    pack('z8', 1)
    pack('c0', 0)
    wr(0, 'z0', 'z8')
    lo_rounds = [[('z16', 'z8', 'z8'), ('z256', 'z128', 'z128')],
                 [('z24', 'z16', 'z8'), ('z32', 'z16', 'z16')],
                 [('z40', 'z8', 'z32'), ('z48', 'z16', 'z32')],
                 [('z56', 'z24', 'z32'), ('z64', 'z32', 'z32')],
                 [('z72', 'z40', 'z32'), ('z80', 'z48', 'z32')],
                 [('z88', 'z56', 'z32'), ('z96', 'z64', 'z32')],
                 [('z104', 'z72', 'z32'), ('z112', 'z80', 'z32')]]
    for r, lst in enumerate(lo_rounds):
        lst = lst + [(f'c{r+1}', f'c{r}', 'z1')]
        mults(lst)
        for d, _, _ in lst:
            if d != 'z256':
                pack(d, d[0] == 'z')
        if r >= 1:
            wr(2 * r, f'z{16*r}', f'z{16*r+8}')
    mults([('z120', 'z88', 'z32'), ('z512', 'z256', 'z256')] + [(f'c{128+o}', f'c{o}', 'z128') for o in range(2)])
    pack('z120', 1)
    wr(14, 'z112', 'z120')
    rd(fB)
    if OPT['stamps'] > 1:
        stamp(s, 'k1')
    for k in ['z1'] + [f'z{8*b}' for b in range(1, 16)]:
        al.remove((val[k], 2))
        V.release(val[k], 2)
    for o in range(0, 8, 2):
        wr(o, f'c{o}', f'c{o+1}')
    pack('c128', 0)
    pack('c129', 0)
    wr(8, 'c128', 'c129')
    for o0 in (2, 5):
        lst = [(f'c{128+o}', f'c{o}', 'z128') for o in range(o0, o0 + 3)]
        mults(lst)
        for d, _, _ in lst:
            pack(d, 0)
        if o0 == 2:
            wr(10, 'c130', 'c131')
    wr(12, 'c132', 'c133')
    wr(14, 'c134', 'c135')
    rd(fA0)
    if OPT['stamps'] > 1:
        stamp(s, 'k2')
    t1 = [[(f'c{256+o}', f'c{o}', 'z256') for o in (0, 2, 4, 6)],
          [(f'c{384+o}', f'c{128+o}', 'z256') for o in (0, 2, 4, 6)],
          [(f'c{h+256}', f'c{h}', 'z256') for h in (256, 260, 384, 388)],
          [(f'c{h+512}', f'c{h}', 'z512') for h in (256, 260, 384, 388)]]
    for r, lst in enumerate(t1):
        mults(lst)
        for d, _, _ in lst:
            pack(d, 0)
        wr(4 * r, lst[0][0], lst[1][0])
        wr(4 * r + 2, lst[2][0], lst[3][0])
        s(f'v_mfma_f32_16x16x32_bf16 {vr(acc,4)}, {vr(fA0+4*r,4)}, {vr(fB+4*r,4)}, {vr(acc,4)}')
    rd(fA1)
    if OPT['stamps'] > 1:
        stamp(s, 'k3')
    t2 = [[(f'c{h+512}', f'c{h}', 'z512') for h in (512, 640, 768, 896)],
          [(f'c{h+512}', f'c{h}', 'z512') for h in (1024, 1152, 1280, 1408)]]
    for r, lst in enumerate(t2):
        mults(lst)
        for d, _, _ in lst:
            pack(d, 0)
        wr(4 * r, lst[0][0], lst[1][0])
        wr(4 * r + 2, lst[2][0], lst[3][0])
        for ks in (2 * r, 2 * r + 1):
            s(f'v_mfma_f32_16x16x32_bf16 {vr(acc+4,4)}, {vr(fA1+4*ks,4)}, {vr(fB+4*ks,4)}, {vr(acc+4,4) if ks else 0}')
    mults([('c2048', 'c1536', 'z512')])
    s(f'ds_write_b128 v{vTA}, {vr(acc,4)}')
    pack('c2048', 0)
    wr(8, 'c2048')
    rd(fA0)
    for i in range(2):
        s(f'ds_write_b64 v{vTA+1+i}, {vr(acc+4+2*i,2)}')
    for ks in range(4):
        s(f'v_mfma_f32_16x16x32_bf16 {vr(acc+8,4)}, {vr(fA0+4*ks,4)}, {vr(fB+4*ks,4)}, {vr(acc+8,4) if ks else 0}')
    s(f'''
v_lshlrev_b32 v{t}, 4, v{vTID}
v_add_u32 v{t}, {L_R}, v{t}
v_bfe_u32 v{t+1}, v{vL}, 2, 2
v_mul_u32_u24 v{t+1}, {RP}, v{t+1}
v_and_b32 v{t+2}, 3, v{vL}
v_lshl_add_u32 v{t+1}, v{t+2}, 4, v{t+1}
v_add_u32 v{t+1}, {L_R + 4096}, v{t+1}
v_mov_b32 v{t+4}, 0
v_mov_b32 v{t+5}, 0
v_mov_b32 v{t+6}, 0
v_mov_b32 v{t+7}, 0
''')
    for i in range(2):
        s(f'ds_write2_b32 v{vTA+3}, v{acc+8+2*i}, v{acc+9+2*i} offset0:{32*i} offset1:{32*i+16}')
    s.wait('*lgkm')
    s('s_barrier')
    if OPT['stamps'] > 1:
        stamp(s, 'k4')
    gv = fB
    assert fA0 == fB + 16 and fA1 == fB + 32
    ov = A(16, 4)
    for i in range(9):
        for p in range(2):
            s(f'ds_read2st64_b32 {vr(gv+4*i+2*p,2)}, v{vGA+i} offset0:{13*p} offset1:{13*(2+p)}')
    s(f'ds_write_b128 v{t+1}, {vr(t+4,4)}')
    for i in range(9):
        s(f'v_pk_add_f32 {vr(gv+4*i,2)}, {vr(gv+4*i,2)}, {vr(gv+4*i+2,2)}')
    for c in range(2):
        for o in (1, 0):
            d = ov + 8 * c + 4 * o
            for k in range(4):
                a = gv + 4 * (2 * k + (1 - o)) + c
                s(f'v_cvt_pk_bf16_f32 v{d+k}, v{a}, v{a+4}')
            s(f'ds_write_b128 v{t}, {vr(d,4)} offset:{(2*c+o)*RP}')
    for b, n in al:
        V.release(b, n)
    return s


def w2t_poll_issue():
    s = Seq()
    s(f'''
v_min_u32 v{vPA}, 27, v{vL}
v_lshlrev_b32 v{vPA}, 7, v{vPA}''')
    poll_issue(s, vPF, vPA, f's{sFW}')
    return s


def w2t_loads():
    g = []
    for ks in range(14):
        for j in range(4):
            s = Seq()
            s(f'buffer_load_dwordx4 {ar(16*ks+4*j,4)}, v{vL16}, {srd(SWS)}, s{sW2l} offen offset:{1024*j} sc1')
            if j == 3:
                s(f's_add_u32 s{sW2l}, s{sW2l}, 4096')
            g.append(s)
    return g


def u_poll_issue():
    s = Seq()
    s(f'''
v_and_b32 v{vPA2}, 31, v{vL}
v_lshlrev_b32 v{vPA2}, 7, v{vPA2}
s_mov_b32 s{sT4}, {WS_FL + FU * 128}''')
    poll_issue(s, vPF2, vPA2, f's{sT4}')
    return s


def u_dma():
    s = Seq()
    poll_check(s, vPF2, vPA2, f's{sT4}')
    s(f'''
s_lshl_b32 s{sT0}, s{sCH}, 12
s_lshl_b32 s{sT1}, s{sBH}, 2
s_sub_u32 s{sT0}, s{sT0}, s{sT1}
s_add_u32 s{sT0}, s{sT0}, {WS_UT}
s_mul_i32 s{sT1}, s{sWV}, {UP}
s_add_u32 m0, s{sT1}, {L_U + 512}
''')
    for i in range(4):
        s(f'buffer_load_dwordx4 v{vL16}, {srd(SWS)}, s{sT0} offen offset:{1024*i} sc1 lds', tag='udma')
    return s


main = Seq()
vXs = V.alloc(4, 1)
vWs = V.alloc(4, 1)
vW2 = V.alloc(8, 4)
vW2o = V.alloc(8, 4)
t = vT
main(f'''
s_cmp_ge_u32 s{sJ}, 14
s_cselect_b32 s{sT0}, 1, 0
s_mul_i32 s{sT1}, s{sT0}, 14
s_sub_u32 s{sT1}, s{sJ}, s{sT1}
s_lshl1_add_u32 s{sT0}, s{sXCD}, s{sT0}
s_and_b32 s{sT2}, s{sWV}, 1
s_lshr_b32 s{sT3}, s{sWV}, 1
s_lshl1_add_u32 s{sTB1}, s{sT0}, s{sT2}
s_lshl1_add_u32 s{sCB1}, s{sT1}, s{sT3}
s_lshl4_add_u32 s{sXb}, s{sT0}, s{sWV}
s_lshl_b32 s{sXb}, s{sXb}, 13
s_mul_i32 s{sWb}, s{sWV}, {4*3584}
s_lshl_b32 s{sT1}, s{sT1}, 8
s_add_u32 s{sWb}, s{sWb}, s{sT1}
''')
main(f'''
s_mul_i32 s{sT0}, s{sXCD}, 28
s_add_u32 s{sT0}, s{sT0}, s{sJ}
s_lshl1_add_u32 s{sT0}, s{sT0}, s{sT3}
s_lshr_b32 s{sT1}, s{sT0}, 3
s_and_b32 s{sT0}, s{sT0}, 7
s_mul_i32 s{sT4}, s{sT0}, 56
s_add_u32 s{sT4}, s{sT4}, s{sT1}
s_lshl1_add_u32 s{sT4}, s{sT4}, s{sT2}
s_lshl_b32 s{sW2o}, s{sT4}, 11
s_add_u32 s{sW2o}, s{sW2o}, {WS_W2T}
s_lshl_b32 s{sT5}, s{sT4}, 7
s_add_u32 s{sT5}, s{sT5}, {WS_FL + FW * 128}
s_lshl_b32 s{sT1}, s{sT1}, 15
s_lshl_b32 s{sT0}, s{sT0}, 7
s_add_u32 s{sT0}, s{sT0}, s{sT1}
s_lshl2_add_u32 s{sT0}, s{sT2}, s{sT0}
s_add_u32 s{sT1}, s{sT0}, 8192
v_lshrrev_b32 v{t}, 1, v{vG}
v_and_b32 v{t+1}, 1, v{vG}
v_lshlrev_b32 v{t}, 14, v{t}
v_lshl_add_u32 v{t}, v{t+1}, 12, v{t}
v_lshl_add_u32 v{t}, v{vN}, 3, v{t}
''')
for jj in range(8):
    main(f'buffer_load_dword v{vW2+jj}, v{t}, {srd(SW2)}, s{sT0 + jj//4} offen offset:{1024*(jj%4)}')
main(f'''
v_lshl_add_u32 v{t}, s{sT2}, 2, v{vG}
v_and_b32 v{t+1}, 7, v{vL}
v_xor_b32 v{t}, v{t}, v{t+1}
v_lshrrev_b32 v{t+1}, 3, v{vL}
v_lshlrev_b32 v{t+1}, 10, v{t+1}
v_lshl_add_u32 v{vXs}, v{t}, 4, v{t+1}
v_lshlrev_b32 v{t}, 2, v{vG}
v_xor_b32 v{t}, v{t}, v{vN}
v_mul_u32_u24 v{t+1}, 3584, v{vG}
v_lshl_add_u32 v{vWs}, v{t}, 4, v{t+1}
''')
for i in range(1, 4):
    main(f'v_add_u32 v{vXs+i}, {32768*i}, v{vXs}')
    main(f'v_add_u32 v{vWs+i}, {16*3584*i}, v{vWs}')
main(f's_mov_b32 s{sKC}, s{sXCD}' if OPT['rot'] else f's_mov_b32 s{sKC}, 0')


def stage_loads(st):
    g = []
    slot = st & 3
    for i in range(4):
        for isw in (0, 1):
            s = Seq()
            if i == 0 and not isw:
                s(f'''
s_lshl_b32 s{sXk}, s{sKC}, 7
s_add_u32 s{sXk}, s{sXk}, s{sXb}
s_mul_i32 s{sWk}, s{sKC}, {64*3584}
s_add_u32 s{sWk}, s{sWk}, s{sWb}
s_add_u32 s{sKC}, s{sKC}, 1
s_and_b32 s{sKC}, s{sKC}, 7''')
            s(f's_add_u32 m0, s{sM}, {(L_W if isw else L_X) + slot*16384 + i*4096}')
            if isw:
                s(f'buffer_load_dwordx4 v{vWs+i}, {srd(SW1)}, s{sWk} offen lds', tag=f'st{st}')
            else:
                s(f'buffer_load_dwordx4 v{vXs+i}, {srd(SX)}, s{sXk} offen lds', tag=f'st{st}')
            g.append(s)
    return g


ld = [stage_loads(st) for st in range(8)]
early = ld[0] + ld[1][:4]
stamp(main, 'pre')
for g in early:
    main.add(g)
stamp(main, 'dma')
main.add(idle_setup())
vXr = V.alloc(4, 1)
vWr = V.alloc(2, 1)
main(f'''
v_and_b32 v{t}, 31, v{vL}
v_bfe_u32 v{t+1}, v{vL}, 1, 3
v_lshrrev_b32 v{t+2}, 5, v{vL}
v_xor_b32 v{t+1}, v{t+1}, v{t+2}
s_and_b32 s{sT0}, s{sWV}, 1
s_lshl_b32 s{sT0}, s{sT0}, 13
v_lshl_add_u32 v{t}, v{t}, 7, s{sT0}
''')
for ks in range(4):
    main(f'v_xor_b32 v{t+3}, {2*ks}, v{t+1}')
    main(f'v_lshl_add_u32 v{vXr+ks}, v{t+3}, 4, v{t}')
main(f'''
v_bfe_u32 v{t}, v{vL}, 2, 2
v_lshl_add_u32 v{t+1}, v{t+2}, 3, v{t}
v_lshlrev_b32 v{t+1}, 8, v{t+1}
v_and_b32 v{t+2}, 1, v{vG}
v_lshl_add_u32 v{t+1}, v{t+2}, 5, v{t+1}
v_and_b32 v{t+2}, 3, v{vL}
v_lshl_add_u32 v{t+1}, v{t+2}, 3, v{t+1}
v_add_u32 v{t+1}, {L_W}, v{t+1}
s_and_b32 s{sT0}, s{sWV}, 2
v_xor_b32 v{t}, s{sT0}, v{t}
v_lshl_add_u32 v{vWr}, v{t}, 6, v{t+1}
v_xor_b32 v{t}, 1, v{t}
v_lshl_add_u32 v{vWr+1}, v{t}, 6, v{t+1}
''')
stamp(main, 'setup')
for jb in range(2):
    for d in range(4):
        main(f'v_perm_b32 v{vW2o+4*jb+d}, v{vW2+2*d+1}, v{vW2+2*d}, s{sSEL0+jb}')
stamp(main, 'par')
for jb in range(2):
    if not OPT['x'] & 1:
        main(f'buffer_store_dwordx4 {vr(vW2o+4*jb,4)}, v{vL16}, {srd(SWS)}, s{sW2o} offen offset:{1024*jb} sc1', tag='w2st')
if not OPT['x'] & 2:
    nonce_issue(main, vNON)
kg = kgen()
if OPT['nokgen']:
    kg = Seq()('s_nop 0\n' * 60)
main.add(sprinkle(kg, ld[1][4:] + ld[2] + ld[3], 8, len(kg) - 30))
V.release(vW2, 8)
V.release(vW2o, 8)
stamp(main, 'kgen')
if OPT['x'] & 2:
    nonce_issue(main, vNON)
nonce_check(main, vNON)
flag_store(main, vNON, f's{sT5}')

vACC = V.alloc(64, 4)
vFR = V.alloc(32, 4)
vTP = V.alloc(24, 4)


def g1_reads(st, ks):
    slot = st & 3
    b = vFR + 16 * (ks & 1)
    r = []
    for k in range(2):
        for hh in range(2):
            r.append(f'ds_read_b64_tr_b16 {vr(b+4*k+2*hh,2)}, v{vWr+k} offset:{slot*16384 + ks*4096 + hh*1024}')
        r.append(f'ds_read_b128 {vr(b+8+4*k,4)}, v{vXr+ks} offset:{slot*16384 + k*4096}')
    return r


def g1_mfma(st, ks):
    b = vFR + 16 * (ks & 1)
    r = []
    for ft, tt in ((0, 0), (1, 0), (0, 1), (1, 1)):
        a = vACC + 32 * ft + 16 * tt
        c = '0' if (st == 0 and ks == 0) else vr(a, 16)
        r.append(f'v_mfma_f32_32x32x16_bf16 {vr(a,16)}, {vr(b+4*ft,4)}, {vr(b+8+4*tt,4)}, {c}')
    return r


w2g = w2t_loads()
main.wait('st0', '*lgkm')
main('s_barrier')
for x in g1_reads(0, 0):
    main(x)
extra = {st: list(ld[st + 4]) for st in range(4)}
fa = Seq()
fa(f'''
v_mov_b32 v{vPA2}, s{sTB1}
v_mov_b32 v{t}, s{sCB1}
v_cmp_gt_u32 vcc, 32, v{vL}
s_mov_b32 s{sT4}, {WS_FL + FA * 128}
v_cndmask_b32 v{vPA2}, v{t}, v{vPA2}, vcc
v_lshlrev_b32 v{vPA2}, 7, v{vPA2}''')
poll_issue(fa, vPF2, vPA2, f's{sT4}')
extra[3] = extra[3] + [w2t_poll_issue(), fa]
NW2_G1 = 0
for st in range(8):
    pend = extra.get(st - 1, [])
    for ks in range(4):
        m = g1_mfma(st, ks)
        if ks < 3:
            r = g1_reads(st, ks + 1)
            share = pend[len(pend) * ks // 3: len(pend) * (ks + 1) // 3]
            for k in range(4):
                main(m[k])
                for x in r[2 * k: 2 * k + 2]:
                    main(x)
                for g in share[len(share) * k // 4: len(share) * (k + 1) // 4]:
                    main.add(g)
        else:
            main.wait('*lgkm')
            main(m[0])
            if st < 7:
                main.wait(f'st{st+1}')
                main('s_barrier')
                r = g1_reads(st + 1, 0)
                for k in range(1, 4):
                    for x in r[2 * k - 2: 2 * k]:
                        main(x)
                    main(m[k])
            else:
                for k in range(1, 4):
                    main(m[k])
    if st == 6:
        chk = Seq()
        poll_check(chk, vPF2, vPA2, f's{sT4}')
        chk(f'''
v_and_b32 v{t}, 31, v{vL}
v_lshlrev_b32 v{t}, 4, v{t}
v_cmp_gt_u32 vcc, 32, v{vL}
v_mov_b32 v{t+1}, 0x7ff00000
s_lshl_b32 s{sT0}, s{sCB1}, 10
s_add_u32 s{sT0}, s{sT0}, {WS_FP}
v_cndmask_b32 v{t+1}, v{t+1}, v{t}, vcc
s_lshl_b32 s{sT1}, s{sTB1}, 10
s_add_u32 s{sT2}, s{sT1}, {WS_TS}
s_add_u32 s{sT1}, s{sT1}, {WS_TP}''')
        for k in range(2):
            chk(f'buffer_load_dwordx4 {vr(vTP+4*k,4)}, v{t}, {srd(SWS)}, s{sT0} offen offset:{512*k} sc1')
            chk(f'buffer_load_dwordx4 {vr(vTP+8+4*k,4)}, v{t+1}, {srd(SWS)}, s{sT1} offen offset:{512*k} sc1')
        for k in range(2):
            chk(f'buffer_load_dwordx4 {vr(vTP+16+4*k,4)}, v{t}, {srd(SWS)}, s{sT2} offen offset:{512*k} sc1')
        chk.add(u_poll_issue())
        chk2 = Seq()
        poll_check(chk2, vPF, vPA, f's{sFW}')
        NW2_G1 = 8
        extra[6] = [chk, chk2] + w2g[:NW2_G1]
    stamp(main, f'g1s{st}')
for ft, tt in ((0, 0), (1, 0), (0, 1), (1, 1)):
    a = vACC + 32 * ft + 16 * tt
    main(f'v_mfma_f32_32x32x16_bf16 {vr(a,16)}, {vr(vTP+4*ft,4)}, {vr(vTP+8+4*tt,4)}, {vr(a,16)}')
vHa = V.alloc()
main(f'''
v_and_b32 v{t}, 1, v{vG}
v_mul_u32_u24 v{t}, {56*1024}, v{t}
v_lshrrev_b32 v{t+1}, 5, v{vL}
v_lshl_add_u32 v{t}, v{t+1}, 8, v{t}
v_lshl_add_u32 v{vHa}, v{vN}, 4, v{t}
s_mul_i32 s{sHst}, s{sTB1}, {4*56}
s_lshl1_add_u32 s{sHst}, s{sCB1}, s{sHst}
s_lshl_b32 s{sHst}, s{sHst}, 10
s_add_u32 s{sHst}, s{sHst}, {WS_H}
s_add_u32 s{sT5}, s{sHst}, {2*56*1024}
s_mul_i32 s{sFH}, s{sTB1}, 28
s_add_u32 s{sFH}, s{sFH}, s{sCB1}
s_lshl_b32 s{sFH}, s{sFH}, 7
s_add_u32 s{sFH}, s{sFH}, {WS_FL + FH * 128}
''')
main.add(u_dma())
gel = Seq()
q = vFR
for ti, (ft, tt) in enumerate(((0, 0), (1, 0), (0, 1), (1, 1))):
    P = vTP + 16 + 4 * tt
    for hh in range(2):
        a = vACC + 32 * ft + 16 * tt + 8 * hh
        o = vFR + 8 + 4 * ((2 * ti + hh) % 4)
        for k in range(4):
            gel(f'v_pk_mul_f32 {vr(q+2*k,2)}, {vr(a+2*k,2)}, {vr(a+2*k,2)}')
        for k in range(4):
            gel(f'v_pk_fma_f32 {vr(q+2*k,2)}, {vr(q+2*k,2)}, {vr(P,2)}, {vr(P,2)} op_sel:[0,1,0] op_sel_hi:[1,1,0]')
        for k in range(4):
            gel(f'v_pk_mul_f32 {vr(q+2*k,2)}, {vr(q+2*k,2)}, {vr(a+2*k,2)}')
        for k in range(8):
            gel(f'v_exp_f32 v{q+k}, v{q+k}')
        for k in range(4):
            gel(f'v_pk_fma_f32 {vr(q+2*k,2)}, {vr(q+2*k,2)}, {vr(P+2,2)}, {vr(P+2,2)} op_sel_hi:[1,0,0]')
        for k in range(8):
            gel(f'v_rcp_f32 v{q+k}, v{q+k}')
        for k in range(4):
            gel(f'v_pk_mul_f32 {vr(q+2*k,2)}, {vr(q+2*k,2)}, {vr(a+2*k,2)}')
        for k in range(4):
            gel(f'v_cvt_pk_bf16_f32 v{o+k}, v{q+2*k}, v{q+2*k+1}')
        gel(f'buffer_store_dwordx4 {vr(o,4)}, v{vHa}, {srd(SWS)}, s{sT5 if tt else sHst} offen offset:{1024*ft + 512*hh} sc1', tag='hst')
NW2_GE = 22
main.add(sprinkle(gel, w2g[NW2_G1:NW2_G1 + NW2_GE], 0, len(gel) - 20))
NW2_PRE = NW2_G1 + NW2_GE
stamp(main, 'gelu')
for b, n in ((vXs, 4), (vWs, 4), (vXr, 4), (vWr, 2), (vACC, 64), (vFR, 32), (vTP, 24), (vHa, 1)):
    V.release(b, n)

sp = Seq()
sp('Lspare:')
vS = V.alloc(4, 1)
vB1 = V.alloc()
sp(f'''
s_sub_u32 s{sT0}, s{sJ}, 28
s_lshl2_add_u32 s{sTB1}, s{sXCD}, s{sT0}
s_min_u32 s{sCB1}, s{sTB1}, 27
s_lshl2_add_u32 s{sXb}, s{sTB1}, s{sWV}
s_lshl_b32 s{sXb}, s{sXb}, 14
s_lshl_b32 s{sT0}, s{sWV}, 2
v_xor_b32 v{t}, s{sT0}, v{vL}
v_lshlrev_b32 v{vS}, 4, v{t}
v_xor_b32 v{vS+1}, 32, v{vS}
s_lshl_b32 s{sT1}, s{sWV}, 14
''')
for i in range(4):
    sp(f's_add_u32 m0, s{sT1}, {L_X + 4096*i}')
    sp(f's_add_u32 s{sT0}, s{sXb}, {4096*i}')
    for r in range(4):
        sp(f'buffer_load_dwordx4 v{vS + i//2}, {srd(SX)}, s{sT0} offen offset:{1024*r} lds', tag='spx')
sp(f'''
s_mov_b32 m0, {L_R}
s_lshl_b32 s{sT2}, s{sCB1}, 7
global_load_lds_dwordx4 v{vL16}, {ptr(P_GW)}
''', tag='spx')
sp(f'''
s_lshl_b32 s{sT0}, s{sWV}, 5
s_add_u32 s{sT0}, s{sT0}, s{sT2}
v_lshl_add_u32 v{t}, v{vN}, 1, s{sT0}
global_load_ushort v{vB1}, v{t}, {ptr(P_B1)}
v_lshlrev_b32 v{t}, 1, v{vG}
v_and_b32 v{t+1}, 7, v{vL}
v_xor_b32 v{t}, v{t}, v{t+1}
v_lshrrev_b32 v{t+1}, 3, v{vL}
v_mul_u32_u24 v{t+1}, 3584, v{t+1}
v_lshl_add_u32 v{vS+2}, v{t}, 4, v{t+1}
s_mul_i32 s{sWb}, s{sWV}, {128*3584}
s_add_u32 s{sWb}, s{sWb}, s{sT2}
''')
for i in range(16):
    sp(f's_add_u32 m0, s{sT1}, {L_W + 1024*i}')
    sp(f'buffer_load_dwordx4 v{vS+2}, {srd(SW1)}, s{sWb} offen lds', tag='spw')
    sp(f's_add_u32 s{sWb}, s{sWb}, {8*3584}')
nonce_issue(sp, vNON)
sp.add(idle_setup())
sp(f's_mov_b32 s{sFH}, {WS_FL + FDUMMY * 128}')
vF = V.alloc(128, 4)
vD = V.alloc(16, 4)
vONE = V.alloc(4, 4)
vTOK = V.alloc()
sp(f'''
v_and_b32 v{t}, 7, v{vN}
v_lshrrev_b32 v{t+1}, 3, v{vN}
v_lshl_add_u32 v{t+1}, v{t}, 3, v{t+1}
s_lshl_b32 s{sT0}, s{sWV}, 1
v_add_u32 v{vTOK}, s{sT0}, v{t+1}
v_lshlrev_b32 v{t}, 1, v{t}
v_xor_b32 v{t}, v{t}, v{vG}
v_lshlrev_b32 v{t+1}, 10, v{vTOK}
v_lshlrev_b32 v{t+6}, 4, v{vG}
v_add_u32 v{t+6}, {L_R}, v{t+6}
''')
for k in range(4):
    sp(f'v_xor_b32 v{t+2+k}, {4*k}, v{t}')
    sp(f'v_lshl_add_u32 v{t+2+k}, v{t+2+k}, 4, v{t+1}')
    sp(f'v_mov_b32 v{vONE+k}, 0x3f803f80')
sp.wait('spx')
sp('s_barrier')
stamp(sp, 'par')
for s_ in range(16):
    sp(f'ds_read_b128 {vr(vF+8*s_,4)}, v{t+2+s_%4} offset:{256*(s_//4)}')
    sp(f'ds_read_b128 {vr(vF+8*s_+4,4)}, v{t+6} offset:{64*s_}')
for s_ in range(16):
    x, gw = vr(vF + 8 * s_, 4), vr(vF + 8 * s_ + 4, 4)
    for k, a in enumerate((x, vr(vONE, 4), gw)):
        sp(f'v_mfma_f32_16x16x32_bf16 {vr(vD+4*k,4)}, {a}, {x}, {vr(vD+4*k,4) if s_ else 0}')
C0 = -2.0 * math.sqrt(2.0 / math.pi) * math.log2(math.e)
C1 = C0 * 0.044715
o = vF
sp(f'''
v_and_b32 v{t}, 1, v{vL}
v_cmp_eq_u32 vcc, 1, v{t}
v_and_b32 v{t}, 2, v{vL}
v_cmp_eq_u32 s[{sT0}:{sT1}], 2, v{t}
v_cndmask_b32 v{vD}, v{vD}, v{vD+1}, vcc
v_cndmask_b32 v{vD+2}, v{vD+2}, v{vD+3}, vcc
v_cndmask_b32 v{vD}, v{vD}, v{vD+2}, s[{sT0}:{sT1}]
v_mul_f32 v{vD+4}, {f32(1/512)}, v{vD+4}
v_mul_f32 v{vD}, {f32(1/512)}, v{vD}
v_mul_f32 v{vD+8}, {f32(-math.log2(math.e))}, v{vD+8}
v_fma_f32 v{vD}, -v{vD+4}, v{vD+4}, v{vD}
v_exp_f32 v{vD+8}, v{vD+8}
v_max_f32 v{vD}, 0, v{vD}
v_add_f32 v{vD}, {f32(1e-5)}, v{vD}
v_add_f32 v{vD+8}, 1.0, v{vD+8}
v_sqrt_f32 v{o+6}, v{vD}
v_rsq_f32 v{vD+1}, v{vD}
v_rcp_f32 v{o+7}, v{vD+8}
v_mul_f32 v{o+4}, {f32(C0)}, v{vD+1}
v_mul_f32 v{vD+2}, v{vD+1}, v{vD+1}
v_mul_f32 v{o+5}, {f32(C1)}, v{vD+1}
v_mul_f32 v{o+5}, v{o+5}, v{vD+2}
v_cvt_pk_bf16_f32 v{o}, -v{vD+4}, -v{vD+4}
v_cvt_pk_bf16_f32 v{vD+5}, v{o+6}, v{o+6}
v_and_b32 v{vD+6}, 0xffff0000, v{o}
v_and_b32 v{vD+5}, 0xffff0000, v{vD+5}
v_add_f32 v{vD+6}, v{vD+6}, v{vD+4}
v_sub_f32 v{vD+7}, v{o+6}, v{vD+5}
v_cvt_pk_bf16_f32 v{o+1}, -v{vD+6}, v{vD+5}
v_cvt_pk_bf16_f32 v{o+2}, v{vD+7}, v{vZ}
v_mov_b32 v{o+3}, 0
v_lshrrev_b32 v{t}, 2, v{vN}
v_cmp_eq_u32 vcc, v{t}, v{vG}
v_lshlrev_b32 v{t}, 4, v{vTOK}
v_lshlrev_b32 v{t+1}, 2, v{vTOK}
v_mov_b32 v{t+2}, 0x7ff00000
v_cndmask_b32 v{t}, v{t+2}, v{t}, vcc
v_cndmask_b32 v{t+1}, v{t+2}, v{t+1}, vcc
s_lshl_b32 s{sT0}, s{sTB1}, 10
s_add_u32 s{sT1}, s{sT0}, {WS_TS}
s_add_u32 s{sT0}, s{sT0}, {WS_TP}
s_lshl_b32 s{sT2}, s{sTB1}, 8
s_add_u32 s{sT2}, s{sT2}, {WS_G}
buffer_store_dwordx4 {vr(o,4)}, v{t}, {srd(SWS)}, s{sT0} offen sc1
buffer_store_dwordx4 {vr(o+4,4)}, v{t}, {srd(SWS)}, s{sT1} offen sc1
buffer_store_dword v{o+7}, v{t+1}, {srd(SWS)}, s{sT2} offen sc1
''')
sp(f'''
v_lshrrev_b32 v{t}, 2, v{vL}
v_bfe_u32 v{t+1}, v{vL}, 3, 2
v_xor_b32 v{t+1}, s{sWV}, v{t+1}
v_lshlrev_b32 v{t}, 7, v{t}
v_lshl_add_u32 v{t}, v{t+1}, 5, v{t}
v_and_b32 v{t+1}, 3, v{vL}
v_lshl_add_u32 v{t}, v{t+1}, 3, v{t}
v_add_u32 v{t}, {L_W}, v{t}
''')
sp.wait('spw')
sp('s_barrier')
for s_ in range(32):
    sp(f'ds_read_b64_tr_b16 {vr(vF+16+2*s_,2)}, v{t} offset:{2048*s_}')
for s_ in range(16):
    sp(f'v_mfma_f32_16x16x32_bf16 {vr(vD+12,4)}, {vr(vONE,4)}, {vr(vF+16+4*s_,4)}, {vr(vD+12,4) if s_ else 0}')
o = vF + 8
sp(f'''
v_cmp_gt_u32 vcc, 16, v{vL}
v_mov_b32 v{t+2}, 0x7ff00000
s_lshl2_add_u32 s{sT0}, s{sCB1}, s{sWV}
s_lshl_b32 s{sT0}, s{sT0}, 8
s_add_u32 s{sT0}, s{sT0}, {WS_FP}
v_cndmask_b32 v{t}, v{t+2}, v{vL16}, vcc
v_mov_b32 v{o+2}, v{vB1}
v_mov_b32 v{o+3}, 0
v_cvt_pk_bf16_f32 v{o+1}, v{vD+12}, v{vZ}
v_lshlrev_b32 v{t+3}, 16, v{o+1}
v_lshl_or_b32 v{o+1}, v{vB1}, 16, v{o+1}
v_sub_f32 v{t+4}, v{vD+12}, v{t+3}
v_cvt_pk_bf16_f32 v{o}, v{t+3}, v{t+4}
''')
sp(f'buffer_store_dwordx4 {vr(o,4)}, v{t}, {srd(SWS)}, s{sT0} offen sc1', tag='fpst')
nonce_check(sp, vNON)
sp(f'''
v_and_b32 v{t}, 7, v{vL}
v_lshrrev_b32 v{t+1}, 3, v{vL}
v_lshlrev_b32 v{t+2}, 1, v{t}
v_xor_b32 v{t+2}, v{t+2}, v{t+1}
v_lshlrev_b32 v{t+3}, 13, v{t}
s_lshl_b32 s{sT0}, s{sWV}, 8
v_lshl_add_u32 v{t+2}, v{t+2}, 4, v{t+3}
v_add_u32 v{t+2}, s{sT0}, v{t+2}
v_xor_b32 v{t+3}, 128, v{t+2}
v_lshlrev_b32 v{t+1}, 15, v{t+1}
v_lshl_add_u32 v{t+1}, v{t}, 4, v{t+1}
s_lshl_b32 s{sT0}, s{sWV}, 19
s_lshl_b32 s{sT1}, s{sTB1}, 7
s_add_u32 s{sT0}, s{sT0}, s{sT1}
s_add_u32 s{sT0}, s{sT0}, {WS_UT}
s_add_u32 s{sT5}, s{sT1}, {WS_FL + FA * 128}
''')
fin, fout = vF + 16, vF + 16 + 64
for h in range(2):
    for tk in range(8):
        sp(f'ds_read_b128 {vr(fin+32*h+4*tk,4)}, v{t+2+h} offset:{1024*tk}')
sp.wait('fpst')
sp('s_barrier')
flag_store(sp, vNON, f's{sT5}')
stamp(sp, 'kgen')
for h in range(2):
    for c in range(8):
        d = fout + 4 * ((8 * h + c) % 8)
        for k in range(4):
            sp(f'v_perm_b32 v{d+k}, v{fin+32*h+4*(2*k+1)+c//2}, v{fin+32*h+4*(2*k)+c//2}, s{sSEL0 + c%2}')
        sp(f's_add_u32 s{sT1}, s{sT0}, {(64*h + c)*4096}')
        sp(f'buffer_store_dwordx4 {vr(d,4)}, v{t+1}, {srd(SWS)}, s{sT1} offen sc1', tag='utst')
for b, n in ((vS, 4), (vB1, 1), (vF, 128), (vD, 16), (vONE, 4), (vTOK, 1)):
    V.release(b, n)
sp(f's_add_u32 s{sT5}, s{sT5}, {(FU - FA) * 128}')
sp.wait('utst')
sp('s_barrier')
flag_store(sp, vNON, f's{sT5}')
stamp(sp, 'g1s0')
sp.add(w2t_poll_issue())
sp.add(kgen())
poll_check(sp, vPF, vPA, f's{sFW}')
sp.add(u_poll_issue())
for g in w2t_loads()[:NW2_PRE]:
    sp.add(g)
sp.add(u_dma())
stamp(sp, 'gelu')
sp('s_branch Ljoin')
for b, n in ((vGA, 9), (vTA, 4), (vRW, 4), (vRR, 1), (vPAR, 6)):
    V.release(b, n)

com = Seq()
com('Ljoin:')
vFa, vGa = V.alloc(), V.alloc()
vCF = V.alloc(128, 4)
aC = 224
com(f'''
s_mul_i32 s{sT0}, s{sWV}, {UP}
v_lshl_add_u32 v{t}, v{vL}, 3, s{sT0}
v_mov_b32 v{t+2}, 0
v_mov_b32 v{t+3}, 0
ds_write_b64 v{t}, {vr(t+2,2)} offset:{L_U}
s_lshl2_add_u32 s{sT0}, s{sBH}, s{sT0}
s_add_u32 s{sT0}, s{sT0}, {L_U + 508}
v_mov_b32 v{t+1}, s{sT0}
v_and_b32 v{t+4}, 1, v{vL}
v_lshrrev_b32 v{t+5}, 1, v{vN}
s_and_b32 s{sT0}, s{sWV}, 2
s_mul_i32 s{sT1}, s{sT0}, {RP}
s_lshl_b32 s{sT2}, s{sBH}, 8
s_sub_u32 s{sT1}, s{sT1}, s{sT2}
s_add_u32 s{sT1}, s{sT1}, {L_R + 56 + 256}
v_mul_u32_u24 v{vFa}, {RP}, v{t+4}
v_lshl_add_u32 v{vFa}, v{vG}, 4, v{vFa}
v_lshlrev_b32 v{t+6}, 3, v{t+5}
v_sub_u32 v{vFa}, v{vFa}, v{t+6}
v_add_u32 v{vFa}, s{sT1}, v{vFa}
s_mul_i32 s{sT1}, s{sT0}, {UP}
s_sub_u32 s{sT1}, s{sT1}, s{sT2}
s_add_u32 s{sT1}, s{sT1}, {L_U + 512 - 192}
v_mul_u32_u24 v{vGa}, {UP}, v{t+4}
v_lshl_add_u32 v{vGa}, v{vG}, 4, v{vGa}
v_lshl_add_u32 v{vGa}, v{t+5}, 6, v{vGa}
v_add_u32 v{vGa}, s{sT1}, v{vGa}
''')
com.wait('udma')
com(f'ds_write_b32 v{t+1}, v{vZ}')
com.wait('*lgkm')
com('s_barrier')
stamp(com, 'cv0')


def cv_reads(bb):
    b = vCF + 64 * (bb & 1)
    r = []
    for a in range(8):
        r.append(f'ds_read_b128 {vr(b+32+4*a,4)}, v{vGa} offset:{512*a + 64*(3-bb)}')
        for hh in range(2):
            r.append(f'ds_read_b64 {vr(b+4*a+2*hh,2)}, v{vFa} offset:{64*(59-8*a-bb) + 8*hh}')
    return r


def cv_mfma(bb):
    b = vCF + 64 * (bb & 1)
    r, first = [], set()
    order = sorted(((a, d) for a in range(8) for d in range(8 - a)), key=lambda x: (max(x), x[0] + x[1]))
    for a, d in order:
        c = aC + 4 * (a + d)
        cc = '0' if (bb == 0 and a + d not in first) else ar(c, 4)
        first.add(a + d)
        r.append(f'v_mfma_f32_16x16x32_bf16 {ar(c,4)}, {vr(b+4*a,4)}, {vr(b+32+4*d,4)}, {cc}')
    return r


rest = w2g[NW2_PRE:]
hflag = Seq()
hflag.wait('hst?')
flag_store(hflag, vNON, f's{sFH}')
cvs = Seq()
for x in cv_reads(0):
    cvs(x)
for bb in range(4):
    m = cv_mfma(bb)
    r = cv_reads(bb + 1) if bb < 3 else []
    for k in range(36):
        cvs(m[k])
        if k < len(r):
            cvs(r[k])
n0 = 24 + 30
com.add(sprinkle(cvs, rest[:6] + [hflag] + rest[6:], 26, len(cvs) - 20))
stamp(com, 'cv1')
com(f'''
v_min_u32 v{vPA}, 6, v{vL}
v_lshlrev_b32 v{vPA}, 7, v{vPA}
s_mul_i32 s{sT0}, s{sTB2}, 28
s_mul_i32 s{sT1}, s{sWV}, 7
s_add_u32 s{sT0}, s{sT0}, s{sT1}
s_lshl_b32 s{sT4}, s{sT0}, 7
s_add_u32 s{sT4}, s{sT4}, {WS_FL + FH * 128}''')
poll_issue(com, vPF, vPA, f's{sT4}')
com(f'''
s_mul_i32 s{sT0}, s{sWV}, {8*CBP}
s_add_u32 s{sT0}, s{sT0}, {L_CB}
v_lshl_add_u32 v{t}, v{vG}, 4, v{vL16}
v_add_u32 v{t}, s{sT0}, v{t}
v_lshrrev_b32 v{t+1}, 5, v{vL}
v_mul_u32_u24 v{t+1}, {CBP}, v{t+1}
v_and_b32 v{t+2}, 3, v{vL}
v_mul_u32_u24 v{t+2}, 272, v{t+2}
v_bfe_u32 v{t+3}, v{vL}, 2, 3
v_lshl_add_u32 v{t+1}, v{t+3}, 5, v{t+1}
s_and_b32 s{sT0}, s{sWV}, 2
s_lshl1_add_u32 s{sT0}, s{sT0}, s{sBH}
s_mul_i32 s{sT0}, s{sT0}, {4*CBP}
s_add_u32 s{sT0}, s{sT0}, {L_CB}
v_add3_u32 v{t+1}, v{t+1}, v{t+2}, s{sT0}
''')
for c in range(8):
    com(f'ds_write_b128 v{t}, {ar(aC+4*c,4)} offset:{CBP*c}')
com(f'''
s_lshl1_add_u32 s{sT0}, s{sCH}, s{sBH}
s_lshl_b32 s{sT5}, s{sT0}, 7
s_add_u32 s{sT5}, s{sT5}, {WS_FL + FC * 128}
s_lshl_b32 s{sT0}, s{sT0}, 11
s_add_u32 s{sT0}, s{sT0}, {WS_AT}
''')
com.wait('*lgkm')
com('s_barrier')
q = vCF
for si in range(2):
    for e in range(2):
        for p in range(2):
            com(f'ds_read_b128 {vr(q+16*si+8*e+4*p,4)}, v{t+1} offset:{2*CBP*si + 16*e + 8*CBP*p}')
for si in range(2):
    b = q + 16 * si
    for e in range(2):
        for k in range(2):
            com(f'v_pk_add_f32 {vr(b+8*e+2*k,2)}, {vr(b+8*e+2*k,2)}, {vr(b+8*e+4+2*k,2)}')
    o = q + 32 + 4 * si
    for k in range(2):
        com(f'v_cvt_pk_bf16_f32 v{o+2*k}, v{b+8+2*k}, v{b+8+2*k+1}')
        com(f'v_cvt_pk_bf16_f32 v{o+2*k+1}, v{b+2*k}, v{b+2*k+1}')
    com(f'buffer_store_dwordx4 {vr(o,4)}, v{vL16}, {srd(SWS)}, s{sT0} offen offset:{1024*si} sc1', tag='atst')
stamp(com, 'cv2')
V.release(vCF, 128)
V.release(vFa)
V.release(vGa)

vH = V.alloc(112, 4)
vA2 = V.alloc(32, 4)
vP = V.alloc(48, 4)
vE = V.alloc(24, 4)
vPW, vPR, vAr, vOa = V.alloc(), V.alloc(), V.alloc(), V.alloc()
poll_check(com, vPF, vPA, f's{sT4}')
stamp(com, 'hok')


def h_loads(sg):
    g = []
    for ks in range(14):
        s = Seq()
        if ks == 0:
            s(f'''
s_add_u32 s{sT0}, s{sWV}, {sg + 1}
s_and_b32 s{sT0}, s{sT0}, 3
s_lshl2_add_u32 s{sT0}, s{sTB2}, s{sT0}
s_mul_i32 s{sT0}, s{sT0}, 56
s_mul_i32 s{sT1}, s{sWV}, 14
s_add_u32 s{sT0}, s{sT0}, s{sT1}
s_lshl_b32 s{sHl}, s{sT0}, 10
s_add_u32 s{sHl}, s{sHl}, {WS_H}''')
        s(f'buffer_load_dwordx4 {vr(vH+56*(sg&1)+4*ks,4)}, v{vL16}, {srd(SWS)}, s{sHl} offen offset:{1024*(ks%4)} sc1')
        if ks % 4 == 3:
            s(f's_add_u32 s{sHl}, s{sHl}, 4096')
        g.append(s)
    return g


for g in h_loads(0):
    com.add(g)
com.wait('atst')
flag_store(com, vNON, f's{sT5}')
hl1 = h_loads(1)
com(f'''
s_mul_i32 s{sT0}, s{sWV}, {3*4096}
s_add_u32 s{sT0}, s{sT0}, {L_PB}
v_add_u32 v{vPR}, s{sT0}, v{vL16}
v_lshrrev_b32 v{t}, 1, v{vN}
v_lshrrev_b32 v{t+1}, 1, v{vG}
s_lshl_b32 s{sT0}, s{sWV}, 1
v_or_b32 v{t+1}, s{sT0}, v{t+1}
v_xor_b32 v{t}, v{t}, v{t+1}
v_lshlrev_b32 v{t}, 4, v{t}
v_lshl_add_u32 v{t}, v{vN}, 7, v{t}
v_and_b32 v{t+1}, 1, v{vG}
v_lshl_add_u32 v{t}, v{t+1}, 3, v{t}
v_add_u32 v{vAr}, {L_AT}, v{t}
v_lshlrev_b32 v{t}, 12, v{vG}
v_lshl_add_u32 v{vOa}, v{vN}, 3, v{t}
''')
apoll = Seq()
apoll(f'''
v_lshlrev_b32 v{vPA}, 10, v{vN}
s_lshl_b32 s{sT2}, s{sNB}, 6
s_add_u32 s{sT2}, s{sT2}, s{sWV}
s_lshr_b32 s{sT3}, s{sTB2}, 4
s_lshl1_add_u32 s{sT4}, s{sT2}, s{sT3}
s_lshl_b32 s{sT4}, s{sT4}, 7
s_add_u32 s{sT4}, s{sT4}, {WS_FL + FC * 128}''')
poll_issue(apoll, vPF, vPA, f's{sT4}')
adma = Seq()
poll_check(adma, vPF, vPA, f's{sT4}')
adma(f'''
v_lshrrev_b32 v{t}, 3, v{vL}
v_and_b32 v{t+1}, 7, v{vL}
v_xor_b32 v{t+1}, v{t+1}, v{vG}
v_lshlrev_b32 v{t}, 14, v{t}
v_lshl_add_u32 v{t}, v{t+1}, 4, v{t}
v_xor_b32 v{t+1}, 64, v{t}
s_lshl_b32 s{sT2}, s{sNB}, 6
s_add_u32 s{sT2}, s{sT2}, s{sWV}
s_lshl_b32 s{sT2}, s{sT2}, 12
s_lshl_b32 s{sT3}, s{sTB2}, 7
s_add_u32 s{sT2}, s{sT2}, s{sT3}
s_add_u32 s{sT2}, s{sT2}, {WS_AT}
s_add_u32 s{sT3}, s{sT2}, {8*16384}
s_lshl_b32 s{sT5}, s{sWV}, 11
s_add_u32 m0, s{sT5}, {L_AT}''')
adma(f'buffer_load_dwordx4 v{t}, {srd(SWS)}, s{sT2} offen sc1 lds', tag='adma')
adma(f's_add_u32 m0, s{sT5}, {L_AT + 1024}')
adma(f'buffer_load_dwordx4 v{t+1}, {srd(SWS)}, s{sT3} offen sc1 lds', tag='adma')
adma(f'''
v_lshlrev_b32 v{t+2}, 4, v{vG}
s_lshl2_add_u32 s{sT2}, s{sTB2}, s{sWV}
s_lshl_b32 s{sT2}, s{sT2}, 6
s_add_u32 s{sT2}, s{sT2}, {WS_G}
buffer_load_dwordx4 {vr(vE,4)}, v{t+2}, {srd(SWS)}, s{sT2} offen sc1
s_lshl_b32 s{sT3}, s{sNB}, 7
v_lshl_add_u32 v{t+3}, v{vN}, 3, s{sT3}
global_load_dwordx2 {vr(vE+4,2)}, v{t+3}, {ptr(P_B2)}''')


def part_write(sg):
    s = Seq()
    s(f'''
s_add_u32 s{sT2}, s{sWV}, {sg + 1}
s_and_b32 s{sT2}, s{sT2}, 3
s_mul_i32 s{sT2}, s{sT2}, {3*4096}
s_add_u32 s{sT2}, s{sT2}, {L_PB + 4096*sg}
v_add_u32 v{vPW}, s{sT2}, v{vL16}''')
    g = [s]
    for j in range(4):
        s = Seq()
        s(f'ds_write_b128 v{vPW}, {vr(vA2+16*(sg&1)+4*j,4)} offset:{1024*j}')
        g.append(s)
    return g


fin = []
s = Seq()
s.wait('adma', '*lgkm')
s('s_barrier')
fin.append(s)
for k in range(12):
    fin.append(Seq()(f'ds_read_b128 {vr(vP+4*k,4)}, v{vPR} offset:{1024*k}'))
for j in range(4):
    fin.append(Seq()(f'ds_read_b64 {vr(vE+8+2*j,2)}, v{vAr} offset:{2048*j}'))
for j in range(4):
    src = vE + 4 + j // 2
    fin.append(Seq()(f'v_and_b32 v{vE+16+j}, 0xffff0000, v{src}' if j % 2 else f'v_lshlrev_b32 v{vE+16+j}, 16, v{src}'))
for i in range(4):
    fin.append(Seq()(f'v_sub_f32 v{vE+20+i}, 1.0, v{vE+i}'))
for j in range(4):
    for i in range(4):
        p = vP + 4 * j + i
        src = vE + 8 + 2 * j + i // 2
        s = Seq()
        s(f'v_add_f32 v{p}, v{p}, v{p+16}')
        s(f'v_add_f32 v{p+32}, v{p+32}, v{vE+16+j}')
        s(f'v_and_b32 v{p+16}, 0xffff0000, v{src}' if i % 2 else f'v_lshlrev_b32 v{p+16}, 16, v{src}')
        fin.append(s)
        s = Seq()
        s(f'v_add_f32 v{p}, v{p}, v{p+32}')
        s(f'v_mul_f32 v{p+16}, v{vE+i}, v{p+16}')
        s(f'v_fma_f32 v{p}, v{p}, v{vE+20+i}, v{p+16}')
        fin.append(s)

for g in hl1:
    com.add(g)
for sg in range(4):
    seg = Seq()
    nxt = h_loads(sg + 2) if sg < 2 else []
    for ks in range(14):
        for j in range(4):
            a = vA2 + 16 * (sg & 1) + 4 * j
            seg(f'v_mfma_f32_16x16x32_bf16 {vr(a,4)}, {vr(vH+56*(sg&1)+4*ks,4)}, {ar(16*ks+4*j,4)}, {vr(a,4) if ks else 0}')
        if nxt:
            seg.add(nxt[ks])
    ex = part_write(sg - 1) if sg else []
    if sg == 1:
        seg.add(apoll)
    if sg == 2:
        ex = ex + [adma]
    if sg == 3:
        com.add(sprinkle(seg, ex + fin, 6, len(seg) - 2))
    else:
        com.add(sprinkle(seg, ex, 6, 30))
    stamp(com, f'g2s{sg}')
com(f'''
s_lshl2_add_u32 s{sT0}, s{sTB2}, s{sWV}
s_lshl_b32 s{sT0}, s{sT0}, 14
s_lshl_b32 s{sT1}, s{sNB}, 7
s_add_u32 s{sT0}, s{sT0}, s{sT1}
''')
for i in range(4):
    for j in range(4):
        com(f'v_fma_f32 v{vP+4*j+i}, v{vA2+16+4*j+i}, v{vE+20+i}, v{vP+4*j+i}')
    com(f'v_cvt_pk_bf16_f32 v{vP+32+2*i}, v{vP+i}, v{vP+4+i}')
    com(f'v_cvt_pk_bf16_f32 v{vP+33+2*i}, v{vP+8+i}, v{vP+12+i}')
    com(f'buffer_store_dwordx2 {vr(vP+32+2*i,2)}, v{vOa}, {srd(SOUT)}, s{sT0} offen offset:{1024*i}')
if OPT['stamps']:
    com.wait('*vm')
    stamp(com, 'end')
    com(f'''
s_memrealtime s[{sSTAMP}:{sSTAMP+1}]
v_writelane_b32 v{vST}, s{sSTAMP}, 63
s_lshl2_add_u32 s{sT0}, s2, s{sWV}
s_lshl_b32 s{sT0}, s{sT0}, 8
s_add_u32 s{sT0}, s{sT0}, {WS_ST}
v_lshlrev_b32 v{t}, 2, v{vL}
buffer_store_dword v{vST}, v{t}, {srd(SWS)}, s{sT0} offen''')
com('Lend:')
com('s_endpgm')

paths = (pro.l + main.l + com.l, pro.l + sp.l + com.l)
for p in paths:
    resolve_waits(p)
for p in paths:
    resolve_waits(p)
for p in paths:
    fix_hazards(p)

ref = open('gated_mix__ssm_conv_s4d__mixer_channel_mlp__prompt.s.ref').read().split('\n')
head = [l for l in ref if l.startswith(';') and '@launch' not in l]
txt = '\n'.join(head) + f'\n; @launch grid=(256,1,1) block=(256,1,1) lds={LDS_SIZE}\n'
txt += f'''.amdgcn_target "amdgcn-amd-amdhsa--gfx950"
.text
.globl {NAME}
.p2align 8
.type {NAME},@function
{NAME}:
'''
txt += render(pro.l) + render(main.l) + render(com.l) + render(sp.l) + ''.join(outline)
txt += f'''Lcode_end:
    s_endpgm
.section .rodata,"a"
.p2align 6
.amdhsa_kernel {NAME}
  .amdhsa_next_free_vgpr 512
  .amdhsa_next_free_sgpr 102
  .amdhsa_accum_offset 256
  .amdhsa_group_segment_fixed_size 0
  .amdhsa_kernarg_size 128
  .amdhsa_user_sgpr_count 2
  .amdhsa_user_sgpr_kernarg_segment_ptr 1
  .amdhsa_system_sgpr_workgroup_id_x 1
.end_amdhsa_kernel
'''
open(sys.argv[1], 'w').write(txt)
if OPT['stamps']:
    open(sys.argv[1] + '.stamps', 'w').write(' '.join(stamp_names))
print('vgpr high water', V.hw, 'instr', sum(1 for p in (pro, main, com, sp) for i in p.l if i.kind != 'meta'))
```

```python
import re

REG_RE = re.compile(r'^(?:-|\|)?(?:abs\(|neg\()?([vas])(?:(\d+)|\[(\d+):(\d+)\])\)?\|?$')
TRANS = ('v_exp_f32', 'v_log_f32', 'v_rcp_f32', 'v_rsq_f32', 'v_sqrt_f32', 'v_sin_f32', 'v_cos_f32')


def regs_of(op):
    op = op.strip()
    if op in ('vcc', 'exec'):
        return [op]
    if op in ('vcc_lo', 'vcc_hi'):
        return ['vcc']
    if op in ('exec_lo', 'exec_hi'):
        return ['exec']
    if op == 'm0':
        return ['m0']
    m = REG_RE.match(op)
    if not m:
        return []
    k = m.group(1)
    if m.group(2) is not None:
        return [k + m.group(2)]
    return [k + str(i) for i in range(int(m.group(3)), int(m.group(4)) + 1)]


class Ins:
    __slots__ = ('text', 'tag', 'kind', 'mn', 'dst', 'src', 'a', 'b', 'c', 'passes', 'vm', 'lgkm', 'wide_store',
                 'data', 'pre', 'wait_tags', 'nvm', 'nlgkm', 'hot')

    def __init__(self, text, tag=None):
        self.text = text.strip()
        self.tag = tag
        self.pre = 0
        self.nvm = None
        self.nlgkm = None
        self.wait_tags = None
        self.dst, self.src = [], []
        self.a = self.b = self.c = None
        self.passes = 0
        self.vm = self.lgkm = False
        self.wide_store = False
        self.data = []
        t = self.text.split(';')[0].strip()
        if t == '' or t.endswith(':') or t.startswith('.'):
            self.kind = 'meta'
            self.mn = ''
            return
        parts = t.split(None, 1)
        mn = parts[0]
        for suf in ('_e32', '_e64', '_dpp', '_sdwa'):
            if mn.endswith(suf):
                mn = mn[:-len(suf)]
        self.mn = mn
        rest = parts[1] if len(parts) > 1 else ''
        ops, depth, cur = [], 0, ''
        for ch in rest:
            if ch == '[':
                depth += 1
            if ch == ']':
                depth -= 1
            if ch == ',' and depth == 0:
                ops.append(cur.strip())
                cur = ''
            else:
                cur += ch
        if cur.strip():
            ops.append(cur.strip())
        mods = ''
        if ops:
            last = ops[-1].split(None, 1)
            ops[-1] = last[0]
            mods = last[1] if len(last) > 1 else ''
        R = [regs_of(o) for o in ops]
        flat = lambda l: [r for x in l for r in x]
        if mn.startswith('v_mfma'):
            self.kind = 'mfma'
            self.dst = R[0]
            self.a, self.b, self.c = R[1], R[2], R[3]
            self.src = R[1] + R[2] + R[3]
            self.passes = 8 if '32x32' in mn else 4
        elif mn.startswith('v_'):
            self.kind = 'valu'
            self.dst = R[0]
            self.src = flat(R[1:])
            if mn.startswith(('v_fmac', 'v_dot2c', 'v_pk_fmac', 'v_writelane')) or 'dpp' in parts[0] or 'row_' in mods or 'quad_perm' in mods:
                self.src += R[0]
            if mn.startswith(('v_swap', 'v_permlane16_swap', 'v_permlane32_swap')):
                self.dst = R[0] + R[1]
                self.src = R[0] + R[1]
            if mn.startswith(('v_add_co', 'v_sub_co', 'v_addc_co', 'v_subb_co')):
                self.dst = R[0] + R[1]
                self.src = flat(R[2:])
            if 'row_' in mods or 'quad_perm' in mods or 'wave_' in mods:
                self.kind = 'valu'
                self.data = ['dpp']
        elif mn.startswith('ds_'):
            self.kind = 'ds'
            self.lgkm = True
            if mn.startswith(('ds_read', 'ds_bpermute', 'ds_permute', 'ds_swizzle')):
                self.dst = R[0]
                self.src = flat(R[1:])
                if 'd16' in mn:
                    self.src += R[0]
            else:
                self.src = flat(R)
        elif mn.startswith(('buffer_', 'global_')):
            self.kind = 'vmem'
            self.vm = True
            islds = 'lds' in mods.split() or '_lds_' in mn
            if 'load' in mn and not islds:
                self.dst = R[0]
                self.src = flat(R[1:])
                if 'd16' in mn:
                    self.src += R[0]
            else:
                self.src = flat(R)
                if islds:
                    self.src.append('m0')
                if 'store' in mn and ('x4' in mn or 'x3' in mn):
                    self.wide_store = True
                    self.data = R[0] if mn.startswith('buffer_') else R[1]
        elif mn.startswith('s_'):
            self.kind = 'salu'
            if mn.startswith(('s_load', 's_memtime', 's_memrealtime', 's_buffer_load')):
                self.kind = 'smem'
                self.dst = R[0]
                self.src = flat(R[1:])
            elif mn.startswith('s_atomic'):
                self.kind = 'smem'
                self.src = flat(R)
            elif mn.startswith(('s_cmp', 's_cbranch', 's_branch', 's_waitcnt', 's_barrier', 's_nop', 's_sleep',
                                's_endpgm', 's_setprio', 's_bitcmp')):
                self.src = flat(R)
            else:
                self.dst = R[0]
                self.src = flat(R[1:])
                if 'saveexec' in mn:
                    self.dst = self.dst + ['exec']
        else:
            raise ValueError('unknown instr: ' + text)

    def states(self):
        n = self.pre
        if self.nvm is not None or self.nlgkm is not None:
            n += 1
        if self.kind == 'meta':
            return n
        if self.mn == 's_nop':
            return n + int(self.text.split()[1]) + 1
        return n + 1


class Wait(Ins):
    def __init__(self, tags):
        super().__init__('; wait ' + ' '.join(tags))
        self.wait_tags = list(tags)


class Seq:
    def __init__(self):
        self.l = []

    def __call__(self, text, tag=None):
        for ln in text.strip('\n').split('\n'):
            if ln.strip() == '':
                continue
            self.l.append(Ins(ln, tag))
        return self

    def wait(self, *tags):
        self.l.append(Wait(tags))
        return self

    def add(self, other):
        self.l.extend(other.l if isinstance(other, Seq) else other)
        return self

    def __len__(self):
        return len(self.l)


def sprinkle(main, groups, start=0, end=None):
    items = main.l
    end = len(items) if end is None else end
    n = len(groups)
    out = Seq()
    pos = [start + (end - start) * k // n for k in range(n)] if n else []
    k = 0
    for i, it in enumerate(items):
        while k < n and pos[k] == i:
            out.add(groups[k])
            k += 1
        out.l.append(it)
    while k < n:
        out.add(groups[k])
        k += 1
    return out


def resolve_waits(path):
    vmq, lq = [], []
    smem = []

    def need(it, nvm=None, nl=None):
        if nvm is not None:
            nvm = min(nvm, 63)
            it.nvm = nvm if it.nvm is None else min(it.nvm, nvm)
        if nl is not None:
            nl = min(nl, 15)
            it.nlgkm = nl if it.nlgkm is None else min(it.nlgkm, nl)

    seen_tags = set()
    for it in path:
        touched = set(it.dst) | set(it.src)
        if it.wait_tags is not None:
            for t in it.wait_tags:
                if t == '*vm':
                    if vmq:
                        need(it, nvm=0)
                    continue
                if t == '*lgkm':
                    if lq or smem:
                        need(it, nl=0)
                    continue
                if t == '*lds':
                    if lq:
                        need(it, nl=0)
                    continue
                opt = t.endswith('?')
                t = t.rstrip('?')
                assert opt or t in seen_tags, 'wait on unknown tag ' + t
                for q, isvm in ((vmq, True), (lq, False)):
                    idx = [i for i, o in enumerate(q) if o.tag == t]
                    if idx:
                        n = len(q) - 1 - idx[-1]
                        need(it, nvm=n) if isvm else need(it, nl=n)
        elif touched:
            if any(set(o.dst) & touched for o in smem):
                need(it, nl=0)
            for q, isvm in ((vmq, True), (lq, False)):
                idx = [i for i, o in enumerate(q) if set(o.dst) & touched]
                if idx and ((it.vm and isvm) or (it.lgkm and not isvm)):
                    idx = [i for i in idx if set(q[i].dst) & set(it.src)]
                if idx:
                    n = len(q) - 1 - idx[-1]
                    need(it, nvm=n) if isvm else need(it, nl=n)
        nvm, nl = it.nvm, it.nlgkm
        if it.mn == 's_waitcnt':
            m = re.search(r'vmcnt\((\d+)\)', it.text)
            if m:
                nvm = int(m.group(1)) if nvm is None else min(nvm, int(m.group(1)))
            m = re.search(r'lgkmcnt\((\d+)\)', it.text)
            if m:
                nl = int(m.group(1)) if nl is None else min(nl, int(m.group(1)))
        if nvm is not None:
            del vmq[:max(0, len(vmq) - nvm)]
        if nl is not None:
            del lq[:max(0, len(lq) - nl)]
            if nl == 0:
                smem.clear()
        if it.tag:
            seen_tags.add(it.tag)
        if it.vm:
            vmq.append(it)
        if it.lgkm:
            lq.append(it)
        if it.kind == 'smem':
            smem.append(it)


def fix_hazards(path):
    hist = []

    def dist_needed(p, c):
        pd, cs, cd = set(p.dst), set(c.src), set(c.dst)
        n = 0
        if p.kind == 'valu':
            vd = {r for r in pd if r[0] in 'va' and r != 'vcc'}
            sd = pd - vd
            if c.kind == 'mfma' and vd & cs:
                n = max(n, 2)
            if c.kind == 'valu':
                if p.mn in TRANS and vd & cs:
                    n = max(n, 1)
                if c.mn in ('v_readfirstlane_b32', 'v_readlane_b32') and vd & cs:
                    n = max(n, 1)
                if (c.data == ['dpp'] or c.mn.startswith('v_permlane')) and vd & cs:
                    n = max(n, 2)
                if sd & cs:
                    n = max(n, 4 if c.mn in ('v_readlane_b32', 'v_writelane_b32') else 2)
            if c.kind == 'vmem' and sd & cs:
                n = max(n, 5)
            if c.kind in ('salu', 'smem') and sd & cs:
                n = max(n, 2)
            if 'exec' in pd:
                n = max(n, 5)
        if p.kind == 'salu' and 'm0' in pd and 'm0' in cs and c.kind in ('vmem', 'ds'):
            n = max(n, 1)
        if p.kind == 'mfma':
            big = {4: 8, 8: 12}[p.passes]
            if c.kind == 'mfma':
                if pd & (set(c.a) | set(c.b)):
                    n = max(n, big)
                if pd & set(c.c):
                    if not (p.dst == c.c and p.passes == c.passes):
                        n = max(n, big - 2)
                elif pd & cd:
                    n = max(n, big)
            elif c.kind in ('valu', 'vmem', 'ds'):
                if pd & (cs | cd):
                    n = max(n, big)
                if set(p.c) & cd:
                    n = max(n, {4: 3, 8: 7}[p.passes])
        if p.wide_store and set(p.data) & cd:
            n = max(n, 2)
        return n

    for it in path:
        if it.kind != 'meta':
            d = it.pre + (1 if (it.nvm is not None or it.nlgkm is not None) else 0)
            short = 0
            for p in reversed(hist):
                if d >= 12:
                    break
                if p.kind != 'meta':
                    short = max(short, dist_needed(p, it) - d)
                d += p.states()
            if short > 0:
                it.pre += short
        hist.append(it)
        if len(hist) > 40:
            del hist[0]


def render(items):
    out = []
    for it in items:
        n = it.pre
        while n > 0:
            k = min(n, 16)
            out.append('    s_nop %d' % (k - 1))
            n -= k
        w = []
        if it.nvm is not None:
            w.append('vmcnt(%d)' % it.nvm)
        if it.nlgkm is not None:
            w.append('lgkmcnt(%d)' % it.nlgkm)
        if w:
            out.append('    s_waitcnt ' + ' '.join(w))
        if it.wait_tags is not None:
            continue
        out.append(it.text if (it.kind == 'meta' and it.text.endswith(':')) else '    ' + it.text)
    return '\n'.join(out) + '\n'


def weave(main, fill, start=0, end=None, late=False, gaps=None):
    idx = [i for i, it in enumerate(main.l) if it.kind == 'mfma']
    end = len(idx) if end is None else end
    gaps = list(range(start, end)) if gaps is None else list(gaps)
    n = len(fill)
    where = {}
    for k, g in enumerate(fill):
        gp = gaps[k * len(gaps) // n]
        if late:
            pos = (idx[gp + 1] - 1) if gp + 1 < len(idx) else len(main.l) - 1
        else:
            pos = idx[gp]
        where.setdefault(pos, []).append(g)
    out = Seq()
    for i, it in enumerate(main.l):
        out.l.append(it)
        for g in where.get(i, []):
            out.add(g)
    return out


def singles(seq):
    out, cur = [], Seq()
    for it in seq.l:
        cur.l.append(it)
        if it.wait_tags is None and it.kind != 'meta':
            out.append(cur)
            cur = Seq()
    if len(cur):
        out.append(cur)
    return out


class Regs:
    def __init__(self, kind, lo, hi):
        self.kind = kind
        self.free = set(range(lo, hi))
        self.hw = lo

    def alloc(self, n=1, align=None):
        align = align or (1 if n == 1 else 2 if n == 2 else 4 if self.kind == 's' else 2)
        for b in sorted(self.free):
            if b % align == 0 and all(b + i in self.free for i in range(n)):
                for i in range(n):
                    self.free.remove(b + i)
                self.hw = max(self.hw, b + n)
                return b
        raise RuntimeError('out of %s registers (need %d)' % (self.kind, n))

    def release(self, b, n=1):
        for i in range(n):
            assert b + i not in self.free, 'double free %d' % (b + i)
            self.free.add(b + i)


def vr(b, n=1, k='v'):
    return '%s%d' % (k, b) if n == 1 else '%s[%d:%d]' % (k, b, b + n - 1)


def ar(b, n=1):
    return vr(b, n, 'a')


def sr(b, n=1):
    return vr(b, n, 's')
```

```python
import sys, struct, math
from asmlib import *

NAME = 'gated_mix__ssm_conv_s4d__mixer_channel_mlp__prompt_kernel'
OPT = dict(stamps=0, rot=1, touch=1, tlb=1, early=8, left=4, hd=15, tx=0)
for a in sys.argv[2:]:
    k, v = a.split('=')
    assert k in OPT, k
    OPT[k] = int(v)


def f32(x):
    return '0x%08x' % struct.unpack('<I', struct.pack('<f', x))[0]


FU, FDUMMY, FH, FC = 0x0, 0x400, 0x1000, 0x6000
WS_TP = 0x80000
WS_TS = 0x88000
WS_G = 0x90000
WS_FP = 0x98000
WS_ST = 0xA0000
WS_UT = 0x200000
WS_AT = 0x400000
WS_H = 0x600000
WS_SIZE = 0x10000000
L_X, L_W = 0, 65536
L_R = 131072
L_TB = 148480
TBP = 3328
RP = 4224
LDS_SIZE = 163840

P_U, P_LA, P_AI, P_CR, P_CI, P_DT, P_DS, P_BX, P_W1, P_B1, P_W2, P_B2, P_GW, P_OUT, P_DBG, P_WS = [4 + 2 * i for i in range(16)]
SX, SW1, SW2, SWS, SOUT = 36, 40, 44, 48, 52
sXCD, sJ, sWV, sBH = 56, 57, 58, 59
sT0, sT1, sT2, sT3 = 60, 61, 62, 63
sNON, sNON1 = 64, 65
sM, sXb, sWb, sKC, sXk, sWk = 66, 67, 68, 69, 70, 71
sHst, sHst2, sFH, sTB1, sCB1, sW2l = 72, 73, 74, 75, 76, 77
sHl, sCNT, sTB2, sNB, sCH, sT4 = 78, 79, 80, 81, 82, 83
sF = 84
sSTAMP = 100
sUs, sUm = 4, 5
sT5, sSEL0, sSEL1 = 3, 18, 19
srd = lambda b: 's[%d:%d]' % (b, b + 3)
ptr = lambda b: 's[%d:%d]' % (b, b + 1)

V = Regs('v', 0, 256)
vTID, vL, vL16, vZ, vST, vN, vG, vNON = [V.alloc() for _ in range(8)]
vT = V.alloc(8, 4)
vPF, vPA = V.alloc(), V.alloc()
vW2s = V.alloc(4, 1)
vTr = V.alloc(8, 1)
vFa, vGa = V.alloc(), V.alloc()
vUz = V.alloc(2, 1)
vZ2 = V.alloc(4, 4)
t = vT

outline = []
stamp_names = []
nlab = [0]


def stamp(s, name, lvl=1):
    if OPT['stamps'] < lvl:
        return
    if name not in stamp_names:
        stamp_names.append(name)
    s(f's_memtime s[{sSTAMP}:{sSTAMP+1}]', tag='stamp:' + name)
    s.l[-1].kind, s.l[-1].dst = 'salu', []


def finish_stamps(items, prev):
    out = []
    for it in items:
        if it.tag and it.tag.startswith('stamp:'):
            if prev is not None:
                w = Ins(f'v_writelane_b32 v{vST}, s{sSTAMP}, {stamp_names.index(prev)}')
                out.append(w)
            prev = it.tag[6:]
        out.append(it)
    items[:] = out
    return prev


def retry(s, branch, exit_branch, body):
    k = nlab[0]
    nlab[0] += 1
    s(f'{branch} Lretry{k}')
    s(f'Lback{k}:')
    body = '\n'.join('    ' + l.strip() for l in body.strip().split('\n'))
    outline.append(f'''Lretry{k}:
    s_mov_b32 s{sCNT}, 0x40000
Lloop{k}:
{body}
    {exit_branch} Lback{k}
    s_sub_u32 s{sCNT}, s{sCNT}, 1
    s_cbranch_scc0 Lloop{k}
    s_branch Lback{k}
''')


def nonce_issue(s):
    s(f'global_load_dword v{vNON}, v{vZ}, {ptr(P_DBG)} sc1')


def nonce_check(s):
    s(f'v_readfirstlane_b32 s{sNON}, v{vNON}')
    s(f's_cmp_eq_u32 s{sNON}, 0')
    retry(s, 's_cbranch_scc1', 's_cbranch_scc0', f'''
global_load_dword v{vNON}, v{vZ}, {ptr(P_DBG)} sc1
s_waitcnt vmcnt(0)
v_readfirstlane_b32 s{sNON}, v{vNON}
s_nop 3
s_cmp_eq_u32 s{sNON}, 0''')
    s(f's_mov_b32 s{sNON1}, s{sNON}')


def flag_set(s, soff):
    s(f's_atomic_swap s{sNON}, {ptr(P_WS)}, s{soff}')


def spoll_issue(s, n, soff):
    s(f's_load_dwordx{8 if n <= 8 else 16} s[{sF}:{sF + (7 if n <= 8 else 15)}], {ptr(P_WS)}, s{soff} glc')


def spoll_check(n, soff):
    l = []
    for k in range(0, n - 1, 2):
        l.append(f's_xor_b64 s[{sF+k}:{sF+k+1}], s[{sF+k}:{sF+k+1}], s[{sNON}:{sNON1}]')
    if n % 2:
        l.append(f's_xor_b32 s{sF+n-1}, s{sF+n-1}, s{sNON}')
        l.append(f's_or_b32 s{sF}, s{sF}, s{sF+n-1}')
    for k in range(2, n - 1, 2):
        l.append(f's_or_b64 s[{sF}:{sF+1}], s[{sF}:{sF+1}], s[{sF+k}:{sF+k+1}]')
    g = [Seq()(x) for x in l]
    ld = Seq()
    spoll_issue(ld, n, soff)
    retry(g[-1], 's_cbranch_scc1', 's_cbranch_scc0', '\n'.join([ld.l[0].text, 's_waitcnt lgkmcnt(0)'] + l))
    return g


pro = Seq()
vPAR = V.alloc(6, 1)
vPo = V.alloc(2, 1)
pro('s_cmp_ge_u32 s2, 0x100\ns_cbranch_scc1 Lend')
if OPT['stamps']:
    pro(f'''
s_memrealtime s[{sSTAMP}:{sSTAMP+1}]
v_mov_b32 v{vST}, 0
v_writelane_b32 v{vST}, s{sSTAMP}, 62''')
stamp(pro, 'start')
pro(f'''
s_load_dwordx2 s[{SX}:{SX+1}], s[0:1], 0
s_load_dwordx2 s[{SW1}:{SW1+1}], s[0:1], 64
s_load_dwordx16 s[4:19], s[0:1], 0
s_load_dwordx16 s[20:35], s[0:1], 64
s_getpc_b64 s[{sT2}:{sT3}]
Lpc:
v_lshrrev_b32 v{t}, 6, v{vTID}
v_and_b32 v{vL}, 63, v{vTID}
v_readfirstlane_b32 s{sWV}, v{t}
v_mov_b32 v{vZ}, 0
s_and_b32 s{sXCD}, s2, 7
s_lshr_b32 s{sJ}, s2, 3
s_lshl2_add_u32 s{sT0}, s{sJ}, s{sWV}
s_lshl_b32 s{sT0}, s{sT0}, 8
v_and_b32 v{t+1}, 1, v{vL}
v_lshl_add_u32 v{t+1}, v{t+1}, 7, s{sT0}
v_min_u32 v{t+1}, Lcode_end-Lpc-4, v{t+1}
global_load_dword v{vPF}, v{t+1}, s[{sT2}:{sT3}]
s_lshl_b32 s{sT0}, s2, 9
v_lshl_add_u32 v{vPo}, v{vTID}, 1, s{sT0}
v_lshrrev_b32 v{vPo+1}, 7, v{vTID}
s_lshl_b32 s{sT0}, s2, 2
v_lshl_add_u32 v{vPo+1}, v{vPo+1}, 1, s{sT0}
v_lshlrev_b32 v{vL16}, 4, v{vL}
v_and_b32 v{vN}, 15, v{vL}
v_lshrrev_b32 v{vG}, 4, v{vL}
s_lshl2_add_u32 s{sHl}, s2, s{sWV}
v_lshlrev_b32 v{vPA}, 7, v{vN}
s_mul_i32 s{sCNT}, s{sHl}, 1792
s_lshl_b32 s{sHl}, s{sHl}, 11
s_mov_b32 s{SX+2}, 0x200000
s_mov_b32 s{SX+3}, 0x20000
s_mov_b32 s{SW1+2}, {512*3584}
s_mov_b32 s{SW1+3}, 0x20000
s_lshl_b32 s{sM}, s{sWV}, 12
s_and_b32 s{sBH}, s{sWV}, 1
s_cmp_ge_u32 s{sJ}, 28
s_cbranch_scc1 Lspare
''')


def touch_loads(s):
    if OPT['tx']:
        s(f'''
buffer_load_dword v{vPF}, v{vPA}, {srd(SX)}, s{sHl} offen
buffer_load_dword v{vPF}, v{vPA}, {srd(SW1)}, s{sCNT} offen''')


def param_loads(s):
    for i, (p, o) in enumerate(((P_LA, 0), (P_AI, 0), (P_CR, 0), (P_CI, 0), (P_DT, 1), (P_DS, 1))):
        s(f'global_load_ushort v{vPAR+i}, v{vPo+o}, {ptr(p)}')


vGA = V.alloc(9, 1)
vTA = V.alloc(5, 1)
vRW = V.alloc(6, 1)
vRR = V.alloc(2, 1)


def setup_a():
    s = Seq()
    for b, p, n in ((SW2, P_W2, 1792 * 1024), (SWS, P_WS, WS_SIZE), (SOUT, P_OUT, 0x200000)):
        s(f'''
s_mov_b64 s[{b}:{b+1}], s[{p}:{p+1}]
s_mov_b32 s{b+2}, {n}
s_mov_b32 s{b+3}, 0x20000''')
    if OPT['touch']:
        s(f'buffer_load_dword v{vPF}, v{vPA}, {srd(SW2)}, s{sCNT} offen')
    if OPT['tlb']:
        s(f'''
v_min_u32 v{t}, 6, v{vL}
v_lshlrev_b32 v{t}, 21, v{t}
v_or_b32 v{t}, 0x100000, v{t}
buffer_load_dword v{vPF}, v{t}, {srd(SWS)}, 0 offen sc1''')
    s(f'''
s_mul_i32 s{sT0}, s{sWV}, 4352
s_add_u32 s{sT0}, s{sT0}, {L_R}
s_mul_i32 s{sT1}, s{sWV}, {TBP}
s_add_u32 s{sT1}, s{sT1}, {L_TB}
v_lshl_add_u32 v{vRW}, v{vL}, 2, s{sT0}
v_add_u32 v{vRW+1}, 1088, v{vRW}
v_add_u32 v{vRW+2}, 2176, v{vRW}
v_add_u32 v{vRW+3}, 3264, v{vRW}
v_lshl_add_u32 v{vRW+4}, v{vL}, 2, s{sT1}
v_add_u32 v{vRW+5}, 1088, v{vRW+4}
v_mul_u32_u24 v{t}, 272, v{vN}
v_lshl_add_u32 v{t}, v{vG}, 4, v{t}
v_add_u32 v{vRR}, s{sT0}, v{t}
v_add_u32 v{vRR+1}, s{sT1}, v{t}
''')
    s(f'''
v_lshrrev_b32 v{t}, 1, v{vG}
v_and_b32 v{t+1}, 1, v{vG}
v_mul_u32_u24 v{t+1}, 400, v{t+1}
v_lshl_add_u32 v{t+1}, v{t}, 4, v{t+1}
v_add_u32 v{t+1}, v{t+1}, v{vN}
v_lshl_add_u32 v{vTA}, v{t+1}, 2, s{sT1}
v_add_u32 v{vTA+1}, 800, v{vTA}
v_sub_u32 v{t+1}, 2, v{t}
v_lshlrev_b32 v{t+1}, v{t+1}, v{vN}
v_lshrrev_b32 v{t+2}, 3, v{t+1}
v_and_b32 v{t+1}, 7, v{t+1}
v_mul_u32_u24 v{t+1}, 100, v{t+1}
v_lshl_add_u32 v{t+2}, v{vG}, 3, v{t+2}
v_add3_u32 v{t+1}, v{t+1}, v{t+2}, 32
v_lshl_add_u32 v{vTA+2}, v{t+1}, 2, s{sT1}
v_mul_u32_u24 v{t}, 784, v{t}
v_sub_u32 v{t}, 800, v{t}
v_add_u32 v{vTA+3}, v{vTA+2}, v{t}
v_and_b32 v{t}, 7, v{vN}
v_mul_u32_u24 v{t}, 100, v{t}
v_lshrrev_b32 v{t+1}, 3, v{vN}
v_lshl_add_u32 v{t+1}, v{vG}, 3, v{t+1}
v_add3_u32 v{t}, v{t}, v{t+1}, 64
v_lshl_add_u32 v{vTA+4}, v{t}, 2, s{sT1}
''')
    return s


def setup_b():
    s = Seq()
    s(f'''
v_lshlrev_b32 v{t+4}, 3, v{vTID}
s_movk_i32 s{sT0}, 128
s_movk_i32 s{sT2}, 100
s_mov_b32 s{sT1}, {L_TB}
''')
    for i in range(9):
        g = vGA + i
        s(f'v_sub_u32 v{g}, {2047 - i}, v{t+4}')
        if i == 8:
            s(f'v_max_i32 v{t+5}, 0, v{g}')
            s(f'v_cvt_f32_u32 v{t+5}, v{t+5}')
        else:
            s(f'v_cvt_f32_u32 v{t+5}, v{g}')
        s(f'''
v_cvt_pk_bf16_f32 v{t+5}, v{t+5}, v{vZ}
v_add_u32 v{t+5}, {128 - 0x4300}, v{t+5}
v_med3_i32 v{g}, v{t+5}, v{g}, s{sT0}
v_and_b32 v{t+5}, 7, v{g}
v_ashrrev_i32 v{g}, 3, v{g}
v_mad_u32_u24 v{g}, v{t+5}, s{sT2}, v{g}
v_lshl_add_u32 v{g}, v{g}, 2, s{sT1}''')
    s(f'''
s_lshr_b32 s{sT0}, s{sJ}, 3
s_lshl2_add_u32 s{sTB2}, s{sXCD}, s{sT0}
s_and_b32 s{sNB}, s{sJ}, 7
s_mul_i32 s{sW2l}, s{sWV}, {448*1024}
s_lshl_b32 s{sT0}, s{sNB}, 7
s_add_u32 s{sW2l}, s{sW2l}, s{sT0}
s_lshr_b32 s{sT0}, s{sWV}, 1
s_lshl1_add_u32 s{sCH}, s2, s{sT0}
v_lshlrev_b32 v{t+2}, 1, v{vG}
v_and_b32 v{t+3}, 7, v{vL}
v_xor_b32 v{t+2}, v{t+2}, v{t+3}
v_lshrrev_b32 v{t+3}, 3, v{vL}
v_lshlrev_b32 v{t+3}, 10, v{t+3}
v_lshl_add_u32 v{vW2s}, v{t+2}, 4, v{t+3}
v_add_u32 v{vW2s+1}, {7168*1}, v{vW2s}
v_add_u32 v{vW2s+2}, {7168*2}, v{vW2s}
v_add_u32 v{vW2s+3}, {7168*3}, v{vW2s}
v_lshrrev_b32 v{t}, 1, v{vG}
v_bfe_u32 v{t+2}, v{vL}, 2, 3
v_lshl_add_u32 v{t+2}, v{t}, 4, v{t+2}
v_lshlrev_b32 v{t+2}, 7, v{t+2}
v_and_b32 v{t+3}, 3, v{vL}
v_lshl_add_u32 v{t+2}, v{t+3}, 3, v{t+2}
v_bfe_u32 v{t+3}, v{vL}, 3, 2
v_lshl_add_u32 v{t+2}, v{t+3}, 5, v{t+2}
s_add_u32 s{sT0}, s{sM}, 32768
''')
    for j in range(4):
        s(f'v_xor_b32 v{t+3}, {32*j}, v{t+2}')
        s(f'v_add_u32 v{vTr+j}, s{sT0}, v{t+3}')
        s(f'v_add_u32 v{vTr+4+j}, 32768, v{vTr+j}')
    s(f'''
v_and_b32 v{t+4}, 1, v{vL}
v_lshrrev_b32 v{t+5}, 1, v{vN}
s_and_b32 s{sT0}, s{sWV}, 2
s_mul_i32 s{sT1}, s{sT0}, {RP}
s_lshl_b32 s{sT2}, s{sBH}, 8
s_sub_u32 s{sT1}, s{sT1}, s{sT2}
s_add_u32 s{sT1}, s{sT1}, {L_R + 56 + 256}
v_mul_u32_u24 v{vFa}, {RP}, v{t+4}
v_lshl_add_u32 v{vFa}, v{vG}, 4, v{vFa}
v_lshlrev_b32 v{t+6}, 3, v{t+5}
v_sub_u32 v{vFa}, v{vFa}, v{t+6}
v_add_u32 v{vFa}, s{sT1}, v{vFa}
s_lshl_b32 s{sT1}, s{sT0}, 13
s_sub_u32 s{sT1}, s{sT1}, s{sT2}
s_add_u32 s{sT1}, s{sT1}, {512 - 192}
v_mul_u32_u24 v{vGa}, {8192 + 32}, v{t+4}
v_lshl_add_u32 v{vGa}, v{vG}, 4, v{vGa}
v_lshl_add_u32 v{vGa}, v{t+5}, 6, v{vGa}
v_add_u32 v{vGa}, s{sT1}, v{vGa}
v_bfe_u32 v{vPA}, v{vL}, 3, 2
v_and_b32 v{t}, 7, v{vL}
v_lshlrev_b32 v{vPA}, 7, v{vPA}
v_lshl_add_u32 v{vPA}, v{t}, 2, v{vPA}
s_lshl_b32 s{sT0}, s{sCH}, 12
s_lshl_b32 s{sT1}, s{sBH}, 2
s_sub_u32 s{sT0}, s{sT0}, s{sT1}
s_add_u32 s{sUs}, s{sT0}, {WS_UT}
s_lshl_b32 s{sT1}, s{sBH}, 5
s_lshl1_add_u32 s{sUm}, s{sM}, s{sT1}
v_lshl_add_u32 v{vUz}, v{vL}, 3, s{sUm}
s_lshl2_add_u32 s{sT0}, s{sBH}, s{sUm}
v_mov_b32 v{vUz+1}, s{sT0}
''')
    return s


def kgen():
    s = Seq()
    live = {}

    def A(name, n=1, align=None):
        live[name] = (V.alloc(n, align), n)
        return live[name][0]

    def F(*names):
        for nm in names:
            V.release(*live.pop(nm))

    la, ai, cr, ci, ld, dsk = [vPAR + i for i in range(6)]
    LOG2E, LOG2E_LO, LN2 = 0x3fb8aa3b, 0x32a5705f, 0x3f317218
    s(f's_mov_b32 s{sT0}, {LOG2E:#x}')
    for x in (la, ld):
        s(f'v_lshlrev_b32 v{x}, 16, v{x}')
    for k, x in enumerate((la, ld)):
        s(f'v_mul_f32 v{t+2*k}, s{sT0}, v{x}')
    for k, x in enumerate((la, ld)):
        s(f'v_fma_f32 v{t+2*k+1}, v{x}, s{sT0}, -v{t+2*k}')
    for k, x in enumerate((la, ld)):
        s(f'v_exp_f32 v{t+2*k}, v{t+2*k}')
    for k, x in enumerate((la, ld)):
        s(f'v_fmamk_f32 v{t+2*k+1}, v{x}, {LOG2E_LO:#x}, v{t+2*k+1}')
    for k, x in enumerate((la, ld)):
        s(f'v_mul_f32 v{t+2*k+1}, {LN2:#x}, v{t+2*k+1}')
    for k, x in enumerate((la, ld)):
        s(f'v_fma_f32 v{t+2*k}, v{t+2*k}, v{t+2*k+1}, v{t+2*k}')
    for x in (ai, cr, ci, dsk):
        s(f'v_lshlrev_b32 v{x}, 16, v{x}')
    s(f'''
v_cvt_pk_bf16_f32 v{t}, v{t}, v{t+2}
v_and_b32 v{ld}, 0xffff0000, v{t}
v_lshlrev_b32 v{la}, 16, v{t}
''')
    val = lambda nm: live[nm][0]
    A('c0', 2)
    s(f'''
v_mul_f32 v{la}, v{la}, v{ld}
v_mul_f32 v{ai}, v{ai}, v{ld}
v_add_f32 v{ld}, v{ld}, v{ld}
v_mul_f32 v{la}, {f32(-1.4426950408889634)}, v{la}
v_mul_f32 v{ai}, 0.15915494, v{ai}
v_mul_f32 v{val('c0')}, v{cr}, v{ld}
v_mul_f32 v{val('c0')+1}, v{ci}, v{ld}
''')
    zs = (('z8', 8.0), ('z1', 1.0), ('z128', 128.0))
    for k, (nm, p) in enumerate(zs):
        A(nm, 2)
        s(f'v_mul_f32 v{t+2*k}, {f32(p)}, v{la}')
        s(f'v_mul_f32 v{t+2*k+1}, {f32(p)}, v{ai}')
    for k, (nm, p) in enumerate(zs):
        s(f'v_fract_f32 v{t+2*k+1}, v{t+2*k+1}')
        s(f'v_exp_f32 v{t+2*k}, v{t+2*k}')
    for k, (nm, p) in enumerate(zs):
        s(f'v_cos_f32 v{val(nm)}, v{t+2*k+1}')
        s(f'v_sin_f32 v{val(nm)+1}, v{t+2*k+1}')
    for k, (nm, p) in enumerate(zs):
        s(f'v_pk_mul_f32 {vr(val(nm),2)}, {vr(val(nm),2)}, {vr(t+2*k,2)} op_sel_hi:[1,0]')
    fB, fA0, fA1, fA2, acc = 160, 176, 192, 208, 224
    s(f'''
s_lshl_b32 s{sT0}, s{sBH}, 6
s_sub_u32 s{sT0}, 64, s{sT0}
v_cmp_eq_u32 vcc, s{sT0}, v{vL}
v_accvgpr_write_b32 a{acc+1}, 0
v_accvgpr_write_b32 a{acc+2}, 0
v_cndmask_b32 v{dsk}, 0, v{dsk}, vcc
v_accvgpr_write_b32 a{acc+3}, 0
v_accvgpr_write_b32 a{acc}, v{dsk}
''')
    late = []
    mode = {'pk': True}

    def pack(nm):
        p = A('p' + nm)
        s(f'v_cvt_pk_bf16_f32 v{p}, v{val(nm)}, {"-" if nm[0] == "z" else ""}v{val(nm)+1}')

    def mults(lst):
        for d, a, b in lst:
            A(d, 2)
        if mode['pk']:
            for d, a, b in lst:
                s(f'v_pk_mul_f32 {vr(val(d),2)}, {vr(val(a),2)}, {vr(val(b),2)} op_sel_hi:[1,0]')
            for d, a, b in lst:
                s(f'v_pk_fma_f32 {vr(val(d),2)}, {vr(val(a),2)}, {vr(val(b),2)}, {vr(val(d),2)} op_sel:[1,1,0] op_sel_hi:[0,1,1] neg_lo:[1,0,0]')
        else:
            for d, a, b in lst:
                s(f'v_mul_f32 v{val(d)}, v{val(a)}, v{val(b)}')
                s(f'v_mul_f32 v{val(d)+1}, v{val(a)+1}, v{val(b)}')
                s(f'v_fma_f32 v{val(d)}, -v{val(a)+1}, v{val(b)+1}, v{val(d)}')
                s(f'v_fmac_f32 v{val(d)+1}, v{val(a)}, v{val(b)+1}')

    def wr(row, a, b=None):
        base, r = vRW + row // 4, row % 4
        if b is None:
            s(f'ds_write_b32 v{base}, v{val("p"+a)} offset:{272*r}')
        else:
            s(f'ds_write2_b32 v{base}, v{val("p"+a)}, v{val("p"+b)} offset0:{68*r} offset1:{68*(r+1)}')
        late.extend(['p' + a] + (['p' + b] if b else []))
        while len(late) > 2:
            F(late.pop(0))

    def rd(dst, q=0):
        for ks in range(4):
            s(f'ds_read_b128 {ar(dst+4*ks,4)}, v{vRR+q} offset:{64*ks}')

    def mf(k, fa, ks):
        c = ar(acc + 4 * k, 4)
        s(f'v_mfma_f32_16x16x32_bf16 {c}, {ar(fa+4*ks,4)}, {ar(fB+4*ks,4)}, {c if (ks or k == 0) else 0}')

    def mp(lst):
        mults(lst)
        for d, _, _ in lst:
            if d not in ('z256', 'z512'):
                pack(d)

    def wr4(row, names):
        for k in range(0, len(names), 2):
            wr(row + k, names[k], names[k + 1])

    stamp(s, 'k0', 3)
    s(f'v_mov_b32 v{A("pz0")}, 0x3f80')
    pack('z8')
    pack('c0')
    lo_rounds = [[('z16', 'z8', 'z8'), ('z256', 'z128', 'z128')],
                 [('z24', 'z16', 'z8'), ('z32', 'z16', 'z16')],
                 [('z40', 'z8', 'z32'), ('z48', 'z16', 'z32')],
                 [('z56', 'z24', 'z32'), ('z64', 'z32', 'z32')],
                 [('z72', 'z40', 'z32'), ('z80', 'z48', 'z32')],
                 [('z88', 'z56', 'z32'), ('z96', 'z64', 'z32')],
                 [('z104', 'z72', 'z32'), ('z112', 'z80', 'z32'), ('z120', 'z88', 'z32')]]
    for r, lst in enumerate(lo_rounds):
        mp(lst + [(f'c{r+1}', f'c{r}', 'z1')])
        if r % 2 or r == 6:
            b0 = 4 * (r // 2)
            wr4(b0, [f'z{8*b}' for b in range(b0, b0 + 4)])
    F('z1', *[f'z{8*b}' for b in range(1, 16)])
    stamp(s, 'k1', 3)
    mp([('z512', 'z256', 'z256')] + [(f'c{128+o}', f'c{o}', 'z128') for o in range(4)])
    rd(fB)
    mp([(f'c{128+o}', f'c{o}', 'z128') for o in range(4, 8)])
    F('z128', 'c1', 'c3', 'c5', 'c7', 'c129', 'c131', 'c133', 'c135')
    stamp(s, 'k2', 3)
    wr4(0, [f'c{o}' for o in range(6)])
    mp([(f'c{256+o}', f'c{o}', 'z256') for o in (0, 2, 4, 6)])
    F('c0', 'c2', 'c4', 'c6', 'c258', 'c262')
    wr4(6, ['c6', 'c7', 'c128', 'c129', 'c130', 'c131'])
    mp([(f'c{384+o}', f'c{128+o}', 'z256') for o in (0, 2, 4, 6)])
    F('c128', 'c130', 'c132', 'c134', 'c386', 'c390')
    wr4(12, ['c132', 'c133', 'c134', 'c135'])
    mp([(f'c{h+256}', f'c{h}', 'z256') for h in (256, 260, 384, 388)])
    mp([(f'c{h+512}', f'c{h}', 'z512') for h in (256, 260, 384, 388)])
    F('z256', 'c516', 'c644', 'c256', 'c260', 'c384', 'c388', 'c772', 'c900')
    stamp(s, 'k3', 3)
    rd(fA0)
    mp([(f'c{h+512}', f'c{h}', 'z512') for h in (512, 640, 768, 896)])
    stamp(s, 'k4', 3)
    wr4(0, ['c256', 'c258', 'c260', 'c262', 'c384', 'c386', 'c388', 'c390'])
    mp([(f'c{h+512}', f'c{h}', 'z512') for h in (1024, 1152, 1280, 1408)])
    wr4(8, ['c512', 'c516', 'c640', 'c644', 'c768', 'c772', 'c896', 'c900'])
    mp([('c2048', 'c1536', 'z512')])
    wr4(16, [f'c{1024 + 128*k}' for k in range(8)])
    s(f'ds_write_b32 v{vRW+5}, v{val("pc2048")} offset:1088')
    F(*list(live))
    late.clear()
    partA, s = s, Seq()
    rd(fA1)
    rd(fA2, 1)
    rdB, s = s, Seq()
    for k, fa in enumerate((fA0, fA1, fA2)):
        for ks in range(4):
            mf(k, fa, ks)
    mfB, s = s, Seq()
    for k in range(6):
        o0, o1 = (0, 100) if k < 4 else (4 * (k - 4), 4 * (k - 4) + 2)
        s(f'ds_write2_b32 v{vTA+min(k,4)}, a{acc+2*k}, a{acc+2*k+1} offset0:{o0} offset1:{o1}')
    ea = A('ea', 3)
    s(f'ds_write_b32 v{ea+2}, v{vZ} offset:{699*4}')
    wrB, s = s, Seq()
    s(f'''
s_mul_i32 s{sT3}, s{sWV}, {TBP}
s_add_u32 s{sT3}, s{sT3}, {L_TB}
v_mov_b32 v{ea+2}, s{sT3}
v_lshlrev_b32 v{ea}, 4, v{vTID}
v_add_u32 v{ea}, {L_R}, v{ea}
v_bfe_u32 v{ea+1}, v{vL}, 2, 2
v_mul_u32_u24 v{ea+1}, {RP}, v{ea+1}
v_and_b32 v{vZ2}, 3, v{vL}
v_lshl_add_u32 v{ea+1}, v{vZ2}, 4, v{ea+1}
v_add_u32 v{ea+1}, {L_R + 4096}, v{ea+1}
v_mov_b32 v{vZ2}, 0
v_mov_b32 v{vZ2+1}, 0
v_mov_b32 v{vZ2+2}, 0
v_mov_b32 v{vZ2+3}, 0
''')
    adB, s = s, Seq()
    gv, ov = A('gv', 36, 4), A('ov', 16, 4)
    for i in range(9):
        for p in range(2):
            s(f'ds_read2st64_b32 {vr(gv+4*i+2*p,2)}, v{vGA+i} offset0:{13*p} offset1:{13*(2+p)}')
    rdC, s = s, Seq()
    for i in range(9):
        s(f'v_add_f32 v{gv+4*i}, v{gv+4*i}, v{gv+4*i+2}')
        s(f'v_add_f32 v{gv+4*i+1}, v{gv+4*i+1}, v{gv+4*i+3}')
    for c in range(2):
        for o in (1, 0):
            for k in range(4):
                a = gv + 4 * (2 * k + (1 - o)) + c
                s(f'v_cvt_pk_bf16_f32 v{ov+8*c+4*o+k}, v{a}, v{a+4}')
    vaC, s = s, Seq()
    s(f'ds_write_b128 v{ea+1}, {vr(vZ2,4)}')
    for c in range(2):
        for o in (1, 0):
            s(f'ds_write_b128 v{ea}, {vr(ov+8*c+4*o,4)} offset:{(2*c+o)*RP}')
    F('gv')
    held = [live.pop(k) for k in list(live)]
    return dict(A=partA, rdB=rdB, mfB=mfB, wrB=wrB, adB=adB, rdC=rdC, vaC=vaC, wrC=s, held=held)


W2E = dict(enumerate(3 * [(L_W, 1, 0), (L_W + 16384, 1, 16384), (L_W + 32768, 1, 32768),
                          (32768, 0, 0), (L_W + 49152, 1, 49152), (49152, 0, 16384)]))


def w2_dma(ks):
    g = []
    for i in range(4):
        s = Seq()
        if i == 0:
            if ks >= 6:
                s.wait(f'tr{ks-6}')
            s(f's_add_u32 m0, s{sM}, {W2E[ks][0]}')
        s(f'buffer_load_dwordx4 v{vW2s+i}, {srd(SW2)}, s{sW2l} offen offset:{1024*i} lds', tag=f'w2d{ks}')
        if i == 3:
            s(f's_add_u32 s{sW2l}, s{sW2l}, 32768')
        g.append(s)
    return g


def w2_dma1(ks):
    return cat(w2_dma(ks))


def w2_tr(ks):
    g = []
    _, win, off = W2E[ks]
    for j in range(4):
        for hh in range(2):
            s = Seq()
            if j == 0 and hh == 0:
                s.wait(f'w2d{ks}')
            s(f'ds_read_b64_tr_b16 {ar(16*ks+4*j+2*hh,2)}, v{vTr+4*win+j} offset:{off + 1024*hh}', tag=f'tr{ks}')
            g.append(s)
    return g


def cat(groups):
    s = Seq()
    for g in groups:
        s.add(g)
    return s


def u_poll_issue():
    s = Seq()
    s(f'buffer_load_dword v{vPF}, v{vPA}, {srd(SWS)}, 0 offen offset:{FU} sc1')
    s(f'ds_write_b64 v{vUz}, {vr(vZ2,2)}')
    return s


def u_dma():
    s = Seq()
    s(f'v_cmp_ne_u32 vcc, s{sNON}, v{vPF}')
    retry(s, 's_cbranch_vccnz', 's_cbranch_vccz', f'''
buffer_load_dword v{vPF}, v{vPA}, {srd(SWS)}, 0 offen offset:{FU} sc1
s_waitcnt vmcnt(0)
v_cmp_ne_u32 vcc, s{sNON}, v{vPF}''')
    s(f's_add_u32 m0, s{sUm}, 512')
    for i in range(4):
        s(f'buffer_load_dwordx4 v{vL16}, {srd(SWS)}, s{sUs} offen offset:{1024*i} sc1 lds', tag='udma')
    return s


main = Seq()
vXs = V.alloc(4, 1)
vWs = V.alloc(4, 1)
vXr = V.alloc(4, 1)
vWr = V.alloc(2, 1)
vACC = V.alloc(64, 4)
vFR = V.alloc(32, 4)
vHa = V.alloc()
main(f'''
s_mul_i32 s{sT0}, s{sJ}, 9363
s_lshr_b32 s{sT0}, s{sT0}, 16
s_mul_i32 s{sT1}, s{sT0}, 7
s_sub_u32 s{sT1}, s{sJ}, s{sT1}
s_lshr_b32 s{sT2}, s{sXCD}, 1
s_and_b32 s{sT3}, s{sXCD}, 1
s_lshl2_add_u32 s{sT0}, s{sT2}, s{sT0}
s_lshl1_add_u32 s{sKC}, s{sT3}, s{sT2}
s_mul_i32 s{sT3}, s{sT3}, 7
s_add_u32 s{sT1}, s{sT1}, s{sT3}
s_lshl_b32 s{sKC}, s{sKC}, 1
s_and_b32 s{sKC}, s{sKC}, {7 if OPT['rot'] else 0}
s_lshr_b32 s{sT3}, s{sWV}, 1
s_lshl1_add_u32 s{sTB1}, s{sT0}, s{sBH}
s_lshl1_add_u32 s{sCB1}, s{sT1}, s{sT3}
s_lshl2_add_u32 s{sXb}, s{sT0}, s{sWV}
s_lshl_b32 s{sXb}, s{sXb}, 15
s_mul_i32 s{sWb}, s{sWV}, {16*3584}
s_lshl_b32 s{sT1}, s{sT1}, 8
s_add_u32 s{sWb}, s{sWb}, s{sT1}
v_and_b32 v{t+1}, 7, v{vL}
v_xor_b32 v{t}, v{vG}, v{t+1}
v_lshrrev_b32 v{t+1}, 3, v{vL}
v_lshlrev_b32 v{t+1}, 10, v{t+1}
v_lshl_add_u32 v{vXs}, v{t}, 4, v{t+1}
v_xor_b32 v{t}, 64, v{vXs}
v_add_u32 v{vXs+1}, 7168, v{t}
v_add_u32 v{vXs+2}, {2*7168}, v{vXs}
v_add_u32 v{vXs+3}, {3*7168}, v{t}
v_lshlrev_b32 v{t}, 2, v{vG}
v_xor_b32 v{t}, v{t}, v{vN}
v_mul_u32_u24 v{t+1}, 3584, v{vG}
v_lshl_add_u32 v{vWs}, v{t}, 4, v{t+1}
''')
for i in range(1, 4):
    main(f'v_add_u32 v{vWs+i}, {(4*3584 - 1024)*i}, v{vWs}')


def stage_loads(st):
    g = []
    slot = st & 3
    for isw in (0, 1):
        for i in range(4):
            s = Seq()
            if i == 0:
                if isw:
                    s(f'''
s_mul_i32 s{sWk}, s{sKC}, {64*3584}
s_add_u32 s{sWk}, s{sWk}, s{sWb}
s_add_u32 s{sKC}, s{sKC}, 1
s_and_b32 s{sKC}, s{sKC}, 7''')
                else:
                    s(f'''
s_lshl_b32 s{sXk}, s{sKC}, 7
s_add_u32 s{sXk}, s{sXk}, s{sXb}''')
                s(f's_add_u32 m0, s{sM}, {(L_W if isw else L_X) + slot*16384}')
            if isw:
                s(f'buffer_load_dwordx4 v{vWs+i}, {srd(SW1)}, s{sWk} offen offset:{1024*i} lds', tag=f'st{st}')
            else:
                s(f'buffer_load_dwordx4 v{vXs+i}, {srd(SX)}, s{sXk} offen offset:{1024*i} lds', tag=f'st{st}')
            g.append(s)
    return g


ld = [stage_loads(st) for st in range(8)]
main(f's_or_b32 s{sT0}, s2, s{sWV}')
main('s_waitcnt lgkmcnt(0)')
stamp(main, 'karg')
main(f'''
s_cmp_eq_u32 s{sT0}, 0
s_cbranch_scc1 Lnonce
Lnonce_back:''')
outline.append(f'''Lnonce:
    s_memrealtime s[{sHst}:{sHst2}]
    s_waitcnt lgkmcnt(0)
    s_or_b32 s{sHst}, s{sHst}, 1
    s_atomic_swap s{sHst}, {ptr(P_DBG)}, 0
    s_branch Lnonce_back
''')
param_loads(main)
touch_loads(main)
pre = ld[0] + ld[1] + ld[2] + ld[3]
NE = OPT['early']
su = Seq()
su.add(setup_a())
su(f'''
v_and_b32 v{t}, 31, v{vL}
v_bfe_u32 v{t+1}, v{vL}, 1, 3
v_lshrrev_b32 v{t+2}, 5, v{vL}
v_xor_b32 v{t+1}, v{t+1}, v{t+2}
s_lshl_b32 s{sT0}, s{sBH}, 13
v_lshl_add_u32 v{t}, v{t}, 7, s{sT0}
''')
for ks in range(4):
    su(f'v_xor_b32 v{t+3}, {2*ks}, v{t+1}')
    su(f'v_lshl_add_u32 v{vXr+ks}, v{t+3}, 4, v{t}')
su(f'''
v_bfe_u32 v{t}, v{vL}, 2, 2
v_lshl_add_u32 v{t+1}, v{t+2}, 3, v{t}
v_lshlrev_b32 v{t+1}, 8, v{t+1}
v_and_b32 v{t+2}, 1, v{vG}
v_lshl_add_u32 v{t+1}, v{t+2}, 5, v{t+1}
v_and_b32 v{t+2}, 3, v{vL}
v_lshl_add_u32 v{t+1}, v{t+2}, 3, v{t+1}
v_add_u32 v{t+1}, {L_W}, v{t+1}
s_and_b32 s{sT0}, s{sWV}, 2
v_xor_b32 v{t}, s{sT0}, v{t}
v_lshl_add_u32 v{vWr}, v{t}, 6, v{t+1}
v_xor_b32 v{t}, 1, v{t}
v_lshl_add_u32 v{vWr+1}, v{t}, 6, v{t+1}
''')
main.add(cat(pre[:4]))
main.add(sprinkle(su, pre[4:NE], 0, min(len(su), 12 * (NE - 4))))
stamp(main, 'setup')
if OPT['stamps']:
    main(f'v_mov_b32 v{vPAR+5}, v{vPAR+5}')
    stamp(main, 'par')
K = kgen()
nz = Seq()
nonce_issue(nz)
NK = 32 - OPT['left']
main.add(sprinkle(K['A'], pre[NE:NE + 10] + [nz] + pre[NE + 10:NK], 2, len(K['A']) - 16))
stamp(main, 'kgenA')
vTP = V.alloc(24, 4)


def g1_reads(st, ks):
    slot = st & 3
    b = vFR + 16 * (ks & 1)
    r = []
    for k in range(2):
        for hh in range(2):
            r.append(f'ds_read_b64_tr_b16 {vr(b+4*k+2*hh,2)}, v{vWr+k} offset:{slot*16384 + ks*4096 + hh*1024}')
        r.append(f'ds_read_b128 {vr(b+8+4*k,4)}, v{vXr+ks} offset:{slot*16384 + k*4096}')
    return r


def g1_mfma(st, ks):
    b = vFR + 16 * (ks & 1)
    r = []
    for ft, tt in ((0, 0), (1, 0), (0, 1), (1, 1)):
        a = vACC + 32 * ft + 16 * tt
        c = '0' if (st == 0 and ks == 0) else vr(a, 16)
        r.append(f'v_mfma_f32_32x32x16_bf16 {vr(a,16)}, {vr(b+4*ft,4)}, {vr(b+8+4*tt,4)}, {c}')
    return r


def merge(a, b):
    out, i, j = [], 0, 0
    while i < len(a) or j < len(b):
        if j >= len(b) or (i < len(a) and i * len(b) <= j * len(a)):
            out.append(a[i])
            i += 1
        else:
            out.append(b[j])
            j += 1
    return out


pc_addr = Seq()
pc_addr(f'''
v_and_b32 v{t}, 31, v{vL}
v_lshlrev_b32 v{t}, 4, v{t}
s_lshl_b32 s{sT0}, s{sCB1}, 10
s_add_u32 s{sT0}, s{sT0}, {WS_FP}
s_lshl_b32 s{sT1}, s{sTB1}, 10
s_add_u32 s{sT4}, s{sT1}, {WS_TS}
s_add_u32 s{sT1}, s{sT1}, {WS_TP}''')
pc_ld = [f'buffer_load_dwordx4 {vr(vTP+8*w+4*k,4)}, v{t}, {srd(SWS)}, s{(sT0, sT1, sT4)[w]} offen offset:{512*k} sc1'
         for w in range(3) for k in range(2)]
pc_cmp = [f'v_xor_b32 v{vTP+4*k+3}, s{sNON}, v{vTP+4*k+3}' for k in range(6)]
pc_cmp += [f'v_or3_b32 v{t+1}, v{vTP+3}, v{vTP+7}, v{vTP+11}', f'v_or3_b32 v{t+2}, v{vTP+15}, v{vTP+19}, v{vTP+23}',
           f'v_or_b32 v{t+1}, v{t+1}, v{t+2}', f'v_cmp_ne_u32 vcc, 0, v{t+1}']
pc_chk = [Seq()(x) for x in pc_cmp]
retry(pc_chk[-1], 's_cbranch_vccnz', 's_cbranch_vccz', '\n'.join(pc_ld + ['s_waitcnt vmcnt(0)'] + pc_cmp))
pc_fix = Seq()
pc_fix(f'v_cmp_gt_u32 vcc, 32, v{vL}')
for k in range(2):
    for d in range(3):
        pc_fix(f'v_cndmask_b32 v{vTP+8+4*k+d}, 0, v{vTP+8+4*k+d}, vcc')
hadr = Seq()
hadr(f'''
v_and_b32 v{t+4}, 1, v{vG}
v_mul_u32_u24 v{t+4}, {56*1024}, v{t+4}
v_lshrrev_b32 v{t+5}, 5, v{vL}
v_lshl_add_u32 v{t+4}, v{t+5}, 8, v{t+4}
v_lshl_add_u32 v{vHa}, v{vN}, 4, v{t+4}
s_mul_i32 s{sHst}, s{sTB1}, {4*56}
s_lshl1_add_u32 s{sHst}, s{sCB1}, s{sHst}
s_lshl_b32 s{sHst}, s{sHst}, 10
s_add_u32 s{sHst}, s{sHst}, {WS_H}
s_add_u32 s{sHst2}, s{sHst}, {2*56*1024}
s_mul_i32 s{sT2}, s{sCB1}, 9363
s_lshr_b32 s{sT2}, s{sT2}, 16
s_mul_i32 s{sT3}, s{sT2}, 7
s_sub_u32 s{sT3}, s{sCB1}, s{sT3}
s_lshl2_add_u32 s{sFH}, s{sTB1}, s{sT2}
s_lshl_b32 s{sFH}, s{sFH}, 7
s_lshl2_add_u32 s{sFH}, s{sT3}, s{sFH}
s_add_u32 s{sFH}, s{sFH}, {FH}
''')
nchk = Seq()
nonce_check(nchk)
sb = singles(K['adB']) + singles(setup_b())
n1 = len(sb)
G23 = [2, 3, 6, 7, 10, 11]
G2 = [2, 6, 10]
fill = {
    0: (pre[NK:] + singles(K['rdB']), G23, sb[:n1 // 4]),
    1: (ld[4], G23, sb[n1 // 4: n1 // 2]),
    2: (ld[5], G23, sb[n1 // 2: 3 * n1 // 4]),
    3: (ld[6], G23, sb[3 * n1 // 4:]),
    4: (ld[7], G23, [nchk] + singles(hadr) + singles(pc_addr)),
    5: (w2_dma(0), G23, singles(K['vaC'])),
    6: ([Seq()(x) for x in pc_ld] + w2_dma(1), G23, []),
    7: (w2_dma(2) + w2_dma(3), G23, pc_chk + singles(pc_fix)),
}
main.wait('st0')
main('s_barrier')
for x in g1_reads(0, 0):
    main(x)
for st in range(8):
    body = Seq()
    for ks in range(3):
        m, r = g1_mfma(st, ks), g1_reads(st, ks + 1)
        for k in range(4):
            body(m[k])
            for x in r[3 * k: 3 * k + 3]:
                body(x)
    mem, gaps, va = fill[st]
    body = weave(body, mem, gaps=gaps)
    if st == 4:
        body = weave(body, singles(K['rdC']), late=True, gaps=[0, 1, 2, 2, 3, 3, 4, 5, 6, 6, 7, 7, 8, 9, 10, 10, 11, 11])
    if va:
        body = weave(body, va, late=True, start=(4 if st == 7 else 0))
    main.add(body)
    if st == 1:
        main.add(K['mfB'])
    m = g1_mfma(st, 3)
    if st == 3:
        main.wait('*lds')
        main(m[0])
        main.add(K['wrB'])
        main.wait('*lds')
    else:
        main.wait('*lds')
        main(m[0])
    if st < 7:
        main.wait(f'st{st+1}')
        main('s_barrier')
        r = g1_reads(st + 1, 0)
        for k in range(1, 4):
            for x in r[3 * k - 3: 3 * k]:
                main(x)
            main(m[k])
    else:
        main('s_barrier')
        for k in range(1, 4):
            main(m[k])
    stamp(main, f'g1s{st}', 1 if st in (3, 7) else 2)
for ft, tt in ((0, 0), (1, 0), (0, 1), (1, 1)):
    a = vACC + 32 * ft + 16 * tt
    main(f'v_mfma_f32_32x32x16_bf16 {vr(a,16)}, {vr(vTP+4*ft,4)}, {vr(vTP+8+4*tt,4)}, {vr(a,16)}')
q = vFR
wc = singles(K['wrC'])
gx = {0: [u_poll_issue(), wc[0]], 1: [w2_dma1(4)], 2: [wc[1], wc[2]], 3: [u_dma()],
      4: [wc[3], wc[4]], 5: [w2_dma1(5)], 6: [], 7: []}
for ti, (ft, tt) in enumerate(((0, 0), (1, 0), (0, 1), (1, 1))):
    P = vTP + 16 + 4 * tt
    for hh in range(2):
        gel = Seq()
        a = vACC + 32 * ft + 16 * tt + 8 * hh
        o = vFR + 8 + 4 * ((2 * ti + hh) % 4)
        for k in range(4):
            gel(f'v_pk_mul_f32 {vr(q+2*k,2)}, {vr(a+2*k,2)}, {vr(a+2*k,2)}')
        for k in range(4):
            gel(f'v_pk_fma_f32 {vr(q+2*k,2)}, {vr(q+2*k,2)}, {vr(P,2)}, {vr(P,2)} op_sel:[0,1,0] op_sel_hi:[1,1,0]')
        for k in range(4):
            gel(f'v_pk_mul_f32 {vr(q+2*k,2)}, {vr(q+2*k,2)}, {vr(a+2*k,2)}')
        for k in range(8):
            gel(f'v_exp_f32 v{q+k}, v{q+k}')
        for k in range(4):
            gel(f'v_pk_fma_f32 {vr(q+2*k,2)}, {vr(q+2*k,2)}, {vr(P+2,2)}, {vr(P+2,2)} op_sel_hi:[1,0,0]')
        for k in range(8):
            gel(f'v_rcp_f32 v{q+k}, v{q+k}')
        for k in range(4):
            gel(f'v_pk_mul_f32 {vr(q+2*k,2)}, {vr(q+2*k,2)}, {vr(a+2*k,2)}')
        for k in range(4):
            gel(f'v_cvt_pk_bf16_f32 v{o+k}, v{q+2*k}, v{q+2*k+1}')
        gel(f'buffer_store_dwordx4 {vr(o,4)}, v{vHa}, {srd(SWS)}, s{sHst2 if tt else sHst} offen offset:{1024*ft + 512*hh} sc1', tag='hst')
        main.add(gel)
        main.add(cat(gx[2 * ti + hh]))
stamp(main, 'gelu')
for b, n in ((vXs, 4), (vWs, 4), (vXr, 4), (vWr, 2), (vACC, 64), (vFR, 32), (vTP, 24), (vHa, 1)) + tuple(K['held']):
    V.release(b, n)

sp = Seq()
sp('Lspare:')
vS = V.alloc(6, 1)
vB1 = V.alloc()
sp(f'''
s_sub_u32 s{sT0}, s{sJ}, 28
s_lshl2_add_u32 s{sTB1}, s{sXCD}, s{sT0}
s_lshr_b32 s{sT1}, s{sXCD}, 1
s_lshl2_add_u32 s{sT0}, s{sT1}, s{sT0}
s_min_u32 s{sT0}, s{sT0}, 13
s_and_b32 s{sT1}, s{sXCD}, 1
s_mul_i32 s{sT1}, s{sT1}, 14
s_add_u32 s{sCB1}, s{sT0}, s{sT1}
s_lshl2_add_u32 s{sXb}, s{sTB1}, s{sWV}
s_lshl_b32 s{sXb}, s{sXb}, 14
s_lshl_b32 s{sT0}, s{sWV}, 2
v_xor_b32 v{t}, s{sT0}, v{vL}
v_lshlrev_b32 v{vS}, 4, v{t}
v_xor_b32 v{vS+1}, 32, v{vS}
s_lshl_b32 s{sT4}, s{sWV}, 14
s_lshl_b32 s{sT2}, s{sCB1}, 7
s_lshl_b32 s{sT0}, s{sWV}, 5
s_add_u32 s{sT0}, s{sT0}, s{sT2}
v_lshl_add_u32 v{vB1}, v{vN}, 1, s{sT0}
v_lshlrev_b32 v{t}, 1, v{vG}
v_and_b32 v{t+1}, 7, v{vL}
v_xor_b32 v{t}, v{t}, v{t+1}
v_lshrrev_b32 v{t+1}, 3, v{vL}
v_mul_u32_u24 v{t+1}, 3584, v{t+1}
v_lshl_add_u32 v{vS+2}, v{t}, 4, v{t+1}
v_add_u32 v{vS+3}, {(8*3584-1024)*1}, v{vS+2}
v_add_u32 v{vS+4}, {(8*3584-1024)*2}, v{vS+2}
v_add_u32 v{vS+5}, {(8*3584-1024)*3}, v{vS+2}
s_mul_i32 s{sWb}, s{sWV}, {128*3584}
s_add_u32 s{sWb}, s{sWb}, s{sT2}
s_waitcnt lgkmcnt(0)
''')
stamp(sp, 'karg')
touch_loads(sp)
sp(f'global_load_ushort v{vB1}, v{vB1}, {ptr(P_B1)}')
wl = []
for i in range(4):
    s = Seq()
    s(f's_add_u32 m0, s{sT4}, {L_W + 4096*i}')
    for r in range(4):
        s(f'buffer_load_dwordx4 v{vS+2+r}, {srd(SW1)}, s{sWb} offen offset:{1024*r} lds', tag='spw')
    s(f's_add_u32 s{sWb}, s{sWb}, {32*3584}')
    wl.append(s)
xl = []
for i in range(4):
    s = Seq()
    s(f's_add_u32 m0, s{sT4}, {L_X + 4096*i}')
    for r in range(4):
        s(f'buffer_load_dwordx4 v{vS + i//2}, {srd(SX)}, s{sXb} offen offset:{1024*r} lds', tag='spx')
    s(f's_add_u32 s{sXb}, s{sXb}, 4096')
    xl.append(s)
sp.add(cat(wl[:3]))
sp.add(setup_a())
sp.add(setup_b())
sp(f'''
s_mov_b32 s{sFH}, {FDUMMY}
s_mov_b32 s{sSEL0}, 0x05040100
s_mov_b32 s{sSEL1}, 0x07060302''')
sp.add(wl[3])
nonce_issue(sp)
sp(f's_mov_b32 m0, {L_R}')
sp(f'global_load_lds_dwordx4 v{vL16}, {ptr(P_GW)}', tag='spx')
sp.add(cat(xl[:3]))
vF = V.alloc(128, 4)
vD = V.alloc(16, 4)
vONE = V.alloc(4, 4)
vTOK = V.alloc()
sp(f'''
v_lshrrev_b32 v{t}, 2, v{vL}
v_bfe_u32 v{t+1}, v{vL}, 3, 2
v_xor_b32 v{t+1}, s{sWV}, v{t+1}
v_lshlrev_b32 v{t}, 7, v{t}
v_lshl_add_u32 v{t}, v{t+1}, 5, v{t}
v_and_b32 v{t+1}, 3, v{vL}
v_lshl_add_u32 v{t}, v{t+1}, 3, v{t}
v_add_u32 v{t}, {L_W}, v{t}
''')
for k in range(4):
    sp(f'v_mov_b32 v{vONE+k}, 0x3f803f80')
sp.wait('spw')
sp('s_barrier')
stamp(sp, 'setup')
for s_ in range(32):
    sp(f'ds_read_b64_tr_b16 {vr(vF+16+2*s_,2)}, v{t} offset:{2048*s_}')
sp.add(xl[3])
param_loads(sp)
for s_ in range(16):
    sp(f'v_mfma_f32_16x16x32_bf16 {vr(vD+12,4)}, {vr(vONE,4)}, {vr(vF+16+4*s_,4)}, {vr(vD+12,4) if s_ else 0}')
nonce_check(sp)
o = vF + 8
sp(f'''
v_cmp_gt_u32 vcc, 16, v{vL}
v_mov_b32 v{t+2}, 0x7ff00000
s_lshl2_add_u32 s{sT0}, s{sCB1}, s{sWV}
s_lshl_b32 s{sT0}, s{sT0}, 8
s_add_u32 s{sT0}, s{sT0}, {WS_FP}
v_cndmask_b32 v{t}, v{t+2}, v{vL16}, vcc
v_mov_b32 v{o+2}, v{vB1}
v_mov_b32 v{o+3}, s{sNON}
v_cvt_pk_bf16_f32 v{o+1}, v{vD+12}, v{vZ}
v_lshlrev_b32 v{t+3}, 16, v{o+1}
v_lshl_or_b32 v{o+1}, v{vB1}, 16, v{o+1}
v_sub_f32 v{t+4}, v{vD+12}, v{t+3}
v_cvt_pk_bf16_f32 v{o}, v{t+3}, v{t+4}
buffer_store_dwordx4 {vr(o,4)}, v{t}, {srd(SWS)}, s{sT0} offen sc1
''')
sp(f'''
v_and_b32 v{t}, 7, v{vN}
v_lshrrev_b32 v{t+1}, 3, v{vN}
v_lshl_add_u32 v{t+1}, v{t}, 3, v{t+1}
s_lshl_b32 s{sT0}, s{sWV}, 1
v_add_u32 v{vTOK}, s{sT0}, v{t+1}
v_lshlrev_b32 v{t}, 1, v{t}
v_xor_b32 v{t}, v{t}, v{vG}
v_lshlrev_b32 v{t+1}, 10, v{vTOK}
v_lshlrev_b32 v{t+6}, 4, v{vG}
v_add_u32 v{t+6}, {L_R}, v{t+6}
''')
for k in range(4):
    sp(f'v_xor_b32 v{t+2+k}, {4*k}, v{t}')
    sp(f'v_lshl_add_u32 v{t+2+k}, v{t+2+k}, 4, v{t+1}')
sp.wait('spx')
sp('s_barrier')
stamp(sp, 'kgenA')
rds = []
for s_ in range(16):
    rds.append(f'ds_read_b128 {vr(vF+8*s_,4)}, v{t+2+s_%4} offset:{256*(s_//4)}')
    rds.append(f'ds_read_b128 {vr(vF+8*s_+4,4)}, v{t+6} offset:{64*s_}')
for x in rds[:6]:
    sp(x)
for s_ in range(16):
    x, gw = vr(vF + 8 * s_, 4), vr(vF + 8 * s_ + 4, 4)
    for k, a in enumerate((x, vr(vONE, 4), gw)):
        sp(f'v_mfma_f32_16x16x32_bf16 {vr(vD+4*k,4)}, {a}, {x}, {vr(vD+4*k,4) if s_ else 0}')
        if k < 2 and 6 + 2 * s_ + k < 32:
            sp(rds[6 + 2 * s_ + k])
fin, fout = vF + 16, vF + 16 + 64
sp(f'''
v_and_b32 v{t}, 7, v{vL}
v_lshrrev_b32 v{t+1}, 3, v{vL}
v_lshlrev_b32 v{t+2}, 1, v{t}
v_xor_b32 v{t+2}, v{t+2}, v{t+1}
v_lshlrev_b32 v{t+3}, 13, v{t}
s_lshl_b32 s{sT0}, s{sWV}, 8
v_lshl_add_u32 v{t+2}, v{t+2}, 4, v{t+3}
v_add_u32 v{t+2}, s{sT0}, v{t+2}
v_xor_b32 v{t+3}, 128, v{t+2}
v_lshlrev_b32 v{t+1}, 15, v{t+1}
v_lshl_add_u32 v{t+7}, v{t}, 4, v{t+1}
''')
for h in range(2):
    for tk in range(8):
        sp(f'ds_read_b128 {vr(fin+32*h+4*tk,4)}, v{t+2+h} offset:{1024*tk}')
C0 = -2.0 * math.sqrt(2.0 / math.pi) * math.log2(math.e)
C1 = C0 * 0.044715
o = vF
sp(f'''
v_and_b32 v{t}, 1, v{vL}
v_cmp_eq_u32 vcc, 1, v{t}
v_and_b32 v{t}, 2, v{vL}
v_cmp_eq_u32 s[{sT0}:{sT1}], 2, v{t}
v_cndmask_b32 v{vD}, v{vD}, v{vD+1}, vcc
v_cndmask_b32 v{vD+2}, v{vD+2}, v{vD+3}, vcc
v_cndmask_b32 v{vD}, v{vD}, v{vD+2}, s[{sT0}:{sT1}]
v_mul_f32 v{vD+4}, {f32(1/512)}, v{vD+4}
v_mul_f32 v{vD}, {f32(1/512)}, v{vD}
v_mul_f32 v{vD+8}, {f32(-math.log2(math.e))}, v{vD+8}
v_fma_f32 v{vD}, -v{vD+4}, v{vD+4}, v{vD}
v_exp_f32 v{vD+8}, v{vD+8}
v_max_f32 v{vD}, 0, v{vD}
v_add_f32 v{vD}, {f32(1e-5)}, v{vD}
v_add_f32 v{vD+8}, 1.0, v{vD+8}
v_sqrt_f32 v{o+6}, v{vD}
v_rsq_f32 v{vD+1}, v{vD}
v_rcp_f32 v{vD+8}, v{vD+8}
v_mul_f32 v{o+4}, {f32(C0)}, v{vD+1}
v_mul_f32 v{vD+2}, v{vD+1}, v{vD+1}
v_mul_f32 v{o+5}, {f32(C1)}, v{vD+1}
v_mul_f32 v{o+5}, v{o+5}, v{vD+2}
v_cvt_pk_bf16_f32 v{o}, -v{vD+4}, -v{vD+4}
v_cvt_pk_bf16_f32 v{vD+5}, v{o+6}, v{o+6}
v_and_b32 v{vD+6}, 0xffff0000, v{o}
v_and_b32 v{vD+5}, 0xffff0000, v{vD+5}
v_add_f32 v{vD+6}, v{vD+6}, v{vD+4}
v_sub_f32 v{vD+7}, v{o+6}, v{vD+5}
v_cvt_pk_bf16_f32 v{o+1}, -v{vD+6}, v{vD+5}
v_cvt_pk_bf16_f32 v{o+2}, v{vD+7}, v{vZ}
v_mov_b32 v{o+3}, s{sNON}
v_mov_b32 v{o+7}, s{sNON}
v_lshrrev_b32 v{t}, 2, v{vN}
v_cmp_eq_u32 vcc, v{t}, v{vG}
v_lshlrev_b32 v{t}, 4, v{vTOK}
v_lshlrev_b32 v{t+1}, 2, v{vTOK}
v_mov_b32 v{t+4}, 0x7ff00000
v_cndmask_b32 v{t}, v{t+4}, v{t}, vcc
v_cndmask_b32 v{t+1}, v{t+4}, v{t+1}, vcc
s_lshl_b32 s{sT0}, s{sTB1}, 10
s_add_u32 s{sT1}, s{sT0}, {WS_TS}
s_add_u32 s{sT0}, s{sT0}, {WS_TP}
s_lshl_b32 s{sT2}, s{sTB1}, 8
s_add_u32 s{sT2}, s{sT2}, {WS_G}
buffer_store_dwordx4 {vr(o,4)}, v{t}, {srd(SWS)}, s{sT0} offen sc1
buffer_store_dwordx4 {vr(o+4,4)}, v{t}, {srd(SWS)}, s{sT1} offen sc1
buffer_store_dword v{vD+8}, v{t+1}, {srd(SWS)}, s{sT2} offen sc1
s_lshl_b32 s{sT0}, s{sWV}, 19
s_lshl_b32 s{sT1}, s{sTB1}, 7
s_add_u32 s{sT0}, s{sT0}, s{sT1}
s_add_u32 s{sT4}, s{sT0}, {WS_UT}
s_lshr_b32 s{sT5}, s{sTB1}, 3
s_lshl_b32 s{sT5}, s{sT5}, 7
s_and_b32 s{sT1}, s{sTB1}, 7
s_lshl2_add_u32 s{sT5}, s{sT1}, s{sT5}
''')
assert FU == 0
stamp(sp, 'g1s3')
vUa = V.alloc()
sp(f'v_mov_b32 v{vUa}, v{t+7}')
ust = []
for h in range(2):
    for c in range(8):
        s = Seq()
        d = fout + 4 * c
        for k in range(4):
            s(f'v_perm_b32 v{d+k}, v{fin+32*h+4*(2*k+1)+c//2}, v{fin+32*h+4*(2*k)+c//2}, s{sSEL0 + c%2}')
        s(f's_add_u32 s{sT1}, s{sT4}, {(64*h + c)*4096}')
        s(f'buffer_store_dwordx4 {vr(d,4)}, v{vUa}, {srd(SWS)}, s{sT1} offen sc1', tag='utst')
        ust.append(s)
sp.add(cat(ust))
for b, n in ((vS, 6), (vB1, 1), (vF, 128), (vD, 16), (vONE, 4), (vTOK, 1), (vUa, 1)):
    V.release(b, n)
sp('s_barrier')
K = kgen()
nA = len(K['A'])
ka1, ka2 = Seq().add(K['A'].l[:nA // 2]), Seq().add(K['A'].l[nA // 2:])
sp.add(ka1)
sp.wait('utst')
sp('s_barrier')
sp(f's_cmp_lg_u32 s{sWV}, 0\ns_cbranch_scc1 Lnofu')
flag_set(sp, sT5)
sp('Lnofu:')
stamp(sp, 'g1s7')
sp.add(sprinkle(ka2, [w2_dma1(k) for k in range(0, 3)], 0, len(ka2) - 16))
sp.add(K['adB'])
sp.add(K['rdB'])
sp.add(K['mfB'])
sp.add(w2_dma1(3))
sp.add(K['wrB'])
sp.wait('*lds')
sp('s_barrier')
sp.add(K['rdC'])
sp.add(u_poll_issue())
sp.add(w2_dma1(4))
sp.add(K['vaC'])
sp.add(K['wrC'])
sp.add(u_dma())
sp.add(w2_dma1(5))
sp.wait('udma')
for b, n in K['held']:
    V.release(b, n)
stamp(sp, 'gelu')
sp('s_branch Ljoin')
for b, n in ((vGA, 9), (vTA, 5), (vRW, 6), (vRR, 2), (vPAR, 6), (vPo, 2)):
    V.release(b, n)

com = Seq()
com('Ljoin:')
vB2 = V.alloc(8, 2)
vGt = V.alloc(2, 2)
vH0 = V.alloc(56, 4)
vCF = V.alloc(128, 4)
vH = (vH0, vCF)
aC = 224
com.wait('udma')
com(f'ds_write_b32 v{vUz+1}, v{vZ} offset:508')
com.wait('*lds')
com('s_barrier')
stamp(com, 'cv0')


def cv_reads(bb):
    b = vCF + 64 * (bb & 1)
    r = []
    for a in range(8):
        r.append(f'ds_read_b128 {vr(b+32+4*a,4)}, v{vGa} offset:{512*a + 64*(3-bb)}')
        for hh in range(2):
            r.append(f'ds_read_b64 {vr(b+4*a+2*hh,2)}, v{vFa} offset:{64*(59-8*a-bb) + 8*hh}')
    return r


def cv_mfma(bb):
    b = vCF + 64 * (bb & 1)
    r, first = [], set()
    order = sorted(((a, d) for a in range(8) for d in range(8 - a)), key=lambda x: (max(x), x[0] + x[1]))
    for a, d in order:
        c = aC + 4 * (a + d)
        cc = '0' if (bb == 0 and a + d not in first) else ar(c, 4)
        first.add(a + d)
        r.append(f'v_mfma_f32_16x16x32_bf16 {ar(c,4)}, {vr(b+4*a,4)}, {vr(b+32+4*d,4)}, {cc}')
    return r


def h_load(L):
    sg, ks = divmod(L, 14)
    s = Seq()
    if ks == 0:
        s(f'''
s_add_u32 s{sT0}, s{sWV}, {sg + 1}
s_and_b32 s{sT0}, s{sT0}, 3
s_lshl2_add_u32 s{sT0}, s{sTB2}, s{sT0}
s_lshl2_add_u32 s{sT0}, s{sT0}, s{sWV}
s_mul_i32 s{sHl}, s{sT0}, {14*1024}
s_add_u32 s{sHl}, s{sHl}, {WS_H}''')
    s(f'buffer_load_dwordx4 {vr(vH[sg&1]+4*ks,4)}, v{vL16}, {srd(SWS)}, s{sHl} offen offset:{1024*(ks%4)} sc1')
    if ks % 4 == 3:
        s(f's_add_u32 s{sHl}, s{sHl}, 4096')
    return s


hflag = Seq()
hflag.wait('hst?')
flag_set(hflag, sFH)
small = Seq()
small(f'''
s_lshl_b32 s{sT3}, s{sNB}, 7
v_lshl_add_u32 v{t}, v{vG}, 3, s{sT3}
s_lshl2_add_u32 s{sT2}, s{sTB2}, s{sWV}
s_lshl_b32 s{sT4}, s{sT2}, 7
s_add_u32 s{sT4}, s{sT4}, {FH}
s_lshl_b32 s{sT2}, s{sT2}, 6
s_add_u32 s{sT2}, s{sT2}, {WS_G}
v_lshlrev_b32 v{t+1}, 2, v{vN}
buffer_load_dword v{vGt}, v{t+1}, {srd(SWS)}, s{sT2} offen sc1''')
for j in range(4):
    small(f'global_load_dwordx2 {vr(vB2+2*j,2)}, v{t}, {ptr(P_B2)} offset:{32*j}')
hpoll = Seq()
spoll_issue(hpoll, 7, sT4)
radr = Seq()
vRa = V.alloc(3, 1)
radr(f'''
v_xor_b32 v{t+2}, v{vL}, v{vG}
s_lshl_b32 s{sT0}, s{sWV}, 13
v_lshl_add_u32 v{vRa}, v{t+2}, 4, s{sT0}
v_and_b32 v{t+2}, 3, v{vL}
v_bfe_u32 v{t+3}, v{vL}, 2, 3
v_lshlrev_b32 v{t+3}, 1, v{t+3}
v_xor_b32 v{t+3}, v{t+3}, v{t+2}
v_lshl_add_u32 v{t+3}, v{t+2}, 4, v{t+3}
v_lshrrev_b32 v{t+2}, 5, v{vL}
v_lshl_add_u32 v{t+3}, v{t+2}, 6, v{t+3}
s_and_b32 s{sT0}, s{sWV}, 2
s_lshl1_add_u32 s{sT0}, s{sT0}, s{sBH}
s_lshl_b32 s{sT0}, s{sT0}, 12
v_lshl_add_u32 v{vRa+1}, v{t+3}, 4, s{sT0}
v_xor_b32 v{vRa+2}, 16, v{vRa+1}
s_lshl1_add_u32 s{sHst}, s{sCH}, s{sBH}
s_lshl_b32 s{sHst}, s{sHst}, 11
s_add_u32 s{sHst}, s{sHst}, {WS_AT}
s_lshr_b32 s{sT0}, s{sCH}, 4
s_lshl1_add_u32 s{sT0}, s{sT0}, s{sBH}
s_lshl_b32 s{sT0}, s{sT0}, 7
s_and_b32 s{sT1}, s{sCH}, 15
s_lshl2_add_u32 s{sT5}, s{sT1}, s{sT0}
s_add_u32 s{sT5}, s{sT5}, {FC}
''')
need = [0, 1, 4, 9, 16, 24, 30, 34]
LEAD = 9
cr = []
for bb in range(4):
    r = cv_reads(bb)
    for a in range(8):
        for x in r[3 * a: 3 * a + 3]:
            cr.append((36 * bb + need[a] - LEAD, x))
slot = [[] for _ in range(144)]
nxt_free = 143
prelude = []
for dl, x in reversed(cr):
    g = min(dl, nxt_free)
    if g < 0:
        prelude.insert(0, x)
    else:
        slot[g].append(Seq()(x))
        nxt_free = g - 1
busy = [bool(x) for x in slot]
CT = 7
window = [(1, 14), (15, 40), (41, 54), (55, 78), (79, 92), (93, 116), (117, 128), (129, 140)]
vm = [[] for _ in range(144)]
tail_vm = []
dma_end = 0
for k in range(CT + 1):
    lo, hi = window[k]
    cand = sorted(sorted(range(lo, hi + 1), key=lambda g: (busy[g], g))[:8])
    for g_, gp in zip(w2_tr(k), cand):
        slot[gp].append(g_)
    g0 = max(cand[-1] + 8, dma_end + 1)
    for i, g_ in enumerate(w2_dma(k + 6)):
        dma_end = g0 + 2 * i
        (vm[dma_end] if dma_end < 144 else tail_vm).append(g_)
sm = singles(small)
for i, g_ in enumerate(sm):
    vm[1 + i].append(g_)
vm[60].append(hflag)
vm[120].append(hpoll)
ra = singles(radr)
for x in prelude:
    com(x)
allm = [x for bb in range(4) for x in cv_mfma(bb)]
for g in range(144):
    com(allm[g])
    com.add(cat(slot[g] + vm[g]))
    if 64 <= g < 64 + len(ra):
        com.add(ra[g - 64])
com.add(cat(tail_vm))
stamp(com, 'cv1')
com.add(cat(spoll_check(7, sT4)))
com('s_barrier')
hl0 = [h_load(L) for L in range(14)]
red = Seq()
for c in range(8):
    red(f'ds_write_b128 v{vRa}, {ar(aC+4*c,4)} offset:{1024*c}')
com.add(sprinkle(red, hl0[:8]))
com.wait('*lds')
com('s_barrier')
q = vCF + 56
red = Seq()
for si in range(2):
    for e in range(2):
        for p in range(2):
            red(f'ds_read_b128 {vr(q+16*si+8*e+4*p,4)}, v{vRa+1+e} offset:{2048*si + 8192*p}')
com.add(sprinkle(red, hl0[8:12]))
for si in range(2):
    b = q + 16 * si
    for e in range(2):
        for k in range(2):
            com(f'v_pk_add_f32 {vr(b+8*e+2*k,2)}, {vr(b+8*e+2*k,2)}, {vr(b+8*e+4+2*k,2)}')
    o = q + 64 + 4 * si
    for k in range(2):
        com(f'v_cvt_pk_bf16_f32 v{o+2*k}, v{b+8+2*k}, v{b+8+2*k+1}')
        com(f'v_cvt_pk_bf16_f32 v{o+2*k+1}, v{b+2*k}, v{b+2*k+1}')
    com.add(hl0[12 + si])
for si in range(2):
    com(f'buffer_store_dwordx4 {vr(q+64+4*si,4)}, v{vL16}, {srd(SWS)}, s{sHst} offen offset:{1024*si} sc1', tag='atst')
stamp(com, 'cv2')
for b, n in ((vCF + 56, 72), (vFa, 1), (vGa, 1), (vRa, 3), (vUz, 2), (vZ2, 4)):
    V.release(b, n)

vA2 = V.alloc(32, 4)
vP = V.alloc(32, 4)
vAa = V.alloc(8, 4)
vPW, vPR, vAr = V.alloc(), V.alloc(), V.alloc()
vOw = V.alloc(4, 1)
vOr, vOa = V.alloc(), V.alloc()
aflag = Seq()
aflag.wait('atst')
flag_set(aflag, sT5)
apoll = Seq()
apoll(f'''
s_lshl2_add_u32 s{sT2}, s{sNB}, s{sWV}
s_lshr_b32 s{sT3}, s{sTB2}, 4
s_lshl1_add_u32 s{sT4}, s{sT2}, s{sT3}
s_lshl_b32 s{sT4}, s{sT4}, 7
s_add_u32 s{sT4}, s{sT4}, {FC}''')
spoll_issue(apoll, 16, sT4)
eadr = Seq()
eadr(f'''
s_add_u32 s{sT2}, s{sM}, {L_W}
v_add_u32 v{vPW}, s{sT2}, v{vL16}
v_lshlrev_b32 v{t}, 1, v{vG}
v_and_b32 v{t+1}, 7, v{vL}
v_xor_b32 v{t}, v{t}, v{t+1}
v_lshrrev_b32 v{t+2}, 3, v{vL}
v_lshlrev_b32 v{t+4}, 12, v{t+2}
v_lshl_add_u32 v{t+4}, v{t}, 4, v{t+4}
v_add_u32 v{t+5}, {32768 - 1024}, v{t+4}
v_lshlrev_b32 v{vOa}, 10, v{t+2}
v_lshl_add_u32 v{vOa}, v{t+1}, 4, v{vOa}
v_xor_b32 v{t}, v{t+1}, v{t+2}
v_lshlrev_b32 v{t}, 4, v{t}
v_lshl_add_u32 v{t}, v{t+2}, 7, v{t}
s_add_u32 s{sT2}, s{sM}, 49152
v_add_u32 v{vOr}, s{sT2}, v{t}
v_lshrrev_b32 v{t}, 1, v{vG}
v_xor_b32 v{t}, v{t}, v{t+1}
v_lshlrev_b32 v{t}, 4, v{t}
v_lshl_add_u32 v{t}, v{vN}, 7, v{t}
v_and_b32 v{t+1}, 1, v{vG}
v_lshl_add_u32 v{t}, v{t+1}, 3, v{t}
v_add_u32 v{vOw}, s{sT2}, v{t}
v_xor_b32 v{vOw+1}, 32, v{vOw}
v_xor_b32 v{vOw+2}, 64, v{vOw}
v_xor_b32 v{vOw+3}, 96, v{vOw}
v_lshrrev_b32 v{t}, 2, v{vL}
v_lshlrev_b32 v{t}, 7, v{t}
v_bfe_u32 v{t+1}, v{vL}, 3, 2
v_xor_b32 v{t+1}, s{sWV}, v{t+1}
v_lshl_add_u32 v{t}, v{t+1}, 5, v{t}
v_and_b32 v{t+1}, 3, v{vL}
v_lshl_add_u32 v{t}, v{t+1}, 3, v{t}
v_add_u32 v{vAr}, {L_W + 49152}, v{t}
v_sub_f32 v{vGt+1}, 1.0, v{vGt}
''')
adma = Seq()
adma(f'''
s_lshl2_add_u32 s{sT2}, s{sNB}, s{sWV}
s_lshl_b32 s{sT2}, s{sT2}, 16
s_lshl_b32 s{sT3}, s{sTB2}, 7
s_add_u32 s{sT2}, s{sT2}, s{sT3}
s_add_u32 s{sT2}, s{sT2}, {WS_AT}
s_add_u32 m0, s{sM}, {L_W + 49152}''')
adma(f'buffer_load_dwordx4 v{t+4}, {srd(SWS)}, s{sT2} offen sc1 lds', tag='adma')
adma(f'buffer_load_dwordx4 v{t+5}, {srd(SWS)}, s{sT2} offen offset:1024 sc1 lds', tag='adma')


def part_write(sg):
    return [Seq()(f'ds_write_b128 v{vPW}, {vr(vA2+16*(sg&1)+4*j,4)} offset:{16384*sg + 1024*j}') for j in range(4)]


def part_read(sg, dst):
    s = Seq()
    s(f'''
s_sub_u32 s{sT2}, s{sWV}, {sg + 1}
s_and_b32 s{sT2}, s{sT2}, 3
s_lshl_b32 s{sT2}, s{sT2}, 12
s_add_u32 s{sT2}, s{sT2}, {L_W + 16384*sg}
v_add_u32 v{vPR}, s{sT2}, v{vL16}''')
    for j in range(4):
        s(f'ds_read_b128 {vr(dst+4*j,4)}, v{vPR} offset:{1024*j}')
    return singles(s)


def bar(*tags):
    s = Seq()
    s.wait(*tags)
    s('s_barrier')
    return s


cinit = Seq()
aL = vA2 + 16
for j in range(4):
    for i in range(4):
        src = vB2 + 2 * j + i // 2
        cinit(f'v_and_b32 v{aL+4*j+i}, 0xffff0000, v{src}' if i % 2 else f'v_lshlrev_b32 v{aL+4*j+i}, 16, v{src}')
for k in range(16):
    cinit(f'v_add_f32 v{vP+k}, v{vP+k}, v{vP+16+k}')
for k in range(16):
    cinit(f'v_add_f32 v{aL+k}, v{aL+k}, v{vP+k}')
fin = Seq()
for j in range(4):
    fin(f'ds_read_b64_tr_b16 {vr(vAa+2*j,2)}, v{vAr} offset:{4096*j}')
for k in range(16):
    src = vAa + k // 2
    fin(f'v_and_b32 v{vP+16+k}, 0xffff0000, v{src}' if k % 2 else f'v_lshlrev_b32 v{vP+16+k}, 16, v{src}')
for k in range(16):
    fin(f'v_mul_f32 v{vP+16+k}, v{vGt}, v{vP+16+k}')
for k in range(16):
    fin(f'v_fma_f32 v{vP+k}, v{vP+k}, v{vGt+1}, v{vP+16+k}')
fin(f'''
s_lshl2_add_u32 s{sT0}, s{sTB2}, s{sWV}
s_lshl_b32 s{sT0}, s{sT0}, 14
s_lshl_b32 s{sT1}, s{sNB}, 7
s_add_u32 s{sT0}, s{sT0}, s{sT1}
s_add_u32 s{sT1}, s{sT0}, 8192''')

HD = OPT['hd']
for L in range(14, HD):
    com.add(h_load(L))
for sg in range(4):
    seg = Seq()
    for ks in range(14):
        for j in range(4):
            a = vA2 + 16 * (sg & 1) + 4 * j
            seg(f'v_mfma_f32_16x16x32_bf16 {vr(a,4)}, {ar(16*ks+4*j,4)}, {vr(vH[sg&1]+4*ks,4)}, {vr(a,4) if (ks or sg == 3) else 0}')
        if 14 * sg + ks + HD < 56:
            seg.add(h_load(14 * sg + ks + HD))
    if sg == 0:
        seg = weave(seg, [g for k in range(CT + 1, 14) for g in w2_tr(k)], start=0, end=44)
        seg = weave(seg, singles(eadr), start=8, end=56, late=True)
    if sg == 1:
        seg = weave(seg, [aflag], gaps=[0])
        seg = weave(seg, part_write(0), gaps=[8, 12, 16, 20])
        seg = weave(seg, singles(apoll), start=48, end=55, late=True)
    if sg == 2:
        seg = weave(seg, part_write(1), gaps=[8, 12, 16, 20])
        seg = weave(seg, [bar('*lgkm')] + spoll_check(16, sT4) + [adma] + part_read(0, vP) + part_read(1, vP + 16)
                    + singles(cinit), start=26, end=55, late=True)
    if sg == 3:
        seg = weave(seg, part_write(2), gaps=[8, 11, 14, 17])
        seg = weave(seg, [bar('adma', '*lds')] + part_read(2, vP) + singles(fin), start=24, end=55, late=True)
    com.add(seg)
    stamp(com, f'g2s{sg}')
for j in range(4):
    for i in range(4):
        com(f'v_fma_f32 v{vP+4*j+i}, v{aL+4*j+i}, v{vGt+1}, v{vP+4*j+i}')
    com(f'v_cvt_pk_bf16_f32 v{vAa+2*j}, v{vP+4*j}, v{vP+4*j+1}')
    com(f'v_cvt_pk_bf16_f32 v{vAa+2*j+1}, v{vP+4*j+2}, v{vP+4*j+3}')
    com(f'ds_write_b64 v{vOw+j}, {vr(vAa+2*j,2)}')
for r in range(2):
    com(f'ds_read_b128 {vr(vP+16+4*r,4)}, v{vOr} offset:{1024*r}')
for r in range(2):
    com(f'buffer_store_dwordx4 {vr(vP+16+4*r,4)}, v{vOa}, {srd(SOUT)}, s{sT0+r} offen')
if OPT['stamps']:
    com.wait('*vm')
    stamp(com, 'end')
    com('s_waitcnt lgkmcnt(0)')
    stamp(com, 'x')
    com(f'''
s_waitcnt lgkmcnt(0)
s_memrealtime s[{sSTAMP}:{sSTAMP+1}]
v_writelane_b32 v{vST}, s{sSTAMP}, 63
s_lshl2_add_u32 s{sT0}, s2, s{sWV}
s_lshl_b32 s{sT0}, s{sT0}, 8
s_add_u32 s{sT0}, s{sT0}, {WS_ST}
v_lshlrev_b32 v{t}, 2, v{vL}
buffer_store_dword v{vST}, v{t}, {srd(SWS)}, s{sT0} offen''')
com('Lend:')
com('s_endpgm')

if OPT['stamps']:
    p0 = finish_stamps(pro.l, None)
    p1 = finish_stamps(main.l, p0)
    assert p1 == finish_stamps(sp.l, p0)
    finish_stamps(com.l, p1)
    stamp_names.remove('x')
paths = (pro.l + main.l + com.l, pro.l + sp.l + com.l)
for p in paths:
    resolve_waits(p)
for p in paths:
    resolve_waits(p)
for p in paths:
    fix_hazards(p)

ref = open('gated_mix__ssm_conv_s4d__mixer_channel_mlp__prompt.s.ref').read().split('\n')
head = [l for l in ref if l.startswith(';') and '@launch' not in l]
txt = '\n'.join(head) + f'\n; @launch grid=(256,1,1) block=(256,1,1) lds={LDS_SIZE}\n'
txt += f'''.amdgcn_target "amdgcn-amd-amdhsa--gfx950"
.text
.globl {NAME}
.p2align 8
.type {NAME},@function
{NAME}:
'''
txt += render(pro.l) + render(main.l) + render(com.l) + render(sp.l) + ''.join(outline)
txt += f'''Lcode_end:
    s_endpgm
.section .rodata,"a"
.p2align 6
.amdhsa_kernel {NAME}
  .amdhsa_next_free_vgpr 512
  .amdhsa_next_free_sgpr 102
  .amdhsa_accum_offset 256
  .amdhsa_group_segment_fixed_size 0
  .amdhsa_kernarg_size 128
  .amdhsa_user_sgpr_count 2
  .amdhsa_user_sgpr_kernarg_segment_ptr 1
  .amdhsa_system_sgpr_workgroup_id_x 1
.end_amdhsa_kernel
'''
open(sys.argv[1], 'w').write(txt)
if OPT['stamps']:
    open(sys.argv[1] + '.stamps', 'w').write(' '.join(stamp_names))
print('vgpr high water', V.hw, 'instr', [sum(1 for i in p.l if i.kind != 'meta') for p in (pro, main, com, sp)],
      'nops', sum(i.pre for p in (pro, main, com) for i in p.l))
```

```python
import re

REG_RE = re.compile(r'^(?:-|\|)?(?:abs\(|neg\()?([vas])(?:(\d+)|\[(\d+):(\d+)\])\)?\|?$')
TRANS = ('v_exp_f32', 'v_log_f32', 'v_rcp_f32', 'v_rsq_f32', 'v_sqrt_f32', 'v_sin_f32', 'v_cos_f32')


def regs_of(op):
    op = op.strip()
    if op in ('vcc', 'exec'):
        return [op]
    if op in ('vcc_lo', 'vcc_hi'):
        return ['vcc']
    if op in ('exec_lo', 'exec_hi'):
        return ['exec']
    if op == 'm0':
        return ['m0']
    m = REG_RE.match(op)
    if not m:
        return []
    k = m.group(1)
    if m.group(2) is not None:
        return [k + m.group(2)]
    return [k + str(i) for i in range(int(m.group(3)), int(m.group(4)) + 1)]


class Ins:
    __slots__ = ('text', 'tag', 'kind', 'mn', 'dst', 'src', 'a', 'b', 'c', 'passes', 'vm', 'lgkm', 'wide_store',
                 'data', 'pre', 'wait_tags', 'nvm', 'nlgkm', 'm0')

    def __init__(self, text, tag=None):
        self.text = text.strip()
        self.tag = tag
        self.pre = 0
        self.nvm = None
        self.nlgkm = None
        self.wait_tags = None
        self.m0 = None
        self.dst, self.src = [], []
        self.a = self.b = self.c = None
        self.passes = 0
        self.vm = self.lgkm = False
        self.wide_store = False
        self.data = []
        t = self.text.split(';')[0].strip()
        if t == '' or t.endswith(':') or t.startswith('.'):
            self.kind = 'meta'
            self.mn = ''
            return
        parts = t.split(None, 1)
        mn = parts[0]
        for suf in ('_e32', '_e64', '_dpp', '_sdwa'):
            if mn.endswith(suf):
                mn = mn[:-len(suf)]
        self.mn = mn
        rest = parts[1] if len(parts) > 1 else ''
        ops, depth, cur = [], 0, ''
        for ch in rest:
            if ch == '[':
                depth += 1
            if ch == ']':
                depth -= 1
            if ch == ',' and depth == 0:
                ops.append(cur.strip())
                cur = ''
            else:
                cur += ch
        if cur.strip():
            ops.append(cur.strip())
        mods = ''
        if ops:
            last = ops[-1].split(None, 1)
            ops[-1] = last[0]
            mods = last[1] if len(last) > 1 else ''
        R = [regs_of(o) for o in ops]
        flat = lambda l: [r for x in l for r in x]
        if mn.startswith('v_mfma'):
            self.kind = 'mfma'
            self.dst = R[0]
            self.a, self.b, self.c = R[1], R[2], R[3]
            self.src = R[1] + R[2] + R[3]
            self.passes = 8 if '32x32' in mn else 4
        elif mn.startswith('v_'):
            self.kind = 'valu'
            self.dst = R[0]
            self.src = flat(R[1:])
            if mn.startswith(('v_fmac', 'v_dot2c', 'v_pk_fmac', 'v_writelane')) or 'dpp' in parts[0] or 'row_' in mods or 'quad_perm' in mods:
                self.src += R[0]
            if mn.startswith(('v_swap', 'v_permlane16_swap', 'v_permlane32_swap')):
                self.dst = R[0] + R[1]
                self.src = R[0] + R[1]
            if mn.startswith(('v_add_co', 'v_sub_co', 'v_addc_co', 'v_subb_co')):
                self.dst = R[0] + R[1]
                self.src = flat(R[2:])
            if 'row_' in mods or 'quad_perm' in mods or 'wave_' in mods:
                self.kind = 'valu'
                self.data = ['dpp']
        elif mn.startswith('ds_'):
            self.kind = 'ds'
            self.lgkm = True
            if mn.startswith(('ds_read', 'ds_bpermute', 'ds_permute', 'ds_swizzle')):
                self.dst = R[0]
                self.src = flat(R[1:])
                if 'd16' in mn:
                    self.src += R[0]
            else:
                self.src = flat(R)
            if 'addtid' in mn:
                self.src.append('m0')
        elif mn.startswith(('buffer_', 'global_')):
            self.kind = 'vmem'
            self.vm = True
            islds = 'lds' in mods.split() or '_lds_' in mn
            if 'load' in mn and not islds:
                self.dst = R[0]
                self.src = flat(R[1:])
                if 'd16' in mn:
                    self.src += R[0]
            else:
                self.src = flat(R)
                if islds:
                    self.src.append('m0')
                if 'store' in mn and ('x4' in mn or 'x3' in mn):
                    self.wide_store = True
                    self.data = R[0] if mn.startswith('buffer_') else R[1]
        elif mn.startswith('s_'):
            self.kind = 'salu'
            if mn.startswith(('s_load', 's_memtime', 's_memrealtime', 's_buffer_load')):
                self.kind = 'smem'
                self.dst = R[0]
                self.src = flat(R[1:])
            elif mn.startswith('s_atomic'):
                self.kind = 'smem'
                self.src = flat(R)
            elif mn.startswith(('s_cmp', 's_cbranch', 's_branch', 's_waitcnt', 's_barrier', 's_nop', 's_sleep',
                                's_endpgm', 's_setprio', 's_bitcmp')):
                self.src = flat(R)
            else:
                self.dst = R[0]
                self.src = flat(R[1:])
                if 'saveexec' in mn:
                    self.dst = self.dst + ['exec']
        else:
            raise ValueError('unknown instr: ' + text)

    def states(self):
        n = self.pre
        if self.nvm is not None or self.nlgkm is not None:
            n += 1
        if self.kind == 'meta':
            return n
        if self.mn == 's_nop':
            return n + int(self.text.split()[1]) + 1
        return n + 1


class Wait(Ins):
    def __init__(self, tags):
        super().__init__('; wait ' + ' '.join(tags))
        self.wait_tags = list(tags)


class Seq:
    def __init__(self):
        self.l = []

    def __call__(self, text, tag=None, m0=None):
        for ln in text.strip('\n').split('\n'):
            if ln.strip() == '':
                continue
            self.l.append(Ins(ln, tag))
            self.l[-1].m0 = m0
        return self

    def wait(self, *tags):
        self.l.append(Wait(tags))
        return self

    def add(self, other):
        self.l.extend(other.l if isinstance(other, Seq) else other)
        return self

    def __len__(self):
        return len(self.l)


def sprinkle(main, groups, start=0, end=None):
    items = main.l
    end = len(items) if end is None else end
    n = len(groups)
    out = Seq()
    pos = [start + (end - start) * k // n for k in range(n)] if n else []
    k = 0
    for i, it in enumerate(items):
        while k < n and pos[k] == i:
            out.add(groups[k])
            k += 1
        out.l.append(it)
    while k < n:
        out.add(groups[k])
        k += 1
    return out


def check_order(canon, path, extra=None):
    pos = {id(it): k for k, it in enumerate(path)}
    extra = extra or {}
    rw = []
    for it in canon:
        if it.kind == 'meta':
            continue
        assert id(it) in pos, 'missing ' + it.text
        ed, es = extra.get(id(it), ((), ()))
        rw.append((it, set(it.dst) | set(ed), (set(it.src) | set(es)) - {'m0'}))
    for i, (a, ad, as_) in enumerate(rw):
        for b, bd, bs in rw[i + 1:]:
            if (ad & (bd | bs)) or (as_ & bd):
                assert pos[id(a)] < pos[id(b)], 'order violated: %s | %s' % (a.text, b.text)


def insert_m0(items):
    out, cur = [], None
    for it in items:
        if it.kind == 'meta' and it.text.endswith(':') and not it.text.startswith('Lback'):
            cur = None
        assert 'm0' not in it.dst
        if 'm0' in it.src:
            assert it.m0, it.text
            if it.m0 != cur:
                cur = it.m0
                k = len(out)
                while k and out[k - 1].kind == 'meta' and out[k - 1].wait_tags is not None:
                    k -= 1
                p = out[k - 1]
                if p.kind in ('mfma', 'valu', 'ds', 'vmem') and 'm0' not in p.src:
                    k -= 1
                elif p.kind == 'salu' and p.mn.startswith(('s_add_u32', 's_mul', 's_lshl', 's_and', 's_mov')):
                    k -= 1
                else:
                    k = len(out)
                out.insert(k, Ins(cur))
        out.append(it)
    items[:] = out


def resolve_waits(path):
    vmq, lq = [], []
    smem = []

    def need(it, nvm=None, nl=None):
        if nvm is not None:
            nvm = min(nvm, 63)
            it.nvm = nvm if it.nvm is None else min(it.nvm, nvm)
        if nl is not None:
            nl = min(nl, 15)
            it.nlgkm = nl if it.nlgkm is None else min(it.nlgkm, nl)

    seen_tags = set()
    for it in path:
        touched = set(it.dst) | set(it.src)
        if it.wait_tags is not None:
            for t in it.wait_tags:
                if t == '*vm':
                    if vmq:
                        need(it, nvm=0)
                    continue
                if t == '*lgkm':
                    if lq or smem:
                        need(it, nl=0)
                    continue
                if t == '*lds':
                    if lq:
                        need(it, nl=0)
                    continue
                opt = t.endswith('?')
                t = t.rstrip('?')
                assert opt or t in seen_tags, 'wait on unknown tag ' + t
                for q, isvm in ((vmq, True), (lq, False)):
                    idx = [i for i, o in enumerate(q) if o.tag == t]
                    if idx:
                        n = len(q) - 1 - idx[-1]
                        need(it, nvm=n) if isvm else need(it, nl=n)
        elif touched:
            if any(set(o.dst) & touched for o in smem):
                need(it, nl=0)
            for q, isvm in ((vmq, True), (lq, False)):
                idx = [i for i, o in enumerate(q) if set(o.dst) & touched]
                if idx and ((it.vm and isvm) or (it.lgkm and not isvm)):
                    idx = [i for i in idx if set(q[i].dst) & set(it.src)]
                if idx:
                    n = len(q) - 1 - idx[-1]
                    need(it, nvm=n) if isvm else need(it, nl=n)
        nvm, nl = it.nvm, it.nlgkm
        if it.mn == 's_waitcnt':
            m = re.search(r'vmcnt\((\d+)\)', it.text)
            if m:
                nvm = int(m.group(1)) if nvm is None else min(nvm, int(m.group(1)))
            m = re.search(r'lgkmcnt\((\d+)\)', it.text)
            if m:
                nl = int(m.group(1)) if nl is None else min(nl, int(m.group(1)))
        if nvm is not None:
            del vmq[:max(0, len(vmq) - nvm)]
        if nl is not None:
            del lq[:max(0, len(lq) - nl)]
            if nl == 0:
                smem.clear()
        if it.tag:
            seen_tags.add(it.tag)
        if it.vm:
            vmq.append(it)
        if it.lgkm:
            lq.append(it)
        if it.kind == 'smem':
            smem.append(it)


def fix_hazards(path):
    hist = []

    def dist_needed(p, c):
        pd, cs, cd = set(p.dst), set(c.src), set(c.dst)
        n = 0
        if p.kind == 'valu':
            vd = {r for r in pd if r[0] in 'va' and r != 'vcc'}
            sd = pd - vd
            if c.kind == 'mfma' and vd & cs:
                n = max(n, 2)
            if c.kind == 'valu':
                if p.mn in TRANS and vd & cs:
                    n = max(n, 1)
                if c.mn in ('v_readfirstlane_b32', 'v_readlane_b32') and vd & cs:
                    n = max(n, 1)
                if (c.data == ['dpp'] or c.mn.startswith('v_permlane')) and vd & cs:
                    n = max(n, 2)
                if sd & cs:
                    n = max(n, 4 if c.mn in ('v_readlane_b32', 'v_writelane_b32') else 2)
            if c.kind in ('vmem', 'ds') and p.mn in TRANS and vd & cs:
                n = max(n, 1)
            if c.kind == 'vmem' and sd & cs:
                n = max(n, 5)
            if c.kind in ('salu', 'smem') and sd & cs:
                n = max(n, 2)
            if 'exec' in pd:
                n = max(n, 5)
        if p.kind == 'salu' and 'm0' in pd and 'm0' in cs and c.kind in ('vmem', 'ds'):
            n = max(n, 1)
        if p.kind == 'mfma':
            big = {4: 8, 8: 12}[p.passes]
            if c.kind == 'mfma':
                if pd & (set(c.a) | set(c.b)):
                    n = max(n, big)
                if pd & set(c.c):
                    if not (p.dst == c.c and p.passes == c.passes):
                        n = max(n, big - 2)
                elif pd & cd:
                    n = max(n, big)
            elif c.kind in ('valu', 'vmem', 'ds'):
                if pd & (cs | cd):
                    n = max(n, big)
                if set(p.c) & cd:
                    n = max(n, {4: 3, 8: 7}[p.passes])
        if p.wide_store and set(p.data) & cd:
            n = max(n, 2)
        return n

    for it in path:
        if it.kind != 'meta':
            d = it.pre + (1 if (it.nvm is not None or it.nlgkm is not None) else 0)
            short = 0
            for p in reversed(hist):
                if d >= 12:
                    break
                if p.kind != 'meta':
                    short = max(short, dist_needed(p, it) - d)
                d += p.states()
            if short > 0:
                it.pre += short
        hist.append(it)
        if len(hist) > 40:
            del hist[0]


def render(items):
    out = []
    for it in items:
        n = it.pre
        while n > 0:
            k = min(n, 16)
            out.append('    s_nop %d' % (k - 1))
            n -= k
        w = []
        if it.nvm is not None:
            w.append('vmcnt(%d)' % it.nvm)
        if it.nlgkm is not None:
            w.append('lgkmcnt(%d)' % it.nlgkm)
        if w:
            out.append('    s_waitcnt ' + ' '.join(w))
        if it.wait_tags is not None:
            continue
        out.append(it.text if (it.kind == 'meta' and it.text.endswith(':')) else '    ' + it.text)
    return '\n'.join(out) + '\n'


def weave(main, fill, start=0, end=None, late=False, gaps=None):
    idx = [i for i, it in enumerate(main.l) if it.kind == 'mfma']
    end = len(idx) if end is None else end
    gaps = list(range(start, end)) if gaps is None else list(gaps)
    n = len(fill)
    where = {}
    for k, g in enumerate(fill):
        gp = gaps[k * len(gaps) // n]
        if late:
            pos = (idx[gp + 1] - 1) if gp + 1 < len(idx) else len(main.l) - 1
        else:
            pos = idx[gp]
        where.setdefault(pos, []).append(g)
    out = Seq()
    for i, it in enumerate(main.l):
        out.l.append(it)
        for g in where.get(i, []):
            out.add(g)
    return out


def singles(seq):
    out, cur = [], Seq()
    for it in seq.l:
        cur.l.append(it)
        if it.wait_tags is None and it.kind != 'meta':
            out.append(cur)
            cur = Seq()
    if len(cur):
        out.append(cur)
    return out


def icost(it):
    if it.kind == 'meta':
        return 4 if it.wait_tags is not None else 0
    if it.mn in TRANS:
        return 8
    if it.kind == 'mfma':
        return 16 if it.passes == 4 else 32
    if it.mn.startswith('ds_write'):
        return 24 if '128' in it.mn else 4 if 'addtid' in it.mn else 12
    return 4


class Gaps:
    def __init__(self, mfmas, cap, maxlds=99):
        self.m = [Ins(x) if isinstance(x, str) else x for x in mfmas]
        n = len(self.m)
        self.mem = [[] for _ in range(n)]
        self.alu = [[] for _ in range(n)]
        self.load = [0] * n
        self.nlds = [0] * n
        self.cap = cap
        self.maxlds = maxlds

    @staticmethod
    def _info(g):
        ismem = any(it.kind in ('ds', 'vmem') or it.mn == 's_barrier' for it in g.l)
        return ismem, sum(icost(it) for it in g.l), sum(it.kind == 'ds' for it in g.l)

    def put(self, gap, g, cost=None):
        if isinstance(g, str):
            g = Seq()(g)
        ismem, c, nl = self._info(g)
        (self.mem if ismem else self.alu)[gap].append(g)
        self.load[gap] += c if cost is None else cost
        self.nlds[gap] += nl

    def reserve(self, gap, cost):
        self.load[gap] += cost

    def fill(self, groups, g0, g1, step=0):
        for slack in range(0, 400, 4):
            load, nlds = list(self.load), list(self.nlds)
            g, alu_here, plan = g0, False, []
            for grp in groups:
                ismem, c, nl = self._info(grp)
                while g < g1 and ((load[g] + c > self.cap + slack and load[g] > 0) or (ismem and alu_here)
                                  or (nl and nlds[g] + nl > self.maxlds + slack // 4)):
                    g, alu_here = g + 1, False
                if g >= g1:
                    break
                plan.append(g)
                load[g] += c
                nlds[g] += nl
                alu_here = alu_here or not ismem
                if step:
                    g, alu_here = g + step, False
            else:
                for grp, gp in zip(groups, plan):
                    self.put(gp, grp)
                return plan
        raise RuntimeError('cannot place stream')

    def over(self):
        return sum(max(0, l - self.cap) for l in self.load)

    def emit(self, lo=0, hi=None):
        s = Seq()
        for i in range(lo, len(self.m) if hi is None else hi):
            s.l.append(self.m[i])
            for g in self.mem[i] + self.alu[i]:
                s.add(g)
        return s


class Regs:
    def __init__(self, kind, lo, hi):
        self.kind = kind
        self.free = set(range(lo, hi))
        self.hw = lo

    def alloc(self, n=1, align=None):
        align = align or (1 if n == 1 else 2 if n == 2 else 4 if self.kind == 's' else 2)
        for b in sorted(self.free):
            if b % align == 0 and all(b + i in self.free for i in range(n)):
                for i in range(n):
                    self.free.remove(b + i)
                self.hw = max(self.hw, b + n)
                return b
        raise RuntimeError('out of %s registers (need %d)' % (self.kind, n))

    def release(self, b, n=1):
        for i in range(n):
            assert b + i not in self.free, 'double free %d' % (b + i)
            self.free.add(b + i)


def vr(b, n=1, k='v'):
    return '%s%d' % (k, b) if n == 1 else '%s[%d:%d]' % (k, b, b + n - 1)


def ar(b, n=1):
    return vr(b, n, 'a')


def sr(b, n=1):
    return vr(b, n, 's')
```

```python
import sys, struct, math
from asmlib import *

NAME = 'gated_mix__ssm_conv_s4d__mixer_channel_mlp__prompt_kernel'
OPT = dict(stamps=0, rot=1, touch=1, tlb=1, early=11, nk=22, res=80, l2=0, lst=9, hd=15, osc=0, up=1, ud=3, cap=36, pcg=94,
           hfg=50, hpg=118, apg=116, acg=142, afg=196, sub=0)
for a in sys.argv[2:]:
    k, v = a.split('=')
    assert k in OPT, k
    OPT[k] = int(v)


def f32(x):
    return '0x%08x' % struct.unpack('<I', struct.pack('<f', x))[0]


FU, FH, FC, FDUMMY = 0x0, 0x1000, 0x6000, 0x9000
WS_TP = 0x80000
WS_TS = 0x88000
WS_G = 0x90000
WS_FP = 0x98000
WS_ST = 0xA0000
WS_UT = 0x200000
WS_AT = 0x400000
WS_H = 0x600000
WS_SIZE = 0x10000000
L_X, L_W = 32768, 98304
PART = 8192
O_T = 4352
L_U = 32768
L_E = 65536
LDS_SIZE = 163840

P_U, P_LA, P_AI, P_CR, P_CI, P_DT, P_DS, P_BX, P_W1, P_B1, P_W2, P_B2, P_GW, P_OUT, P_DBG, P_WS = [4 + 2 * i for i in range(16)]
SX, SW1, SW2, SWS, SOUT = 36, 40, 44, 48, 52
sXCD, sJ, sWV, sBH = 56, 57, 58, 59
sT0, sT1, sT2, sT3 = 60, 61, 62, 63
sNON, sNON1 = 64, 65
sM, sXb, sWb, sKC, sXk, sWk = 66, 67, 68, 69, 70, 71
sHst, sHst2, sFH, sTB1, sCB1, sW2l = 72, 73, 74, 75, 76, 77
sP4, sCNT, sTB2, sNB, sCH, sT4 = 78, 79, 80, 81, 82, 83
sF = 84
sSTAMP = 100
sFC = 3
sUs, sUm = 4, 5
sSEL0, sSEL1 = 18, 19
sH = 6
sPR = 10
sAs, sAT, sFHp, sFCp, sGs = 13, 14, 15, 16, 17
sO0, sO1 = 20, 21
srd = lambda b: 's[%d:%d]' % (b, b + 3)
ptr = lambda b: 's[%d:%d]' % (b, b + 1)

V = Regs('v', 0, 256)
vTID, vL, vZ, vST, vN, vG, vNON, vPF = [V.alloc() for _ in range(8)]
vT = V.alloc(8, 4)
vZ2 = V.alloc(4, 4)
vL16 = V.alloc(4, 1)
vPA = V.alloc()
vW2s = V.alloc(4, 1)
vTr = V.alloc(8, 1)
vFa, vGa = V.alloc(), V.alloc()
vUz = V.alloc(2, 1)
vX = V.alloc(16, 1)
vPAR, vPo, vXs, vWs = vX, vX + 6, vX + 8, vX + 12
vRa, vAd, vPW, vAr, vOw, vOr, vOa, vBa, vGo = vX, vX + 3, vX + 5, vX + 6, vX + 7, vX + 11, vX + 12, vX + 13, vX + 14
t = vT

outline = []
stamp_names = []
nlab = [0]
checks = []


def stamp(s, name, lvl=1):
    if OPT['stamps'] < lvl:
        return
    if name not in stamp_names:
        stamp_names.append(name)
    s(f's_memtime s[{sSTAMP}:{sSTAMP+1}]', tag='stamp:' + name)
    s.l[-1].kind, s.l[-1].dst = 'salu', []


def finish_stamps(items, prev):
    out = []
    for it in items:
        if it.tag and it.tag.startswith('stamp:'):
            if prev is not None:
                out.append(Ins(f'v_writelane_b32 v{vST}, s{sSTAMP}, {stamp_names.index(prev)}'))
            prev = it.tag[6:]
        out.append(it)
    items[:] = out
    return prev


def retry(s, branch, exit_branch, body):
    k = nlab[0]
    nlab[0] += 1
    s(f'{branch} Lretry{k}')
    s(f'Lback{k}:')
    body = '\n'.join('    ' + l.strip() for l in body.strip().split('\n'))
    outline.append(f'''Lretry{k}:
    s_mov_b32 s{sCNT}, 0x40000
Lloop{k}:
    s_sleep 2
{body}
    {exit_branch} Lback{k}
    s_sub_u32 s{sCNT}, s{sCNT}, 1
    s_cbranch_scc0 Lloop{k}
    s_branch Lback{k}
''')


def cat(groups):
    s = Seq()
    for g in groups:
        s.add(g)
    return s


def chunks(seq, n):
    return [Seq().add(seq.l[i:i + n]) for i in range(0, len(seq), n)]


def bar(*tags):
    s = Seq()
    if tags:
        s.wait(*tags)
    s('s_barrier')
    return s


def nonce_issue():
    return Seq()(f'global_load_dword v{vNON}, v{vZ}, {ptr(P_DBG)} sc1')


def nonce_check():
    s = Seq()
    s(f'v_readfirstlane_b32 s{sNON}, v{vNON}')
    s(f's_cmp_eq_u32 s{sNON}, 0')
    retry(s, 's_cbranch_scc1', 's_cbranch_scc0', f'''
global_load_dword v{vNON}, v{vZ}, {ptr(P_DBG)} sc1
s_waitcnt vmcnt(0)
v_readfirstlane_b32 s{sNON}, v{vNON}
s_nop 3
s_cmp_eq_u32 s{sNON}, 0''')
    s(f's_mov_b32 s{sNON1}, s{sNON}')
    return s


def flag_set(s, soff):
    s(f's_atomic_swap s{sNON}, {ptr(P_WS)}, s{soff}')


def spoll_issue(n, soff):
    return Seq()(f's_load_dwordx{8 if n <= 8 else 16} s[{sF}:{sF + (7 if n <= 8 else 15)}], {ptr(P_WS)}, s{soff} glc')


def spoll_check(n, soff):
    l = []
    for k in range(0, n - 1, 2):
        l.append(f's_xor_b64 s[{sF+k}:{sF+k+1}], s[{sF+k}:{sF+k+1}], s[{sNON}:{sNON1}]')
    if n % 2:
        l.append(f's_xor_b32 s{sF+n-1}, s{sF+n-1}, s{sNON}')
        l.append(f's_or_b32 s{sF}, s{sF}, s{sF+n-1}')
    for k in range(2, n - 1, 2):
        l.append(f's_or_b64 s[{sF}:{sF+1}], s[{sF}:{sF+1}], s[{sF+k}:{sF+k+1}]')
    g = [Seq()(x) for x in l]
    retry(g[-1], 's_cbranch_scc1', 's_cbranch_scc0', '\n'.join([spoll_issue(n, soff).l[0].text, 's_waitcnt lgkmcnt(0)'] + l))
    return g


pro = Seq()
pro('s_cmp_ge_u32 s2, 0x100\ns_cbranch_scc1 Lend')
if OPT['stamps']:
    pro(f'''
s_memrealtime s[{sSTAMP}:{sSTAMP+1}]
v_mov_b32 v{vST}, 0
v_writelane_b32 v{vST}, s{sSTAMP}, 62''')
stamp(pro, 'start')
pro(f'''
s_load_dwordx2 s[{SX}:{SX+1}], s[0:1], 0
s_load_dwordx2 s[{SW1}:{SW1+1}], s[0:1], 64
s_load_dwordx16 s[4:19], s[0:1], 0
s_load_dwordx16 s[20:35], s[0:1], 64
s_getpc_b64 s[{sT2}:{sT3}]
Lpc:
s_cmp_ge_u32 s2, 224
s_cbranch_scc1 Lspare
''')


def pro_body(s):
    s(f'''
v_lshrrev_b32 v{t}, 6, v{vTID}
v_and_b32 v{vL}, 63, v{vTID}
v_readfirstlane_b32 s{sWV}, v{t}
v_mov_b32 v{vZ}, 0
s_and_b32 s{sXCD}, s2, 7
s_lshr_b32 s{sJ}, s2, 3
s_lshl2_add_u32 s{sT0}, s{sJ}, s{sWV}
s_lshl_b32 s{sT0}, s{sT0}, 8
v_and_b32 v{t+1}, 1, v{vL}
v_lshl_add_u32 v{t+1}, v{t+1}, 7, s{sT0}
v_min_u32 v{t+1}, Lcode_end-Lpc-4, v{t+1}
global_load_dword v{vPF}, v{t+1}, s[{sT2}:{sT3}]
s_lshl_b32 s{sT0}, s2, 9
v_lshl_add_u32 v{vPo}, v{vTID}, 1, s{sT0}
v_lshrrev_b32 v{vPo+1}, 7, v{vTID}
s_lshl_b32 s{sT0}, s2, 2
v_lshl_add_u32 v{vPo+1}, v{vPo+1}, 1, s{sT0}
v_lshlrev_b32 v{vL16}, 4, v{vL}
v_and_b32 v{vN}, 15, v{vL}
v_lshrrev_b32 v{vG}, 4, v{vL}
s_mov_b32 s{SX+2}, 0x200000
s_mov_b32 s{SX+3}, 0x20000
s_mov_b32 s{SW1+2}, {512*3584}
s_mov_b32 s{SW1+3}, 0x20000
s_lshl_b32 s{sM}, s{sWV}, 12
s_lshl_b32 s{sP4}, s{sWV}, 13
s_and_b32 s{sBH}, s{sWV}, 1
''')


def param_loads(s):
    for i, (p, o) in enumerate(((P_LA, 0), (P_AI, 0), (P_CR, 0), (P_CI, 0), (P_DT, 1), (P_DS, 1))):
        s(f'global_load_ushort v{vPAR+i}, v{vPo+o}, {ptr(p)}')


def setup_a():
    s = Seq()
    for b, p, n in ((SW2, P_W2, 1792 * 1024), (SWS, P_WS, WS_SIZE), (SOUT, P_OUT, 0x200000)):
        s(f'''
s_mov_b64 s[{b}:{b+1}], s[{p}:{p+1}]
s_mov_b32 s{b+2}, {n}
s_mov_b32 s{b+3}, 0x20000''')
    s(f'''
s_lshl2_add_u32 s{sT0}, s2, s{sWV}
s_mul_i32 s{sT0}, s{sT0}, 1792
v_lshlrev_b32 v{t+1}, 7, v{vN}
v_min_u32 v{t}, 6, v{vL}
v_lshlrev_b32 v{t}, 21, v{t}
v_or_b32 v{t}, 0x100000, v{t}''')
    if OPT['touch']:
        s(f'buffer_load_dword v{vPF}, v{t+1}, {srd(SW2)}, s{sT0} offen')
    if OPT['tlb']:
        s(f'buffer_load_dword v{vPF}, v{t}, {srd(SWS)}, 0 offen sc1')
    return s


vGA = V.alloc(9, 1)
vTA = V.alloc(5, 1)
vRR = V.alloc()
vEa = V.alloc(3, 1)


def setup_k():
    s = Seq()
    s(f'''
v_mul_u32_u24 v{t}, 272, v{vN}
v_lshl_add_u32 v{t}, v{vG}, 4, v{t}
v_add_u32 v{vRR}, s{sP4}, v{t}
s_add_u32 s{sT1}, s{sP4}, {O_T}
v_mov_b32 v{vEa+2}, s{sT1}
v_lshlrev_b32 v{vEa}, 4, v{vTID}
v_bfe_u32 v{t}, v{vL}, 2, 2
v_bfe_u32 v{t+1}, v{vL}, 2, 1
v_lshlrev_b32 v{t}, 13, v{t}
v_lshl_add_u32 v{t}, v{t+1}, 7, v{t}
v_and_b32 v{t+1}, 3, v{vL}
v_lshl_add_u32 v{vEa+1}, v{t+1}, 4, v{t}
v_mov_b32 v{vZ2}, 0
v_mov_b32 v{vZ2+1}, 0
v_mov_b32 v{vZ2+2}, 0
v_mov_b32 v{vZ2+3}, 0
v_lshrrev_b32 v{t}, 1, v{vG}
v_and_b32 v{t+1}, 1, v{vG}
v_mul_u32_u24 v{t+1}, 400, v{t+1}
v_lshl_add_u32 v{t+1}, v{t}, 4, v{t+1}
v_add_u32 v{t+1}, v{t+1}, v{vN}
v_lshl_add_u32 v{vTA}, v{t+1}, 2, s{sT1}
v_add_u32 v{vTA+1}, 800, v{vTA}
v_sub_u32 v{t+1}, 2, v{t}
v_lshlrev_b32 v{t+1}, v{t+1}, v{vN}
v_lshrrev_b32 v{t+2}, 3, v{t+1}
v_and_b32 v{t+1}, 7, v{t+1}
v_mul_u32_u24 v{t+1}, 100, v{t+1}
v_lshl_add_u32 v{t+2}, v{vG}, 3, v{t+2}
v_add3_u32 v{t+1}, v{t+1}, v{t+2}, 32
v_lshl_add_u32 v{vTA+2}, v{t+1}, 2, s{sT1}
v_mul_u32_u24 v{t}, 784, v{t}
v_sub_u32 v{t}, 800, v{t}
v_add_u32 v{vTA+3}, v{vTA+2}, v{t}
v_and_b32 v{t}, 7, v{vN}
v_mul_u32_u24 v{t}, 100, v{t}
v_lshrrev_b32 v{t+1}, 3, v{vN}
v_lshl_add_u32 v{t+1}, v{vG}, 3, v{t+1}
v_add3_u32 v{t}, v{t}, v{t+1}, 64
v_lshl_add_u32 v{vTA+4}, v{t}, 2, s{sT1}
''')
    return s


def setup_g():
    s = Seq()
    s(f'''
v_lshlrev_b32 v{t+4}, 3, v{vTID}
s_movk_i32 s{sT3}, 128
''')
    for i in range(9):
        g = vGA + i
        s(f'v_sub_u32 v{g}, {2047 - i}, v{t+4}')
        if i == 8:
            s(f'v_max_i32 v{t+5}, 0, v{g}')
            s(f'v_cvt_f32_u32 v{t+5}, v{t+5}')
        else:
            s(f'v_cvt_f32_u32 v{t+5}, v{g}')
        s(f'''
v_cvt_pk_bf16_f32 v{t+5}, v{t+5}, v{vZ}
v_add_u32 v{t+5}, {128 - 0x4300}, v{t+5}
v_med3_i32 v{g}, v{t+5}, v{g}, s{sT3}
v_and_b32 v{t+5}, 7, v{g}
v_ashrrev_i32 v{g}, 3, v{g}
v_mul_u32_u24 v{t+5}, 400, v{t+5}
v_lshl_add_u32 v{g}, v{g}, 2, v{t+5}''')
    return s


def setup_b():
    s = Seq()
    s(f'''
s_lshr_b32 s{sT0}, s{sJ}, 3
s_lshl2_add_u32 s{sTB2}, s{sXCD}, s{sT0}
s_and_b32 s{sNB}, s{sJ}, 7
s_mul_i32 s{sW2l}, s{sWV}, {448*1024}
s_lshl_b32 s{sT0}, s{sNB}, 7
s_add_u32 s{sW2l}, s{sW2l}, s{sT0}
s_sub_u32 s{sW2l}, s{sW2l}, 32768
s_lshr_b32 s{sT0}, s{sWV}, 1
s_lshl1_add_u32 s{sCH}, s2, s{sT0}
v_lshlrev_b32 v{t+2}, 1, v{vG}
v_and_b32 v{t+3}, 7, v{vL}
v_xor_b32 v{t+2}, v{t+2}, v{t+3}
v_lshrrev_b32 v{t+3}, 3, v{vL}
v_lshlrev_b32 v{t+3}, 10, v{t+3}
v_lshl_add_u32 v{vW2s}, v{t+2}, 4, v{t+3}
v_add_u32 v{vW2s+1}, {7168*1}, v{vW2s}
v_add_u32 v{vW2s+2}, {7168*2}, v{vW2s}
v_add_u32 v{vW2s+3}, {7168*3}, v{vW2s}
v_lshrrev_b32 v{t}, 1, v{vG}
v_bfe_u32 v{t+2}, v{vL}, 2, 3
v_lshl_add_u32 v{t+2}, v{t}, 4, v{t+2}
v_lshlrev_b32 v{t+2}, 7, v{t+2}
v_and_b32 v{t+3}, 3, v{vL}
v_lshl_add_u32 v{t+2}, v{t+3}, 3, v{t+2}
v_bfe_u32 v{t+3}, v{vL}, 3, 2
v_lshl_add_u32 v{t+2}, v{t+3}, 5, v{t+2}
s_add_u32 s{sT0}, s{sM}, {L_E}
v_add_u32 v{vTr}, s{sT0}, v{t+2}
''')
    for j in range(4):
        if j:
            s(f'v_xor_b32 v{vTr+j}, {32*j}, v{vTr}')
        s(f'v_add_u32 v{vTr+4+j}, 65536, v{vTr+j}')
    s(f'''
v_and_b32 v{t+4}, 1, v{vL}
v_lshrrev_b32 v{t+5}, 1, v{vN}
s_and_b32 s{sT0}, s{sWV}, 2
s_lshl_b32 s{sT0}, s{sT0}, 13
s_lshl_b32 s{sT2}, s{sBH}, 8
s_sub_u32 s{sT0}, s{sT0}, s{sT2}
s_add_u32 s{sT1}, s{sT0}, {56 + 256}
v_mul_u32_u24 v{vFa}, {PART + 128}, v{t+4}
v_lshl_add_u32 v{vFa}, v{vG}, 4, v{vFa}
v_lshlrev_b32 v{t+6}, 3, v{t+5}
v_sub_u32 v{vFa}, v{vFa}, v{t+6}
v_add_u32 v{vFa}, s{sT1}, v{vFa}
s_add_u32 s{sT1}, s{sT0}, {L_U + 512 - 192}
v_mul_u32_u24 v{vGa}, {PART + 32}, v{t+4}
v_lshl_add_u32 v{vGa}, v{vG}, 4, v{vGa}
v_lshl_add_u32 v{vGa}, v{t+5}, 6, v{vGa}
v_add_u32 v{vGa}, s{sT1}, v{vGa}
v_and_b32 v{vPA}, 31, v{vL}
v_lshlrev_b32 v{vPA}, 7, v{vPA}
s_lshl_b32 s{sT0}, s{sCH}, 12
s_lshl_b32 s{sT1}, s{sBH}, 2
s_sub_u32 s{sT0}, s{sT0}, s{sT1}
s_add_u32 s{sUs}, s{sT0}, {WS_UT}
s_lshl_b32 s{sT1}, s{sBH}, 5
s_add_u32 s{sUm}, s{sP4}, s{sT1}
v_lshl_add_u32 v{vUz}, v{vL}, 3, s{sUm}
s_lshl2_add_u32 s{sT0}, s{sBH}, s{sUm}
v_mov_b32 v{vUz+1}, s{sT0}
v_add_u32 v{vL16+1}, 4096, v{vL16}
v_add_u32 v{vL16+2}, 8192, v{vL16}
v_add_u32 v{vL16+3}, 12288, v{vL16}
''')
    for sg in range(4):
        s(f'''
s_add_u32 s{sT0}, s{sWV}, {sg + 1}
s_and_b32 s{sT0}, s{sT0}, 3
s_lshl2_add_u32 s{sT0}, s{sTB2}, s{sT0}
s_lshl2_add_u32 s{sT0}, s{sT0}, s{sWV}
s_mul_i32 s{sT0}, s{sT0}, {14*1024}
s_add_u32 s{sH+sg}, s{sT0}, {WS_H}''')
    for sg in range(3):
        s(f'''
s_sub_u32 s{sT0}, s{sWV}, {sg + 1}
s_and_b32 s{sT0}, s{sT0}, 3
s_lshl_b32 s{sT0}, s{sT0}, 12
s_add_u32 s{sPR+sg}, s{sT0}, {L_E + 16384*sg}''')
    s(f'''
s_lshl1_add_u32 s{sAT}, s{sCH}, s{sBH}
s_lshl_b32 s{sAT}, s{sAT}, 11
s_add_u32 s{sAT}, s{sAT}, {WS_AT}
s_lshr_b32 s{sT0}, s{sCH}, 4
s_lshl1_add_u32 s{sT0}, s{sT0}, s{sBH}
s_lshl_b32 s{sT0}, s{sT0}, 7
s_and_b32 s{sT1}, s{sCH}, 15
s_lshl2_add_u32 s{sFC}, s{sT1}, s{sT0}
s_add_u32 s{sFC}, s{sFC}, {FC}
s_lshl2_add_u32 s{sT0}, s{sTB2}, s{sWV}
s_lshl_b32 s{sFHp}, s{sT0}, 7
s_add_u32 s{sFHp}, s{sFHp}, {FH}
s_lshl_b32 s{sGs}, s{sT0}, 6
s_add_u32 s{sGs}, s{sGs}, {WS_G}
s_lshl_b32 s{sO0}, s{sT0}, 14
s_lshl_b32 s{sT1}, s{sNB}, 7
s_add_u32 s{sO0}, s{sO0}, s{sT1}
s_add_u32 s{sO1}, s{sO0}, 8192
s_lshl2_add_u32 s{sT0}, s{sNB}, s{sWV}
s_lshr_b32 s{sT1}, s{sTB2}, 4
s_lshl1_add_u32 s{sFCp}, s{sT0}, s{sT1}
s_lshl_b32 s{sFCp}, s{sFCp}, 7
s_add_u32 s{sFCp}, s{sFCp}, {FC}
s_lshl_b32 s{sT0}, s{sT0}, 16
s_lshl_b32 s{sT1}, s{sTB2}, 7
s_add_u32 s{sT0}, s{sT0}, s{sT1}
s_add_u32 s{sAs}, s{sT0}, {WS_AT}
''')
    return s


def setup_e():
    s = Seq()
    a, b, c = t + 4, t + 5, t + 6
    s(f'''
v_xor_b32 v{a}, v{vL}, v{vG}
v_lshl_add_u32 v{vRa}, v{a}, 4, s{sP4}
v_and_b32 v{a}, 3, v{vL}
v_bfe_u32 v{b}, v{vL}, 2, 3
v_lshlrev_b32 v{b}, 1, v{b}
v_xor_b32 v{b}, v{b}, v{a}
v_lshl_add_u32 v{b}, v{a}, 4, v{b}
v_lshrrev_b32 v{a}, 5, v{vL}
v_lshl_add_u32 v{b}, v{a}, 6, v{b}
s_and_b32 s{sT2}, s{sWV}, 2
s_lshl1_add_u32 s{sT2}, s{sT2}, s{sBH}
s_lshl_b32 s{sT2}, s{sT2}, 12
v_lshl_add_u32 v{vRa+1}, v{b}, 4, s{sT2}
v_xor_b32 v{vRa+2}, 16, v{vRa+1}
s_add_u32 s{sT2}, s{sM}, {L_E}
v_add_u32 v{vPW}, s{sT2}, v{vL16}
v_lshlrev_b32 v{a}, 1, v{vG}
v_and_b32 v{b}, 7, v{vL}
v_xor_b32 v{a}, v{a}, v{b}
v_lshrrev_b32 v{c}, 3, v{vL}
v_lshlrev_b32 v{vAd}, 12, v{c}
v_lshl_add_u32 v{vAd}, v{a}, 4, v{vAd}
v_add_u32 v{vAd+1}, {32768 - 1024}, v{vAd}
v_lshlrev_b32 v{vOa}, 10, v{c}
v_lshl_add_u32 v{vOa}, v{b}, 4, v{vOa}
v_xor_b32 v{a}, v{b}, v{c}
v_lshlrev_b32 v{a}, 4, v{a}
v_lshl_add_u32 v{a}, v{c}, 7, v{a}
s_add_u32 s{sT2}, s{sM}, {L_E + 4*16384}
v_add_u32 v{vOr}, s{sT2}, v{a}
v_lshrrev_b32 v{a}, 1, v{vG}
v_xor_b32 v{a}, v{a}, v{b}
v_lshlrev_b32 v{a}, 4, v{a}
v_lshl_add_u32 v{a}, v{vN}, 7, v{a}
v_and_b32 v{b}, 1, v{vG}
v_lshl_add_u32 v{a}, v{b}, 3, v{a}
v_add_u32 v{vOw}, s{sT2}, v{a}
v_xor_b32 v{vOw+1}, 32, v{vOw}
v_xor_b32 v{vOw+2}, 64, v{vOw}
v_xor_b32 v{vOw+3}, 96, v{vOw}
v_lshrrev_b32 v{a}, 2, v{vL}
v_lshlrev_b32 v{a}, 7, v{a}
v_bfe_u32 v{b}, v{vL}, 3, 2
v_xor_b32 v{b}, s{sWV}, v{b}
v_lshl_add_u32 v{a}, v{b}, 5, v{a}
v_and_b32 v{b}, 3, v{vL}
v_lshl_add_u32 v{a}, v{b}, 3, v{a}
v_add_u32 v{vAr}, {L_E + 3*16384}, v{a}
s_lshl_b32 s{sT2}, s{sNB}, 7
v_lshl_add_u32 v{vBa}, v{vG}, 3, s{sT2}
v_lshlrev_b32 v{vGo}, 2, v{vN}
''')
    return s


def kgen(pkC, za):
    s = Seq()
    live = {}
    vb = V.alloc(36, 2)
    pb = V.alloc(40, 2)
    VV, VP, VZ = Regs('v', vb, vb + 36), Regs('v', pb, pb + 32), Regs('v', za, za + 32)
    pool = lambda nm: VP if nm[0] == 'p' else VZ if (nm[0] == 'z' and nm not in ('z128', 'z256', 'z512')) else VV

    def A(name, n=1):
        live[name] = (pool(name).alloc(n), n)
        return live[name][0]

    def F(*names):
        for nm in names:
            pool(nm).release(*live.pop(nm))

    P, canon, extra = {}, [], {}

    def cut(name):
        nonlocal s
        canon.extend(s.l)
        P[name], s = s, Seq()

    la, ai, cr, ci, ld, dsk = [vPAR + i for i in range(6)]
    LOG2E, LOG2E_LO, LN2 = 0x3fb8aa3b, 0x32a5705f, 0x3f317218
    s(f's_mov_b32 s{sT0}, {LOG2E:#x}')
    for x in (la, ld):
        s(f'v_lshlrev_b32 v{x}, 16, v{x}')
    for k, x in enumerate((la, ld)):
        s(f'v_mul_f32 v{t+2*k}, s{sT0}, v{x}')
    for k, x in enumerate((la, ld)):
        s(f'v_fma_f32 v{t+2*k+1}, v{x}, s{sT0}, -v{t+2*k}')
    for k, x in enumerate((la, ld)):
        s(f'v_exp_f32 v{t+2*k}, v{t+2*k}')
    for k, x in enumerate((la, ld)):
        s(f'v_fmamk_f32 v{t+2*k+1}, v{x}, {LOG2E_LO:#x}, v{t+2*k+1}')
    for k, x in enumerate((la, ld)):
        s(f'v_mul_f32 v{t+2*k+1}, {LN2:#x}, v{t+2*k+1}')
    for k, x in enumerate((la, ld)):
        s(f'v_fma_f32 v{t+2*k}, v{t+2*k}, v{t+2*k+1}, v{t+2*k}')
    for x in (ai, cr, ci, dsk):
        s(f'v_lshlrev_b32 v{x}, 16, v{x}')
    s(f'''
v_cvt_pk_bf16_f32 v{t}, v{t}, v{t+2}
v_and_b32 v{ld}, 0xffff0000, v{t}
v_lshlrev_b32 v{la}, 16, v{t}
''')
    val = lambda nm: live[nm][0]
    A('c0', 2)
    s(f'''
v_mul_f32 v{la}, v{la}, v{ld}
v_mul_f32 v{ai}, v{ai}, v{ld}
v_add_f32 v{ld}, v{ld}, v{ld}
v_mul_f32 v{la}, {f32(-1.4426950408889634)}, v{la}
v_mul_f32 v{ai}, 0.15915494, v{ai}
v_mul_f32 v{val('c0')}, v{cr}, v{ld}
v_mul_f32 v{val('c0')+1}, v{ci}, v{ld}
''')
    zs = (('z8', 8.0), ('z1', 1.0), ('z128', 128.0))
    for k, (nm, p) in enumerate(zs):
        A(nm, 2)
        s(f'v_mul_f32 v{t+2*k}, {f32(p)}, v{la}')
        s(f'v_mul_f32 v{t+2*k+1}, {f32(p)}, v{ai}')
    for k, (nm, p) in enumerate(zs):
        s(f'v_fract_f32 v{t+2*k+1}, v{t+2*k+1}')
        s(f'v_exp_f32 v{t+2*k}, v{t+2*k}')
    for k, (nm, p) in enumerate(zs):
        s(f'v_cos_f32 v{val(nm)}, v{t+2*k+1}')
        s(f'v_sin_f32 v{val(nm)+1}, v{t+2*k+1}')
    for k, (nm, p) in enumerate(zs):
        s(f'v_pk_mul_f32 {vr(val(nm),2)}, {vr(val(nm),2)}, {vr(t+2*k,2)} op_sel_hi:[1,0]')
    fr, acc = 160, 224
    s(f'''
s_lshl_b32 s{sT0}, s{sBH}, 6
s_sub_u32 s{sT0}, 64, s{sT0}
v_cmp_eq_u32 vcc, s{sT0}, v{vL}
v_accvgpr_write_b32 a{acc+1}, 0
v_accvgpr_write_b32 a{acc+2}, 0
v_cndmask_b32 v{dsk}, 0, v{dsk}, vcc
v_accvgpr_write_b32 a{acc+3}, 0
v_accvgpr_write_b32 a{acc}, v{dsk}
''')
    mode = {'pk': True}

    def pack(nm):
        p = A('p' + nm)
        s(f'v_cvt_pk_bf16_f32 v{p}, v{val(nm)}, {"-" if nm[0] == "z" else ""}v{val(nm)+1}')

    def mp(lst):
        for d, a, b in lst:
            A(d, 2)
        if mode['pk']:
            for d, a, b in lst:
                s(f'v_pk_mul_f32 {vr(val(d),2)}, {vr(val(a),2)}, {vr(val(b),2)} op_sel_hi:[1,0]')
            for d, a, b in lst:
                s(f'v_pk_fma_f32 {vr(val(d),2)}, {vr(val(a),2)}, {vr(val(b),2)}, {vr(val(d),2)} op_sel:[1,1,0] op_sel_hi:[0,1,1] neg_lo:[1,0,0]')
        else:
            for d, a, b in lst:
                s(f'v_mul_f32 v{val(d)}, v{val(a)}, v{val(b)}')
                s(f'v_mul_f32 v{val(d)+1}, v{val(a)+1}, v{val(b)}')
                s(f'v_fma_f32 v{val(d)}, -v{val(a)+1}, v{val(b)+1}, v{val(d)}')
                s(f'v_fmac_f32 v{val(d)+1}, v{val(a)}, v{val(b)+1}')
        for d, _, _ in lst:
            if d not in ('z256', 'z512'):
                pack(d)

    s(f'v_mov_b32 v{A("pz0")}, 0x3f80')
    pack('z8')
    pack('c0')
    lo_rounds = [[('z16', 'z8', 'z8'), ('z256', 'z128', 'z128')],
                 [('z24', 'z16', 'z8'), ('z32', 'z16', 'z16')],
                 [('z40', 'z8', 'z32'), ('z48', 'z16', 'z32')],
                 [('z56', 'z24', 'z32'), ('z64', 'z32', 'z32')],
                 [('z72', 'z40', 'z32'), ('z80', 'z48', 'z32')],
                 [('z88', 'z56', 'z32'), ('z96', 'z64', 'z32')],
                 [('z104', 'z72', 'z32'), ('z112', 'z80', 'z32'), ('z120', 'z88', 'z32')]]
    def wr(row, names):
        for k, nm in enumerate(names):
            s(f'ds_write_addtid_b32 v{val("p" + nm)} offset:{272*(row+k)}', m0=f's_mov_b32 m0, s{sP4}')
            extra[id(s.l[-1])] = ([f'row{row+k}'], [])

    def rd(tile):
        for ks in range(4):
            s(f'ds_read_b128 {ar(fr+16*tile+4*ks,4)}, v{vRR} offset:{(O_T if tile == 3 else 0) + 64*ks}')
            extra[id(s.l[-1])] = ([], [f'row{r + (16 if tile == 3 else 0)}' for r in range(16)])

    for r, lst in enumerate(lo_rounds):
        mp(lst + [(f'c{r+1}', f'c{r}', 'z1')])
        F(*{2: ['z8', 'z16'], 3: ['z24'], 4: ['z40', 'z48'], 5: ['z56', 'z64', 'z96']}.get(r, []))
    F('z1', 'z32', 'z72', 'z80', 'z88', 'z104', 'z112', 'z120')
    cut('A')
    wr(0, [f'z{8*b}' for b in range(16)])
    cut('wl')
    rd(0)
    cut('rl')
    mp([(f'c{128+o}', f'c{o}', 'z128') for o in range(4)])
    F('c1', 'c3', 'c129', 'c131')
    mp([(f'c{128+o}', f'c{o}', 'z128') for o in range(4, 8)])
    F('z128', 'c5', 'c7', 'c133', 'c135')
    cut('v0')
    F(*[f'pz{8*b}' for b in range(16)])
    t0 = [f'c{h}' for h in list(range(8)) + list(range(128, 136))]
    wr(0, t0)
    cut('w0')
    rd(1)
    cut('r0')
    mp([(f'c{256+o}', f'c{o}', 'z256') for o in (0, 2, 4, 6)])
    F('c0', 'c2', 'c4', 'c6', 'c258', 'c262')
    mp([(f'c{384+o}', f'c{128+o}', 'z256') for o in (0, 2, 4, 6)] + [('z512', 'z256', 'z256')])
    F('c128', 'c130', 'c132', 'c134', 'c386', 'c390')
    mp([(f'c{h+256}', f'c{h}', 'z256') for h in (256, 260, 384, 388)])
    mp([(f'c{h+512}', f'c{h}', 'z512') for h in (256, 260, 384, 388)])
    F('z256', 'c516', 'c644', 'c256', 'c260', 'c384', 'c388', 'c772', 'c900')
    cut('v1')
    wr(0, [f'c{h}' for h in (256, 258, 260, 262, 384, 386, 388, 390, 512, 516, 640, 644, 768, 772, 896, 900)])
    cut('w1')
    rd(2)
    cut('r1')
    F(*['p' + x for x in t0])
    mp([(f'c{h+512}', f'c{h}', 'z512') for h in (512, 640, 768, 896)])
    F('c512', 'c640', 'c768', 'c896')
    mp([(f'c{h+512}', f'c{h}', 'z512') for h in (1024, 1152, 1280, 1408)])
    F('c1024', 'c1152', 'c1280', 'c1408')
    mp([('c2048', 'c1536', 'z512')])
    cut('v2')
    wr(16, [f'c{1024 + 128*k}' for k in range(9)])
    cut('w2')
    rd(3)
    cut('r2')
    for k in range(3):
        for ks in range(4):
            c = ar(acc + 4 * k, 4)
            s(f'v_mfma_f32_16x16x32_bf16 {c}, {ar(fr+16*(k+1)+4*ks,4)}, {ar(fr+4*ks,4)}, {c if (ks or k == 0) else 0}')
    cut('mf')
    s(f'ds_write_b32 v{vEa+2}, v{vZ} offset:{699*4}')
    for k in range(6):
        o0, o1 = (0, 100) if k < 4 else (4 * (k - 4), 4 * (k - 4) + 2)
        s(f'ds_write2_b32 v{vTA+min(k,4)}, a{acc+2*k}, a{acc+2*k+1} offset0:{o0} offset1:{o1}')
    for k, it in enumerate(s.l):
        extra[id(it)] = ([f'row{25+k}'], [])
    cut('wt')
    gv, ov = vb, pb
    for i in range(9):
        for p in range(2):
            s(f'ds_read2st64_b32 {vr(gv+4*i+2*p,2)}, v{vGA+i} offset0:{17 + 32*p} offset1:{17 + 32*(2+p)}')
    cut('rc')
    for i in range(9):
        if pkC:
            s(f'v_pk_add_f32 {vr(gv+4*i,2)}, {vr(gv+4*i,2)}, {vr(gv+4*i+2,2)}')
        else:
            s(f'v_add_f32 v{gv+4*i}, v{gv+4*i}, v{gv+4*i+2}')
            s(f'v_add_f32 v{gv+4*i+1}, v{gv+4*i+1}, v{gv+4*i+3}')
    for c in range(2):
        for o in (1, 0):
            for k in range(4):
                a = gv + 4 * (2 * k + (1 - o)) + c
                s(f'v_cvt_pk_bf16_f32 v{ov+8*c+4*o+k}, v{a}, v{a+4}')
    cut('vc')
    for c in range(2):
        for o in (1, 0):
            s(f'ds_write_b128 v{vEa}, {vr(ov+8*c+4*o,4)} offset:{(2*c+o)*PART + 128*o}')
    s(f'ds_write_b128 v{vEa+1}, {vr(vZ2,4)} offset:4096')
    s(f'ds_write_b64 v{vUz}, {vr(vZ2,2)} offset:{L_U}')
    cut('wc')
    P['vb'], P['pb'] = vb, pb
    checks.append((canon, extra))
    return P


W2E = 3 * [2, 3, 0, 4, 1, 5]


def w2_dma(ks):
    g = []
    for i in range(4):
        s = Seq()
        if i == 0:
            if ks >= 6:
                s.wait(f'tr{ks-6}')
            s(f's_add_u32 s{sW2l}, s{sW2l}, 32768')
        s(f'buffer_load_dwordx4 v{vW2s+i}, {srd(SW2)}, s{sW2l} offen offset:{1024*i} lds', tag=f'w2d{ks}',
          m0=f's_add_u32 m0, s{sM}, {L_E + 16384*W2E[ks]}')
        g.append(s)
    return g


def w2_tr(ks):
    g = []
    e = W2E[ks]
    for j in range(4):
        for hh in range(2):
            s = Seq()
            if j == 0 and hh == 0:
                s.wait(f'w2d{ks}')
            s(f'ds_read_b64_tr_b16 {ar(16*ks+4*j+2*hh,2)}, v{vTr+4*(e//4)+j} offset:{16384*(e%4) + 1024*hh}', tag=f'tr{ks}')
            g.append(s)
    return g


def u_poll_issue():
    return Seq()(f'buffer_load_dword v{vPF}, v{vPA}, {srd(SWS)}, 0 offen offset:{FU} sc1')


def u_dma():
    s = Seq()
    s(f'v_cmp_ne_u32 vcc, s{sNON}, v{vPF}')
    retry(s, 's_cbranch_vccnz', 's_cbranch_vccz', f'''
buffer_load_dword v{vPF}, v{vPA}, {srd(SWS)}, 0 offen offset:{FU} sc1
s_waitcnt vmcnt(0)
v_cmp_ne_u32 vcc, s{sNON}, v{vPF}''')
    for i in range(4):
        s(f'buffer_load_dwordx4 v{vL16}, {srd(SWS)}, s{sUs} offen offset:{1024*i} sc1 lds', tag='udma', m0=f's_add_u32 m0, s{sUm}, {L_U + 512}')
    return s


main = Seq()
vXr = V.alloc(4, 1)
vWr = V.alloc(2, 1)
vHa = V.alloc()
vACC = V.alloc(64, 2)
vFR = V.alloc(32, 2)
pro_body(main)
main(f'''
s_mul_i32 s{sT0}, s{sJ}, 9363
s_lshr_b32 s{sT0}, s{sT0}, 16
s_mul_i32 s{sT1}, s{sT0}, 7
s_sub_u32 s{sT1}, s{sJ}, s{sT1}
s_lshr_b32 s{sT2}, s{sXCD}, 1
s_and_b32 s{sT3}, s{sXCD}, 1
s_lshl2_add_u32 s{sT0}, s{sT2}, s{sT0}
s_lshl1_add_u32 s{sKC}, s{sT3}, s{sT2}
s_mul_i32 s{sT3}, s{sT3}, 7
s_add_u32 s{sT1}, s{sT1}, s{sT3}
s_lshl_b32 s{sKC}, s{sKC}, 4
s_and_b32 s{sKC}, s{sKC}, {63 if OPT['rot'] else 0}
s_lshr_b32 s{sT3}, s{sWV}, 1
s_lshl1_add_u32 s{sTB1}, s{sT0}, s{sBH}
s_lshl1_add_u32 s{sCB1}, s{sT1}, s{sT3}
s_lshl2_add_u32 s{sXb}, s{sT0}, s{sWV}
s_lshl_b32 s{sXb}, s{sXb}, 15
s_mul_i32 s{sWb}, s{sWV}, {16*3584}
s_lshl_b32 s{sT1}, s{sT1}, 8
s_add_u32 s{sWb}, s{sWb}, s{sT1}
v_and_b32 v{t+1}, 7, v{vL}
v_xor_b32 v{t}, v{vG}, v{t+1}
v_lshrrev_b32 v{t+1}, 3, v{vL}
v_lshlrev_b32 v{t+1}, 10, v{t+1}
v_lshl_add_u32 v{vXs}, v{t}, 4, v{t+1}
v_xor_b32 v{t}, 64, v{vXs}
v_add_u32 v{vXs+1}, 7168, v{t}
v_add_u32 v{vXs+2}, {2*7168}, v{vXs}
v_add_u32 v{vXs+3}, {3*7168}, v{t}
v_lshlrev_b32 v{t}, 2, v{vG}
v_xor_b32 v{t}, v{t}, v{vN}
v_mul_u32_u24 v{t+1}, 3584, v{vG}
v_lshl_add_u32 v{vWs}, v{t}, 4, v{t+1}
''')
for i in range(1, 4):
    main(f'v_add_u32 v{vWs+i}, {(4*3584 - 1024)*i}, v{vWs}')


def stage_loads(st):
    g = []
    for isw in (0, 1):
        for i in range(4):
            s = Seq()
            if i == 0:
                if isw:
                    s(f's_mul_i32 s{sWk}, s{sKC}, {8*3584}')
                    s(f's_add_u32 s{sWk}, s{sWk}, s{sWb}')
                else:
                    s(f's_lshl4_add_u32 s{sXk}, s{sKC}, s{sXb}')
            m0 = f's_add_u32 m0, s{sM}, {(L_W if isw else L_X) + 16384*(st % 4)}'
            if isw:
                s(f'buffer_load_dwordx4 v{vWs+i}, {srd(SW1)}, s{sWk} offen offset:{1024*i} lds', tag=f'st{st}', m0=m0)
            else:
                s(f'buffer_load_dwordx4 v{vXs+i}, {srd(SX)}, s{sXk} offen offset:{1024*i} lds', tag=f'st{st}', m0=m0)
            if isw and i == 1:
                s(f's_add_u32 s{sKC}, s{sKC}, 8')
            if isw and i == 2:
                s(f's_and_b32 s{sKC}, s{sKC}, 63')
            g.append(s)
    return g


LS = [g for st in range(8) for g in stage_loads(st)]
if OPT['l2']:
    main(f'''
s_lshl2_add_u32 s{sT0}, s{sJ}, s{sWV}
v_lshl_add_u32 v{t}, s{sT0}, 6, v{vL}
v_mul_u32_u24 v{t+1}, 9363, v{t}
v_lshrrev_b32 v{t+1}, 17, v{t+1}
v_mul_u32_u24 v{t+1}, 14, v{t+1}
v_add_lshl_u32 v{vFa}, v{t}, v{t+1}, 7
s_and_b32 s{sT1}, s{sXCD}, 1
s_mul_i32 s{sFH}, s{sT1}, 1792
s_mul_i32 s{sT0}, s{sT0}, 37
v_min_u32 v{t}, 36, v{vL}
v_add_u32 v{t}, s{sT0}, v{t}
v_min_u32 v{t}, 4095, v{t}
v_lshlrev_b32 v{vGa}, 7, v{t}
s_lshl_b32 s{sT4}, s{sT2}, 19
''')
assert all((q * 9363) >> 17 == q // 14 for q in range(7168))
main(f's_or_b32 s{sT0}, s2, s{sWV}')
main('s_waitcnt lgkmcnt(0)')
stamp(main, 'karg')
main(f'''
s_cmp_eq_u32 s{sT0}, 0
s_cbranch_scc1 Lnonce
Lnonce_back:''')
outline.append(f'''Lnonce:
    s_memrealtime s[{sHst}:{sHst2}]
    s_waitcnt lgkmcnt(0)
    s_or_b32 s{sHst}, s{sHst}, 1
    s_atomic_swap s{sHst}, {ptr(P_DBG)}, 0
    s_branch Lnonce_back
''')
param_loads(main)
NE, NK = OPT['early'], OPT['nk']
su = Seq()
su(f'''
v_and_b32 v{t}, 31, v{vL}
v_bfe_u32 v{t+1}, v{vL}, 1, 3
v_lshrrev_b32 v{t+2}, 5, v{vL}
v_xor_b32 v{t+1}, v{t+1}, v{t+2}
s_lshl_b32 s{sT0}, s{sBH}, 13
s_add_u32 s{sT0}, s{sT0}, {L_X}
v_lshl_add_u32 v{t}, v{t}, 7, s{sT0}
''')
for ks in range(4):
    su(f'v_xor_b32 v{t+3}, {2*ks}, v{t+1}')
    su(f'v_lshl_add_u32 v{vXr+ks}, v{t+3}, 4, v{t}')
su(f'''
v_bfe_u32 v{t}, v{vL}, 2, 2
v_lshl_add_u32 v{t+1}, v{t+2}, 3, v{t}
v_lshlrev_b32 v{t+1}, 8, v{t+1}
v_and_b32 v{t+2}, 1, v{vG}
v_lshl_add_u32 v{t+1}, v{t+2}, 5, v{t+1}
v_and_b32 v{t+2}, 3, v{vL}
v_lshl_add_u32 v{t+1}, v{t+2}, 3, v{t+1}
v_add_u32 v{t+1}, {L_W}, v{t+1}
s_and_b32 s{sT0}, s{sWV}, 2
v_xor_b32 v{t}, s{sT0}, v{t}
v_lshl_add_u32 v{vWr}, v{t}, 6, v{t+1}
v_xor_b32 v{t}, 1, v{t}
v_lshl_add_u32 v{vWr+1}, v{t}, 6, v{t+1}
''')
su.add(setup_k())
su.add(setup_a())
if OPT['sub']:
    su.add(setup_b())
main.add(cat(LS[:4]))
if OPT['l2']:
    su(f'buffer_load_dword v{vPF}, v{vGa}, {srd(SX)}, s{sT4} offen')
    su(f'buffer_load_dword v{vPF}, v{vFa}, {srd(SW1)}, s{sFH} offen')
    assert not OPT['sub']
su.add(setup_g())
main.add(sprinkle(su, LS[4:NE], 0, 10 * (NE - 4)))
stamp(main, 'setup')
K = kgen(False, vACC)
vTP = K['pb'] + 16


def kgen_seq(K):
    s = Seq()
    wl, w0, w1 = chunks(K['wl'], 4), chunks(K['w0'], 4), chunks(K['w1'], 4)
    v0, v1, v2 = K['v0'].l, K['v1'].l, K['v2'].l
    s.add(K['A']).add(wl[0]).add(wl[1]).add(v0[:6]).add(wl[2]).add(wl[3]).add(v0[6:20]).add(K['rl']).add(v0[20:])
    s.add(w0[0]).add(v1[:8]).add(w0[1]).add(v1[8:16]).add(w0[2]).add(v1[16:24]).add(w0[3]).add(v1[24:40])
    s.add(K['r0']).add(v1[40:])
    s.add(w1[0]).add(v2[:8]).add(w1[1]).add(v2[8:16]).add(w1[2]).add(v2[16:24]).add(w1[3]).add(v2[24:])
    s.add(K['w2'])
    mf, wt = K['mf'].l, K['wt'].l
    s.add(mf[:4]).add(K['r1']).add(K['r2']).add(mf[4:]).add(wt)
    return s


ka = kgen_seq(K)
main.add(sprinkle(ka, LS[NE:NK] + [nonce_issue()], len(ka) - OPT['res'], len(ka) - 7))
stamp(main, 'kgenA')


def g1_reads(st, ks):
    xo = wo = 16384 * (st % 4)
    b = vFR + 16 * (ks & 1)
    r = []
    for k in range(2):
        for hh in range(2):
            r.append(f'ds_read_b64_tr_b16 {vr(b+4*k+2*hh,2)}, v{vWr+k} offset:{wo + ks*4096 + hh*1024}')
        r.append(f'ds_read_b128 {vr(b+8+4*k,4)}, v{vXr+ks} offset:{xo + k*4096}')
    return r


def g1_mfma(st, ks):
    b = vFR + 16 * (ks & 1)
    r = []
    for ft, tt in ((0, 0), (1, 1), (1, 0), (0, 1)):
        a = vACC + 32 * ft + 16 * tt
        c = '0' if (st == 0 and ks == 0) else vr(a, 16)
        r.append(f'v_mfma_f32_32x32x16_bf16 {vr(a,16)}, {vr(b+4*ft,4)}, {vr(b+8+4*tt,4)}, {c}')
    return r


pc_addr = Seq()
pc_addr(f'''
v_and_b32 v{t}, 31, v{vL}
v_lshlrev_b32 v{t}, 4, v{t}
s_lshl_b32 s{sT0}, s{sCB1}, 10
s_add_u32 s{sT0}, s{sT0}, {WS_FP}
s_lshl_b32 s{sT1}, s{sTB1}, 10
s_add_u32 s{sT4}, s{sT1}, {WS_TS}
s_add_u32 s{sT1}, s{sT1}, {WS_TP}''')
pc_ld = [f'buffer_load_dwordx4 {vr(vTP+8*w+4*k,4)}, v{t}, {srd(SWS)}, s{(sT0, sT1, sT4)[w]} offen offset:{512*k} sc1'
         for w in range(3) for k in range(2)]
pc_cmp = [f'v_xor_b32 v{vTP+4*k+3}, s{sNON}, v{vTP+4*k+3}' for k in range(6)]
pc_cmp += [f'v_or3_b32 v{t+1}, v{vTP+3}, v{vTP+7}, v{vTP+11}', f'v_or3_b32 v{t+2}, v{vTP+15}, v{vTP+19}, v{vTP+23}',
           f'v_or_b32 v{t+1}, v{t+1}, v{t+2}', f'v_cmp_ne_u32 vcc, 0, v{t+1}']
pc_chk = [Seq()(x) for x in pc_cmp]
retry(pc_chk[-1], 's_cbranch_vccnz', 's_cbranch_vccz', '\n'.join(pc_ld + ['s_waitcnt vmcnt(0)'] + pc_cmp))
pc_fix = Seq()
pc_fix(f'v_cmp_gt_u32 vcc, 32, v{vL}')
for k in range(2):
    for d in range(3):
        pc_fix(f'v_cndmask_b32 v{vTP+8+4*k+d}, 0, v{vTP+8+4*k+d}, vcc')
hadr = Seq()
hadr(f'''
v_and_b32 v{t+4}, 1, v{vG}
v_mul_u32_u24 v{t+4}, {56*1024}, v{t+4}
v_lshrrev_b32 v{t+5}, 5, v{vL}
v_lshl_add_u32 v{t+4}, v{t+5}, 8, v{t+4}
v_lshl_add_u32 v{vHa}, v{vN}, 4, v{t+4}
s_mul_i32 s{sHst}, s{sTB1}, {4*56}
s_lshl1_add_u32 s{sHst}, s{sCB1}, s{sHst}
s_lshl_b32 s{sHst}, s{sHst}, 10
s_add_u32 s{sHst}, s{sHst}, {WS_H}
s_add_u32 s{sHst2}, s{sHst}, {2*56*1024}
s_mul_i32 s{sT2}, s{sCB1}, 9363
s_lshr_b32 s{sT2}, s{sT2}, 16
s_mul_i32 s{sT3}, s{sT2}, 7
s_sub_u32 s{sT3}, s{sCB1}, s{sT3}
s_lshl2_add_u32 s{sFH}, s{sTB1}, s{sT2}
s_lshl_b32 s{sFH}, s{sFH}, 7
s_lshl2_add_u32 s{sFH}, s{sT3}, s{sFH}
s_add_u32 s{sFH}, s{sFH}, {FH}
''')

TILES = ((0, 0), (1, 0), (0, 1), (1, 1))
G = Gaps([x for st in range(8) for ks in range(4) for x in g1_mfma(st, ks)] +
         [f'v_mfma_f32_32x32x16_bf16 {vr(vACC+32*ft+16*tt,16)}, {vr(vTP+4*ft,4)}, {vr(vTP+8+4*tt,4)}, {vr(vACC+32*ft+16*tt,16)}'
          for ft, tt in TILES], cap=24)
for st in range(8):
    b = 16 * st
    G.put(b + 12, bar(f'rd{st}', *([f'st{st+1}'] if st < 7 else [])))
    for ks in range(4):
        if st == 7 and ks == 3:
            break
        r = g1_reads(st, ks + 1) if ks < 3 else g1_reads(st + 1, 0)
        for k, x in enumerate(r):
            G.put(b + 4 * ks + k // 3, Seq()(x, tag=f'rd{st}' if ks < 3 else None))
        G.reserve(b + 4 * ks + 3, 4)
        if ks != 2:
            G.reserve(b + 4 * ks + 4, 4)
lg = [g for g in range(128) if g % 16 in (14, 15, 2, 3, 6, 7, 10, 11, 13, 5, 9, 1)[:OPT['lst']]]
for i in range(NK, 64):
    while lg[0] < 16 * (i // 8 - 4) + 13:
        lg.pop(0)
    last_ld = lg.pop(0)
    assert last_ld < 16 * (i // 8 - 1) + 12
    G.put(last_ld, LS[i])


for k, g_ in enumerate(singles(K['rc'])):
    G.put(14 + 4 * (k // 2) + k % 2, g_)
p = G.fill(([] if OPT['sub'] else singles(setup_b())) + [nonce_check()] + singles(hadr), 0, 76)
p = G.fill(singles(K['vc']) + singles(pc_addr), max(p[-1], 54), 92)
for k, x in enumerate(pc_ld):
    G.put(OPT['pcg'] // 4 * 4 + 4 * (k // 2) + 3, x)
for k, g_ in enumerate(w2_dma(0) + w2_dma(1) + w2_dma(2) + w2_dma(3) + w2_dma(4)):
    G.put((82, 83, 86, 87, 105, 106, 107, 107, 110, 111, 114, 115, 118, 119, 122, 123, 126, 127, 128, 129)[k], g_)
G.fill(pc_chk + singles(pc_fix), 116, 127)
p2 = G.fill(singles(setup_e()), max(p[-1], last_ld) + 1, 131)
print('gemm1 over', G.over(), 'last load gap', last_ld)
main.add(bar('st0'))
for x in g1_reads(0, 0):
    main(x)
for st in range(8):
    main.add(G.emit(16 * st, 16 * st + 16))
    stamp(main, f'g1s{st}', 1 if st in (3, 7) else 2)
main.add(G.emit(128))
q = vFR
gx = {k: [] for k in range(8)}
gx[0] += [cat(w2_dma(5))]
wc = singles(K['wc'])
gx[5] += wc[:2]
gx[6] += wc[2:4]
gx[7] += wc[4:]
gx[OPT['up']].insert(0, u_poll_issue())
gx[OPT['ud']].append(u_dma())
assert OPT['ud'] >= 1
for ti, (ft, tt) in enumerate(TILES):
    P = vTP + 16 + 4 * tt
    for hh in range(2):
        a = vACC + 32 * ft + 16 * tt + 8 * hh
        for k in range(4):
            main(f'v_pk_mul_f32 {vr(q+2*k,2)}, {vr(a+2*k,2)}, {vr(a+2*k,2)}')
        for k in range(4):
            main(f'v_pk_fma_f32 {vr(q+2*k,2)}, {vr(q+2*k,2)}, {vr(P,2)}, {vr(P,2)} op_sel:[0,1,0] op_sel_hi:[1,1,0]')
        for k in range(4):
            main(f'v_pk_mul_f32 {vr(q+2*k,2)}, {vr(q+2*k,2)}, {vr(a+2*k,2)}')
        for k in range(8):
            main(f'v_exp_f32 v{q+k}, v{q+k}')
        for k in range(4):
            main(f'v_pk_fma_f32 {vr(q+2*k,2)}, {vr(q+2*k,2)}, {vr(P+2,2)}, {vr(P+2,2)} op_sel_hi:[1,0,0]')
        for k in range(8):
            main(f'v_rcp_f32 v{q+k}, v{q+k}')
        for k in range(4):
            main(f'v_pk_mul_f32 {vr(q+2*k,2)}, {vr(q+2*k,2)}, {vr(a+2*k,2)}')
        for k in range(4):
            main(f'v_cvt_pk_bf16_f32 v{a+k}, v{q+2*k}, v{q+2*k+1}')
        main(f'buffer_store_dwordx4 {vr(a,4)}, v{vHa}, {srd(SWS)}, s{sHst2 if tt else sHst} offen offset:{1024*ft + 512*hh} sc1', tag='hst')
        main.add(cat(gx[2 * ti + hh]))
        stamp(main, f'ge{2*ti+hh}', 3)
stamp(main, 'gelu')
for b, n in ((vXr, 4), (vWr, 2), (vACC, 64), (vFR, 32), (vHa, 1), (K['vb'], 36), (K['pb'], 40)):
    V.release(b, n)

sp = Seq()
sp('Lspare:')
pro_body(sp)
vS = vXs
vB1 = vXs + 6
L_SX, L_SW, L_SG = 32768, 98304, 7168 + 3 * 8192
sp(f'''
s_sub_u32 s{sT4}, s{sJ}, 28
s_lshl2_add_u32 s{sTB1}, s{sXCD}, s{sT4}
s_lshl2_add_u32 s{sXb}, s{sTB1}, s{sWV}
s_lshl_b32 s{sXb}, s{sXb}, 14
s_lshl_b32 s{sT1}, s{sWV}, 2
v_xor_b32 v{t}, s{sT1}, v{vL}
v_lshlrev_b32 v{vS}, 4, v{t}
v_xor_b32 v{vS+1}, 32, v{vS}
s_waitcnt lgkmcnt(0)
''')
stamp(sp, 'karg')
wl, xl = [], []
for i in range(4):
    s = Seq()
    s(f's_add_u32 s{sWb}, s{sWb}, {32*3584}')
    for r in range(4):
        s(f'buffer_load_dwordx4 v{vS+2+r}, {srd(SW1)}, s{sWb} offen offset:{1024*r} lds', tag='spw', m0=f's_lshl2_add_u32 m0, s{sM}, {L_SW + 4096*i}')
    wl.append(s)
    s = Seq()
    s(f's_add_u32 s{sXk}, s{sXb}, {4096*i}')
    for r in range(4):
        s(f'buffer_load_dwordx4 v{vS + i//2}, {srd(SX)}, s{sXk} offen offset:{1024*r} lds', tag='spx', m0=f's_lshl2_add_u32 m0, s{sM}, {L_SX + 4096*i}')
    xl.append(s)
xs = singles(cat(xl))
sp.add(cat(xs[:15]))
vSa = V.alloc(10, 1)
o = V.alloc(8, 2)
fout = V.alloc(8, 2)
vF1 = V.alloc(32, 2)
vF0 = V.alloc(32, 2)
vF = (vF0, vF1)
vD = V.alloc(16, 2)
vONE = V.alloc(4, 2)
vTOK = t + 7
sp(f'''
s_lshr_b32 s{sT1}, s{sXCD}, 1
s_lshl2_add_u32 s{sT0}, s{sT1}, s{sT4}
s_min_u32 s{sT0}, s{sT0}, 13
s_and_b32 s{sT1}, s{sXCD}, 1
s_mul_i32 s{sT1}, s{sT1}, 14
s_add_u32 s{sCB1}, s{sT0}, s{sT1}
s_lshl_b32 s{sT2}, s{sCB1}, 7
s_lshl_b32 s{sT0}, s{sWV}, 5
s_add_u32 s{sT0}, s{sT0}, s{sT2}
v_lshl_add_u32 v{vB1}, v{vN}, 1, s{sT0}
v_lshlrev_b32 v{t}, 1, v{vG}
v_and_b32 v{t+1}, 7, v{vL}
v_xor_b32 v{t}, v{t}, v{t+1}
v_lshrrev_b32 v{t+1}, 3, v{vL}
v_mul_u32_u24 v{t+1}, 3584, v{t+1}
v_lshl_add_u32 v{vS+2}, v{t}, 4, v{t+1}
v_add_u32 v{vS+3}, {(8*3584-1024)*1}, v{vS+2}
v_add_u32 v{vS+4}, {(8*3584-1024)*2}, v{vS+2}
v_add_u32 v{vS+5}, {(8*3584-1024)*3}, v{vS+2}
s_mul_i32 s{sWb}, s{sWV}, {128*3584}
s_add_u32 s{sWb}, s{sWb}, s{sT2}
s_sub_u32 s{sWb}, s{sWb}, {32*3584}
s_mov_b32 s{sFH}, {FDUMMY}
s_mov_b32 s{sSEL0}, 0x05040100
s_mov_b32 s{sSEL1}, 0x07060302
v_and_b32 v{t}, 7, v{vN}
v_lshrrev_b32 v{t+1}, 3, v{vN}
v_lshl_add_u32 v{t+1}, v{t}, 3, v{t+1}
s_lshl_b32 s{sT0}, s{sWV}, 1
v_add_u32 v{vTOK}, s{sT0}, v{t+1}
v_lshlrev_b32 v{t}, 1, v{t}
v_xor_b32 v{t}, v{t}, v{vG}
v_lshlrev_b32 v{t+1}, 10, v{vTOK}
v_add_u32 v{t+1}, {L_SX}, v{t+1}
v_lshlrev_b32 v{vSa+4}, 4, v{vG}
v_add_u32 v{vSa+4}, {L_SG}, v{vSa+4}
''')
for k in range(4):
    sp(f'v_xor_b32 v{vSa+k}, {4*k}, v{t}')
    sp(f'v_lshl_add_u32 v{vSa+k}, v{vSa+k}, 4, v{t+1}')
    sp(f'v_mov_b32 v{vONE+k}, 0x3f803f80')
sp(f'''
v_lshrrev_b32 v{t}, 2, v{vL}
v_bfe_u32 v{t+1}, v{vL}, 3, 2
v_xor_b32 v{t+1}, s{sWV}, v{t+1}
v_lshlrev_b32 v{t}, 7, v{t}
v_lshl_add_u32 v{t}, v{t+1}, 5, v{t}
v_and_b32 v{t+1}, 3, v{vL}
v_lshl_add_u32 v{t}, v{t+1}, 3, v{t}
v_add_u32 v{vSa+5}, {L_SW}, v{t}
v_and_b32 v{t}, 7, v{vL}
v_lshrrev_b32 v{t+1}, 3, v{vL}
v_lshlrev_b32 v{t+2}, 1, v{t}
v_xor_b32 v{t+2}, v{t+2}, v{t+1}
v_lshlrev_b32 v{t+3}, 13, v{t}
s_lshl_b32 s{sT0}, s{sWV}, 8
s_add_u32 s{sT0}, s{sT0}, {L_SX}
v_lshl_add_u32 v{t+2}, v{t+2}, 4, v{t+3}
v_add_u32 v{vSa+6}, s{sT0}, v{t+2}
v_xor_b32 v{vSa+7}, 128, v{vSa+6}
v_lshlrev_b32 v{t+1}, 15, v{t+1}
v_lshl_add_u32 v{vSa+8}, v{t}, 4, v{t+1}
v_lshrrev_b32 v{t}, 2, v{vN}
v_cmp_eq_u32 vcc, v{t}, v{vG}
v_lshlrev_b32 v{t}, 4, v{vTOK}
v_mov_b32 v{t+4}, 0x7ff00000
v_cndmask_b32 v{vSa+9}, v{t+4}, v{t}, vcc
s_lshl_b32 s{sT0}, s{sTB1}, 10
s_add_u32 s{sHst2}, s{sT0}, {WS_TS}
s_add_u32 s{sHst}, s{sT0}, {WS_TP}
s_lshl_b32 s{sT0}, s{sWV}, 19
s_lshl_b32 s{sKC}, s{sTB1}, 7
s_add_u32 s{sT0}, s{sT0}, s{sKC}
s_add_u32 s{sT4}, s{sT0}, {WS_UT}
''')
assert FU == 0
sa = setup_a()
sp.add(sa.l[:9])
sp.add(cat(xs[15:]))
sp.add(nonce_issue())
sp.add(cat(wl[:2]))
sp.add(bar('spx'))
stamp(sp, 'setup')
ust = []
for h in range(2):
    for c in range(8):
        s = Seq()
        d = fout + 4 * (c % 2)
        for k in range(4):
            s(f'v_perm_b32 v{d+k}, v{vF[h]+4*(2*k+1)+c//2}, v{vF[h]+4*(2*k)+c//2}, s{sSEL0 + c%2}')
        s(f's_add_u32 s{sXk}, s{sT4}, {(64*h + c)*4096}')
        s(f'buffer_store_dwordx4 {vr(d,4)}, v{vSa+8}, {srd(SWS)}, s{sXk} offen sc1', tag='utst')
        ust.append(s)
aX = 64
Gs = Gaps([f'v_mfma_f32_16x16x32_bf16 {vr(vD+4*k,4)}, {a}, {ar(aX+4*s_,4)}, {vr(vD+4*k,4) if s_ else 0}'
           for s_ in range(16) for k, a in enumerate((ar(aX + 4 * s_, 4), vr(vONE, 4)))], cap=8, maxlds=1)
rds = [Seq()(f'ds_read_b128 {ar(aX+4*s_,4)}, v{vSa+s_%4} offset:{256*(s_//4)}') for s_ in range(16)]
rdu = [Seq()(f'ds_read_b128 {vr(vF[h]+4*tk,4)}, v{vSa+6+h} offset:{1024*tk}') for h in range(2) for tk in range(8)]
rest = cat(wl[2:])
rest(f'global_load_ushort v{vB1}, v{vB1}, {ptr(P_B1)}')
rest(f'global_load_lds_dwordx4 v{vL16}, {ptr(P_GW)}', tag='spw', m0=f's_mov_b32 m0, {L_SG}')
param_loads(rest)
sp.add(cat(rds[:5]))
Gs.fill(rds[5:] + rdu, 0, 32)
Gs.fill(singles(rest), 0, 32, step=1)
sp.add(Gs.emit())
sp.add(cat(ust[:2]))
sp.add(nonce_check())
C0 = -2.0 * math.sqrt(2.0 / math.pi) * math.log2(math.e)
C1 = C0 * 0.044715
sp(f'''
v_and_b32 v{t}, 1, v{vL}
v_cmp_eq_u32 vcc, 1, v{t}
v_and_b32 v{t}, 2, v{vL}
v_cmp_eq_u32 s[{sT0}:{sT1}], 2, v{t}
v_cndmask_b32 v{vD}, v{vD}, v{vD+1}, vcc
v_cndmask_b32 v{vD+2}, v{vD+2}, v{vD+3}, vcc
v_cndmask_b32 v{vD}, v{vD}, v{vD+2}, s[{sT0}:{sT1}]
v_mul_f32 v{vD+4}, {f32(1/512)}, v{vD+4}
v_mul_f32 v{vD}, {f32(1/512)}, v{vD}
v_fma_f32 v{vD}, -v{vD+4}, v{vD+4}, v{vD}
v_cvt_pk_bf16_f32 v{o}, -v{vD+4}, -v{vD+4}
v_max_f32 v{vD}, 0, v{vD}
v_add_f32 v{vD}, {f32(1e-5)}, v{vD}
v_and_b32 v{vD+6}, 0xffff0000, v{o}
v_sqrt_f32 v{o+6}, v{vD}
v_rsq_f32 v{vD+1}, v{vD}
v_add_f32 v{vD+6}, v{vD+6}, v{vD+4}
v_mul_f32 v{o+4}, {f32(C0)}, v{vD+1}
v_mul_f32 v{vD+2}, v{vD+1}, v{vD+1}
v_mul_f32 v{o+5}, {f32(C1)}, v{vD+1}
v_mul_f32 v{o+5}, v{o+5}, v{vD+2}
v_cvt_pk_bf16_f32 v{vD+5}, v{o+6}, v{o+6}
v_and_b32 v{vD+5}, 0xffff0000, v{vD+5}
v_sub_f32 v{vD+7}, v{o+6}, v{vD+5}
v_cvt_pk_bf16_f32 v{o+1}, -v{vD+6}, v{vD+5}
v_cvt_pk_bf16_f32 v{o+2}, v{vD+7}, v{vZ}
v_mov_b32 v{o+3}, s{sNON}
v_mov_b32 v{o+7}, s{sNON}
buffer_store_dwordx4 {vr(o,4)}, v{vSa+9}, {srd(SWS)}, s{sHst} offen sc1
buffer_store_dwordx4 {vr(o+4,4)}, v{vSa+9}, {srd(SWS)}, s{sHst2} offen sc1
''')
stamp(sp, 'kgenA')
sp.add(cat(ust[2:5]))
sp.add(bar('spw'))
Gs = Gaps([f'v_mfma_f32_16x16x32_bf16 {vr(vD+12,4)}, {vr(vONE,4)}, {ar(4*s_,4)}, {vr(vD+12,4) if s_ else 0}' for s_ in range(16)], cap=8)
rdw = [Seq()(f'ds_read_b64_tr_b16 {ar(2*s_,2)}, v{vSa+5} offset:{2048*s_}') for s_ in range(32)]
rdw += [Seq()(f'ds_read_b128 {ar(128+4*s_,4)}, v{vSa+4} offset:{64*s_}') for s_ in range(16)]
sp.add(cat(rdw[:16]))
Gs.fill(rdw[16:], 0, 16)
sp.add(Gs.emit())
sp.add(ust[5])
sp(f'''
v_cmp_gt_u32 vcc, 16, v{vL}
v_mov_b32 v{t+2}, 0x7ff00000
s_lshl2_add_u32 s{sT0}, s{sCB1}, s{sWV}
s_lshl_b32 s{sT0}, s{sT0}, 8
s_add_u32 s{sT0}, s{sT0}, {WS_FP}
v_cndmask_b32 v{t}, v{t+2}, v{vL16}, vcc
v_mov_b32 v{o+2}, v{vB1}
v_cvt_pk_bf16_f32 v{o+1}, v{vD+12}, v{vZ}
v_lshlrev_b32 v{t+3}, 16, v{o+1}
v_lshl_or_b32 v{o+1}, v{vB1}, 16, v{o+1}
v_sub_f32 v{t+4}, v{vD+12}, v{t+3}
v_cvt_pk_bf16_f32 v{o}, v{t+3}, v{t+4}
buffer_store_dwordx4 {vr(o,4)}, v{t}, {srd(SWS)}, s{sT0} offen sc1
''')
stamp(sp, 'g1s3')
gate = Seq()
for s_ in range(16):
    gate(f'v_mfma_f32_16x16x32_bf16 {vr(vD+8,4)}, {ar(128+4*s_,4)}, {ar(aX+4*s_,4)}, {vr(vD+8,4) if s_ else 0}')
sp.add(weave(gate, ust[6:8], gaps=[0, 8]))
V.release(vF0, 32)
V.release(vONE, 4)
sp(f'''
s_lshl_b32 s{sT2}, s{sTB1}, 8
s_add_u32 s{sT2}, s{sT2}, {WS_G}
v_lshrrev_b32 v{t+1}, 2, v{vSa+9}
v_mul_f32 v{vD+8}, {f32(-math.log2(math.e))}, v{vD+8}
v_exp_f32 v{vD+8}, v{vD+8}
v_add_f32 v{vD+8}, 1.0, v{vD+8}
v_rcp_f32 v{o+4}, v{vD+8}
buffer_store_dword v{o+4}, v{t+1}, {srd(SWS)}, s{sT2} offen sc1
''')
V.release(vD, 16)
za = V.alloc(32, 2)
K = kgen(True, za)
sp.add(sprinkle(cat([setup_k(), setup_g()]), ust[8:]))
sp.add(sa.l[9:])
sp.add(K['A'])
sp.add(bar('utst'))
sp(f's_cmp_lg_u32 s{sWV}, 0\ns_cbranch_scc1 Lnofu')
flag_set(sp, sKC)
sp('Lnofu:')
stamp(sp, 'g1s7')
sb = setup_b()
sp.add(sb.l[:70])
ks_ = Seq().add(kgen_seq(K).l[len(K['A']):])
sp.add(sprinkle(ks_, [cat(w2_dma(0)), cat(w2_dma(1))], len(ks_) - 30, len(ks_) - 8))
sp.add(bar('*lds'))
sp.add(K['rc'])
sp.add(K['vc'])
sp.add(K['wc'])
sp.add(sprinkle(Seq().add(sb.l[70:]).add(setup_e()), [cat(w2_dma(k)) for k in range(2, 5)]))
sp.add(u_poll_issue())
sp.add(cat(w2_dma(5)))
sp.add(u_dma())
sp.wait('udma')
stamp(sp, 'gelu')
sp('s_branch Ljoin')
for b, n in ((vF1, 32), (vSa, 10), (o, 8), (fout, 8), (za, 32), (K['vb'], 36), (K['pb'], 40),
             (vGA, 9), (vTA, 5), (vRR, 1), (vEa, 3)):
    V.release(b, n)

com = Seq()
com('Ljoin:')
vB2 = V.alloc(8, 2)
vGt = V.alloc(2, 2)
vH0 = V.alloc(56, 2)
vCF = V.alloc(128, 2)
vH = (vH0, vCF)
aC = 224
com.wait('udma')
com(f'ds_write_b32 v{vUz+1}, v{vZ} offset:{L_U + 508}')
com.add(bar('*lds'))
stamp(com, 'cv0')


def cv_reads(bb):
    b = vCF + 64 * (bb & 1)
    r = []
    for a in range(8):
        for hh in range(2):
            r.append(f'ds_read_b64 {vr(b+4*a+2*hh,2)}, v{vFa} offset:{64*(59-8*a-bb) + 8*hh}')
        r.append(f'ds_read_b128 {vr(b+32+4*a,4)}, v{vGa} offset:{512*a + 64*(3-bb)}')
    return r


def cv_mfma(bb):
    b = vCF + 64 * (bb & 1)
    r, first = [], set()
    order = sorted(((a, d) for a in range(8) for d in range(8 - a)), key=lambda x: (max(x), x[0] + x[1], x[0]))
    for a, d in order:
        c = aC + 4 * (a + d)
        cc = '0' if (bb == 0 and a + d not in first) else ar(c, 4)
        first.add(a + d)
        r.append(f'v_mfma_f32_16x16x32_bf16 {ar(c,4)}, {vr(b+4*a,4)}, {vr(b+32+4*d,4)}, {cc}')
    return r


def h_load(L):
    sg, ks = divmod(L, 14)
    return Seq()(f'buffer_load_dwordx4 {vr(vH[sg&1]+4*ks,4)}, v{vL16+ks//4}, {srd(SWS)}, s{sH+sg} offen offset:{1024*(ks%4)} sc1')


hflag = Seq()
hflag.wait('hst?')
flag_set(hflag, sFH)
small = Seq()
small(f'buffer_load_dword v{vGt}, v{vGo}, {srd(SWS)}, s{sGs} offen sc1')
for j in range(4):
    small(f'global_load_dwordx2 {vr(vB2+2*j,2)}, v{vBa}, {ptr(P_B2)} offset:{32*j}')

C = Gaps([x for bb in range(4) for x in cv_mfma(bb)], cap=8, maxlds=1)
need = [0, 1, 4, 9, 16, 24, 30, 34]
LEAD = 8
cr = [(36 * bb + need[a] - LEAD, x) for bb in range(4) for a in range(8) for x in cv_reads(bb)[3 * a: 3 * a + 3]]
nxt_free, prelude, placed = 143, [], []
for dl, x in reversed(cr):
    g = min(dl, nxt_free)
    if g < 0:
        prelude.insert(0, x)
    else:
        placed.append((g, x))
        nxt_free = g - 1
for g, x in placed:
    C.put(g, x)
for bb in range(4):
    for a in range(8):
        if 36 * bb + need[a] > 0:
            C.reserve(36 * bb + need[a] - 1, 4)
CT = 7
window = [(1, 15), (15, 42), (42, 55), (55, 79), (79, 93), (93, 117), (117, 130), (130, 144)]
tail_vm, dma_end = [], 0
for k in range(CT + 1):
    p = C.fill(w2_tr(k), *window[k])
    g0 = max(p[-1] + 7, dma_end + 1)
    if g0 + 9 < 144:
        dma_end = C.fill(w2_dma(k + 6), g0, min(g0 + 12, 144), step=2)[-1]
    else:
        tail_vm += w2_dma(k + 6)
C.fill(singles(small), 1, 20, step=2)
C.put(OPT['hfg'], hflag)
C.put(OPT['hpg'], spoll_issue(7, sFHp))
print('conv over', C.over())
for x in prelude:
    com(x)
com.add(C.emit())
stamp(com, 'cv1')
com.add(cat(spoll_check(7, sFHp)))
com('s_barrier')
hl0 = [h_load(L) for L in range(14)]
red = Seq()
for c in range(8):
    red(f'ds_write_b128 v{vRa}, {ar(aC+4*c,4)} offset:{L_U + 1024*c}')
NH0 = 12 - len(tail_vm)
com.add(sprinkle(red, hl0[:NH0 - 4] + tail_vm))
com.add(bar('*lds'))
q = vCF + 56
red = Seq()
for si in range(2):
    for e in range(2):
        for p in range(2):
            red(f'ds_read_b128 {vr(q+16*si+8*e+4*p,4)}, v{vRa+1+e} offset:{L_U + 2048*si + PART*p}')
com.add(sprinkle(red, hl0[NH0 - 4:NH0]))
for si in range(2):
    b = q + 16 * si
    for e in range(2):
        for k in range(2):
            com(f'v_pk_add_f32 {vr(b+8*e+2*k,2)}, {vr(b+8*e+2*k,2)}, {vr(b+8*e+4+2*k,2)}')
    o = q + 64 + 4 * si
    for k in range(2):
        com(f'v_cvt_pk_bf16_f32 v{o+2*k}, v{b+8+2*k}, v{b+8+2*k+1}')
        com(f'v_cvt_pk_bf16_f32 v{o+2*k+1}, v{b+2*k}, v{b+2*k+1}')
com.add(cat(hl0[NH0:NH0 + 2]))
for si in range(2):
    com(f'buffer_store_dwordx4 {vr(q+64+4*si,4)}, v{vL16}, {srd(SWS)}, s{sAT} offen offset:{1024*si} sc1', tag='atst')
NH0 += 2
stamp(com, 'cv2')

vA2, vP, vAa = vCF + 56, vCF + 88, vCF + 120
vPR = t
aL = vA2 + 16
aflag = Seq()
aflag.wait('atst')
flag_set(aflag, sFC)
adma = [Seq()(f'buffer_load_dwordx4 v{vAd+i}, {srd(SWS)}, s{sAs} offen offset:{1024*i} sc1 lds', tag='adma',
              m0=f's_add_u32 m0, s{sM}, {L_E + 3*16384}') for i in range(2)]


def part_write(sg):
    return [Seq()(f'ds_write_b128 v{vPW}, {vr(vA2+16*(sg&1)+4*j,4)} offset:{16384*sg + 1024*j}', tag=f'pw{sg}') for j in range(4)]


def part_read(sg, dst):
    return [Seq()(f'ds_read_b128 {vr(dst+4*j,4)}, v{vPR+sg} offset:{1024*j}') for j in range(4)]


def unpack(dst, src):
    return [Seq()(f'v_and_b32 v{dst+k}, 0xffff0000, v{src+k//2}' if k % 2 else f'v_lshlrev_b32 v{dst+k}, 16, v{src+k//2}')
            for k in range(16)]


M = Gaps([f'v_mfma_f32_16x16x32_bf16 {vr(vA2+16*(sg&1)+4*j,4)}, {ar(16*ks+4*j,4)}, {vr(vH[sg&1]+4*ks,4)}, '
          f'{vr(vA2+16*(sg&1)+4*j,4) if (ks or sg == 3) else 0}'
          for sg in range(4) for ks in range(14) for j in range(4)], cap=8, maxlds=1)
HD = OPT['hd']
for g in range(3, 223, 4):
    M.reserve(g, 4)
nl = NH0
for step in range(56):
    for k in range(2):
        if nl < 56 and nl <= step + HD:
            M.put(4 * step + 2 * k, h_load(nl))
            nl += 1
M.fill([g for k in range(CT + 1, 14) for g in w2_tr(k)], 0, 46)
M.fill([Seq()(f'v_add_u32 v{vPR+sg}, s{sPR+sg}, v{vL16}') for sg in range(3)] + [Seq()(f'v_sub_f32 v{vGt+1}, 1.0, v{vGt}')]
       + unpack(vP, vB2), 40, 64)
M.put(4 * NH0 + 1, aflag)
for sg in range(3):
    for j, g_ in enumerate(part_write(sg)):
        M.put(56 * (sg + 1) + 5 + 4 * j, g_)
M.put(56 + 29, bar('pw0'))
M.fill(part_read(0, vP + 16), 56 + 30, 56 + 40)
M.fill([Seq()(f'v_add_f32 v{vP+k}, v{vP+k}, v{vP+16+k}') for k in range(16)], 56 + 42, 112 + 4)
M.put(OPT['apg'], spoll_issue(16, sFCp))
M.put(112 + 29, bar('pw1'))
M.fill(spoll_check(16, sFCp) + adma, OPT['acg'], OPT['acg'] + 14)
M.fill(part_read(1, vP + 16), 112 + 30, 112 + 40)
M.fill([Seq()(f'v_add_f32 v{aL+k}, v{vP+k}, v{vP+16+k}') for k in range(16)], 112 + 42, 167)
AF = OPT['afg']
M.put(AF, bar('pw2', 'adma'))
M.fill([Seq()(f'ds_read_b64_tr_b16 {vr(vAa+2*j,2)}, v{vAr} offset:{4096*j}') for j in range(4)] + part_read(2, vP), AF + 1, AF + 7)
M.fill(unpack(vP + 16, vAa) + [Seq()(f'v_mul_f32 v{vP+16+k}, v{vGt}, v{vP+16+k}') for k in range(16)]
       + [Seq()(f'v_fma_f32 v{vP+k}, v{vP+k}, v{vGt+1}, v{vP+16+k}') for k in range(16)], AF + 8, 224)
print('gemm2 over', M.over())
for sg in range(4):
    com.add(M.emit(56 * sg, 56 * sg + 56))
    stamp(com, f'g2s{sg}')
for j in range(4):
    for i in range(0, 4, 2):
        k = 4 * j + i
        com(f'v_pk_fma_f32 {vr(vP+k,2)}, {vr(aL+k,2)}, {vr(vGt,2)}, {vr(vP+k,2)} op_sel:[0,1,0] op_sel_hi:[1,1,1]')
for j in range(4):
    com(f'v_cvt_pk_bf16_f32 v{vAa+2*j}, v{vP+4*j}, v{vP+4*j+1}')
    com(f'v_cvt_pk_bf16_f32 v{vAa+2*j+1}, v{vP+4*j+2}, v{vP+4*j+3}')
for j in range(4):
    com(f'ds_write_b64 v{vOw+j}, {vr(vAa+2*j,2)}')
for r in range(2):
    com(f'ds_read_b128 {vr(vP+16+4*r,4)}, v{vOr} offset:{1024*r}')
for r in range(2):
    com(f'buffer_store_dwordx4 {vr(vP+16+4*r,4)}, v{vOa}, {srd(SOUT)}, s{sO0+r} offen' + ('', ' sc1', ' nt', ' sc0 sc1')[OPT['osc']])
if OPT['stamps']:
    com.wait('*vm')
    stamp(com, 'end')
    com('s_waitcnt lgkmcnt(0)')
    stamp(com, 'x')
    com(f'''
s_waitcnt lgkmcnt(0)
s_memrealtime s[{sSTAMP}:{sSTAMP+1}]
v_writelane_b32 v{vST}, s{sSTAMP}, 63
s_lshl2_add_u32 s{sT0}, s2, s{sWV}
s_lshl_b32 s{sT0}, s{sT0}, 8
s_add_u32 s{sT0}, s{sT0}, {WS_ST}
v_lshlrev_b32 v{t}, 2, v{vL}
buffer_store_dword v{vST}, v{t}, {srd(SWS)}, s{sT0} offen''')
com('Lend:')
com('s_endpgm')

check_order(checks[0][0], main.l, checks[0][1])
check_order(checks[1][0], sp.l, checks[1][1])
for x in (main, sp, com):
    insert_m0(x.l)
if OPT['stamps']:
    p0 = finish_stamps(pro.l, None)
    p1 = finish_stamps(main.l, p0)
    assert p1 == finish_stamps(sp.l, p0)
    finish_stamps(com.l, p1)
    stamp_names.remove('x')
paths = (pro.l + main.l + com.l, pro.l + sp.l + com.l)
for p in paths:
    resolve_waits(p)
for p in paths:
    resolve_waits(p)
for p in paths:
    fix_hazards(p)

ref = open('gated_mix__ssm_conv_s4d__mixer_channel_mlp__prompt.s.ref').read().split('\n')
head = [l for l in ref if l.startswith(';') and '@launch' not in l]
txt = '\n'.join(head) + f'\n; @launch grid=(256,1,1) block=(256,1,1) lds={LDS_SIZE}\n'
txt += f'''.amdgcn_target "amdgcn-amd-amdhsa--gfx950"
.text
.globl {NAME}
.p2align 8
.type {NAME},@function
{NAME}:
'''
txt += render(pro.l) + render(main.l) + render(com.l) + render(sp.l) + ''.join(outline)
txt += f'''Lcode_end:
    s_endpgm
.section .rodata,"a"
.p2align 6
.amdhsa_kernel {NAME}
  .amdhsa_next_free_vgpr 512
  .amdhsa_next_free_sgpr 102
  .amdhsa_accum_offset 256
  .amdhsa_group_segment_fixed_size 0
  .amdhsa_kernarg_size 128
  .amdhsa_user_sgpr_count 2
  .amdhsa_user_sgpr_kernarg_segment_ptr 1
  .amdhsa_system_sgpr_workgroup_id_x 1
.end_amdhsa_kernel
'''
open(sys.argv[1], 'w').write(txt)
if OPT['stamps']:
    open(sys.argv[1] + '.stamps', 'w').write(' '.join(stamp_names))
print('vgpr high water', V.hw, 'instr', [sum(1 for i in p.l if i.kind != 'meta') for p in (pro, main, com, sp)],
      'nops', sum(i.pre for p in (pro, main, com) for i in p.l))
```

```python
import sys, struct, math
from asmlib import *

NAME = 'gated_mix__ssm_conv_s4d__mixer_channel_mlp__prompt_kernel'
OPT = dict(stamps=0, rt=0, rot=1, touch=1, tlb=1, early=12, nk=22, res=50, lst=9, hd=27, osc=0, up=0, ud=3, pcg=88,
           hfg=30, hpg=72, hcg=128, alg=140, acg=182, afg=196, ct=11, nb4=12, asg=-1, skipw=0, c3=1, spf=150, fup=230)
PROBE = None
for a in sys.argv[2:]:
    k, v = a.split('=')
    if k == 'probe':
        PROBE = v
        continue
    assert k in OPT, k
    OPT[k] = int(v)


def f32(x):
    return '0x%08x' % struct.unpack('<I', struct.pack('<f', x))[0]


FU, FH, FC, FDUMMY = 0x0, 0x1000, 0x6000, 0x9000
WS_TP = 0x80000
WS_TS = 0x88000
WS_G = 0x90000
WS_FP = 0x98000
WS_ST = 0xA0000
WS_UT = 0x200000
WS_AT = 0xE00000
WS_H = 0x600000
WS_SIZE = 0x10000000
L_X, L_W = 32768, 98304
PART = 8192
O_T = 4352
L_U = 32768
L_E = 65536
LDS_SIZE = 163840

P_U, P_LA, P_AI, P_CR, P_CI, P_DT, P_DS, P_BX, P_W1, P_B1, P_W2, P_B2, P_GW, P_OUT, P_DBG, P_WS = [4 + 2 * i for i in range(16)]
SX, SW1, SW2, SWS, SOUT = 36, 40, 44, 48, 52
sXCD, sJ, sWV, sBH = 56, 57, 58, 59
sT0, sT1, sT2, sT3 = 60, 61, 62, 63
sNON, sNON1 = 64, 65
sM, sXb, sWb, sKC, sXk, sWk = 66, 67, 68, 69, 70, 71
sHst, sHst2, sFH, sTB1, sCB1, sW2l = 72, 73, 74, 75, 76, 77
sP4, sCNT, sTB2, sNB, sCH, sT4 = 78, 79, 80, 81, 82, 83
sF = 84
sSTAMP = 100
sDT, sDS = 96, 97
sUs, sUm = 4, 5
sSEL0, sSEL1 = 18, 19
sH = 6
sPR = 10
sAT, sFHp, sGs = 14, 15, 17
sAs = 92
sO0, sO1 = 20, 21
srd = lambda b: 's[%d:%d]' % (b, b + 3)
ptr = lambda b: 's[%d:%d]' % (b, b + 1)

V = Regs('v', 0, 256)
vTID, vL, vZ, vST, vN, vG, vNON, vPF = [V.alloc() for _ in range(8)]
vT = V.alloc(8, 4)
vZ2 = V.alloc(4, 4)
vL16 = V.alloc(4, 1)
vPA = V.alloc()
vW2s = V.alloc(4, 1)
vTr = V.alloc(8, 1)
vFa, vGa = V.alloc(), V.alloc()
vUz = V.alloc(2, 1)
vX = V.alloc(16, 1)
vPAR, vPo, vXs, vWs = vX, vX + 6, vX + 8, vX + 12
vRa, vAd, vPW, vAr, vOw, vOr, vOa, vBa, vGo, vAs = vX, vX + 3, vX + 5, vX + 6, vX + 7, vX + 11, vX + 12, vX + 13, vX + 14, vX + 15
vAo = V.alloc()
t = vT

outline = []
stamp_names = []
nlab = [0]
checks = []


def stamp(s, name, lvl=1):
    if PROBE is not None and name == 'karg':
        s(f'v_mov_b32 v{vST}, s{sSTAMP}')
    if PROBE is not None and name in (PROBE.split(':')[0], 'start'):
        s(f's_memrealtime s[{sSTAMP}:{sSTAMP+1}]')
        s.l[-1].kind, s.l[-1].dst = 'salu', []
    if OPT['stamps'] < lvl or (OPT['stamps'] == 4 and lvl in (2, 3)):
        return
    if name not in stamp_names:
        stamp_names.append(name)
    s(f's_mem{"real" if OPT["rt"] else ""}time s[{sSTAMP}:{sSTAMP+1}]', tag='stamp:' + name)
    s.l[-1].kind, s.l[-1].dst = 'salu', []


def finish_stamps(items, prev):
    out = []
    for it in items:
        if it.tag and it.tag.startswith('stamp:'):
            if prev is not None:
                out.append(Ins(f'v_writelane_b32 v{vST}, s{sSTAMP}, {stamp_names.index(prev)}'))
            prev = it.tag[6:]
        out.append(it)
    items[:] = out
    return prev


def retry(s, branch, exit_branch, body):
    k = nlab[0]
    nlab[0] += 1
    s(f'{branch} Lretry{k}')
    s(f'Lback{k}:')
    body = '\n'.join('    ' + l.strip() for l in body.strip().split('\n'))
    outline.append(f'''Lretry{k}:
    s_mov_b32 s{sCNT}, 0x40000
Lloop{k}:
    s_sleep 2
{body}
    {exit_branch} Lback{k}
    s_sub_u32 s{sCNT}, s{sCNT}, 1
    s_cbranch_scc0 Lloop{k}
    s_branch Lback{k}
''')


def cat(groups):
    s = Seq()
    for g in groups:
        s.add(g)
    return s


def chunks(seq, n):
    return [Seq().add(seq.l[i:i + n]) for i in range(0, len(seq), n)]


def bar(*tags):
    s = Seq()
    if tags:
        s.wait(*tags)
    s('s_barrier')
    return s


def nonce_issue():
    return Seq()(f'global_load_dword v{vNON}, v{vZ}, {ptr(P_DBG)} sc1')


def nonce_check():
    s = Seq()
    s(f'v_readfirstlane_b32 s{sNON}, v{vNON}')
    s(f's_cmp_eq_u32 s{sNON}, 0')
    retry(s, 's_cbranch_scc1', 's_cbranch_scc0', f'''
global_load_dword v{vNON}, v{vZ}, {ptr(P_DBG)} sc1
s_waitcnt vmcnt(0)
v_readfirstlane_b32 s{sNON}, v{vNON}
s_nop 3
s_cmp_eq_u32 s{sNON}, 0''')
    s(f's_mov_b32 s{sNON1}, s{sNON}')
    return s


def flag_set(s, soff):
    s(f's_atomic_swap s{sNON}, {ptr(P_WS)}, s{soff}')


def spoll_issue(n, soff):
    return Seq()(f's_load_dwordx{8 if n <= 8 else 16} s[{sF}:{sF + (7 if n <= 8 else 15)}], {ptr(P_WS)}, s{soff} glc')


def spoll_check(n, soff):
    l = []
    for k in range(0, n - 1, 2):
        l.append(f's_xor_b64 s[{sF+k}:{sF+k+1}], s[{sF+k}:{sF+k+1}], s[{sNON}:{sNON1}]')
    if n % 2:
        l.append(f's_xor_b32 s{sF+n-1}, s{sF+n-1}, s{sNON}')
        l.append(f's_or_b32 s{sF}, s{sF}, s{sF+n-1}')
    for k in range(2, n - 1, 2):
        l.append(f's_or_b64 s[{sF}:{sF+1}], s[{sF}:{sF+1}], s[{sF+k}:{sF+k+1}]')
    g = [Seq()(x) for x in l]
    retry(g[-1], 's_cbranch_scc1', 's_cbranch_scc0', '\n'.join([spoll_issue(n, soff).l[0].text, 's_waitcnt lgkmcnt(0)'] + l))
    return g


pro = Seq()
pro('s_cmp_ge_u32 s2, 0x100\ns_cbranch_scc1 Lend')
if OPT['stamps']:
    pro(f'''
s_memrealtime s[{sSTAMP}:{sSTAMP+1}]
s_waitcnt lgkmcnt(0)
s_add_u32 s{sT0}, s{sSTAMP}, 0x500
s_and_b32 s{sT0}, s{sT0}, 0xfffffc00
Lsync:
s_memrealtime s[{sSTAMP}:{sSTAMP+1}]
s_waitcnt lgkmcnt(0)
s_sub_u32 s{sT1}, s{sSTAMP}, s{sT0}
s_cmp_lt_i32 s{sT1}, 0
s_cbranch_scc1 Lsync
v_mov_b32 v{vST}, 0
v_writelane_b32 v{vST}, s{sSTAMP}, 62''')
stamp(pro, 'start')
pro(f'''
s_load_dwordx2 s[{SX}:{SX+1}], s[0:1], 0
s_load_dwordx2 s[{SW1}:{SW1+1}], s[0:1], 64
s_load_dwordx16 s[4:19], s[0:1], 0
s_load_dwordx16 s[20:35], s[0:1], 64
s_getpc_b64 s[{sT2}:{sT3}]
Lpc:
s_cmp_ge_u32 s2, 224
s_cbranch_scc1 Lspare
''')


def pro_body(s):
    s(f'''
v_lshrrev_b32 v{t}, 6, v{vTID}
v_and_b32 v{vL}, 63, v{vTID}
v_readfirstlane_b32 s{sWV}, v{t}
v_mov_b32 v{vZ}, 0
s_and_b32 s{sXCD}, s2, 7
s_lshr_b32 s{sJ}, s2, 3
s_lshl2_add_u32 s{sT0}, s{sJ}, s{sWV}
s_lshl_b32 s{sT0}, s{sT0}, 8
v_and_b32 v{t+1}, 1, v{vL}
v_lshl_add_u32 v{t+1}, v{t+1}, 7, s{sT0}
v_min_u32 v{t+1}, Lcode_end-Lpc-4, v{t+1}
global_load_dword v{vPF}, v{t+1}, s[{sT2}:{sT3}]
s_lshl_b32 s{sT0}, s2, 9
v_lshl_add_u32 v{vPo}, v{vTID}, 1, s{sT0}
s_lshl_b32 s{sCNT}, s2, 2
v_lshlrev_b32 v{vL16}, 4, v{vL}
v_and_b32 v{vN}, 15, v{vL}
v_lshrrev_b32 v{vG}, 4, v{vL}
s_mov_b32 s{SX+2}, 0x200000
s_mov_b32 s{SX+3}, 0x20000
s_mov_b32 s{SW1+2}, {512*3584}
s_mov_b32 s{SW1+3}, 0x20000
s_lshl_b32 s{sM}, s{sWV}, 12
s_lshl_b32 s{sP4}, s{sWV}, 13
s_and_b32 s{sBH}, s{sWV}, 1
''')


def param_loads(s):
    for i, p in enumerate((P_LA, P_AI, P_CR, P_CI)):
        s(f'global_load_ushort v{vPAR+i}, v{vPo}, {ptr(p)}')


def scalar_params(s):
    s(f's_load_dword s{sDT}, {ptr(P_DT)}, s{sCNT}')
    s(f's_load_dword s{sDS}, {ptr(P_DS)}, s{sCNT}')


def setup_a():
    s = Seq()
    for b, p, n in ((SW2, P_W2, 1792 * 1024), (SWS, P_WS, WS_SIZE), (SOUT, P_OUT, 0x200000)):
        s(f'''
s_mov_b64 s[{b}:{b+1}], s[{p}:{p+1}]
s_mov_b32 s{b+2}, {n}
s_mov_b32 s{b+3}, 0x20000''')
    s(f'''
s_lshl2_add_u32 s{sT1}, s2, s{sWV}
s_mul_i32 s{sT1}, s{sT1}, 1792
v_lshlrev_b32 v{t+7}, 7, v{vN}
v_min_u32 v{t+6}, 8, v{vL}
v_lshlrev_b32 v{t+6}, 21, v{t+6}
v_or_b32 v{t+6}, 0x100000, v{t+6}
s_lshl2_add_u32 s{sT2}, s{sJ}, s{sWV}
s_mul_i32 s{sT2}, s{sT2}, {14*1024}
v_min_u32 v{vAo}, 13, v{vL}
v_lshlrev_b32 v{vAo}, 10, v{vAo}''')
    if OPT['c3']:
        s(f'buffer_load_dword v{vPF}, v{vAo}, {srd(SW2)}, s{sT2} offen offset:384')
    if OPT['touch']:
        s(f'buffer_load_dword v{vPF}, v{t+7}, {srd(SW2)}, s{sT1} offen')
    if OPT['tlb']:
        s(f'buffer_load_dword v{vPF}, v{t+6}, {srd(SWS)}, 0 offen sc1')
    return s


vGA = V.alloc(9, 1)
vTA = V.alloc(5, 1)
vRR = V.alloc()
vEa = V.alloc(3, 1)


def setup_k():
    s = Seq()
    s(f'''
v_mul_u32_u24 v{t}, 272, v{vN}
v_lshl_add_u32 v{t}, v{vG}, 4, v{t}
v_add_u32 v{vRR}, s{sP4}, v{t}
s_add_u32 s{sT1}, s{sP4}, {O_T}
v_mov_b32 v{vEa+2}, s{sT1}
v_lshlrev_b32 v{vEa}, 4, v{vTID}
v_bfe_u32 v{t}, v{vL}, 2, 2
v_bfe_u32 v{t+1}, v{vL}, 2, 1
v_lshlrev_b32 v{t}, 13, v{t}
v_lshl_add_u32 v{t}, v{t+1}, 7, v{t}
v_and_b32 v{t+1}, 3, v{vL}
v_lshl_add_u32 v{vEa+1}, v{t+1}, 4, v{t}
v_mov_b32 v{vZ2}, 0
v_mov_b32 v{vZ2+1}, 0
v_mov_b32 v{vZ2+2}, 0
v_mov_b32 v{vZ2+3}, 0
v_lshrrev_b32 v{t}, 1, v{vG}
v_and_b32 v{t+1}, 1, v{vG}
v_mul_u32_u24 v{t+1}, 400, v{t+1}
v_lshl_add_u32 v{t+1}, v{t}, 4, v{t+1}
v_add_u32 v{t+1}, v{t+1}, v{vN}
v_lshl_add_u32 v{vTA}, v{t+1}, 2, s{sT1}
v_add_u32 v{vTA+1}, 800, v{vTA}
v_sub_u32 v{t+1}, 2, v{t}
v_lshlrev_b32 v{t+1}, v{t+1}, v{vN}
v_lshrrev_b32 v{t+2}, 3, v{t+1}
v_and_b32 v{t+1}, 7, v{t+1}
v_mul_u32_u24 v{t+1}, 100, v{t+1}
v_lshl_add_u32 v{t+2}, v{vG}, 3, v{t+2}
v_add3_u32 v{t+1}, v{t+1}, v{t+2}, 32
v_lshl_add_u32 v{vTA+2}, v{t+1}, 2, s{sT1}
v_mul_u32_u24 v{t}, 784, v{t}
v_sub_u32 v{t}, 800, v{t}
v_add_u32 v{vTA+3}, v{vTA+2}, v{t}
v_and_b32 v{t}, 7, v{vN}
v_mul_u32_u24 v{t}, 100, v{t}
v_lshrrev_b32 v{t+1}, 3, v{vN}
v_lshl_add_u32 v{t+1}, v{vG}, 3, v{t+1}
v_add3_u32 v{t}, v{t}, v{t+1}, 64
v_lshl_add_u32 v{vTA+4}, v{t}, 2, s{sT1}
''')
    return s


def setup_g():
    s = Seq()
    s(f'''
v_lshlrev_b32 v{t+4}, 3, v{vTID}
s_movk_i32 s{sT3}, 128
''')
    for i in range(9):
        g = vGA + i
        s(f'v_sub_u32 v{g}, {2047 - i}, v{t+4}')
        if i == 8:
            s(f'v_max_i32 v{t+5}, 0, v{g}')
            s(f'v_cvt_f32_u32 v{t+5}, v{t+5}')
        else:
            s(f'v_cvt_f32_u32 v{t+5}, v{g}')
        s(f'''
v_cvt_pk_bf16_f32 v{t+5}, v{t+5}, v{vZ}
v_add_u32 v{t+5}, {128 - 0x4300}, v{t+5}
v_med3_i32 v{g}, v{t+5}, v{g}, s{sT3}
v_and_b32 v{t+5}, 7, v{g}
v_ashrrev_i32 v{g}, 3, v{g}
v_mul_u32_u24 v{t+5}, 400, v{t+5}
v_lshl_add_u32 v{g}, v{g}, 2, v{t+5}''')
    return s


def setup_b():
    s = Seq()
    s(f'''
s_lshr_b32 s{sT0}, s{sJ}, 3
s_lshl2_add_u32 s{sTB2}, s{sXCD}, s{sT0}
s_and_b32 s{sNB}, s{sJ}, 7
s_mul_i32 s{sW2l}, s{sWV}, {448*1024}
s_lshl_b32 s{sT0}, s{sNB}, 7
s_add_u32 s{sW2l}, s{sW2l}, s{sT0}
s_sub_u32 s{sW2l}, s{sW2l}, 32768
s_lshr_b32 s{sT0}, s{sWV}, 1
s_lshl1_add_u32 s{sCH}, s2, s{sT0}
v_lshlrev_b32 v{t+2}, 1, v{vG}
v_and_b32 v{t+3}, 7, v{vL}
v_xor_b32 v{t+2}, v{t+2}, v{t+3}
v_lshrrev_b32 v{t+3}, 3, v{vL}
v_lshlrev_b32 v{t+3}, 10, v{t+3}
v_lshl_add_u32 v{vW2s}, v{t+2}, 4, v{t+3}
v_add_u32 v{vW2s+1}, {7168*1}, v{vW2s}
v_add_u32 v{vW2s+2}, {7168*2}, v{vW2s}
v_add_u32 v{vW2s+3}, {7168*3}, v{vW2s}
v_lshrrev_b32 v{t}, 1, v{vG}
v_bfe_u32 v{t+2}, v{vL}, 2, 3
v_lshl_add_u32 v{t+2}, v{t}, 4, v{t+2}
v_lshlrev_b32 v{t+2}, 7, v{t+2}
v_and_b32 v{t+3}, 3, v{vL}
v_lshl_add_u32 v{t+2}, v{t+3}, 3, v{t+2}
v_bfe_u32 v{t+3}, v{vL}, 3, 2
v_lshl_add_u32 v{t+2}, v{t+3}, 5, v{t+2}
s_add_u32 s{sT0}, s{sM}, {L_E}
v_add_u32 v{vTr}, s{sT0}, v{t+2}
s_sub_u32 s{sT0}, s{sM}, {L_E - L_U}
''')
    for j in range(4):
        if j:
            s(f'v_xor_b32 v{vTr+j}, {32*j}, v{vTr}')
        s(f'v_add_u32 v{vTr+4+j}, s{sT0}, v{vTr+j}')
    s(f'''
v_and_b32 v{t+4}, 1, v{vL}
v_lshrrev_b32 v{t+5}, 1, v{vN}
s_and_b32 s{sT0}, s{sWV}, 2
s_lshl_b32 s{sT0}, s{sT0}, 13
s_lshl_b32 s{sT2}, s{sBH}, 8
s_sub_u32 s{sT0}, s{sT0}, s{sT2}
s_add_u32 s{sT1}, s{sT0}, {56 + 256}
v_mul_u32_u24 v{vFa}, {PART + 128}, v{t+4}
v_lshl_add_u32 v{vFa}, v{vG}, 4, v{vFa}
v_lshlrev_b32 v{t+6}, 3, v{t+5}
v_sub_u32 v{vFa}, v{vFa}, v{t+6}
v_add_u32 v{vFa}, s{sT1}, v{vFa}
s_add_u32 s{sT1}, s{sT0}, {L_U + 512 - 192}
v_mul_u32_u24 v{vGa}, {PART + 32}, v{t+4}
v_lshl_add_u32 v{vGa}, v{vG}, 4, v{vGa}
v_lshl_add_u32 v{vGa}, v{t+5}, 6, v{vGa}
v_add_u32 v{vGa}, s{sT1}, v{vGa}
v_and_b32 v{vPA}, 31, v{vL}
v_lshlrev_b32 v{vPA}, 7, v{vPA}
s_lshl_b32 s{sT0}, s{sCH}, 12
s_lshl_b32 s{sT1}, s{sBH}, 2
s_sub_u32 s{sT0}, s{sT0}, s{sT1}
s_add_u32 s{sUs}, s{sT0}, {WS_UT}
s_lshl_b32 s{sT1}, s{sBH}, 5
s_add_u32 s{sUm}, s{sP4}, s{sT1}
v_lshl_add_u32 v{vUz}, v{vL}, 3, s{sUm}
s_lshl2_add_u32 s{sT0}, s{sBH}, s{sUm}
v_mov_b32 v{vUz+1}, s{sT0}
v_add_u32 v{vL16+1}, 4096, v{vL16}
v_add_u32 v{vL16+2}, 8192, v{vL16}
v_add_u32 v{vL16+3}, 12288, v{vL16}
''')
    for sg in range(4):
        s(f'''
s_add_u32 s{sT0}, s{sWV}, {sg + 1}
s_and_b32 s{sT0}, s{sT0}, 3
s_lshl2_add_u32 s{sT0}, s{sTB2}, s{sT0}
s_lshl2_add_u32 s{sT0}, s{sT0}, s{sWV}
s_mul_i32 s{sT0}, s{sT0}, {14*1024}
s_add_u32 s{sH+sg}, s{sT0}, {WS_H}''')
    for sg in range(3):
        s(f'''
s_sub_u32 s{sT0}, s{sWV}, {sg + 1}
s_and_b32 s{sT0}, s{sT0}, 3
s_lshl_b32 s{sT0}, s{sT0}, 12
s_add_u32 s{sPR+sg}, s{sT0}, {L_E + 16384*sg}''')
    s(f'''
s_lshl1_add_u32 s{sAT}, s{sCH}, s{sBH}
s_lshl_b32 s{sAT}, s{sAT}, 12
s_add_u32 s{sAT}, s{sAT}, {WS_AT}
s_lshl2_add_u32 s{sT0}, s{sTB2}, s{sWV}
s_lshl_b32 s{sFHp}, s{sT0}, 7
s_add_u32 s{sFHp}, s{sFHp}, {FH}
s_lshl_b32 s{sGs}, s{sT0}, 6
s_add_u32 s{sGs}, s{sGs}, {WS_G}
s_lshl_b32 s{sO0}, s{sT0}, 14
s_lshl_b32 s{sT1}, s{sNB}, 7
s_add_u32 s{sO0}, s{sO0}, s{sT1}
s_add_u32 s{sO1}, s{sO0}, 8192
s_lshl2_add_u32 s{sT0}, s{sNB}, s{sWV}
s_lshl_b32 s{sT0}, s{sT0}, 17
s_lshl_b32 s{sT1}, s{sTB2}, 8
s_add_u32 s{sT0}, s{sT0}, s{sT1}
s_add_u32 s{sAs}, s{sT0}, {WS_AT}
s_add_u32 s{sAs+1}, s{sAs}, 32768
s_add_u32 s{sAs+2}, s{sAs}, 65536
s_add_u32 s{sAs+3}, s{sAs}, 98304
''')
    return s


def setup_e():
    s = Seq()
    a, b, c = t + 4, t + 5, t + 6
    s(f'''
v_xor_b32 v{a}, v{vL}, v{vG}
s_add_u32 s{sT2}, s{sM}, {L_E + 2*16384}
v_lshl_add_u32 v{vRa}, v{a}, 4, s{sT2}
v_and_b32 v{a}, 3, v{vL}
v_bfe_u32 v{b}, v{vL}, 2, 3
v_lshlrev_b32 v{b}, 1, v{b}
v_xor_b32 v{b}, v{b}, v{a}
v_lshl_add_u32 v{b}, v{a}, 4, v{b}
v_lshrrev_b32 v{a}, 5, v{vL}
v_lshl_add_u32 v{b}, v{a}, 6, v{b}
s_and_b32 s{sT2}, s{sWV}, 2
s_lshl2_add_u32 s{sT2}, s{sBH}, s{sT2}
s_lshl_b32 s{sT2}, s{sT2}, 12
s_add_u32 s{sT2}, s{sT2}, {L_E + 2*16384}
v_lshl_add_u32 v{vRa+1}, v{b}, 4, s{sT2}
v_xor_b32 v{vRa+2}, 16, v{vRa+1}
s_add_u32 s{sT2}, s{sM}, {L_E}
v_add_u32 v{vPW}, s{sT2}, v{vL16}
v_bfe_u32 v{a}, v{vL}, 1, 2
v_lshrrev_b32 v{b}, 5, v{vL}
v_xor_b32 v{a}, v{a}, v{b}
v_lshlrev_b32 v{a}, 5, v{a}
v_lshl_add_u32 v{a}, v{vG}, 7, v{a}
v_and_b32 v{b}, 1, v{vL}
v_lshl_add_u32 v{a}, v{b}, 4, v{a}
v_and_b32 v{b}, 8, v{vL}
s_add_u32 s{sT2}, s{sM}, {L_E + 3*16384}
v_add3_u32 v{vAd}, v{a}, v{b}, s{sT2}
v_xor_b32 v{vAd+1}, 64, v{vAd}
v_lshlrev_b32 v{a}, 13, v{vG}
v_lshl_add_u32 v{vAs}, v{vN}, 4, v{a}
v_and_b32 v{b}, 7, v{vL}
v_lshrrev_b32 v{c}, 3, v{vL}
v_lshlrev_b32 v{vAo}, 8, v{c}
v_lshl_add_u32 v{vAo}, v{b}, 4, v{vAo}
v_lshlrev_b32 v{vOa}, 10, v{c}
v_lshl_add_u32 v{vOa}, v{b}, 4, v{vOa}
v_xor_b32 v{a}, v{b}, v{c}
v_lshlrev_b32 v{a}, 4, v{a}
v_lshl_add_u32 v{a}, v{c}, 7, v{a}
s_add_u32 s{sT2}, s{sM}, {L_E + 4*16384}
v_add_u32 v{vOr}, s{sT2}, v{a}
v_lshrrev_b32 v{a}, 1, v{vG}
v_xor_b32 v{a}, v{a}, v{b}
v_lshlrev_b32 v{a}, 4, v{a}
v_lshl_add_u32 v{a}, v{vN}, 7, v{a}
v_and_b32 v{b}, 1, v{vG}
v_lshl_add_u32 v{a}, v{b}, 3, v{a}
v_add_u32 v{vOw}, s{sT2}, v{a}
v_xor_b32 v{vOw+1}, 32, v{vOw}
v_xor_b32 v{vOw+2}, 64, v{vOw}
v_xor_b32 v{vOw+3}, 96, v{vOw}
v_lshrrev_b32 v{a}, 2, v{vL}
v_lshlrev_b32 v{a}, 7, v{a}
v_bfe_u32 v{b}, v{vL}, 3, 2
v_xor_b32 v{b}, s{sWV}, v{b}
v_lshl_add_u32 v{a}, v{b}, 5, v{a}
v_and_b32 v{b}, 3, v{vL}
v_lshl_add_u32 v{a}, v{b}, 3, v{a}
v_add_u32 v{vAr}, {L_E + 3*16384}, v{a}
s_lshl_b32 s{sT2}, s{sNB}, 7
v_lshl_add_u32 v{vBa}, v{vG}, 3, s{sT2}
v_lshlrev_b32 v{vGo}, 2, v{vN}
''')
    return s


def kgen(pkC, za):
    s = Seq()
    live = {}
    vb = V.alloc(36, 2)
    pb = V.alloc(40, 2)
    VV, VP, VZ = Regs('v', vb, vb + 36), Regs('v', pb, pb + 32), Regs('v', za, za + 32)
    pool = lambda nm: VP if nm[0] == 'p' else VZ if (nm[0] == 'z' and nm not in ('z128', 'z256', 'z512')) else VV

    def A(name, n=1):
        live[name] = (pool(name).alloc(n), n)
        return live[name][0]

    def F(*names):
        for nm in names:
            pool(nm).release(*live.pop(nm))

    P, canon, extra = {}, [], {}

    def cut(name):
        nonlocal s
        canon.extend(s.l)
        P[name], s = s, Seq()

    la, ai, cr, ci, ld, dsk = [vPAR + i for i in range(6)]
    LOG2E, LOG2E_LO, LN2 = 0x3fb8aa3b, 0x32a5705f, 0x3f317218
    s(f'''
s_lshr_b32 s{sT0}, s{sWV}, 1
s_lshl_b32 s{sT0}, s{sT0}, 4
s_lshr_b32 s{sDT}, s{sDT}, s{sT0}
s_lshr_b32 s{sDS}, s{sDS}, s{sT0}
v_lshlrev_b32 v{ld}, 16, s{sDT}
v_lshlrev_b32 v{dsk}, 16, s{sDS}
s_mov_b32 s{sT0}, {LOG2E:#x}
v_lshlrev_b32 v{la}, 16, v{la}''')
    for k, x in enumerate((la, ld)):
        s(f'v_mul_f32 v{t+2*k}, s{sT0}, v{x}')
    for k, x in enumerate((la, ld)):
        s(f'v_fma_f32 v{t+2*k+1}, v{x}, s{sT0}, -v{t+2*k}')
    for k, x in enumerate((la, ld)):
        s(f'v_exp_f32 v{t+2*k}, v{t+2*k}')
    for k, x in enumerate((la, ld)):
        s(f'v_fmamk_f32 v{t+2*k+1}, v{x}, {LOG2E_LO:#x}, v{t+2*k+1}')
    for k, x in enumerate((la, ld)):
        s(f'v_mul_f32 v{t+2*k+1}, {LN2:#x}, v{t+2*k+1}')
    for k, x in enumerate((la, ld)):
        s(f'v_fma_f32 v{t+2*k}, v{t+2*k}, v{t+2*k+1}, v{t+2*k}')
    for x in (ai, cr, ci):
        s(f'v_lshlrev_b32 v{x}, 16, v{x}')
    s(f'''
v_cvt_pk_bf16_f32 v{t}, v{t}, v{t+2}
v_and_b32 v{ld}, 0xffff0000, v{t}
v_lshlrev_b32 v{la}, 16, v{t}
''')
    val = lambda nm: live[nm][0]
    A('c0', 2)
    s(f'''
v_mul_f32 v{la}, v{la}, v{ld}
v_mul_f32 v{ai}, v{ai}, v{ld}
v_add_f32 v{ld}, v{ld}, v{ld}
v_mul_f32 v{la}, {f32(-1.4426950408889634)}, v{la}
v_mul_f32 v{ai}, 0.15915494, v{ai}
v_mul_f32 v{val('c0')}, v{cr}, v{ld}
v_mul_f32 v{val('c0')+1}, v{ci}, v{ld}
''')
    zs = (('z8', 8.0), ('z1', 1.0), ('z128', 128.0))
    for k, (nm, p) in enumerate(zs):
        A(nm, 2)
        s(f'v_mul_f32 v{t+2*k}, {f32(p)}, v{la}')
        s(f'v_mul_f32 v{t+2*k+1}, {f32(p)}, v{ai}')
    for k, (nm, p) in enumerate(zs):
        s(f'v_fract_f32 v{t+2*k+1}, v{t+2*k+1}')
        s(f'v_exp_f32 v{t+2*k}, v{t+2*k}')
    for k, (nm, p) in enumerate(zs):
        s(f'v_cos_f32 v{val(nm)}, v{t+2*k+1}')
        s(f'v_sin_f32 v{val(nm)+1}, v{t+2*k+1}')
    for k, (nm, p) in enumerate(zs):
        s(f'v_pk_mul_f32 {vr(val(nm),2)}, {vr(val(nm),2)}, {vr(t+2*k,2)} op_sel_hi:[1,0]')
    fr, acc = 160, 224
    s(f'''
s_lshl_b32 s{sT0}, s{sBH}, 6
s_sub_u32 s{sT0}, 64, s{sT0}
v_cmp_eq_u32 vcc, s{sT0}, v{vL}
v_accvgpr_write_b32 a{acc+1}, 0
v_accvgpr_write_b32 a{acc+2}, 0
v_cndmask_b32 v{dsk}, 0, v{dsk}, vcc
v_accvgpr_write_b32 a{acc+3}, 0
v_accvgpr_write_b32 a{acc}, v{dsk}
''')
    mode = {'pk': True}

    def pack(nm):
        p = A('p' + nm)
        s(f'v_cvt_pk_bf16_f32 v{p}, v{val(nm)}, {"-" if nm[0] == "z" else ""}v{val(nm)+1}')

    def mp(lst):
        for d, a, b in lst:
            A(d, 2)
        if mode['pk']:
            for d, a, b in lst:
                s(f'v_pk_mul_f32 {vr(val(d),2)}, {vr(val(a),2)}, {vr(val(b),2)} op_sel_hi:[1,0]')
            for d, a, b in lst:
                s(f'v_pk_fma_f32 {vr(val(d),2)}, {vr(val(a),2)}, {vr(val(b),2)}, {vr(val(d),2)} op_sel:[1,1,0] op_sel_hi:[0,1,1] neg_lo:[1,0,0]')
        else:
            for d, a, b in lst:
                s(f'v_mul_f32 v{val(d)}, v{val(a)}, v{val(b)}')
                s(f'v_mul_f32 v{val(d)+1}, v{val(a)+1}, v{val(b)}')
                s(f'v_fma_f32 v{val(d)}, -v{val(a)+1}, v{val(b)+1}, v{val(d)}')
                s(f'v_fmac_f32 v{val(d)+1}, v{val(a)}, v{val(b)+1}')
        for d, _, _ in lst:
            if d not in ('z256', 'z512'):
                pack(d)

    s(f'v_mov_b32 v{A("pz0")}, 0x3f80')
    pack('z8')
    pack('c0')
    lo_rounds = [[('z16', 'z8', 'z8'), ('z256', 'z128', 'z128')],
                 [('z24', 'z16', 'z8'), ('z32', 'z16', 'z16')],
                 [('z40', 'z8', 'z32'), ('z48', 'z16', 'z32')],
                 [('z56', 'z24', 'z32'), ('z64', 'z32', 'z32')],
                 [('z72', 'z40', 'z32'), ('z80', 'z48', 'z32')],
                 [('z88', 'z56', 'z32'), ('z96', 'z64', 'z32')],
                 [('z104', 'z72', 'z32'), ('z112', 'z80', 'z32'), ('z120', 'z88', 'z32')]]
    def wr(row, names):
        for k, nm in enumerate(names):
            s(f'ds_write_addtid_b32 v{val("p" + nm)} offset:{272*(row+k)}', m0=f's_mov_b32 m0, s{sP4}')
            extra[id(s.l[-1])] = ([f'row{row+k}'], [])

    def rd(tile):
        for ks in range(4):
            s(f'ds_read_b128 {ar(fr+16*tile+4*ks,4)}, v{vRR} offset:{(O_T if tile == 3 else 0) + 64*ks}')
            extra[id(s.l[-1])] = ([], [f'row{r + (16 if tile == 3 else 0)}' for r in range(16)])

    for r, lst in enumerate(lo_rounds):
        mp(lst + [(f'c{r+1}', f'c{r}', 'z1')])
        F(*{2: ['z8', 'z16'], 3: ['z24'], 4: ['z40', 'z48'], 5: ['z56', 'z64', 'z96']}.get(r, []))
    F('z1', 'z32', 'z72', 'z80', 'z88', 'z104', 'z112', 'z120')
    cut('A')
    wr(0, [f'z{8*b}' for b in range(16)])
    cut('wl')
    rd(0)
    cut('rl')
    mp([(f'c{128+o}', f'c{o}', 'z128') for o in range(4)])
    F('c1', 'c3', 'c129', 'c131')
    mp([(f'c{128+o}', f'c{o}', 'z128') for o in range(4, 8)])
    F('z128', 'c5', 'c7', 'c133', 'c135')
    cut('v0')
    F(*[f'pz{8*b}' for b in range(16)])
    t0 = [f'c{h}' for h in list(range(8)) + list(range(128, 136))]
    wr(0, t0)
    cut('w0')
    rd(1)
    cut('r0')
    mp([(f'c{256+o}', f'c{o}', 'z256') for o in (0, 2, 4, 6)])
    F('c0', 'c2', 'c4', 'c6', 'c258', 'c262')
    mp([(f'c{384+o}', f'c{128+o}', 'z256') for o in (0, 2, 4, 6)] + [('z512', 'z256', 'z256')])
    F('c128', 'c130', 'c132', 'c134', 'c386', 'c390')
    mp([(f'c{h+256}', f'c{h}', 'z256') for h in (256, 260, 384, 388)])
    mp([(f'c{h+512}', f'c{h}', 'z512') for h in (256, 260, 384, 388)])
    F('z256', 'c516', 'c644', 'c256', 'c260', 'c384', 'c388', 'c772', 'c900')
    cut('v1')
    wr(0, [f'c{h}' for h in (256, 258, 260, 262, 384, 386, 388, 390, 512, 516, 640, 644, 768, 772, 896, 900)])
    cut('w1')
    rd(2)
    cut('r1')
    F(*['p' + x for x in t0])
    mp([(f'c{h+512}', f'c{h}', 'z512') for h in (512, 640, 768, 896)])
    F('c512', 'c640', 'c768', 'c896')
    mp([(f'c{h+512}', f'c{h}', 'z512') for h in (1024, 1152, 1280, 1408)])
    F('c1024', 'c1152', 'c1280', 'c1408')
    mp([('c2048', 'c1536', 'z512')])
    cut('v2')
    wr(16, [f'c{1024 + 128*k}' for k in range(9)])
    cut('w2')
    rd(3)
    cut('r2')
    for k in range(3):
        for ks in range(4):
            c = ar(acc + 4 * k, 4)
            s(f'v_mfma_f32_16x16x32_bf16 {c}, {ar(fr+16*(k+1)+4*ks,4)}, {ar(fr+4*ks,4)}, {c if (ks or k == 0) else 0}')
    cut('mf')
    s(f'ds_write_b32 v{vEa+2}, v{vZ} offset:{699*4}')
    for k in range(6):
        o0, o1 = (0, 100) if k < 4 else (4 * (k - 4), 4 * (k - 4) + 2)
        s(f'ds_write2_b32 v{vTA+min(k,4)}, a{acc+2*k}, a{acc+2*k+1} offset0:{o0} offset1:{o1}')
    for k, it in enumerate(s.l):
        extra[id(it)] = ([f'row{25+k}'], [])
    cut('wt')
    gv, ov = vb, pb
    for i in range(9):
        for p in range(2):
            s(f'ds_read2st64_b32 {vr(gv+4*i+2*p,2)}, v{vGA+i} offset0:{17 + 32*p} offset1:{17 + 32*(2+p)}')
    cut('rc')
    for i in range(9):
        if pkC:
            s(f'v_pk_add_f32 {vr(gv+4*i,2)}, {vr(gv+4*i,2)}, {vr(gv+4*i+2,2)}')
        else:
            s(f'v_add_f32 v{gv+4*i}, v{gv+4*i}, v{gv+4*i+2}')
            s(f'v_add_f32 v{gv+4*i+1}, v{gv+4*i+1}, v{gv+4*i+3}')
    for c in range(2):
        for o in (1, 0):
            for k in range(4):
                a = gv + 4 * (2 * k + (1 - o)) + c
                s(f'v_cvt_pk_bf16_f32 v{ov+8*c+4*o+k}, v{a}, v{a+4}')
    cut('vc')
    for c in range(2):
        for o in (1, 0):
            s(f'ds_write_b128 v{vEa}, {vr(ov+8*c+4*o,4)} offset:{(2*c+o)*PART + 128*o}')
    s(f'ds_write_b128 v{vEa+1}, {vr(vZ2,4)} offset:4096')
    s(f'ds_write_b64 v{vUz}, {vr(vZ2,2)} offset:{L_U}')
    cut('wc')
    P['vb'], P['pb'] = vb, pb
    checks.append((canon, extra))
    return P


W2E = [2, 'A', 'B', 3, 0, 4, 1, 5, 2, 3, 0, 4, 1, 5]
W2DEP = {8: 0, 9: 3, 10: 4, 11: 5, 12: 6, 13: 7}


def w2_dma(ks):
    g = []
    e = W2E[ks]
    m0 = f's_add_u32 m0, s{sP4}, {L_U + 4096*"AB".index(e)}' if e in ('A', 'B') else f's_add_u32 m0, s{sM}, {L_E + 16384*e}'
    for i in range(4):
        s = Seq()
        if i == 0:
            if ks in W2DEP:
                s.wait(f'tr{W2DEP[ks]}')
            s(f's_add_u32 s{sW2l}, s{sW2l}, 32768')
        if OPT['skipw'] and ks >= 7:
            s('s_nop 0', tag=f'w2d{ks}')
        else:
            s(f'buffer_load_dwordx4 v{vW2s+i}, {srd(SW2)}, s{sW2l} offen offset:{1024*i} lds', tag=f'w2d{ks}', m0=m0)
        g.append(s)
    return g


def w2_tr(ks):
    g = []
    e = W2E[ks]
    win, off = (1, 4096 * 'AB'.index(e)) if e in ('A', 'B') else (e // 4, 16384 * (e % 4))
    for j in range(4):
        for hh in range(2):
            s = Seq()
            if j == 0 and hh == 0:
                s.wait(f'w2d{ks}')
            s(f'ds_read_b64_tr_b16 {ar(16*ks+4*j+2*hh,2)}, v{vTr+4*win+j} offset:{off + 1024*hh}', tag=f'tr{ks}')
            g.append(s)
    return g


def w2_window():
    return Seq()('\n'.join(f'v_add_u32 v{vTr+4+j}, 65536, v{vTr+j}' for j in range(4)))


def u_poll_issue():
    return Seq()(f'buffer_load_dword v{vPF}, v{vPA}, {srd(SWS)}, 0 offen offset:{FU} sc1')


def u_dma():
    s = Seq()
    s(f'v_cmp_ne_u32 vcc, s{sNON}, v{vPF}')
    retry(s, 's_cbranch_vccnz', 's_cbranch_vccz', f'''
buffer_load_dword v{vPF}, v{vPA}, {srd(SWS)}, 0 offen offset:{FU} sc1
s_waitcnt vmcnt(0)
v_cmp_ne_u32 vcc, s{sNON}, v{vPF}''')
    s.wait('tr2')
    for i in range(4):
        s(f'buffer_load_dwordx4 v{vL16}, {srd(SWS)}, s{sUs} offen offset:{1024*i} sc1 lds', tag='udma', m0=f's_add_u32 m0, s{sUm}, {L_U + 512}')
    return s


main = Seq()
vXr = V.alloc(4, 1)
vWr = V.alloc(2, 1)
vHa = V.alloc()
vACC = V.alloc(64, 2)
vFR = V.alloc(32, 2)
pro_body(main)
main(f'''
s_mul_i32 s{sT0}, s{sJ}, 9363
s_lshr_b32 s{sT0}, s{sT0}, 16
s_mul_i32 s{sT1}, s{sT0}, 7
s_sub_u32 s{sT1}, s{sJ}, s{sT1}
s_lshr_b32 s{sT2}, s{sXCD}, 1
s_and_b32 s{sT3}, s{sXCD}, 1
s_lshl2_add_u32 s{sT0}, s{sT2}, s{sT0}
s_lshl1_add_u32 s{sKC}, s{sT3}, s{sT2}
s_mul_i32 s{sT3}, s{sT3}, 7
s_add_u32 s{sT1}, s{sT1}, s{sT3}
s_lshl_b32 s{sKC}, s{sKC}, 4
s_and_b32 s{sKC}, s{sKC}, {63 if OPT['rot'] else 0}
s_lshr_b32 s{sT3}, s{sWV}, 1
s_lshl1_add_u32 s{sTB1}, s{sT0}, s{sBH}
s_lshl1_add_u32 s{sCB1}, s{sT1}, s{sT3}
s_lshl2_add_u32 s{sXb}, s{sT0}, s{sWV}
s_lshl_b32 s{sXb}, s{sXb}, 15
s_mul_i32 s{sWb}, s{sWV}, {16*3584}
s_lshl_b32 s{sT1}, s{sT1}, 8
s_add_u32 s{sWb}, s{sWb}, s{sT1}
v_and_b32 v{t+1}, 7, v{vL}
v_xor_b32 v{t}, v{vG}, v{t+1}
v_lshrrev_b32 v{t+1}, 3, v{vL}
v_lshlrev_b32 v{t+1}, 10, v{t+1}
v_lshl_add_u32 v{vXs}, v{t}, 4, v{t+1}
v_xor_b32 v{t}, 64, v{vXs}
v_add_u32 v{vXs+1}, 7168, v{t}
v_add_u32 v{vXs+2}, {2*7168}, v{vXs}
v_add_u32 v{vXs+3}, {3*7168}, v{t}
v_lshlrev_b32 v{t}, 2, v{vG}
v_xor_b32 v{t}, v{t}, v{vN}
v_mul_u32_u24 v{t+1}, 3584, v{vG}
v_lshl_add_u32 v{vWs}, v{t}, 4, v{t+1}
''')
for i in range(1, 4):
    main(f'v_add_u32 v{vWs+i}, {(4*3584 - 1024)*i}, v{vWs}')


def stage_loads(st):
    g = []
    for isw in (0, 1):
        for i in range(4):
            s = Seq()
            if i == 0:
                if isw:
                    s(f's_mul_i32 s{sWk}, s{sKC}, {8*3584}')
                    s(f's_add_u32 s{sWk}, s{sWk}, s{sWb}')
                else:
                    s(f's_lshl4_add_u32 s{sXk}, s{sKC}, s{sXb}')
            m0 = f's_add_u32 m0, s{sM}, {(L_W if isw else L_X) + 16384*(st % 4)}'
            if isw:
                s(f'buffer_load_dwordx4 v{vWs+i}, {srd(SW1)}, s{sWk} offen offset:{1024*i} lds', tag=f'st{st}', m0=m0)
            else:
                s(f'buffer_load_dwordx4 v{vXs+i}, {srd(SX)}, s{sXk} offen offset:{1024*i} lds', tag=f'st{st}', m0=m0)
            if isw and i == 1:
                s(f's_add_u32 s{sKC}, s{sKC}, 8')
            if isw and i == 2:
                s(f's_and_b32 s{sKC}, s{sKC}, 63')
            g.append(s)
    return g


LS = [g for st in range(8) for g in stage_loads(st)]
main(f's_or_b32 s{sT0}, s2, s{sWV}')
main('s_waitcnt lgkmcnt(0)')
stamp(main, 'karg')
main(f'''
s_cmp_eq_u32 s{sT0}, 0
s_cbranch_scc1 Lnonce
Lnonce_back:''')
outline.append(f'''Lnonce:
    s_memrealtime s[{sHst}:{sHst2}]
    s_waitcnt lgkmcnt(0)
    s_or_b32 s{sHst}, s{sHst}, 1
    s_atomic_swap s{sHst}, {ptr(P_DBG)}, 0
    s_branch Lnonce_back
''')
param_loads(main)
scalar_params(main)
NE, NK = OPT['early'], OPT['nk']
su = Seq()
su(f'''
v_and_b32 v{t}, 31, v{vL}
v_bfe_u32 v{t+1}, v{vL}, 1, 3
v_lshrrev_b32 v{t+2}, 5, v{vL}
v_xor_b32 v{t+1}, v{t+1}, v{t+2}
s_lshl_b32 s{sT0}, s{sBH}, 13
s_add_u32 s{sT0}, s{sT0}, {L_X}
v_lshl_add_u32 v{t}, v{t}, 7, s{sT0}
''')
for ks in range(4):
    su(f'v_xor_b32 v{t+3}, {2*ks}, v{t+1}')
    su(f'v_lshl_add_u32 v{vXr+ks}, v{t+3}, 4, v{t}')
su(f'''
v_bfe_u32 v{t}, v{vL}, 2, 2
v_lshl_add_u32 v{t+1}, v{t+2}, 3, v{t}
v_lshlrev_b32 v{t+1}, 8, v{t+1}
v_and_b32 v{t+2}, 1, v{vG}
v_lshl_add_u32 v{t+1}, v{t+2}, 5, v{t+1}
v_and_b32 v{t+2}, 3, v{vL}
v_lshl_add_u32 v{t+1}, v{t+2}, 3, v{t+1}
v_add_u32 v{t+1}, {L_W}, v{t+1}
s_and_b32 s{sT0}, s{sWV}, 2
v_xor_b32 v{t}, s{sT0}, v{t}
v_lshl_add_u32 v{vWr}, v{t}, 6, v{t+1}
v_xor_b32 v{t}, 1, v{t}
v_lshl_add_u32 v{vWr+1}, v{t}, 6, v{t+1}
''')
su.add(setup_k())
sa = setup_a()
ntouch = OPT['touch'] + OPT['tlb'] + OPT['c3']
su.add(setup_g())
su.add(sa.l[:len(sa) - ntouch])
main.add(cat(LS[:4]))
main.add(sprinkle(su, LS[4:NE], 0, 12 * (NE - 4)))
stamp(main, 'setup')
K = kgen(False, vACC)
vTP = K['pb'] + 16


def kgen_seq(K):
    s = Seq()
    wl, w0, w1 = chunks(K['wl'], 4), chunks(K['w0'], 4), chunks(K['w1'], 4)
    v0, v1, v2 = K['v0'].l, K['v1'].l, K['v2'].l
    s.add(K['A']).add(wl[0]).add(wl[1]).add(v0[:6]).add(wl[2]).add(wl[3]).add(v0[6:20]).add(K['rl']).add(v0[20:])
    s.add(w0[0]).add(v1[:8]).add(w0[1]).add(v1[8:16]).add(w0[2]).add(v1[16:24]).add(w0[3]).add(v1[24:40])
    s.add(K['r0']).add(v1[40:])
    s.add(w1[0]).add(v2[:8]).add(w1[1]).add(v2[8:16]).add(w1[2]).add(v2[16:24]).add(w1[3]).add(v2[24:])
    s.add(K['w2'])
    mf, wt = K['mf'].l, K['wt'].l
    s.add(mf[:4]).add(K['r1']).add(K['r2']).add(mf[4:]).add(wt)
    return s


ka = kgen_seq(K)
ka.l[30:30] = sa.l[len(sa) - ntouch:]
main.add(sprinkle(ka, LS[NE:NK] + [nonce_issue()], len(ka) - OPT['res'], len(ka) - 7))
stamp(main, 'kgenA')


def g1_reads(st, ks):
    xo = wo = 16384 * (st % 4)
    b = vFR + 16 * (ks & 1)
    r = []
    for k in range(2):
        for hh in range(2):
            r.append(f'ds_read_b64_tr_b16 {vr(b+4*k+2*hh,2)}, v{vWr+k} offset:{wo + ks*4096 + hh*1024}')
        r.append(f'ds_read_b128 {vr(b+8+4*k,4)}, v{vXr+ks} offset:{xo + k*4096}')
    return r


def g1_mfma(st, ks):
    b = vFR + 16 * (ks & 1)
    r = []
    for ft, tt in ((0, 0), (1, 1), (1, 0), (0, 1)):
        a = vACC + 32 * ft + 16 * tt
        c = '0' if (st == 0 and ks == 0) else vr(a, 16)
        r.append(f'v_mfma_f32_32x32x16_bf16 {vr(a,16)}, {vr(b+4*ft,4)}, {vr(b+8+4*tt,4)}, {c}')
    return r


pc_addr = Seq()
pc_addr(f'''
v_and_b32 v{t}, 31, v{vL}
v_lshlrev_b32 v{t}, 4, v{t}
s_lshl_b32 s{sT0}, s{sCB1}, 10
s_add_u32 s{sT0}, s{sT0}, {WS_FP}
s_lshl_b32 s{sT1}, s{sTB1}, 10
s_add_u32 s{sT4}, s{sT1}, {WS_TS}
s_add_u32 s{sT1}, s{sT1}, {WS_TP}''')
pc_ld = [f'buffer_load_dwordx4 {vr(vTP+8*w+4*k,4)}, v{t}, {srd(SWS)}, s{(sT0, sT1, sT4)[w]} offen offset:{512*k} sc1'
         for w in range(3) for k in range(2)]
pc_cmp = [f'v_xor_b32 v{vTP+4*k+3}, s{sNON}, v{vTP+4*k+3}' for k in range(6)]
pc_cmp += [f'v_or3_b32 v{t+1}, v{vTP+3}, v{vTP+7}, v{vTP+11}', f'v_or3_b32 v{t+2}, v{vTP+15}, v{vTP+19}, v{vTP+23}',
           f'v_or_b32 v{t+1}, v{t+1}, v{t+2}', f'v_cmp_ne_u32 vcc, 0, v{t+1}']
pc_chk = [Seq()(x) for x in pc_cmp]
retry(pc_chk[-1], 's_cbranch_vccnz', 's_cbranch_vccz', '\n'.join(pc_ld + ['s_waitcnt vmcnt(0)'] + pc_cmp))
pc_fix = Seq()
pc_fix(f'v_cmp_gt_u32 vcc, 32, v{vL}')
for k in range(2):
    for d in range(3):
        pc_fix(f'v_cndmask_b32 v{vTP+8+4*k+d}, 0, v{vTP+8+4*k+d}, vcc')
hadr = Seq()
hadr(f'''
v_and_b32 v{t+4}, 1, v{vG}
v_mul_u32_u24 v{t+4}, {56*1024}, v{t+4}
v_lshrrev_b32 v{t+5}, 5, v{vL}
v_lshl_add_u32 v{t+4}, v{t+5}, 8, v{t+4}
v_lshl_add_u32 v{vHa}, v{vN}, 4, v{t+4}
s_mul_i32 s{sHst}, s{sTB1}, {4*56}
s_lshl1_add_u32 s{sHst}, s{sCB1}, s{sHst}
s_lshl_b32 s{sHst}, s{sHst}, 10
s_add_u32 s{sHst}, s{sHst}, {WS_H}
s_add_u32 s{sHst2}, s{sHst}, {2*56*1024}
s_mul_i32 s{sT2}, s{sCB1}, 9363
s_lshr_b32 s{sT2}, s{sT2}, 16
s_mul_i32 s{sT3}, s{sT2}, 7
s_sub_u32 s{sT3}, s{sCB1}, s{sT3}
s_lshl2_add_u32 s{sFH}, s{sTB1}, s{sT2}
s_lshl_b32 s{sFH}, s{sFH}, 7
s_lshl2_add_u32 s{sFH}, s{sT3}, s{sFH}
s_add_u32 s{sFH}, s{sFH}, {FH}
''')

TILES = ((0, 0), (1, 0), (0, 1), (1, 1))
G = Gaps([x for st in range(8) for ks in range(4) for x in g1_mfma(st, ks)] +
         [f'v_mfma_f32_32x32x16_bf16 {vr(vACC+32*ft+16*tt,16)}, {vr(vTP+4*ft,4)}, {vr(vTP+8+4*tt,4)}, {vr(vACC+32*ft+16*tt,16)}'
          for ft, tt in TILES], cap=24)
for st in range(8):
    b = 16 * st
    G.put(b + 12, bar(f'rd{st}', *([f'st{st+1}'] if st < 7 else [])))
    for ks in range(4):
        if st == 7 and ks == 3:
            break
        r = g1_reads(st, ks + 1) if ks < 3 else g1_reads(st + 1, 0)
        for k, x in enumerate(r):
            G.put(b + 4 * ks + k // 3, Seq()(x, tag=f'rd{st}' if ks < 3 else None))
        G.reserve(b + 4 * ks + 3, 4)
        if ks != 2:
            G.reserve(b + 4 * ks + 4, 4)
lg = [g for g in range(128) if g % 16 in (14, 15, 2, 3, 6, 7, 10, 11, 13, 5, 9, 1)[:OPT['lst']]]
for i in range(NK, 64):
    while lg[0] < 16 * (i // 8 - 4) + 13:
        lg.pop(0)
    last_ld = lg.pop(0)
    assert last_ld < 16 * (i // 8 - 1) + 12
    G.put(last_ld, LS[i])


for k, g_ in enumerate(singles(K['rc'])):
    G.put(14 + 4 * (k // 2) + k % 2, g_)
p = G.fill(singles(setup_b()) + [nonce_check()] + singles(hadr), 0, 76)
p = G.fill(singles(K['vc']) + singles(pc_addr), max(p[-1], 54), OPT['pcg'])
for k, x in enumerate(pc_ld):
    G.put(OPT['pcg'] + (1, 2, 2, 3, 3, 5)[k], x)
wg = [max(last_ld + 1, 78), 81, 82, 83] + [b + g for b in (80, 96) for g in (14, 15, 18, 19, 22, 23, 26, 27)] + [126, 127, 129, 130]
for k, g_ in enumerate([g for ks in range(6) for g in w2_dma(ks)]):
    G.put(wg[k], g_)
for k, g0 in enumerate((102, 114, 124)):
    for i, g_ in enumerate(w2_tr(k)):
        G.put(g0 + ((0, 0, 1, 1, 4, 4, 5, 5) if k < 2 else (1, 1, 2, 2, 3, 3, 4, 4))[i], g_)
G.put(130, w2_window())
G.fill(pc_chk + singles(pc_fix), 116, 127)
p2 = G.fill(singles(setup_e()), max(p[-1], last_ld) + 1, 131)
print('gemm1 over', G.over(), 'last load gap', last_ld)
main.add(bar('st0'))
for x in g1_reads(0, 0):
    main(x)
for st in range(8):
    main.add(G.emit(16 * st, 16 * st + 16))
    stamp(main, f'g1s{st}', 1 if st in (3, 7) else 2)
main.add(G.emit(128))
q = vFR
gx = {k: [] for k in range(8)}
gx[0] += [cat(w2_dma(6))]
gx[1] += [cat(w2_dma(7))]
gx[2] += [cat(w2_dma(8))]
wc = singles(K['wc'])
gx[6] += wc[:3]
gx[7] += wc[3:]
gx[OPT['up']].insert(0, u_poll_issue())
gx[OPT['ud']].insert(0, u_dma())
assert OPT['ud'] >= 1
for ti, (ft, tt) in enumerate(TILES):
    P = vTP + 16 + 4 * tt
    for hh in range(2):
        a = vACC + 32 * ft + 16 * tt + 8 * hh
        for k in range(4):
            main(f'v_pk_mul_f32 {vr(q+2*k,2)}, {vr(a+2*k,2)}, {vr(a+2*k,2)}')
        for k in range(4):
            main(f'v_pk_fma_f32 {vr(q+2*k,2)}, {vr(q+2*k,2)}, {vr(P,2)}, {vr(P,2)} op_sel:[0,1,0] op_sel_hi:[1,1,0]')
        for k in range(4):
            main(f'v_pk_mul_f32 {vr(q+2*k,2)}, {vr(q+2*k,2)}, {vr(a+2*k,2)}')
        for k in range(8):
            main(f'v_exp_f32 v{q+k}, v{q+k}')
        for k in range(4):
            main(f'v_pk_fma_f32 {vr(q+2*k,2)}, {vr(q+2*k,2)}, {vr(P+2,2)}, {vr(P+2,2)} op_sel_hi:[1,0,0]')
        for k in range(8):
            main(f'v_rcp_f32 v{q+k}, v{q+k}')
        for k in range(4):
            main(f'v_pk_mul_f32 {vr(q+2*k,2)}, {vr(q+2*k,2)}, {vr(a+2*k,2)}')
        for k in range(4):
            main(f'v_cvt_pk_bf16_f32 v{a+k}, v{q+2*k}, v{q+2*k+1}')
        main(f'buffer_store_dwordx4 {vr(a,4)}, v{vHa}, {srd(SWS)}, s{sHst2 if tt else sHst} offen offset:{1024*ft + 512*hh} sc1', tag='hst')
        main.add(cat(gx[2 * ti + hh]))
        stamp(main, f'ge{2*ti+hh}', 3)
stamp(main, 'gelu')
for b, n in ((vXr, 4), (vWr, 2), (vACC, 64), (vFR, 32), (vHa, 1), (K['vb'], 36), (K['pb'], 40)):
    V.release(b, n)

sp = Seq()
sp('Lspare:')
pro_body(sp)
vS = vXs
vB1 = vXs + 6
L_SX, L_SW, L_SG = 32768, 98304, 7168 + 3 * 8192
sp(f'''
s_sub_u32 s{sT4}, s{sJ}, 28
s_lshl2_add_u32 s{sTB1}, s{sXCD}, s{sT4}
s_lshl2_add_u32 s{sXb}, s{sTB1}, s{sWV}
s_lshl_b32 s{sXb}, s{sXb}, 14
s_lshl_b32 s{sT1}, s{sWV}, 2
v_xor_b32 v{t}, s{sT1}, v{vL}
v_lshlrev_b32 v{vS}, 4, v{t}
v_xor_b32 v{vS+1}, 32, v{vS}
s_waitcnt lgkmcnt(0)
''')
stamp(sp, 'karg')
scalar_params(sp)
wl, xl = [], []
for i in range(4):
    s = Seq()
    s(f's_add_u32 s{sWb}, s{sWb}, {32*3584}')
    for r in range(4):
        s(f'buffer_load_dwordx4 v{vS+2+r}, {srd(SW1)}, s{sWb} offen offset:{1024*r} lds', tag='spw', m0=f's_lshl2_add_u32 m0, s{sM}, {L_SW + 4096*i}')
    wl.append(s)
    s = Seq()
    s(f's_add_u32 s{sXk}, s{sXb}, {4096*i}')
    for r in range(4):
        s(f'buffer_load_dwordx4 v{vS + i//2}, {srd(SX)}, s{sXk} offen offset:{1024*r} lds', tag='spx', m0=f's_lshl2_add_u32 m0, s{sM}, {L_SX + 4096*i}')
    xl.append(s)
xs = singles(cat(xl))
sp.add(cat(xs[:15]))
vSa = V.alloc(10, 1)
o = V.alloc(8, 2)
fout = V.alloc(8, 2)
vF1 = V.alloc(32, 2)
vF0 = V.alloc(32, 2)
vF = (vF0, vF1)
vD = V.alloc(16, 2)
vONE = V.alloc(4, 2)
vTOK = t + 7
sp(f'''
s_lshr_b32 s{sT1}, s{sXCD}, 1
s_lshl2_add_u32 s{sT0}, s{sT1}, s{sT4}
s_min_u32 s{sT0}, s{sT0}, 13
s_and_b32 s{sT1}, s{sXCD}, 1
s_mul_i32 s{sT1}, s{sT1}, 14
s_add_u32 s{sCB1}, s{sT0}, s{sT1}
s_lshl_b32 s{sT2}, s{sCB1}, 7
s_lshl_b32 s{sT0}, s{sWV}, 5
s_add_u32 s{sT0}, s{sT0}, s{sT2}
v_lshl_add_u32 v{vB1}, v{vN}, 1, s{sT0}
v_lshlrev_b32 v{t}, 1, v{vG}
v_and_b32 v{t+1}, 7, v{vL}
v_xor_b32 v{t}, v{t}, v{t+1}
v_lshrrev_b32 v{t+1}, 3, v{vL}
v_mul_u32_u24 v{t+1}, 3584, v{t+1}
v_lshl_add_u32 v{vS+2}, v{t}, 4, v{t+1}
v_add_u32 v{vS+3}, {(8*3584-1024)*1}, v{vS+2}
v_add_u32 v{vS+4}, {(8*3584-1024)*2}, v{vS+2}
v_add_u32 v{vS+5}, {(8*3584-1024)*3}, v{vS+2}
s_mul_i32 s{sWb}, s{sWV}, {128*3584}
s_add_u32 s{sWb}, s{sWb}, s{sT2}
s_sub_u32 s{sWb}, s{sWb}, {32*3584}
s_mov_b32 s{sFH}, {FDUMMY}
s_mov_b32 s{sSEL0}, 0x05040100
s_mov_b32 s{sSEL1}, 0x07060302
v_and_b32 v{t}, 7, v{vN}
v_lshrrev_b32 v{t+1}, 3, v{vN}
v_lshl_add_u32 v{t+1}, v{t}, 3, v{t+1}
s_lshl_b32 s{sT0}, s{sWV}, 1
v_add_u32 v{vTOK}, s{sT0}, v{t+1}
v_lshlrev_b32 v{t}, 1, v{t}
v_xor_b32 v{t}, v{t}, v{vG}
v_lshlrev_b32 v{t+1}, 10, v{vTOK}
v_add_u32 v{t+1}, {L_SX}, v{t+1}
v_lshlrev_b32 v{vSa+4}, 4, v{vG}
v_add_u32 v{vSa+4}, {L_SG}, v{vSa+4}
''')
for k in range(4):
    sp(f'v_xor_b32 v{vSa+k}, {4*k}, v{t}')
    sp(f'v_lshl_add_u32 v{vSa+k}, v{vSa+k}, 4, v{t+1}')
    sp(f'v_mov_b32 v{vONE+k}, 0x3f803f80')
sp(f'''
v_lshrrev_b32 v{t}, 2, v{vL}
v_bfe_u32 v{t+1}, v{vL}, 3, 2
v_xor_b32 v{t+1}, s{sWV}, v{t+1}
v_lshlrev_b32 v{t}, 7, v{t}
v_lshl_add_u32 v{t}, v{t+1}, 5, v{t}
v_and_b32 v{t+1}, 3, v{vL}
v_lshl_add_u32 v{t}, v{t+1}, 3, v{t}
v_add_u32 v{vSa+5}, {L_SW}, v{t}
v_and_b32 v{t}, 7, v{vL}
v_lshrrev_b32 v{t+1}, 3, v{vL}
v_lshlrev_b32 v{t+2}, 1, v{t}
v_xor_b32 v{t+2}, v{t+2}, v{t+1}
v_lshlrev_b32 v{t+3}, 13, v{t}
s_lshl_b32 s{sT0}, s{sWV}, 8
s_add_u32 s{sT0}, s{sT0}, {L_SX}
v_lshl_add_u32 v{t+2}, v{t+2}, 4, v{t+3}
v_add_u32 v{vSa+6}, s{sT0}, v{t+2}
v_xor_b32 v{vSa+7}, 128, v{vSa+6}
v_lshlrev_b32 v{t+1}, 15, v{t+1}
v_lshl_add_u32 v{vSa+8}, v{t}, 4, v{t+1}
v_lshrrev_b32 v{t}, 2, v{vN}
v_cmp_eq_u32 vcc, v{t}, v{vG}
v_lshlrev_b32 v{t}, 4, v{vTOK}
v_mov_b32 v{t+4}, 0x7ff00000
v_cndmask_b32 v{vSa+9}, v{t+4}, v{t}, vcc
s_lshl_b32 s{sT0}, s{sTB1}, 10
s_add_u32 s{sHst2}, s{sT0}, {WS_TS}
s_add_u32 s{sHst}, s{sT0}, {WS_TP}
s_lshl_b32 s{sT0}, s{sWV}, 19
s_lshl_b32 s{sKC}, s{sTB1}, 7
s_add_u32 s{sT0}, s{sT0}, s{sKC}
s_add_u32 s{sT4}, s{sT0}, {WS_UT}
''')
assert FU == 0
sa = setup_a()
sp.add(sa.l[:9])
sp.add(cat(xs[15:]))
sp.add(nonce_issue())
sp.add(cat(wl[:2]))
sp.add(bar('spx'))
stamp(sp, 'setup')
ust = []
for h in range(2):
    for c in range(8):
        s = Seq()
        d = fout + 4 * (c % 2)
        for k in range(4):
            s(f'v_perm_b32 v{d+k}, v{vF[h]+4*(2*k+1)+c//2}, v{vF[h]+4*(2*k)+c//2}, s{sSEL0 + c%2}')
        s(f's_add_u32 s{sXk}, s{sT4}, {(64*h + c)*4096}')
        s(f'buffer_store_dwordx4 {vr(d,4)}, v{vSa+8}, {srd(SWS)}, s{sXk} offen sc1', tag='utst')
        ust.append(s)
aX = 64
Gs = Gaps([f'v_mfma_f32_16x16x32_bf16 {vr(vD+4*k,4)}, {a}, {ar(aX+4*s_,4)}, {vr(vD+4*k,4) if s_ else 0}'
           for s_ in range(16) for k, a in enumerate((ar(aX + 4 * s_, 4), vr(vONE, 4)))], cap=8, maxlds=1)
rds = [Seq()(f'ds_read_b128 {ar(aX+4*s_,4)}, v{vSa+s_%4} offset:{256*(s_//4)}') for s_ in range(16)]
rdu = [Seq()(f'ds_read_b128 {vr(vF[h]+4*tk,4)}, v{vSa+6+h} offset:{1024*tk}') for h in range(2) for tk in range(8)]
rest = cat(wl[2:])
rest(f'global_load_ushort v{vB1}, v{vB1}, {ptr(P_B1)}')
rest(f'global_load_lds_dwordx4 v{vL16}, {ptr(P_GW)}', tag='spw', m0=f's_mov_b32 m0, {L_SG}')
param_loads(rest)
sp.add(cat(rds[:5]))
Gs.fill(rds[5:] + rdu, 0, 32)
Gs.fill(singles(rest), 0, 32, step=1)
sp.add(Gs.emit())
sp.add(cat(ust[:2]))
sp.add(nonce_check())
C0 = -2.0 * math.sqrt(2.0 / math.pi) * math.log2(math.e)
C1 = C0 * 0.044715
sp(f'''
v_and_b32 v{t}, 1, v{vL}
v_cmp_eq_u32 vcc, 1, v{t}
v_and_b32 v{t}, 2, v{vL}
v_cmp_eq_u32 s[{sT0}:{sT1}], 2, v{t}
v_cndmask_b32 v{vD}, v{vD}, v{vD+1}, vcc
v_cndmask_b32 v{vD+2}, v{vD+2}, v{vD+3}, vcc
v_cndmask_b32 v{vD}, v{vD}, v{vD+2}, s[{sT0}:{sT1}]
v_mul_f32 v{vD+4}, {f32(1/512)}, v{vD+4}
v_mul_f32 v{vD}, {f32(1/512)}, v{vD}
v_fma_f32 v{vD}, -v{vD+4}, v{vD+4}, v{vD}
v_cvt_pk_bf16_f32 v{o}, -v{vD+4}, -v{vD+4}
v_max_f32 v{vD}, 0, v{vD}
v_add_f32 v{vD}, {f32(1e-5)}, v{vD}
v_and_b32 v{vD+6}, 0xffff0000, v{o}
v_sqrt_f32 v{o+6}, v{vD}
v_rsq_f32 v{vD+1}, v{vD}
v_add_f32 v{vD+6}, v{vD+6}, v{vD+4}
v_mul_f32 v{o+4}, {f32(C0)}, v{vD+1}
v_mul_f32 v{vD+2}, v{vD+1}, v{vD+1}
v_mul_f32 v{o+5}, {f32(C1)}, v{vD+1}
v_mul_f32 v{o+5}, v{o+5}, v{vD+2}
v_cvt_pk_bf16_f32 v{vD+5}, v{o+6}, v{o+6}
v_and_b32 v{vD+5}, 0xffff0000, v{vD+5}
v_sub_f32 v{vD+7}, v{o+6}, v{vD+5}
v_cvt_pk_bf16_f32 v{o+1}, -v{vD+6}, v{vD+5}
v_cvt_pk_bf16_f32 v{o+2}, v{vD+7}, v{vZ}
v_mov_b32 v{o+3}, s{sNON}
v_mov_b32 v{o+7}, s{sNON}
buffer_store_dwordx4 {vr(o,4)}, v{vSa+9}, {srd(SWS)}, s{sHst} offen sc1
buffer_store_dwordx4 {vr(o+4,4)}, v{vSa+9}, {srd(SWS)}, s{sHst2} offen sc1
''')
stamp(sp, 'kgenA')
sp.add(cat(ust[2:5]))
sp.add(bar('spw'))
Gs = Gaps([f'v_mfma_f32_16x16x32_bf16 {vr(vD+12,4)}, {vr(vONE,4)}, {ar(4*s_,4)}, {vr(vD+12,4) if s_ else 0}' for s_ in range(16)], cap=8)
rdw = [Seq()(f'ds_read_b64_tr_b16 {ar(2*s_,2)}, v{vSa+5} offset:{2048*s_}') for s_ in range(32)]
rdw += [Seq()(f'ds_read_b128 {ar(128+4*s_,4)}, v{vSa+4} offset:{64*s_}') for s_ in range(16)]
sp.add(cat(rdw[:16]))
Gs.fill(rdw[16:], 0, 16)
sp.add(Gs.emit())
sp.add(ust[5])
sp(f'''
v_cmp_gt_u32 vcc, 16, v{vL}
v_mov_b32 v{t+2}, 0x7ff00000
s_lshl2_add_u32 s{sT0}, s{sCB1}, s{sWV}
s_lshl_b32 s{sT0}, s{sT0}, 8
s_add_u32 s{sT0}, s{sT0}, {WS_FP}
v_cndmask_b32 v{t}, v{t+2}, v{vL16}, vcc
v_mov_b32 v{o+2}, v{vB1}
v_cvt_pk_bf16_f32 v{o+1}, v{vD+12}, v{vZ}
v_lshlrev_b32 v{t+3}, 16, v{o+1}
v_lshl_or_b32 v{o+1}, v{vB1}, 16, v{o+1}
v_sub_f32 v{t+4}, v{vD+12}, v{t+3}
v_cvt_pk_bf16_f32 v{o}, v{t+3}, v{t+4}
buffer_store_dwordx4 {vr(o,4)}, v{t}, {srd(SWS)}, s{sT0} offen sc1
''')
stamp(sp, 'g1s3')
gate = Seq()
for s_ in range(16):
    gate(f'v_mfma_f32_16x16x32_bf16 {vr(vD+8,4)}, {ar(128+4*s_,4)}, {ar(aX+4*s_,4)}, {vr(vD+8,4) if s_ else 0}')
sp.add(weave(gate, ust[6:8], gaps=[0, 8]))
V.release(vF0, 32)
V.release(vONE, 4)
sp(f'''
s_lshl_b32 s{sT2}, s{sTB1}, 8
s_add_u32 s{sT2}, s{sT2}, {WS_G}
v_lshrrev_b32 v{t+1}, 2, v{vSa+9}
v_mul_f32 v{vD+8}, {f32(-math.log2(math.e))}, v{vD+8}
v_exp_f32 v{vD+8}, v{vD+8}
v_add_f32 v{vD+8}, 1.0, v{vD+8}
v_rcp_f32 v{o+4}, v{vD+8}
buffer_store_dword v{o+4}, v{t+1}, {srd(SWS)}, s{sT2} offen sc1
''')
V.release(vD, 16)
za = V.alloc(32, 2)
K = kgen(True, za)
sb = setup_b()
NB = 1 + max(k for k, it in enumerate(sb.l) if it.kind == 'valu')
pre_ = cat([setup_k(), Seq().add(sb.l[:18]), Seq().add(sa.l[9:len(sa) - ntouch])])
ks_ = kgen_seq(K)
fu = bar('utst')
fu(f'''
s_cmp_lg_u32 s{sWV}, 0
s_cbranch_scc1 Lback_fu
buffer_store_dword v{vNON}, v{vZ}, {srd(SWS)}, s{sKC} offen sc1
Lback_fu:''')
fu.l[-2].vm = False
stamp(fu, 'g1s7')
ks_.l[OPT['fup']:OPT['fup']] = fu.l
body = sprinkle(pre_.add(ks_), ust[8:] + [Seq().add(sa.l[len(sa) - ntouch:])], 0, OPT['spf'])
sp.add(body)
sp.add(sprinkle(setup_g(), [cat(w2_dma(0)), cat(w2_dma(1))]))
sp.add(bar('*lds'))
sp.add(K['rc'])
sp.add(K['vc'])
sp.add(K['wc'].l[:5])
sp.add(sprinkle(Seq().add(sb.l[18:]).add(setup_e()), [cat(w2_dma(k)) for k in range(2, 6)]))
sp.add(u_poll_issue())
sp.add(cat(w2_tr(0) + w2_tr(1) + w2_tr(2)))
sp.add(K['wc'].l[5:])
sp.add(w2_window())
sp.add(cat(w2_dma(6) + w2_dma(7)))
sp.add(u_dma())
sp.add(cat(w2_dma(8)))
sp.wait('udma')
stamp(sp, 'gelu')
sp('s_branch Ljoin')
for b, n in ((vF1, 32), (vSa, 10), (o, 8), (fout, 8), (za, 32), (K['vb'], 36), (K['pb'], 40),
             (vGA, 9), (vTA, 5), (vRR, 1), (vEa, 3)):
    V.release(b, n)

com = Seq()
com('Ljoin:')
vB2 = V.alloc(8, 2)
vGt = V.alloc(2, 2)
vH0 = V.alloc(56, 2)
vCF = V.alloc(128, 2)
vH = (vH0, vCF)
aC = 224
com.wait('udma')
com(f'ds_write_b32 v{vUz+1}, v{vZ} offset:{L_U + 508}')
com.add(bar('*lds'))
stamp(com, 'cv0')


def cv_reads(bb):
    b = vCF + 64 * (bb & 1)
    r = []
    for a in range(8):
        for hh in range(2):
            r.append(f'ds_read_b64 {vr(b+4*a+2*hh,2)}, v{vFa} offset:{64*(59-8*a-bb) + 8*hh}')
        r.append(f'ds_read_b128 {vr(b+32+4*a,4)}, v{vGa} offset:{512*a + 64*(3-bb)}')
    return r


def cv_mfma(bb):
    b = vCF + 64 * (bb & 1)
    r, first = [], set()
    key = (lambda x: (x[0] + x[1], x[0])) if bb == 3 else (lambda x: (max(x), x[0] + x[1], x[0]))
    order = sorted(((a, d) for a in range(8) for d in range(8 - a)), key=key)
    for a, d in order:
        c = aC + 4 * (a + d)
        cc = '0' if (bb == 0 and a + d not in first) else ar(c, 4)
        first.add(a + d)
        r.append(f'v_mfma_f32_16x16x32_bf16 {ar(c,4)}, {vr(b+4*a,4)}, {vr(b+32+4*d,4)}, {cc}')
    return r


def h_load(L):
    sg, ks = divmod(L, 14)
    return Seq()(f'buffer_load_dwordx4 {vr(vH[sg&1]+4*ks,4)}, v{vL16+ks//4}, {srd(SWS)}, s{sH+sg} offen offset:{1024*(ks%4)} sc1')


hflag = Seq()
hflag.wait('hst?')
flag_set(hflag, sFH)
small = Seq()
small(f'buffer_load_dword v{vGt}, v{vGo}, {srd(SWS)}, s{sGs} offen sc1')
for j in range(4):
    small(f'global_load_dwordx2 {vr(vB2+2*j,2)}, v{vBa}, {ptr(P_B2)} offset:{32*j}')

C = Gaps([x for bb in range(4) for x in cv_mfma(bb)], cap=8, maxlds=1)
need = 3 * [[0, 1, 4, 9, 16, 24, 30, 34]] + [[0, 1, 3, 6, 10, 15, 21, 28]]
LEAD = 8
cr = [(36 * bb + need[bb][a] - LEAD, x) for bb in range(4) for a in range(8) for x in cv_reads(bb)[3 * a: 3 * a + 3]]
nxt_free, prelude, placed = 143, [], []
for dl, x in reversed(cr):
    g = min(dl, nxt_free)
    if g < 0:
        prelude.insert(0, x)
    else:
        placed.append((g, x))
        nxt_free = g - 1
for g, x in placed:
    C.put(g, x)
for bb in range(4):
    for a in range(8):
        if 36 * bb + need[bb][a] > 0:
            C.reserve(36 * bb + need[bb][a] - 1, 4)
CT = OPT['ct']
assert CT >= 9
g0, dma_end = 0, 0
dma_at = {k: -46 for k in range(9)}
for k in range(3, CT + 1):
    g0 = max(g0, dma_at[k] + 44)
    p = C.fill(w2_tr(k), g0, min(g0 + 12, 144))
    g0 = p[-1] + 1
    if k == 9:
        tr9 = p[-1]
    if k < 8:
        d0 = max(p[-1] + 6, dma_end + 4)
        dma_end = dma_at[k + 6] = C.fill(w2_dma(k + 6), d0, d0 + 16, step=4)[-1]
print('w2 dma gaps', dma_at, 'last tr', g0)
red = [Seq()(f'ds_write_b128 v{vRa}, {ar(aC+4*c,4)} offset:{16384*(c//4) + 1024*(c%4)}') for c in range(8)]
for c, g in enumerate((129, 131, 133, 135, 137, 139, 142)):
    assert g > tr9 and g >= 108 + (c + 1) * (c + 2) // 2 + 4
    C.put(g, red[c])
C.fill(singles(small), 1, 14, step=2)
C.put(OPT['hfg'], hflag)
C.put(OPT['hpg'], spoll_issue(7, sFHp))
p = C.fill(spoll_check(7, sFHp), OPT['hcg'], OPT['hcg'] + 8)
g0 = max(p[-1], dma_end) + 1
NC = min(14, (144 - g0) // 3)
C.fill([h_load(L) for L in range(NC)], g0, 144, step=3)
print('conv over', C.over())
for x in prelude:
    com(x)
for g in range(0, 144, 12):
    com.add(C.emit(g, g + 12))
    if g < 132:
        stamp(com, f'c{g+12}', 4)
stamp(com, 'cv1')
NH0 = OPT['nb4']
hl1 = [h_load(L) for L in range(NC, NH0)]
q = vCF + 56
for k in range(4):
    com(f'v_mov_b32 v{q+32+4*k+2}, s{sNON}')
    com(f'v_mov_b32 v{q+32+4*k+3}, s{sNON}')
com.add(red[7])
com.add(cat(hl1[:3]))
com.add(bar('*lds'))
rr = Seq()
for si in range(2):
    for e in range(2):
        for p in range(2):
            rr(f'ds_read_b128 {vr(q+16*si+8*e+4*p,4)}, v{vRa+1+e} offset:{2048*si + 4096*p}')
com.add(rr)
com.add(cat(hl1[3:6]))
for si in range(2):
    b = q + 16 * si
    for e in range(2):
        for k in range(2):
            com(f'v_pk_add_f32 {vr(b+8*e+2*k,2)}, {vr(b+8*e+2*k,2)}, {vr(b+8*e+4+2*k,2)}')
    for k in range(2):
        o = q + 32 + 8 * si + 4 * k
        com(f'v_cvt_pk_bf16_f32 v{o}, v{b+8+2*k}, v{b+8+2*k+1}')
        com(f'v_cvt_pk_bf16_f32 v{o+1}, v{b+2*k}, v{b+2*k+1}')
com.add(cat(hl1[6:]))
ast = [Seq()(f'buffer_store_dwordx4 {vr(q+32+8*si+4*k,4)}, v{vAo}, {srd(SWS)}, s{sAT} offen offset:{2048*si + 128*k} sc1', tag='atst')
       for si in range(2) for k in range(2)]
if OPT['asg'] < 0:
    com.add(cat(ast))
stamp(com, 'cv2')

vA2, vP, vAa = vCF + 56, vCF + 88, vCF + 120
vPR = t
aL = vA2 + 16
a_ld = [f'buffer_load_dwordx4 {vr(vH0+4*i,4)}, v{vAs}, {srd(SWS)}, s{sAs+i} offen sc1' for i in range(4)]
a_cmp = [f'v_xor_b32 v{vH0+4*i+2}, s{sNON}, v{vH0+4*i+2}' for i in range(4)]
a_cmp += [f'v_or3_b32 v{vH0+3}, v{vH0+2}, v{vH0+6}, v{vH0+10}', f'v_or_b32 v{vH0+3}, v{vH0+3}, v{vH0+14}',
          f'v_cmp_ne_u32 vcc, 0, v{vH0+3}']
a_chk = [Seq()(x) for x in a_cmp]
retry(a_chk[-1], 's_cbranch_vccnz', 's_cbranch_vccz', '\n'.join(a_ld + ['s_waitcnt vmcnt(0)'] + a_cmp))
a_wr = [Seq()(f'ds_write_b64 v{vAd+i%2}, {vr(vH0+4*i,2)} offset:{512*i}', tag='awr') for i in range(4)]


def part_write(sg):
    return [Seq()(f'ds_write_b128 v{vPW}, {vr(vA2+16*(sg&1)+4*j,4)} offset:{16384*sg + 1024*j}', tag=f'pw{sg}') for j in range(4)]


def part_read(sg, dst):
    return [Seq()(f'ds_read_b128 {vr(dst+4*j,4)}, v{vPR+sg} offset:{1024*j}') for j in range(4)]


def unpack(dst, src):
    return [Seq()(f'v_and_b32 v{dst+k}, 0xffff0000, v{src+k//2}' if k % 2 else f'v_lshlrev_b32 v{dst+k}, 16, v{src+k//2}')
            for k in range(16)]


M = Gaps([f'v_mfma_f32_16x16x32_bf16 {vr(vA2+16*(sg&1)+4*j,4)}, {ar(16*ks+4*j,4)}, {vr(vH[sg&1]+4*ks,4)}, '
          f'{vr(vA2+16*(sg&1)+4*j,4) if (ks or sg == 3) else 0}'
          for sg in range(4) for ks in range(14) for j in range(4)], cap=8, maxlds=1)
HD = OPT['hd']
for g in range(3, 223, 4):
    M.reserve(g, 4)
nl = NH0
for step in range(56):
    for k in range(2 if step % 3 == 0 else 1):
        if nl < 56 and nl <= step + HD:
            M.put(4 * step + 2 * k, h_load(nl))
            nl += 1
if OPT['asg'] >= 0:
    M.fill(ast, OPT['asg'], OPT['asg'] + 12, step=2)
M.fill([g for k in range(CT + 1, 14) for g in w2_tr(k)], 0, 40)
M.fill([Seq()(f'v_add_u32 v{vPR+sg}, s{sPR+sg}, v{vL16}') for sg in range(3)] + [Seq()(f'v_sub_f32 v{vGt+1}, 1.0, v{vGt}')]
       + unpack(vP, vB2), max(30, OPT['asg'] + 14), 110)
assert OPT['alg'] >= 128
M.fill([Seq()(x) for x in a_ld], OPT['alg'], OPT['alg'] + 14, step=3)
for sg in range(3):
    for j, g_ in enumerate(part_write(sg)):
        M.put(56 * (sg + 1) + 5 + (4 if sg == 0 else 3) * j, g_)
M.put(112 + 21, bar('pw1'))
M.fill(part_read(0, vP + 16) + part_read(1, aL), 112 + 22, 112 + 32)
M.fill([Seq()(f'v_add_f32 v{vP+k}, v{vP+k}, v{vP+16+k}') for k in range(16)]
       + [Seq()(f'v_add_f32 v{aL+k}, v{aL+k}, v{vP+k}') for k in range(16)], 112 + 34, 167)
AF = OPT['afg']
p = M.fill(a_chk + a_wr, OPT['acg'], AF - 2)
M.put(AF, bar('pw2', 'awr'))
M.fill([Seq()(f'ds_read_b64_tr_b16 {vr(vAa+2*j,2)}, v{vAr} offset:{4096*j}') for j in range(4)] + part_read(2, vP), AF + 1, AF + 7)
M.fill(unpack(vP + 16, vAa) + [Seq()(f'v_mul_f32 v{vP+16+k}, v{vGt}, v{vP+16+k}') for k in range(16)]
       + [Seq()(f'v_fma_f32 v{vP+k}, v{vP+k}, v{vGt+1}, v{vP+16+k}') for k in range(16)], AF + 8, 224)
print('gemm2 over', M.over())
for sg in range(4):
    for g in range(56 * sg, 56 * sg + 56, 14):
        com.add(M.emit(g, g + 14))
        if (g + 14) % 56:
            stamp(com, f'm{g+14}', 4)
    stamp(com, f'g2s{sg}')
for j in range(4):
    for i in range(0, 4, 2):
        k = 4 * j + i
        com(f'v_pk_fma_f32 {vr(vP+k,2)}, {vr(aL+k,2)}, {vr(vGt,2)}, {vr(vP+k,2)} op_sel:[0,1,0] op_sel_hi:[1,1,1]')
for j in range(4):
    com(f'v_cvt_pk_bf16_f32 v{vAa+2*j}, v{vP+4*j}, v{vP+4*j+1}')
    com(f'v_cvt_pk_bf16_f32 v{vAa+2*j+1}, v{vP+4*j+2}, v{vP+4*j+3}')
for j in range(4):
    com(f'ds_write_b64 v{vOw+j}, {vr(vAa+2*j,2)}')
for r in range(2):
    com(f'ds_read_b128 {vr(vP+16+4*r,4)}, v{vOr} offset:{1024*r}')
for r in range(2):
    com(f'buffer_store_dwordx4 {vr(vP+16+4*r,4)}, v{vOa}, {srd(SOUT)}, s{sO0+r} offen' + ('', ' sc1', ' nt', ' sc0 sc1')[OPT['osc']])
if OPT['stamps']:
    com.wait('*vm')
    stamp(com, 'end')
    com('s_waitcnt lgkmcnt(0)')
    stamp(com, 'x')
    com(f'''
s_waitcnt lgkmcnt(0)
s_memrealtime s[{sSTAMP}:{sSTAMP+1}]
v_writelane_b32 v{vST}, s{sSTAMP}, 63
s_lshl2_add_u32 s{sT0}, s2, s{sWV}
s_lshl_b32 s{sT0}, s{sT0}, 8
s_add_u32 s{sT0}, s{sT0}, {WS_ST}
v_lshlrev_b32 v{t}, 2, v{vL}
buffer_store_dword v{vST}, v{t}, {srd(SWS)}, s{sT0} offen''')
if PROBE is not None:
    com.wait('*vm')
    stamp(com, 'end')
    role = PROBE.split(':')[1]
    com(f'''
s_waitcnt lgkmcnt(0)
s_cmp_ge_u32 s2, 224
{'s_cbranch_scc1 Lend' if role == 'm' else 's_cbranch_scc0 Lend' if role == 's' else 's_nop 0'}
v_readfirstlane_b32 s{sT1}, v{vST}
{dict(n=f's_sub_u32 s{sT0}, s{sSTAMP}, s{sNON}', r=f's_sub_u32 s{sT0}, s{sNON}, s{sT1}', s=f's_sub_u32 s{sT0}, s{sSTAMP}, s{sT1}')[PROBE.split(':')[2]]}
s_max_i32 s{sT0}, s{sT0}, 0
s_min_i32 s{sT0}, s{sT0}, 0x2000
s_lshl_b32 s{sT0}, s{sT0}, 2
s_memrealtime s[{sT2}:{sT3}]
s_waitcnt lgkmcnt(0)
s_add_u32 s{sT0}, s{sT0}, s{sT2}
Lprobe:
s_memrealtime s[{sT2}:{sT3}]
s_waitcnt lgkmcnt(0)
s_sub_u32 s{sT1}, s{sT2}, s{sT0}
s_cmp_lt_i32 s{sT1}, 0
s_cbranch_scc1 Lprobe''')
com('Lend:')
com('s_endpgm')

check_order(checks[0][0], main.l, checks[0][1])
check_order(checks[1][0], sp.l, checks[1][1])
for x in (main, sp, com):
    insert_m0(x.l)
if OPT['stamps']:
    p0 = finish_stamps(pro.l, None)
    p1 = finish_stamps(main.l, p0)
    assert p1 == finish_stamps(sp.l, p0)
    finish_stamps(com.l, p1)
    stamp_names.remove('x')
paths = (pro.l + main.l + com.l, pro.l + sp.l + com.l)
for p in paths:
    resolve_waits(p)
for p in paths:
    resolve_waits(p)
for p in paths:
    fix_hazards(p)

ref = open('gated_mix__ssm_conv_s4d__mixer_channel_mlp__prompt.s.ref').read().split('\n')
head = [l for l in ref if l.startswith(';') and '@launch' not in l]
txt = '\n'.join(head) + f'\n; @launch grid=(256,1,1) block=(256,1,1) lds={LDS_SIZE}\n'
txt += f'''.amdgcn_target "amdgcn-amd-amdhsa--gfx950"
.text
.globl {NAME}
.p2align 8
.type {NAME},@function
{NAME}:
'''
txt += render(pro.l) + render(main.l) + render(com.l) + render(sp.l) + ''.join(outline)
txt += f'''Lcode_end:
    s_endpgm
.section .rodata,"a"
.p2align 6
.amdhsa_kernel {NAME}
  .amdhsa_next_free_vgpr 512
  .amdhsa_next_free_sgpr 102
  .amdhsa_accum_offset 256
  .amdhsa_group_segment_fixed_size 0
  .amdhsa_kernarg_size 128
  .amdhsa_user_sgpr_count 2
  .amdhsa_user_sgpr_kernarg_segment_ptr 1
  .amdhsa_system_sgpr_workgroup_id_x 1
.end_amdhsa_kernel
'''
open(sys.argv[1], 'w').write(txt)
if OPT['stamps']:
    open(sys.argv[1] + '.stamps', 'w').write(' '.join(stamp_names))
print('vgpr high water', V.hw, 'instr', [sum(1 for i in p.l if i.kind != 'meta') for p in (pro, main, com, sp)],
      'nops', sum(i.pre for p in (pro, main, com) for i in p.l))
```

```python
import sys, struct, math
from asmlib import *

NAME = 'gated_mix__ssm_conv_s4d__mixer_channel_mlp__prompt_kernel'
OPT = dict(stamps=0, rt=0, rot=1, touch=1, tlb=0, early=10, nk=21, res=50, lst=9, hd=27, osc=0, up=-1, ud=0, pcg=88,
           hfg=22, hpg=70, hcg=112, alg=140, acg=182, afg=196, ct=11, nb4=8, asg=-1, skipw=0, c3=1, gs0=4, gsp=13, pause=6, hs=3, cu=3, ua=80, nost=0, hsk=0, nochk=0, vp=1)
PROBE = None
for a in sys.argv[2:]:
    k, v = a.split('=')
    if k == 'probe':
        PROBE = v
        continue
    assert k in OPT, k
    OPT[k] = int(v)


def f32(x):
    return '0x%08x' % struct.unpack('<I', struct.pack('<f', x))[0]


FU, FH, FDUMMY = 0x10000, 0x1000, 0x9000
WS_TP = 0x80000
WS_TS = 0x88000
WS_G = 0x90000
WS_FP = 0x98000
WS_ST = 0xA0000
WS_UT = 0x200000
HS = 2 if OPT['hsk'] else 1
WS_AT = 0x400000
WS_H = 0x800000 + (512 if OPT['hsk'] else 0)
WS_SIZE = 0x10000000
L_X, L_W = 32768, 98304
PART = 8192
O_T = 4352
L_U = 32768
L_E = 65536
LDS_SIZE = 163840

P_U, P_LA, P_AI, P_CR, P_CI, P_DT, P_DS, P_BX, P_W1, P_B1, P_W2, P_B2, P_GW, P_OUT, P_DBG, P_WS = [4 + 2 * i for i in range(16)]
SX, SW1, SW2, SWS, SOUT = 36, 40, 44, 48, 52
sXCD, sJ, sWV, sBH = 56, 57, 58, 59
sT0, sT1, sT2, sT3 = 60, 61, 62, 63
sNON, sNON1 = 64, 65
sM, sXb, sWb, sKC, sXk, sWk = 66, 67, 68, 69, 70, 71
sHst, sHst2, sFH, sTB1, sCB1, sW2l = 72, 73, 74, 75, 76, 77
sP4, sCNT, sTB2, sNB, sCH, sT4 = 78, 79, 80, 81, 82, 83
sF = 84
sSTAMP = 100
sUt, sUo, sFU, sFUp = 3, 98, 99, 13
sDT, sDS = 96, 97
sT5 = 91
sUs, sUm = 4, 5
sSEL0, sSEL1 = 18, 19
sH = 6
sPR = 10
sAT, sFHp, sGs = 14, 15, 17
sAs = 92
sO0, sO1 = 20, 21
srd = lambda b: 's[%d:%d]' % (b, b + 3)
ptr = lambda b: 's[%d:%d]' % (b, b + 1)

V = Regs('v', 0, 256)
vTID, vL, vZ, vST, vN, vG, vNON, vPF = [V.alloc() for _ in range(8)]
vT = V.alloc(8, 4)
vZ2 = V.alloc(4, 4)
vL16 = V.alloc(4, 1)
vPA = V.alloc()
vW2s = V.alloc(4, 1)
vTr = V.alloc(8, 1)
vFa, vGa = V.alloc(), V.alloc()
vUz = V.alloc(2, 1)
vX = V.alloc(16, 1)
vPAR, vPo, vXs, vWs = vX, vX + 6, vX + 8, vX + 12
vRa, vAd, vPW, vAr, vOw, vOr, vOa, vBa, vGo, vAs = vX, vX + 3, vX + 5, vX + 6, vX + 7, vX + 11, vX + 12, vX + 13, vX + 14, vX + 15
vAo = V.alloc()
t = vT

outline = []
stamp_names = []
nlab = [0]
checks = []


def stamp(s, name, lvl=1):
    if PROBE is not None and name == 'karg':
        s(f'v_mov_b32 v{vST}, s{sSTAMP}')
    if PROBE is not None and name in (PROBE.split(':')[0], 'start'):
        s(f's_memrealtime s[{sSTAMP}:{sSTAMP+1}]')
        s.l[-1].kind, s.l[-1].dst = 'salu', []
    if OPT['stamps'] < lvl or (OPT['stamps'] == 4 and lvl in (2, 3)):
        return
    if name not in stamp_names:
        stamp_names.append(name)
    s(f's_mem{"real" if OPT["rt"] else ""}time s[{sSTAMP}:{sSTAMP+1}]', tag='stamp:' + name)
    s.l[-1].kind, s.l[-1].dst = 'salu', []


def finish_stamps(items, prev):
    out = []
    for it in items:
        if it.tag and it.tag.startswith('stamp:'):
            if prev is not None:
                out.append(Ins(f'v_writelane_b32 v{vST}, s{sSTAMP}, {stamp_names.index(prev)}'))
            prev = it.tag[6:]
        out.append(it)
    items[:] = out
    return prev


def retry(s, branch, exit_branch, body):
    k = nlab[0]
    nlab[0] += 1
    s(f'{branch} Lretry{k}')
    s(f'Lback{k}:')
    body = '\n'.join('    ' + l.strip() for l in body.strip().split('\n'))
    outline.append(f'''Lretry{k}:
    s_mov_b32 s{sCNT}, 0x40000
Lloop{k}:
    s_sleep 2
{body}
    {exit_branch} Lback{k}
    s_sub_u32 s{sCNT}, s{sCNT}, 1
    s_cbranch_scc0 Lloop{k}
    s_branch Lback{k}
''')


def cat(groups):
    s = Seq()
    for g in groups:
        s.add(g)
    return s


def chunks(seq, n):
    return [Seq().add(seq.l[i:i + n]) for i in range(0, len(seq), n)]


def bar(*tags):
    s = Seq()
    if tags:
        s.wait(*tags)
    s('s_barrier')
    return s


def nonce_issue():
    return Seq()(f'global_load_dword v{vNON}, v{vZ}, {ptr(P_DBG)} sc1')


def nonce_check():
    s = Seq()
    s(f'v_readfirstlane_b32 s{sNON}, v{vNON}')
    s(f's_cmp_eq_u32 s{sNON}, 0')
    retry(s, 's_cbranch_scc1', 's_cbranch_scc0', f'''
global_load_dword v{vNON}, v{vZ}, {ptr(P_DBG)} sc1
s_waitcnt vmcnt(0)
v_readfirstlane_b32 s{sNON}, v{vNON}
s_nop 3
s_cmp_eq_u32 s{sNON}, 0''')
    s(f's_mov_b32 s{sNON1}, s{sNON}')
    return s


def flag_set(s, soff):
    s(f's_atomic_swap s{sNON}, {ptr(P_WS)}, s{soff}')


def spoll_issue(n, soff):
    return Seq()(f's_load_dwordx{8 if n <= 8 else 16} s[{sF}:{sF + (7 if n <= 8 else 15)}], {ptr(P_WS)}, s{soff} glc')


def spoll_check(n, soff):
    l = []
    for k in range(0, n - 1, 2):
        l.append(f's_xor_b64 s[{sF+k}:{sF+k+1}], s[{sF+k}:{sF+k+1}], s[{sNON}:{sNON1}]')
    if n % 2:
        l.append(f's_xor_b32 s{sF+n-1}, s{sF+n-1}, s{sNON}')
        l.append(f's_or_b32 s{sF}, s{sF}, s{sF+n-1}')
    for k in range(2, n - 1, 2):
        l.append(f's_or_b64 s[{sF}:{sF+1}], s[{sF}:{sF+1}], s[{sF+k}:{sF+k+1}]')
    g = [Seq()(x) for x in l]
    retry(g[-1], 's_cbranch_scc1', 's_cbranch_scc0', '\n'.join([spoll_issue(n, soff).l[0].text, 's_waitcnt lgkmcnt(0)'] + l))
    return g


pro = Seq()
pro('s_cmp_ge_u32 s2, 0x100\ns_cbranch_scc1 Lend')
if OPT['stamps']:
    pro(f'''
s_memrealtime s[{sSTAMP}:{sSTAMP+1}]
s_waitcnt lgkmcnt(0)
s_add_u32 s{sT0}, s{sSTAMP}, 0x500
s_and_b32 s{sT0}, s{sT0}, 0xfffffc00
Lsync:
s_memrealtime s[{sSTAMP}:{sSTAMP+1}]
s_waitcnt lgkmcnt(0)
s_sub_u32 s{sT1}, s{sSTAMP}, s{sT0}
s_cmp_lt_i32 s{sT1}, 0
s_cbranch_scc1 Lsync
v_mov_b32 v{vST}, 0
v_writelane_b32 v{vST}, s{sSTAMP}, 62''')
stamp(pro, 'start')
pro(f'''
s_load_dwordx2 s[{SX}:{SX+1}], s[0:1], 0
s_load_dwordx2 s[{SW1}:{SW1+1}], s[0:1], 64
s_load_dwordx16 s[4:19], s[0:1], 0
s_load_dwordx16 s[20:35], s[0:1], 64
s_getpc_b64 s[{sT2}:{sT3}]
Lpc:
s_cmp_ge_u32 s2, 224
s_cbranch_scc1 Lspare
''')


def pro_body(s):
    s(f'''
v_lshrrev_b32 v{t}, 6, v{vTID}
v_and_b32 v{vL}, 63, v{vTID}
v_readfirstlane_b32 s{sWV}, v{t}
v_mov_b32 v{vZ}, 0
s_and_b32 s{sXCD}, s2, 7
s_lshr_b32 s{sJ}, s2, 3
s_lshl2_add_u32 s{sT0}, s{sJ}, s{sWV}
s_mul_i32 s{sT0}, s{sT0}, 384
v_and_b32 v{t+1}, 3, v{vL}
v_lshl_add_u32 v{t+1}, v{t+1}, 7, s{sT0}
v_min_u32 v{t+1}, Lcode_end-Lpc-4, v{t+1}
global_load_dword v{vPF}, v{t+1}, s[{sT2}:{sT3}]
s_lshl_b32 s{sT0}, s2, 9
v_lshl_add_u32 v{vPo}, v{vTID}, 1, s{sT0}
s_lshl_b32 s{sCNT}, s2, 2
v_lshlrev_b32 v{vL16}, 4, v{vL}
v_and_b32 v{vN}, 15, v{vL}
v_lshrrev_b32 v{vG}, 4, v{vL}
s_mov_b32 s{SX+2}, 0x200000
s_mov_b32 s{SX+3}, 0x20000
s_mov_b32 s{SW1+2}, {512*3584}
s_mov_b32 s{SW1+3}, 0x20000
s_lshl_b32 s{sM}, s{sWV}, 12
s_lshl_b32 s{sP4}, s{sWV}, 13
s_lshl_b32 s{sT5}, s{sWV}, 11
s_and_b32 s{sBH}, s{sWV}, 1
s_lshr_b32 s{sT0}, s{sXCD}, 1
s_and_b32 s{sT1}, s{sJ}, 7
s_lshl3_add_u32 s{sUo}, s{sT0}, s{sT1}
s_and_b32 s{sT0}, s{sXCD}, 1
s_lshr_b32 s{sT1}, s{sJ}, 3
s_lshl2_add_u32 s{sFU}, s{sT0}, s{sT1}
s_lshl2_add_u32 s{sUt}, s{sUo}, s{sWV}
s_lshl_b32 s{sUt}, s{sUt}, 7
s_add_u32 s{sUt}, s{sUt}, s{sFU}
s_lshl_b32 s{sUt}, s{sUt}, 7
s_lshl_b32 s{sT0}, s{sWV}, 1
v_and_b32 v{t+2}, 7, v{vL}
v_xor_b32 v{t+2}, s{sT0}, v{t+2}
v_lshrrev_b32 v{t+3}, 3, v{vL}
v_lshlrev_b32 v{t+3}, 10, v{t+3}
v_lshl_add_u32 v{vFa}, v{t+2}, 4, v{t+3}
v_xor_b32 v{vGa}, 16, v{vFa}
v_add_u32 v{vGa}, 7168, v{vGa}
''')


def ut_loads(lds):
    s = Seq()
    for i in range(2):
        s(f'buffer_load_dwordx4 v{(vFa, vGa)[i]}, {srd(SX)}, s{sUt} offen offset:{1024*i} lds', tag='utl',
          m0=f's_add_u32 m0, s{sT5}, {lds}')
    return s


def ut_setup(lds):
    s = Seq()
    s(f'''
v_and_b32 v{t}, 7, v{vL}
v_lshrrev_b32 v{t+1}, 5, v{vL}
v_lshl_add_u32 v{t+1}, s{sWV}, 1, v{t+1}
v_xor_b32 v{t+1}, v{t+1}, v{t}
v_lshlrev_b32 v{t+1}, 4, v{t+1}
v_lshl_add_u32 v{t+1}, v{t}, 10, v{t+1}
v_bfe_u32 v{t+2}, v{vL}, 3, 2
v_lshl_add_u32 v{t+1}, v{t+2}, 2, v{t+1}
v_add_u32 v{vUz}, {lds}, v{t+1}
v_lshrrev_b32 v{t+1}, 3, v{vL}
v_lshlrev_b32 v{t+1}, 13, v{t+1}
v_lshl_add_u32 v{vUz+1}, v{t}, 4, v{t+1}
s_lshl2_add_u32 s{sT0}, s{sFU}, s{sWV}
s_lshl_b32 s{sT0}, s{sT0}, 9
s_lshl_b32 s{sFU}, s{sFU}, 5
s_add_u32 s{sFU}, s{sFU}, s{sUo}
s_lshl_b32 s{sFU}, s{sFU}, 7
s_add_u32 s{sFU}, s{sFU}, {FU}
s_add_u32 s{sUo}, s{sUo}, s{sT0}
s_lshl_b32 s{sUo}, s{sUo}, 7
s_add_u32 s{sUo}, s{sUo}, {WS_UT}
s_add_u32 s{sUt}, s{sUo}, 4096
s_mov_b32 s{sSEL0}, 0x05040100
s_mov_b32 s{sSEL1}, 0x07060302
''')
    return s


def ut_work(r):
    a, b = bar('utl'), Seq()
    for k in range(4):
        a(f'ds_read2_b32 {vr(r+2*k,2)}, v{vUz} offset0:{64*k} offset1:{64*k+32}')
    for c in range(2):
        for k in range(4):
            b(f'v_perm_b32 v{r+8+4*c+k}, v{r+2*k+1}, v{r+2*k}, s{sSEL0+c}')
    for c in range(2):
        b(f's_nop 0' if OPT['nost'] else f'buffer_store_dwordx4 {vr(r+8+4*c,4)}, v{vUz+1}, {srd(SWS)}, s{(sUo, sUt)[c]} offen sc1', tag='utst')
    return a, b


def fu_flag():
    k = nlab[0]
    nlab[0] += 1
    return Seq()(f'''
s_cmp_lg_u32 s{sWV}, 0
s_cbranch_scc1 Lback{k}
s_atomic_swap s{sNON}, {ptr(P_WS)}, s{sFU}
Lback{k}:''')


def param_loads(s):
    for i, p in enumerate((P_LA, P_AI, P_CR, P_CI)):
        s(f'global_load_ushort v{vPAR+i}, v{vPo}, {ptr(p)}')


def scalar_params(s):
    s(f's_load_dword s{sDT}, {ptr(P_DT)}, s{sCNT}')
    s(f's_load_dword s{sDS}, {ptr(P_DS)}, s{sCNT}')


def setup_a():
    s = Seq()
    for b, p, n in ((SW2, P_W2, 1792 * 1024), (SWS, P_WS, WS_SIZE), (SOUT, P_OUT, 0x200000)):
        s(f'''
s_mov_b64 s[{b}:{b+1}], s[{p}:{p+1}]
s_mov_b32 s{b+2}, {n}
s_mov_b32 s{b+3}, 0x20000''')
    s(f'''
s_lshl2_add_u32 s{sT1}, s2, s{sWV}
s_mul_i32 s{sT1}, s{sT1}, 1792
v_lshlrev_b32 v{t+7}, 7, v{vN}
v_min_u32 v{t+6}, 8, v{vL}
v_lshlrev_b32 v{t+6}, 21, v{t+6}
v_or_b32 v{t+6}, 0x100000, v{t+6}
s_lshl2_add_u32 s{sT2}, s{sJ}, s{sWV}
s_mul_i32 s{sT2}, s{sT2}, {14*1024}
v_min_u32 v{vAo}, 13, v{vL}
v_lshlrev_b32 v{vAo}, 10, v{vAo}''')
    if OPT['c3']:
        s(f'buffer_load_dword v{vPF}, v{vAo}, {srd(SW2)}, s{sT2} offen offset:384')
    if OPT['touch']:
        s(f'buffer_load_dword v{vPF}, v{t+7}, {srd(SW2)}, s{sT1} offen')
    if OPT['tlb']:
        s(f'buffer_load_dword v{vPF}, v{t+6}, {srd(SWS)}, 0 offen sc1')
    return s


vGA = V.alloc(9, 1)
vTA = V.alloc(5, 1)
vRR = V.alloc()
vEa = V.alloc(3, 1)


def setup_k():
    s = Seq()
    s(f'''
v_mul_u32_u24 v{t}, 272, v{vN}
v_lshl_add_u32 v{t}, v{vG}, 4, v{t}
v_add_u32 v{vRR}, s{sP4}, v{t}
s_add_u32 s{sT1}, s{sP4}, {O_T}
v_mov_b32 v{vEa+2}, s{sT1}
v_lshlrev_b32 v{vEa}, 4, v{vTID}
v_bfe_u32 v{t}, v{vL}, 2, 2
v_bfe_u32 v{t+1}, v{vL}, 2, 1
v_lshlrev_b32 v{t}, 13, v{t}
v_lshl_add_u32 v{t}, v{t+1}, 7, v{t}
v_and_b32 v{t+1}, 3, v{vL}
v_lshl_add_u32 v{vEa+1}, v{t+1}, 4, v{t}
v_mov_b32 v{vZ2}, 0
v_mov_b32 v{vZ2+1}, 0
v_mov_b32 v{vZ2+2}, 0
v_mov_b32 v{vZ2+3}, 0
v_lshrrev_b32 v{t}, 1, v{vG}
v_and_b32 v{t+1}, 1, v{vG}
v_mul_u32_u24 v{t+1}, 400, v{t+1}
v_lshl_add_u32 v{t+1}, v{t}, 4, v{t+1}
v_add_u32 v{t+1}, v{t+1}, v{vN}
v_lshl_add_u32 v{vTA}, v{t+1}, 2, s{sT1}
v_add_u32 v{vTA+1}, 800, v{vTA}
v_sub_u32 v{t+1}, 2, v{t}
v_lshlrev_b32 v{t+1}, v{t+1}, v{vN}
v_lshrrev_b32 v{t+2}, 3, v{t+1}
v_and_b32 v{t+1}, 7, v{t+1}
v_mul_u32_u24 v{t+1}, 100, v{t+1}
v_lshl_add_u32 v{t+2}, v{vG}, 3, v{t+2}
v_add3_u32 v{t+1}, v{t+1}, v{t+2}, 32
v_lshl_add_u32 v{vTA+2}, v{t+1}, 2, s{sT1}
v_mul_u32_u24 v{t}, 784, v{t}
v_sub_u32 v{t}, 800, v{t}
v_add_u32 v{vTA+3}, v{vTA+2}, v{t}
v_and_b32 v{t}, 7, v{vN}
v_mul_u32_u24 v{t}, 100, v{t}
v_lshrrev_b32 v{t+1}, 3, v{vN}
v_lshl_add_u32 v{t+1}, v{vG}, 3, v{t+1}
v_add3_u32 v{t}, v{t}, v{t+1}, 64
v_lshl_add_u32 v{vTA+4}, v{t}, 2, s{sT1}
''')
    return s


def setup_g():
    s = Seq()
    s(f'''
v_lshlrev_b32 v{t+4}, 3, v{vTID}
s_movk_i32 s{sT3}, 128
''')
    for i in range(9):
        g = vGA + i
        s(f'v_sub_u32 v{g}, {2047 - i}, v{t+4}')
        if i == 8:
            s(f'v_max_i32 v{t+5}, 0, v{g}')
            s(f'v_cvt_f32_u32 v{t+5}, v{t+5}')
        else:
            s(f'v_cvt_f32_u32 v{t+5}, v{g}')
        s(f'''
v_cvt_pk_bf16_f32 v{t+5}, v{t+5}, v{vZ}
v_add_u32 v{t+5}, {128 - 0x4300}, v{t+5}
v_med3_i32 v{g}, v{t+5}, v{g}, s{sT3}
v_and_b32 v{t+5}, 7, v{g}
v_ashrrev_i32 v{g}, 3, v{g}
v_mul_u32_u24 v{t+5}, 400, v{t+5}
v_lshl_add_u32 v{g}, v{g}, 2, v{t+5}''')
    return s


def setup_b():
    s = Seq()
    s(f'''
s_lshr_b32 s{sT0}, s{sJ}, 3
s_lshl2_add_u32 s{sTB2}, s{sXCD}, s{sT0}
s_and_b32 s{sNB}, s{sJ}, 7
s_mul_i32 s{sW2l}, s{sWV}, {448*1024}
s_lshl_b32 s{sT0}, s{sNB}, 7
s_add_u32 s{sW2l}, s{sW2l}, s{sT0}
s_sub_u32 s{sW2l}, s{sW2l}, 32768
s_lshr_b32 s{sT0}, s{sWV}, 1
s_lshl1_add_u32 s{sCH}, s2, s{sT0}
v_lshlrev_b32 v{t+2}, 1, v{vG}
v_and_b32 v{t+3}, 7, v{vL}
v_xor_b32 v{t+2}, v{t+2}, v{t+3}
v_lshrrev_b32 v{t+3}, 3, v{vL}
v_lshlrev_b32 v{t+3}, 10, v{t+3}
v_lshl_add_u32 v{vW2s}, v{t+2}, 4, v{t+3}
v_add_u32 v{vW2s+1}, {7168*1}, v{vW2s}
v_add_u32 v{vW2s+2}, {7168*2}, v{vW2s}
v_add_u32 v{vW2s+3}, {7168*3}, v{vW2s}
v_lshrrev_b32 v{t}, 1, v{vG}
v_bfe_u32 v{t+2}, v{vL}, 2, 3
v_lshl_add_u32 v{t+2}, v{t}, 4, v{t+2}
v_lshlrev_b32 v{t+2}, 7, v{t+2}
v_and_b32 v{t+3}, 3, v{vL}
v_lshl_add_u32 v{t+2}, v{t+3}, 3, v{t+2}
v_bfe_u32 v{t+3}, v{vL}, 3, 2
v_lshl_add_u32 v{t+2}, v{t+3}, 5, v{t+2}
s_add_u32 s{sT0}, s{sM}, {L_E}
v_add_u32 v{vTr}, s{sT0}, v{t+2}
s_sub_u32 s{sT0}, s{sM}, {L_E - L_U}
''')
    for j in range(4):
        if j:
            s(f'v_xor_b32 v{vTr+j}, {32*j}, v{vTr}')
        s(f'v_add_u32 v{vTr+4+j}, s{sT0}, v{vTr+j}')
    s(f'''
v_and_b32 v{t+4}, 1, v{vL}
v_lshrrev_b32 v{t+5}, 1, v{vN}
s_and_b32 s{sT0}, s{sWV}, 2
s_lshl_b32 s{sT0}, s{sT0}, 13
s_lshl_b32 s{sT2}, s{sBH}, 8
s_sub_u32 s{sT0}, s{sT0}, s{sT2}
s_add_u32 s{sT1}, s{sT0}, {56 + 256}
v_mul_u32_u24 v{vFa}, {PART + 128}, v{t+4}
v_lshl_add_u32 v{vFa}, v{vG}, 4, v{vFa}
v_lshlrev_b32 v{t+6}, 3, v{t+5}
v_sub_u32 v{vFa}, v{vFa}, v{t+6}
v_add_u32 v{vFa}, s{sT1}, v{vFa}
s_add_u32 s{sT1}, s{sT0}, {L_U + 512 - 192}
v_mul_u32_u24 v{vGa}, {PART + 32}, v{t+4}
v_lshl_add_u32 v{vGa}, v{vG}, 4, v{vGa}
v_lshl_add_u32 v{vGa}, v{t+5}, 6, v{vGa}
v_add_u32 v{vGa}, s{sT1}, v{vGa}
s_lshr_b32 s{sFUp}, s2, 5
s_lshl_b32 s{sFUp}, s{sFUp}, 12
s_add_u32 s{sFUp}, s{sFUp}, {FU}
v_and_b32 v{vPA}, 31, v{vL}
v_lshlrev_b32 v{vPA}, 7, v{vPA}
s_lshl_b32 s{sT0}, s{sCH}, 12
s_lshl_b32 s{sT1}, s{sBH}, 2
s_sub_u32 s{sT0}, s{sT0}, s{sT1}
s_add_u32 s{sUs}, s{sT0}, {WS_UT}
s_lshl_b32 s{sT1}, s{sBH}, 5
s_add_u32 s{sUm}, s{sP4}, s{sT1}
v_lshl_add_u32 v{vUz}, v{vL}, 3, s{sUm}
s_lshl2_add_u32 s{sT0}, s{sBH}, s{sUm}
v_mov_b32 v{vUz+1}, s{sT0}
s_movk_i32 s{sT1}, 4096
v_and_b32 v{t+6}, {512 if HS == 2 else 0}, v{vL16}
v_add3_u32 v{vL16+1}, v{vL16}, v{t+6}, {0 if HS == 2 else f's{sT1}'}
v_add_u32 v{vL16+2}, 4096, v{vL16+1}
v_add_u32 v{vL16+3}, 8192, v{vL16+1}
''')
    for sg in range(4):
        s(f'''
s_add_u32 s{sT0}, s{sWV}, {sg + 1}
s_and_b32 s{sT0}, s{sT0}, 3
s_lshl2_add_u32 s{sT0}, s{sTB2}, s{sT0}
s_lshl2_add_u32 s{sT0}, s{sT0}, s{sWV}
s_mul_i32 s{sT0}, s{sT0}, {14*1024*HS}
s_add_u32 s{sH+sg}, s{sT0}, {WS_H}''')
    for sg in range(3):
        s(f'''
s_sub_u32 s{sT0}, s{sWV}, {sg + 1}
s_and_b32 s{sT0}, s{sT0}, 3
s_lshl_b32 s{sT0}, s{sT0}, 12
s_add_u32 s{sPR+sg}, s{sT0}, {L_E + 16384*sg}''')
    s(f'''
s_lshl1_add_u32 s{sAT}, s{sCH}, s{sBH}
s_lshl_b32 s{sAT}, s{sAT}, 12
s_add_u32 s{sAT}, s{sAT}, {WS_AT}
s_lshl2_add_u32 s{sT0}, s{sTB2}, s{sWV}
s_lshl_b32 s{sFHp}, s{sT0}, 7
s_add_u32 s{sFHp}, s{sFHp}, {FH}
s_lshl_b32 s{sGs}, s{sT0}, 7
s_add_u32 s{sGs}, s{sGs}, {WS_G}
s_lshl_b32 s{sO0}, s{sT0}, 14
s_lshl_b32 s{sT1}, s{sNB}, 7
s_add_u32 s{sO0}, s{sO0}, s{sT1}
s_add_u32 s{sO1}, s{sO0}, 8192
s_lshl2_add_u32 s{sT0}, s{sNB}, s{sWV}
s_lshl_b32 s{sT0}, s{sT0}, 17
s_lshl_b32 s{sT1}, s{sTB2}, 8
s_add_u32 s{sT0}, s{sT0}, s{sT1}
s_add_u32 s{sAs}, s{sT0}, {WS_AT}
s_add_u32 s{sAs+1}, s{sAs}, 32768
s_add_u32 s{sAs+2}, s{sAs}, 65536
s_add_u32 s{sAs+3}, s{sAs}, 98304
''')
    return s


def setup_e():
    s = Seq()
    a, b, c = t + 4, t + 5, t + 6
    s(f'''
v_xor_b32 v{a}, v{vL}, v{vG}
s_add_u32 s{sT2}, s{sM}, {L_E + 2*16384}
v_lshl_add_u32 v{vRa}, v{a}, 4, s{sT2}
v_and_b32 v{a}, 3, v{vL}
v_bfe_u32 v{b}, v{vL}, 2, 3
v_lshlrev_b32 v{b}, 1, v{b}
v_xor_b32 v{b}, v{b}, v{a}
v_lshl_add_u32 v{b}, v{a}, 4, v{b}
v_lshrrev_b32 v{a}, 5, v{vL}
v_lshl_add_u32 v{b}, v{a}, 6, v{b}
s_and_b32 s{sT2}, s{sWV}, 2
s_lshl2_add_u32 s{sT2}, s{sBH}, s{sT2}
s_lshl_b32 s{sT2}, s{sT2}, 12
s_add_u32 s{sT2}, s{sT2}, {L_E + 2*16384}
v_lshl_add_u32 v{vRa+1}, v{b}, 4, s{sT2}
v_xor_b32 v{vRa+2}, 16, v{vRa+1}
s_add_u32 s{sT2}, s{sM}, {L_E}
v_add_u32 v{vPW}, s{sT2}, v{vL16}
v_bfe_u32 v{a}, v{vL}, 1, 2
v_lshrrev_b32 v{b}, 5, v{vL}
v_xor_b32 v{a}, v{a}, v{b}
v_lshlrev_b32 v{a}, 5, v{a}
v_lshl_add_u32 v{a}, v{vG}, 7, v{a}
v_and_b32 v{b}, 1, v{vL}
v_lshl_add_u32 v{a}, v{b}, 4, v{a}
v_and_b32 v{b}, 8, v{vL}
s_add_u32 s{sT2}, s{sM}, {L_E + 3*16384}
v_add3_u32 v{vAd}, v{a}, v{b}, s{sT2}
v_xor_b32 v{vAd+1}, 64, v{vAd}
v_lshlrev_b32 v{a}, 13, v{vG}
v_lshl_add_u32 v{vAs}, v{vN}, 4, v{a}
v_and_b32 v{b}, 7, v{vL}
v_lshrrev_b32 v{c}, 3, v{vL}
v_lshlrev_b32 v{vAo}, 8, v{c}
v_lshl_add_u32 v{vAo}, v{b}, 4, v{vAo}
v_lshlrev_b32 v{vOa}, 10, v{c}
v_lshl_add_u32 v{vOa}, v{b}, 4, v{vOa}
v_xor_b32 v{a}, v{b}, v{c}
v_lshlrev_b32 v{a}, 4, v{a}
v_lshl_add_u32 v{a}, v{c}, 7, v{a}
s_add_u32 s{sT2}, s{sM}, {L_E + 4*16384}
v_add_u32 v{vOr}, s{sT2}, v{a}
v_lshrrev_b32 v{a}, 1, v{vG}
v_xor_b32 v{a}, v{a}, v{b}
v_lshlrev_b32 v{a}, 4, v{a}
v_lshl_add_u32 v{a}, v{vN}, 7, v{a}
v_and_b32 v{b}, 1, v{vG}
v_lshl_add_u32 v{a}, v{b}, 3, v{a}
v_add_u32 v{vOw}, s{sT2}, v{a}
v_xor_b32 v{vOw+1}, 32, v{vOw}
v_xor_b32 v{vOw+2}, 64, v{vOw}
v_xor_b32 v{vOw+3}, 96, v{vOw}
v_lshrrev_b32 v{a}, 2, v{vL}
v_lshlrev_b32 v{a}, 7, v{a}
v_bfe_u32 v{b}, v{vL}, 3, 2
v_xor_b32 v{b}, s{sWV}, v{b}
v_lshl_add_u32 v{a}, v{b}, 5, v{a}
v_and_b32 v{b}, 3, v{vL}
v_lshl_add_u32 v{a}, v{b}, 3, v{a}
v_add_u32 v{vAr}, {L_E + 3*16384}, v{a}
s_lshl_b32 s{sT2}, s{sNB}, 7
v_lshl_add_u32 v{vBa}, v{vG}, 3, s{sT2}
v_lshlrev_b32 v{vGo}, 3, v{vN}
''')
    return s


def kgen(pkC, za, npb=40):
    s = Seq()
    live = {}
    vb = V.alloc(36, 2)
    pb = V.alloc(npb, 2)
    VV, VP, VZ = Regs('v', vb, vb + 36), Regs('v', pb, pb + 32), Regs('v', za, za + 32)
    pool = lambda nm: VP if nm[0] == 'p' else VZ if (nm[0] == 'z' and nm not in ('z128', 'z256', 'z512')) else VV

    def A(name, n=1):
        live[name] = (pool(name).alloc(n), n)
        return live[name][0]

    def F(*names):
        for nm in names:
            pool(nm).release(*live.pop(nm))

    P, canon, extra = {}, [], {}

    def cut(name):
        nonlocal s
        canon.extend(s.l)
        P[name], s = s, Seq()

    la, ai, cr, ci, ld, dsk = [vPAR + i for i in range(6)]
    LOG2E, LOG2E_LO, LN2 = 0x3fb8aa3b, 0x32a5705f, 0x3f317218
    s(f'''
s_lshr_b32 s{sT0}, s{sWV}, 1
s_lshl_b32 s{sT0}, s{sT0}, 4
s_lshr_b32 s{sDT}, s{sDT}, s{sT0}
s_lshr_b32 s{sDS}, s{sDS}, s{sT0}
v_lshlrev_b32 v{ld}, 16, s{sDT}
v_lshlrev_b32 v{dsk}, 16, s{sDS}
s_mov_b32 s{sT0}, {LOG2E:#x}
v_lshlrev_b32 v{la}, 16, v{la}''')
    for k, x in enumerate((la, ld)):
        s(f'v_mul_f32 v{t+2*k}, s{sT0}, v{x}')
    for k, x in enumerate((la, ld)):
        s(f'v_fma_f32 v{t+2*k+1}, v{x}, s{sT0}, -v{t+2*k}')
    for k, x in enumerate((la, ld)):
        s(f'v_exp_f32 v{t+2*k}, v{t+2*k}')
    for k, x in enumerate((la, ld)):
        s(f'v_fmamk_f32 v{t+2*k+1}, v{x}, {LOG2E_LO:#x}, v{t+2*k+1}')
    for k, x in enumerate((la, ld)):
        s(f'v_mul_f32 v{t+2*k+1}, {LN2:#x}, v{t+2*k+1}')
    for k, x in enumerate((la, ld)):
        s(f'v_fma_f32 v{t+2*k}, v{t+2*k}, v{t+2*k+1}, v{t+2*k}')
    for x in (ai, cr, ci):
        s(f'v_lshlrev_b32 v{x}, 16, v{x}')
    s(f'''
v_cvt_pk_bf16_f32 v{t}, v{t}, v{t+2}
v_and_b32 v{ld}, 0xffff0000, v{t}
v_lshlrev_b32 v{la}, 16, v{t}
''')
    val = lambda nm: live[nm][0]
    A('c0', 2)
    s(f'''
v_mul_f32 v{la}, v{la}, v{ld}
v_mul_f32 v{ai}, v{ai}, v{ld}
v_add_f32 v{ld}, v{ld}, v{ld}
v_mul_f32 v{la}, {f32(-1.4426950408889634)}, v{la}
v_mul_f32 v{ai}, 0.15915494, v{ai}
v_mul_f32 v{val('c0')}, v{cr}, v{ld}
v_mul_f32 v{val('c0')+1}, v{ci}, v{ld}
''')
    zs = (('z8', 8.0), ('z1', 1.0), ('z128', 128.0))
    for k, (nm, p) in enumerate(zs):
        A(nm, 2)
        s(f'v_mul_f32 v{t+2*k}, {f32(p)}, v{la}')
        s(f'v_mul_f32 v{t+2*k+1}, {f32(p)}, v{ai}')
    for k, (nm, p) in enumerate(zs):
        s(f'v_fract_f32 v{t+2*k+1}, v{t+2*k+1}')
        s(f'v_exp_f32 v{t+2*k}, v{t+2*k}')
    for k, (nm, p) in enumerate(zs):
        s(f'v_cos_f32 v{val(nm)}, v{t+2*k+1}')
        s(f'v_sin_f32 v{val(nm)+1}, v{t+2*k+1}')
    for k, (nm, p) in enumerate(zs):
        s(f'v_pk_mul_f32 {vr(val(nm),2)}, {vr(val(nm),2)}, {vr(t+2*k,2)} op_sel_hi:[1,0]')
    fr, acc = 160, 224
    s(f'''
s_lshl_b32 s{sT0}, s{sBH}, 6
s_sub_u32 s{sT0}, 64, s{sT0}
v_cmp_eq_u32 vcc, s{sT0}, v{vL}
v_accvgpr_write_b32 a{acc+1}, 0
v_accvgpr_write_b32 a{acc+2}, 0
v_cndmask_b32 v{dsk}, 0, v{dsk}, vcc
v_accvgpr_write_b32 a{acc+3}, 0
v_accvgpr_write_b32 a{acc}, v{dsk}
''')
    mode = {'pk': True}

    def pack(nm):
        p = A('p' + nm)
        s(f'v_cvt_pk_bf16_f32 v{p}, v{val(nm)}, {"-" if nm[0] == "z" else ""}v{val(nm)+1}')

    def mp(lst):
        for d, a, b in lst:
            A(d, 2)
        if mode['pk']:
            for d, a, b in lst:
                s(f'v_pk_mul_f32 {vr(val(d),2)}, {vr(val(a),2)}, {vr(val(b),2)} op_sel_hi:[1,0]')
            for d, a, b in lst:
                s(f'v_pk_fma_f32 {vr(val(d),2)}, {vr(val(a),2)}, {vr(val(b),2)}, {vr(val(d),2)} op_sel:[1,1,0] op_sel_hi:[0,1,1] neg_lo:[1,0,0]')
        else:
            for d, a, b in lst:
                s(f'v_mul_f32 v{val(d)}, v{val(a)}, v{val(b)}')
                s(f'v_mul_f32 v{val(d)+1}, v{val(a)+1}, v{val(b)}')
                s(f'v_fma_f32 v{val(d)}, -v{val(a)+1}, v{val(b)+1}, v{val(d)}')
                s(f'v_fmac_f32 v{val(d)+1}, v{val(a)}, v{val(b)+1}')
        for d, _, _ in lst:
            if d not in ('z256', 'z512'):
                pack(d)

    s(f'v_mov_b32 v{A("pz0")}, 0x3f80')
    pack('z8')
    pack('c0')
    lo_rounds = [[('z16', 'z8', 'z8'), ('z256', 'z128', 'z128')],
                 [('z24', 'z16', 'z8'), ('z32', 'z16', 'z16')],
                 [('z40', 'z8', 'z32'), ('z48', 'z16', 'z32')],
                 [('z56', 'z24', 'z32'), ('z64', 'z32', 'z32')],
                 [('z72', 'z40', 'z32'), ('z80', 'z48', 'z32')],
                 [('z88', 'z56', 'z32'), ('z96', 'z64', 'z32')],
                 [('z104', 'z72', 'z32'), ('z112', 'z80', 'z32'), ('z120', 'z88', 'z32')]]
    def wr(row, names):
        for k, nm in enumerate(names):
            s(f'ds_write_addtid_b32 v{val("p" + nm)} offset:{272*(row+k)}', m0=f's_mov_b32 m0, s{sP4}')
            extra[id(s.l[-1])] = ([f'row{row+k}'], [])

    def rd(tile):
        for ks in range(4):
            s(f'ds_read_b128 {ar(fr+16*tile+4*ks,4)}, v{vRR} offset:{(O_T if tile == 3 else 0) + 64*ks}')
            extra[id(s.l[-1])] = ([], [f'row{r + (16 if tile == 3 else 0)}' for r in range(16)])

    for r, lst in enumerate(lo_rounds):
        mp(lst + [(f'c{r+1}', f'c{r}', 'z1')])
        F(*{2: ['z8', 'z16'], 3: ['z24'], 4: ['z40', 'z48'], 5: ['z56', 'z64', 'z96']}.get(r, []))
    F('z1', 'z32', 'z72', 'z80', 'z88', 'z104', 'z112', 'z120')
    cut('A')
    wr(0, [f'z{8*b}' for b in range(16)])
    cut('wl')
    rd(0)
    cut('rl')
    mp([(f'c{128+o}', f'c{o}', 'z128') for o in range(4)])
    F('c1', 'c3', 'c129', 'c131')
    mp([(f'c{128+o}', f'c{o}', 'z128') for o in range(4, 8)])
    F('z128', 'c5', 'c7', 'c133', 'c135')
    cut('v0')
    F(*[f'pz{8*b}' for b in range(16)])
    t0 = [f'c{h}' for h in list(range(8)) + list(range(128, 136))]
    wr(0, t0)
    cut('w0')
    rd(1)
    cut('r0')
    mp([(f'c{256+o}', f'c{o}', 'z256') for o in (0, 2, 4, 6)])
    F('c0', 'c2', 'c4', 'c6', 'c258', 'c262')
    mp([(f'c{384+o}', f'c{128+o}', 'z256') for o in (0, 2, 4, 6)] + [('z512', 'z256', 'z256')])
    F('c128', 'c130', 'c132', 'c134', 'c386', 'c390')
    mp([(f'c{h+256}', f'c{h}', 'z256') for h in (256, 260, 384, 388)])
    mp([(f'c{h+512}', f'c{h}', 'z512') for h in (256, 260, 384, 388)])
    F('z256', 'c516', 'c644', 'c256', 'c260', 'c384', 'c388', 'c772', 'c900')
    cut('v1')
    wr(0, [f'c{h}' for h in (256, 258, 260, 262, 384, 386, 388, 390, 512, 516, 640, 644, 768, 772, 896, 900)])
    cut('w1')
    rd(2)
    cut('r1')
    F(*['p' + x for x in t0])
    mp([(f'c{h+512}', f'c{h}', 'z512') for h in (512, 640, 768, 896)])
    F('c512', 'c640', 'c768', 'c896')
    mp([(f'c{h+512}', f'c{h}', 'z512') for h in (1024, 1152, 1280, 1408)])
    F('c1024', 'c1152', 'c1280', 'c1408')
    mp([('c2048', 'c1536', 'z512')])
    cut('v2')
    wr(16, [f'c{1024 + 128*k}' for k in range(9)])
    cut('w2')
    rd(3)
    cut('r2')
    for k in range(3):
        for ks in range(4):
            c = ar(acc + 4 * k, 4)
            s(f'v_mfma_f32_16x16x32_bf16 {c}, {ar(fr+16*(k+1)+4*ks,4)}, {ar(fr+4*ks,4)}, {c if (ks or k == 0) else 0}')
    cut('mf')
    s(f'ds_write_b32 v{vEa+2}, v{vZ} offset:{699*4}')
    for k in range(6):
        o0, o1 = (0, 100) if k < 4 else (4 * (k - 4), 4 * (k - 4) + 2)
        s(f'ds_write2_b32 v{vTA+min(k,4)}, a{acc+2*k}, a{acc+2*k+1} offset0:{o0} offset1:{o1}')
    for k, it in enumerate(s.l):
        extra[id(it)] = ([f'row{25+k}'], [])
    cut('wt')
    gv, ov = vb, pb
    for i in range(9):
        for p in range(2):
            s(f'ds_read2st64_b32 {vr(gv+4*i+2*p,2)}, v{vGA+i} offset0:{17 + 32*p} offset1:{17 + 32*(2+p)}')
    cut('rc')
    for i in range(9):
        if pkC:
            s(f'v_pk_add_f32 {vr(gv+4*i,2)}, {vr(gv+4*i,2)}, {vr(gv+4*i+2,2)}')
        else:
            s(f'v_add_f32 v{gv+4*i}, v{gv+4*i}, v{gv+4*i+2}')
            s(f'v_add_f32 v{gv+4*i+1}, v{gv+4*i+1}, v{gv+4*i+3}')
    for c in range(2):
        for o in (1, 0):
            for k in range(4):
                a = gv + 4 * (2 * k + (1 - o)) + c
                s(f'v_cvt_pk_bf16_f32 v{ov+8*c+4*o+k}, v{a}, v{a+4}')
    cut('vc')
    for c in range(2):
        for o in (1, 0):
            s(f'ds_write_b128 v{vEa}, {vr(ov+8*c+4*o,4)} offset:{(2*c+o)*PART + 128*o}')
    s(f'ds_write_b128 v{vEa+1}, {vr(vZ2,4)} offset:4096')
    s(f'ds_write_b64 v{vUz}, {vr(vZ2,2)} offset:{L_U}')
    cut('wc')
    P['vb'], P['pb'] = vb, pb
    checks.append((canon, extra))
    return P


W2E = [2, 'A', 'B', 3, 0, 4, 1, 5, 2, 3, 0, 4, 1, 5]
W2DEP = {8: 0, 9: 3, 10: 4, 11: 5, 12: 6, 13: 7}


def w2_dma(ks):
    g = []
    e = W2E[ks]
    m0 = f's_add_u32 m0, s{sP4}, {L_U + 4096*"AB".index(e)}' if e in ('A', 'B') else f's_add_u32 m0, s{sM}, {L_E + 16384*e}'
    for i in range(4):
        s = Seq()
        if i == 0:
            if ks in W2DEP:
                s.wait(f'tr{W2DEP[ks]}')
            s(f's_add_u32 s{sW2l}, s{sW2l}, 32768')
        if OPT['skipw'] and ks >= 7:
            s('s_nop 0', tag=f'w2d{ks}')
        else:
            s(f'buffer_load_dwordx4 v{vW2s+i}, {srd(SW2)}, s{sW2l} offen offset:{1024*i} lds', tag=f'w2d{ks}', m0=m0)
        g.append(s)
    return g


def w2_tr(ks):
    g = []
    e = W2E[ks]
    win, off = (1, 4096 * 'AB'.index(e)) if e in ('A', 'B') else (e // 4, 16384 * (e % 4))
    for j in range(4):
        for hh in range(2):
            s = Seq()
            if j == 0 and hh == 0:
                s.wait(f'w2d{ks}')
            s(f'ds_read_b64_tr_b16 {ar(16*ks+4*j+2*hh,2)}, v{vTr+4*win+j} offset:{off + 1024*hh}', tag=f'tr{ks}')
            g.append(s)
    return g


def w2_window():
    return Seq()('\n'.join(f'v_add_u32 v{vTr+4+j}, 65536, v{vTr+j}' for j in range(4)))


def u_poll_issue():
    return Seq()(f'buffer_load_dword v{vPF}, v{vPA}, {srd(SWS)}, s{sFUp} offen sc1')


def u_dma():
    s = Seq()
    s(f'v_cmp_ne_u32 vcc, s{sNON}, v{vPF}')
    retry(s, 's_cbranch_vccnz', 's_cbranch_vccz', f'''
buffer_load_dword v{vPF}, v{vPA}, {srd(SWS)}, s{sFUp} offen sc1
s_waitcnt vmcnt(0)
v_cmp_ne_u32 vcc, s{sNON}, v{vPF}''')
    s.wait('tr2')
    for i in range(4):
        s(f'buffer_load_dwordx4 v{vL16}, {srd(SWS)}, s{sUs} offen offset:{1024*i} sc1 lds', tag='udma', m0=f's_add_u32 m0, s{sUm}, {L_U + 512}')
    return s


main = Seq()
vXr = V.alloc(4, 1)
vWr = V.alloc(2, 1)
vHa = V.alloc()
vACC = V.alloc(64, 2)
vFR = V.alloc(32, 2)
pro_body(main)
main(f'''
s_mul_i32 s{sT0}, s{sJ}, 9363
s_lshr_b32 s{sT0}, s{sT0}, 16
s_mul_i32 s{sT1}, s{sT0}, 7
s_sub_u32 s{sT1}, s{sJ}, s{sT1}
s_lshr_b32 s{sT2}, s{sXCD}, 1
s_and_b32 s{sT3}, s{sXCD}, 1
s_lshl2_add_u32 s{sT0}, s{sT2}, s{sT0}
s_lshl1_add_u32 s{sKC}, s{sT3}, s{sT2}
s_mul_i32 s{sT3}, s{sT3}, 7
s_add_u32 s{sT1}, s{sT1}, s{sT3}
s_lshl_b32 s{sKC}, s{sKC}, 4
s_and_b32 s{sKC}, s{sKC}, {63 if OPT['rot'] else 0}
s_lshr_b32 s{sT3}, s{sWV}, 1
s_lshl1_add_u32 s{sTB1}, s{sT0}, s{sBH}
s_lshl1_add_u32 s{sCB1}, s{sT1}, s{sT3}
s_lshl2_add_u32 s{sXb}, s{sT0}, s{sWV}
s_lshl_b32 s{sXb}, s{sXb}, 15
s_mul_i32 s{sWb}, s{sWV}, {16*3584}
s_lshl_b32 s{sT1}, s{sT1}, 8
s_add_u32 s{sWb}, s{sWb}, s{sT1}
v_and_b32 v{t+1}, 7, v{vL}
v_xor_b32 v{t}, v{vG}, v{t+1}
v_lshrrev_b32 v{t+1}, 3, v{vL}
v_lshlrev_b32 v{t+1}, 10, v{t+1}
v_lshl_add_u32 v{vXs}, v{t}, 4, v{t+1}
v_xor_b32 v{t}, 64, v{vXs}
v_add_u32 v{vXs+1}, 7168, v{t}
v_add_u32 v{vXs+2}, {2*7168}, v{vXs}
v_add_u32 v{vXs+3}, {3*7168}, v{t}
v_lshlrev_b32 v{t}, 2, v{vG}
v_xor_b32 v{t}, v{t}, v{vN}
v_mul_u32_u24 v{t+1}, 3584, v{vG}
v_lshl_add_u32 v{vWs}, v{t}, 4, v{t+1}
''')
for i in range(1, 4):
    main(f'v_add_u32 v{vWs+i}, {(4*3584 - 1024)*i}, v{vWs}')


def stage_loads(st):
    g = []
    for isw in (0, 1):
        for i in range(4):
            s = Seq()
            if i == 0:
                if isw:
                    s(f's_mul_i32 s{sWk}, s{sKC}, {8*3584}')
                    s(f's_add_u32 s{sWk}, s{sWk}, s{sWb}')
                else:
                    s(f's_lshl4_add_u32 s{sXk}, s{sKC}, s{sXb}')
            m0 = f's_add_u32 m0, s{sM}, {(L_W if isw else L_X) + 16384*(st % 4)}'
            if isw:
                s(f'buffer_load_dwordx4 v{vWs+i}, {srd(SW1)}, s{sWk} offen offset:{1024*i} lds', tag=f'st{st}', m0=m0)
            else:
                s(f'buffer_load_dwordx4 v{vXs+i}, {srd(SX)}, s{sXk} offen offset:{1024*i} lds', tag=f'st{st}', m0=m0)
            if isw and i == 1:
                s(f's_add_u32 s{sKC}, s{sKC}, 8')
            if isw and i == 2:
                s(f's_and_b32 s{sKC}, s{sKC}, 63')
            g.append(s)
    return g


LS = [g for st in range(8) for g in stage_loads(st)]
main(f's_or_b32 s{sT0}, s2, s{sWV}')
main('s_waitcnt lgkmcnt(0)')
stamp(main, 'karg')
main(f'''
s_cmp_eq_u32 s{sT0}, 0
s_cbranch_scc1 Lnonce
Lnonce_back:''')
outline.append(f'''Lnonce:
    s_memrealtime s[{sHst}:{sHst2}]
    s_waitcnt lgkmcnt(0)
    s_or_b32 s{sHst}, s{sHst}, 1
    s_atomic_swap s{sHst}, {ptr(P_DBG)}, 0
    s_branch Lnonce_back
''')
L_UT = L_W + 3 * 16384
param_loads(main)
main.add(ut_loads(L_UT))
scalar_params(main)
NE, NK = OPT['early'], OPT['nk']
su = Seq()
su(f'''
v_and_b32 v{t}, 31, v{vL}
v_bfe_u32 v{t+1}, v{vL}, 1, 3
v_lshrrev_b32 v{t+2}, 5, v{vL}
v_xor_b32 v{t+1}, v{t+1}, v{t+2}
s_lshl_b32 s{sT0}, s{sBH}, 13
s_add_u32 s{sT0}, s{sT0}, {L_X}
v_lshl_add_u32 v{t}, v{t}, 7, s{sT0}
''')
for ks in range(4):
    su(f'v_xor_b32 v{t+3}, {2*ks}, v{t+1}')
    su(f'v_lshl_add_u32 v{vXr+ks}, v{t+3}, 4, v{t}')
su(f'''
v_bfe_u32 v{t}, v{vL}, 2, 2
v_lshl_add_u32 v{t+1}, v{t+2}, 3, v{t}
v_lshlrev_b32 v{t+1}, 8, v{t+1}
v_and_b32 v{t+2}, 1, v{vG}
v_lshl_add_u32 v{t+1}, v{t+2}, 5, v{t+1}
v_and_b32 v{t+2}, 3, v{vL}
v_lshl_add_u32 v{t+1}, v{t+2}, 3, v{t+1}
v_add_u32 v{t+1}, {L_W}, v{t+1}
s_and_b32 s{sT0}, s{sWV}, 2
v_xor_b32 v{t}, s{sT0}, v{t}
v_lshl_add_u32 v{vWr}, v{t}, 6, v{t+1}
v_xor_b32 v{t}, 1, v{t}
v_lshl_add_u32 v{vWr+1}, v{t}, 6, v{t+1}
''')
su.add(setup_k())
sa = setup_a()
ntouch = OPT['touch'] + OPT['tlb'] + OPT['c3']
su.add(setup_g())
su.add(ut_setup(L_UT))
su.add(sa.l[:len(sa) - ntouch])
main.add(cat(LS[:4]))
main.add(sprinkle(su, LS[4:NE], 0, 12 * (NE - 4)))
stamp(main, 'setup')
K = kgen(False, vACC)
vTP = K['pb'] + 16


def kgen_seq(K):
    s = Seq()
    wl, w0, w1 = chunks(K['wl'], 4), chunks(K['w0'], 4), chunks(K['w1'], 4)
    v0, v1, v2 = K['v0'].l, K['v1'].l, K['v2'].l
    s.add(K['A']).add(wl[0]).add(wl[1]).add(v0[:6]).add(wl[2]).add(wl[3]).add(v0[6:20]).add(K['rl']).add(v0[20:])
    s.add(w0[0]).add(v1[:8]).add(w0[1]).add(v1[8:16]).add(w0[2]).add(v1[16:24]).add(w0[3]).add(v1[24:40])
    s.add(K['r0']).add(v1[40:])
    s.add(w1[0]).add(v2[:8]).add(w1[1]).add(v2[8:16]).add(w1[2]).add(v2[16:24]).add(w1[3]).add(v2[24:])
    s.add(K['w2'])
    mf, wt = K['mf'].l, K['wt'].l
    s.add(mf[:4]).add(K['r1']).add(K['r2']).add(mf[4:]).add(wt)
    return s


ka = kgen_seq(K)
ua, ub = ut_work(vFR)
tch = sa.l[len(sa) - ntouch:] if ntouch else []
UA = OPT['ua']
ka.l[UA + 60:UA + 60] = nonce_issue().l
ka.l[UA + 40:UA + 40] = ub.l[-1:]
ka.l[UA + 24:UA + 24] = ub.l[:-1]
ka.l[UA:UA] = ua.l
for k, x in enumerate(tch):
    ka.l[UA - 12 * (k + 1):UA - 12 * (k + 1)] = [x]
if OPT['stamps'] == 3:
    for pos, nm in ((len(ka) - OPT['res'], 'kC'), (170, 'kB'), (60, 'kA'), (8, 'bar')):
        x = Seq()
        stamp(x, nm, 3)
        ka.l[pos:pos] = x.l
    stamp_names[-4:] = stamp_names[:-5:-1]
main.add(sprinkle(ka, LS[NE:NK], len(ka) - OPT['res'], len(ka) - 7))
stamp(main, 'kgenA')


def g1_reads(st, ks):
    xo = wo = 16384 * (st % 4)
    b = vFR + 16 * (ks & 1)
    r = []
    for k in range(2):
        for hh in range(2):
            r.append(f'ds_read_b64_tr_b16 {vr(b+4*k+2*hh,2)}, v{vWr+k} offset:{wo + ks*4096 + hh*1024}')
        r.append(f'ds_read_b128 {vr(b+8+4*k,4)}, v{vXr+ks} offset:{xo + k*4096}')
    return r


def g1_mfma(st, ks):
    b = vFR + 16 * (ks & 1)
    r = []
    for ft, tt in ((0, 0), (1, 1), (1, 0), (0, 1)):
        a = vACC + 32 * ft + 16 * tt
        c = '0' if (st == 0 and ks == 0) else vr(a, 16)
        r.append(f'v_mfma_f32_32x32x16_bf16 {vr(a,16)}, {vr(b+4*ft,4)}, {vr(b+8+4*tt,4)}, {c}')
    return r


pc_addr = Seq()
pc_addr(f'''
v_and_b32 v{t}, 31, v{vL}
v_lshlrev_b32 v{t}, 4, v{t}
s_lshl_b32 s{sT0}, s{sCB1}, 10
s_add_u32 s{sT0}, s{sT0}, {WS_FP}
s_lshl_b32 s{sT1}, s{sTB1}, 10
s_add_u32 s{sT4}, s{sT1}, {WS_TS}
s_add_u32 s{sT1}, s{sT1}, {WS_TP}''')
pc_ld = [f'buffer_load_dwordx4 {vr(vTP+8*w+4*k,4)}, v{t}, {srd(SWS)}, s{(sT0, sT1, sT4)[w]} offen offset:{512*k} sc1'
         for w in range(3) for k in range(2)]
pc_cmp = [f'v_xor_b32 v{vTP+4*k+3}, s{sNON}, v{vTP+4*k+3}' for k in range(6)]
pc_cmp += [f'v_or3_b32 v{t+1}, v{vTP+3}, v{vTP+7}, v{vTP+11}', f'v_or3_b32 v{t+2}, v{vTP+15}, v{vTP+19}, v{vTP+23}',
           f'v_or_b32 v{t+1}, v{t+1}, v{t+2}', f'v_cmp_ne_u32 vcc, 0, v{t+1}']
pc_chk = [Seq()(x) for x in pc_cmp]
retry(pc_chk[-1], 's_cbranch_vccnz', 's_cbranch_vccz', '\n'.join(pc_ld + ['s_waitcnt vmcnt(0)'] + pc_cmp))
pc_fix = Seq()
pc_fix(f'v_cmp_gt_u32 vcc, 32, v{vL}')
for k in range(2):
    for d in range(3):
        pc_fix(f'v_cndmask_b32 v{vTP+8+4*k+d}, 0, v{vTP+8+4*k+d}, vcc')
hadr = Seq()
hadr(f'''
v_and_b32 v{t+4}, 1, v{vG}
v_mul_u32_u24 v{t+4}, {56*1024*HS}, v{t+4}
v_lshrrev_b32 v{t+5}, 5, v{vL}
v_lshl_add_u32 v{t+4}, v{t+5}, 8, v{t+4}
v_lshl_add_u32 v{vHa}, v{vN}, 4, v{t+4}
s_mul_i32 s{sHst}, s{sTB1}, {4*56}
s_lshl1_add_u32 s{sHst}, s{sCB1}, s{sHst}
s_lshl_b32 s{sHst}, s{sHst}, {9 + HS}
s_add_u32 s{sHst}, s{sHst}, {WS_H}
s_add_u32 s{sHst2}, s{sHst}, {2*56*1024*HS}
s_mul_i32 s{sT2}, s{sCB1}, 9363
s_lshr_b32 s{sT2}, s{sT2}, 16
s_mul_i32 s{sT3}, s{sT2}, 7
s_sub_u32 s{sT3}, s{sCB1}, s{sT3}
s_lshl2_add_u32 s{sFH}, s{sTB1}, s{sT2}
s_lshl_b32 s{sFH}, s{sFH}, 7
s_lshl2_add_u32 s{sFH}, s{sT3}, s{sFH}
s_add_u32 s{sFH}, s{sFH}, {FH}
''')

TILES = ((0, 0), (1, 0), (0, 1), (1, 1))
G = Gaps([x for st in range(8) for ks in range(4) for x in g1_mfma(st, ks)] +
         [f'v_mfma_f32_32x32x16_bf16 {vr(vACC+32*ft+16*tt,16)}, {vr(vTP+4*ft,4)}, {vr(vTP+8+4*tt,4)}, {vr(vACC+32*ft+16*tt,16)}'
          for ft, tt in TILES], cap=24)
for st in range(8):
    b = 16 * st
    G.put(b + 12, bar(f'rd{st}', *([f'st{st+1}', 'utst'] if st < 7 else [])))
    for ks in range(4):
        if st == 7 and ks == 3:
            break
        r = g1_reads(st, ks + 1) if ks < 3 else g1_reads(st + 1, 0)
        for k, x in enumerate(r):
            G.put(b + 4 * ks + k // 3, Seq()(x, tag=f'rd{st}' if ks < 3 else None))
        G.reserve(b + 4 * ks + 3, 4)
        if ks != 2:
            G.reserve(b + 4 * ks + 4, 4)
lg = [g for g in range(128) if g % 16 in (14, 15, 2, 3, 6, 7, 10, 11, 13, 5, 9, 1)[:OPT['lst']]]
for i in range(NK, 64):
    while lg[0] < 16 * (i // 8 - 4) + 13:
        lg.pop(0)
    last_ld = lg.pop(0)
    assert last_ld < 16 * (i // 8 - 1) + 12
    G.put(last_ld, LS[i])


for k, g_ in enumerate(singles(K['rc'])):
    G.put(14 + 4 * (k // 2) + k % 2, g_)
G.put(13, nonce_check())
G.put(14, fu_flag())
p = G.fill(singles(setup_b()) + singles(hadr), 0, 76)
p = G.fill(singles(K['vc']) + singles(pc_addr), max(p[-1], 54), OPT['pcg'])
for k, x in enumerate(pc_ld):
    G.put(OPT['pcg'] + (1, 2, 2, 3, 3, 5)[k], x)
wg = [max(last_ld + 1, 78), 81, 82, 83] + [b + g for b in (80, 96) for g in (14, 15, 18, 19, 22, 23, 26, 27)] + [126, 127, 129, 130]
for k, g_ in enumerate([g for ks in range(6) for g in w2_dma(ks)]):
    G.put(wg[k], g_)
for k, g0 in enumerate((102, 114, 124)):
    for i, g_ in enumerate(w2_tr(k)):
        G.put(g0 + ((0, 0, 1, 1, 4, 4, 5, 5) if k < 2 else (1, 1, 2, 2, 3, 3, 4, 4))[i], g_)
G.put(130, w2_window())
if OPT['up'] < 0:
    G.put(109, u_poll_issue())
G.fill(pc_chk + singles(pc_fix), 116, 127)
p2 = G.fill(singles(setup_e()), max(p[-1], last_ld) + 1, 131)
print('gemm1 over', G.over(), 'last load gap', last_ld)
main.add(bar('st0'))
for x in g1_reads(0, 0):
    main(x)
for st in range(8):
    main.add(G.emit(16 * st, 16 * st + 16))
    stamp(main, f'g1s{st}', 1 if st in (3, 7) else 2)
main.add(G.emit(128))
q = vFR
gx = {k: [] for k in range(8)}
wc = singles(K['wc'])
gx[6] += wc[:3]
gx[7] += wc[3:]
ud = u_dma()
gl_ = [Seq().add(ud.l[:-3])] + singles(Seq().add(ud.l[-3:])) + w2_dma(6) + w2_dma(7) + w2_dma(8)
pre_gelu, main = main, Seq()
for ti, (ft, tt) in enumerate(TILES):
    P = vTP + 16 + 4 * tt
    for hh in range(2):
        a = vACC + 32 * ft + 16 * tt + 8 * hh
        for k in range(4):
            main(f'v_pk_mul_f32 {vr(q+2*k,2)}, {vr(a+2*k,2)}, {vr(a+2*k,2)}')
        for k in range(4):
            main(f'v_pk_fma_f32 {vr(q+2*k,2)}, {vr(q+2*k,2)}, {vr(P,2)}, {vr(P,2)} op_sel:[0,1,0] op_sel_hi:[1,1,0]')
        for k in range(4):
            main(f'v_pk_mul_f32 {vr(q+2*k,2)}, {vr(q+2*k,2)}, {vr(a+2*k,2)}')
        for k in range(8):
            main(f'v_exp_f32 v{q+k}, v{q+k}')
        for k in range(4):
            main(f'v_pk_fma_f32 {vr(q+2*k,2)}, {vr(q+2*k,2)}, {vr(P+2,2)}, {vr(P+2,2)} op_sel_hi:[1,0,0]')
        for k in range(8):
            main(f'v_rcp_f32 v{q+k}, v{q+k}')
        for k in range(4):
            main(f'v_pk_mul_f32 {vr(q+2*k,2)}, {vr(q+2*k,2)}, {vr(a+2*k,2)}')
        for k in range(4):
            main(f'v_cvt_pk_bf16_f32 v{a+k}, v{q+2*k}, v{q+2*k+1}')
        main(f'buffer_store_dwordx4 {vr(a,4)}, v{vHa}, {srd(SWS)}, s{sHst2 if tt else sHst} offen offset:{HS*(1024*ft + 512*hh)} sc1', tag='hst')
        main.add(cat(gx[2 * ti + hh]))
        stamp(main, f'ge{2*ti+hh}', 3)
main = pre_gelu.add(sprinkle(main, gl_, OPT['gs0'], OPT['gs0'] + OPT['gsp'] * len(gl_)))
stamp(main, 'gelu')
for b, n in ((vXr, 4), (vWr, 2), (vACC, 64), (vFR, 32), (vHa, 1), (K['vb'], 36), (K['pb'], 40)):
    V.release(b, n)

sp = Seq()
sp('Lspare:')
pro_body(sp)
vS = vXs
vB1 = vXs + 6
L_SX, L_SW, L_SG = 32768, 98304, 16384
sp(f'''
s_sub_u32 s{sT4}, s{sJ}, 28
s_lshl2_add_u32 s{sTB1}, s{sXCD}, s{sT4}
s_lshl2_add_u32 s{sXb}, s{sTB1}, s{sWV}
s_lshl_b32 s{sXb}, s{sXb}, 14
s_lshl_b32 s{sT1}, s{sWV}, 2
v_and_b32 v{t}, 31, v{vL}
v_xor_b32 v{t}, s{sT1}, v{t}
v_lshrrev_b32 v{t+1}, 5, v{vL}
v_lshlrev_b32 v{t+1}, 10, v{t+1}
v_lshl_add_u32 v{vS}, v{t}, 4, v{t+1}
v_xor_b32 v{vS+1}, 32, v{vS}
s_waitcnt lgkmcnt(0)
''')
stamp(sp, 'karg')
scalar_params(sp)
wl, xl = [], []
for i in range(4):
    s = Seq()
    s(f's_add_u32 s{sWb}, s{sWb}, {32*3584}')
    for r in range(4):
        s(f'buffer_load_dwordx4 v{vS+2+r}, {srd(SW1)}, s{sWb} offen offset:{1024*r} lds', tag='spw', m0=f's_lshl2_add_u32 m0, s{sM}, {L_SW + 4096*i}')
    wl.append(s)
xs = []
for h in range(2):
    for i in range(8):
        s = Seq()
        s(f's_add_u32 s{sXk}, s{sXb}, {512*h + 2048*i - 1024*(i%4)}')
        s(f'buffer_load_dwordx4 v{vS + i//4}, {srd(SX)}, s{sXk} offen offset:{1024*(i%4)} lds', tag=f'spx{h}',
          m0=f's_add_u32 m0, s{sP4}, {L_SX + 32768*h + 4096*(i//4)}')
        xs.append(s)
L_ST = 16384 + 8192
sp.add(ut_loads(L_ST))
param_loads(sp)
sp.add(cat(xs[:2]))
sp_head, sp = sp, Seq()
vSa = V.alloc(10, 1)
o = V.alloc(8, 2)
vF1 = V.alloc(48, 2)
vD = V.alloc(16, 2)
vONE = V.alloc(4, 2)
vTOK = t + 7
sp(f'''
s_lshr_b32 s{sT1}, s{sXCD}, 1
s_lshl2_add_u32 s{sT0}, s{sT1}, s{sT4}
s_min_u32 s{sT0}, s{sT0}, 13
s_and_b32 s{sT1}, s{sXCD}, 1
s_mul_i32 s{sT1}, s{sT1}, 14
s_add_u32 s{sCB1}, s{sT0}, s{sT1}
s_lshl_b32 s{sT2}, s{sCB1}, 7
s_lshl_b32 s{sT0}, s{sWV}, 5
s_add_u32 s{sT0}, s{sT0}, s{sT2}
v_lshl_add_u32 v{vB1}, v{vN}, 1, s{sT0}
v_lshlrev_b32 v{t}, 1, v{vG}
v_and_b32 v{t+1}, 7, v{vL}
v_xor_b32 v{t}, v{t}, v{t+1}
v_lshrrev_b32 v{t+1}, 3, v{vL}
v_mul_u32_u24 v{t+1}, 3584, v{t+1}
v_lshl_add_u32 v{vS+2}, v{t}, 4, v{t+1}
v_add_u32 v{vS+3}, {(8*3584-1024)*1}, v{vS+2}
v_add_u32 v{vS+4}, {(8*3584-1024)*2}, v{vS+2}
v_add_u32 v{vS+5}, {(8*3584-1024)*3}, v{vS+2}
s_mul_i32 s{sWb}, s{sWV}, {128*3584}
s_add_u32 s{sWb}, s{sWb}, s{sT2}
s_sub_u32 s{sWb}, s{sWb}, {32*3584}
s_mov_b32 s{sFH}, {FDUMMY}
v_and_b32 v{t}, 7, v{vN}
v_lshrrev_b32 v{t+1}, 3, v{vN}
v_lshl_add_u32 v{t+1}, v{t}, 3, v{t+1}
s_lshl_b32 s{sT0}, s{sWV}, 1
v_add_u32 v{vTOK}, s{sT0}, v{t+1}
v_lshlrev_b32 v{t}, 1, v{t}
v_xor_b32 v{t}, v{t}, v{vG}
v_lshlrev_b32 v{t+1}, 9, v{vTOK}
v_add_u32 v{t+1}, {L_SX}, v{t+1}
v_lshlrev_b32 v{vSa+4}, 4, v{vG}
v_add_u32 v{vSa+4}, {L_SG}, v{vSa+4}
''')
for k in range(4):
    sp(f'v_xor_b32 v{vSa+k}, {4*k}, v{t}')
    sp(f'v_lshl_add_u32 v{vSa+k}, v{vSa+k}, 4, v{t+1}')
    sp(f'v_mov_b32 v{vONE+k}, 0x3f803f80')
sp(f'''
v_lshrrev_b32 v{t}, 2, v{vL}
v_bfe_u32 v{t+1}, v{vL}, 3, 2
v_xor_b32 v{t+1}, s{sWV}, v{t+1}
v_lshlrev_b32 v{t}, 7, v{t}
v_lshl_add_u32 v{t}, v{t+1}, 5, v{t}
v_and_b32 v{t+1}, 3, v{vL}
v_lshl_add_u32 v{t}, v{t+1}, 3, v{t}
v_add_u32 v{vSa+5}, {L_SW}, v{t}
v_lshrrev_b32 v{t}, 2, v{vN}
v_cmp_eq_u32 vcc, v{t}, v{vG}
v_lshlrev_b32 v{t}, 4, v{vTOK}
v_mov_b32 v{t+4}, 0x7ff00000
v_cndmask_b32 v{vSa+9}, v{t+4}, v{t}, vcc
s_lshl_b32 s{sT0}, s{sTB1}, 10
s_add_u32 s{sHst2}, s{sT0}, {WS_TS}
s_add_u32 s{sHst}, s{sT0}, {WS_TP}
''')
sa = setup_a()
sp.add(sa.l[:9])
sp.add(ut_setup(L_ST))
sp.add(setup_k())
sp = sp_head.add(sprinkle(sp, xs[2:9], 0, 100))
K = kgen(True, vF1, 32)
ua, ub = ut_work(vF1 + 32)
rest = cat(wl)
rest(f'global_load_ushort v{vB1}, v{vB1}, {ptr(P_B1)}')
rest(f'global_load_lds_dwordx4 v{vL16}, {ptr(P_GW)}', tag='spw', m0=f's_mov_b32 m0, {L_SG}')
rest = singles(rest)
sp.add(ua)
sp.add(sprinkle(cat([K['A'], setup_g()]), xs[9:] + [nonce_issue()] + rest[:10], 0, 215))
sp.add(bar('spx1'))
stamp(sp, 'setup')
aX = 64
Gs = Gaps([f'v_mfma_f32_16x16x32_bf16 {vr(vD+4*k,4)}, {a}, {ar(aX+4*s_,4)}, {vr(vD+4*k,4) if s_ else 0}'
           for s_ in range(16) for k, a in enumerate((ar(aX + 4 * s_, 4), vr(vONE, 4)))], cap=8, maxlds=1)
rds = [Seq()(f'ds_read_b128 {ar(aX+4*s_,4)}, v{vSa+s_%4} offset:{32768*(s_//8) + 256*((s_//4)%2)}') for s_ in range(16)]
sp.add(cat(rds[:5]))
Gs.fill(rds[5:], 0, 32)
Gs.fill(rest[10:], 0, 32, step=2)
sp.add(Gs.emit())
sp.add(ub)
sp.add(nonce_check())
C0 = -2.0 * math.sqrt(2.0 / math.pi) * math.log2(math.e)
C1 = C0 * 0.044715
sp(f'''
v_and_b32 v{t}, 1, v{vL}
v_cmp_eq_u32 vcc, 1, v{t}
v_and_b32 v{t}, 2, v{vL}
v_cmp_eq_u32 s[{sT0}:{sT1}], 2, v{t}
v_cndmask_b32 v{vD}, v{vD}, v{vD+1}, vcc
v_cndmask_b32 v{vD+2}, v{vD+2}, v{vD+3}, vcc
v_cndmask_b32 v{vD}, v{vD}, v{vD+2}, s[{sT0}:{sT1}]
v_mul_f32 v{vD+4}, {f32(1/512)}, v{vD+4}
v_mul_f32 v{vD}, {f32(1/512)}, v{vD}
v_fma_f32 v{vD}, -v{vD+4}, v{vD+4}, v{vD}
v_cvt_pk_bf16_f32 v{o}, -v{vD+4}, -v{vD+4}
v_max_f32 v{vD}, 0, v{vD}
v_add_f32 v{vD}, {f32(1e-5)}, v{vD}
v_and_b32 v{vD+6}, 0xffff0000, v{o}
v_sqrt_f32 v{o+6}, v{vD}
v_rsq_f32 v{vD+1}, v{vD}
v_add_f32 v{vD+6}, v{vD+6}, v{vD+4}
v_mul_f32 v{o+4}, {f32(C0)}, v{vD+1}
v_mul_f32 v{vD+2}, v{vD+1}, v{vD+1}
v_mul_f32 v{o+5}, {f32(C1)}, v{vD+1}
v_mul_f32 v{o+5}, v{o+5}, v{vD+2}
v_cvt_pk_bf16_f32 v{vD+5}, v{o+6}, v{o+6}
v_and_b32 v{vD+5}, 0xffff0000, v{vD+5}
v_sub_f32 v{vD+7}, v{o+6}, v{vD+5}
v_cvt_pk_bf16_f32 v{o+1}, -v{vD+6}, v{vD+5}
v_cvt_pk_bf16_f32 v{o+2}, v{vD+7}, v{vZ}
v_mov_b32 v{o+3}, s{sNON}
v_mov_b32 v{o+7}, s{sNON}
buffer_store_dwordx4 {vr(o,4)}, v{vSa+9}, {srd(SWS)}, s{sHst} offen sc1
buffer_store_dwordx4 {vr(o+4,4)}, v{vSa+9}, {srd(SWS)}, s{sHst2} offen sc1
''')
stamp(sp, 'kgenA')
sp.add(sa.l[9:])
sp.add(bar('spw'))
Gs = Gaps([f'v_mfma_f32_16x16x32_bf16 {vr(vD+12,4)}, {vr(vONE,4)}, {ar(4*s_,4)}, {vr(vD+12,4) if s_ else 0}' for s_ in range(16)], cap=8)
rdw = [Seq()(f'ds_read_b64_tr_b16 {ar(2*s_,2)}, v{vSa+5} offset:{2048*s_}') for s_ in range(32)]
rdw += [Seq()(f'ds_read_b128 {ar(128+4*s_,4)}, v{vSa+4} offset:{64*s_}') for s_ in range(16)]
sp.add(cat(rdw[:16]))
Gs.fill(rdw[16:], 0, 16)
sp.add(Gs.emit())
sp(f'''
v_cmp_gt_u32 vcc, 16, v{vL}
v_mov_b32 v{t+2}, 0x7ff00000
s_lshl2_add_u32 s{sT0}, s{sCB1}, s{sWV}
s_lshl_b32 s{sT0}, s{sT0}, 8
s_add_u32 s{sT0}, s{sT0}, {WS_FP}
v_cndmask_b32 v{t}, v{t+2}, v{vL16}, vcc
v_mov_b32 v{o+2}, v{vB1}
v_cvt_pk_bf16_f32 v{o+1}, v{vD+12}, v{vZ}
v_lshlrev_b32 v{t+3}, 16, v{o+1}
v_lshl_or_b32 v{o+1}, v{vB1}, 16, v{o+1}
v_sub_f32 v{t+4}, v{vD+12}, v{t+3}
v_cvt_pk_bf16_f32 v{o}, v{t+3}, v{t+4}
buffer_store_dwordx4 {vr(o,4)}, v{t}, {srd(SWS)}, s{sT0} offen sc1
''')
stamp(sp, 'g1s3')
gate = Seq()
for s_ in range(16):
    gate(f'v_mfma_f32_16x16x32_bf16 {vr(vD+8,4)}, {ar(128+4*s_,4)}, {ar(aX+4*s_,4)}, {vr(vD+8,4) if s_ else 0}')
sp.add(gate)
sp(f'''
s_lshl_b32 s{sT2}, s{sTB1}, 9
s_add_u32 s{sT2}, s{sT2}, {WS_G}
v_lshrrev_b32 v{t+1}, 1, v{vSa+9}
v_mul_f32 v{vD+8}, {f32(-math.log2(math.e))}, v{vD+8}
v_exp_f32 v{vD+8}, v{vD+8}
v_add_f32 v{vD+8}, 1.0, v{vD+8}
v_rcp_f32 v{o+6}, v{vD+8}
buffer_store_dwordx2 {vr(o+6,2)}, v{t+1}, {srd(SWS)}, s{sT2} offen sc1
''')
sp.add(bar('utst'))
sp.add(fu_flag())
sp.add(setup_b())
ks_ = Seq().add(kgen_seq(K).l[len(K['A']):])
sp.add(ks_)
sp.add(cat(w2_dma(0)))
sp.add(bar('*lds'))
stamp(sp, 'g1s7')
sp.add(K['rc'])
sp.add(cat(w2_dma(1)))
sp.add(K['vc'])
sp.add(K['wc'].l[:5])
sp.add(sprinkle(setup_e(), [cat(w2_dma(k)) for k in range(2, 6)]))
sp.add(u_poll_issue())
sp.add(cat(w2_tr(0) + w2_tr(1) + w2_tr(2)))
sp.add(K['wc'].l[5:])
sp.add(w2_window())
sp.add(cat(w2_dma(6) + w2_dma(7)))
sp.add(u_dma())
sp.add(cat(w2_dma(8)))
sp.wait('udma')
stamp(sp, 'gelu')
sp('s_branch Ljoin')
for b, n in ((vF1, 48), (vD, 16), (vONE, 4), (vSa, 10), (o, 8), (K['vb'], 36), (K['pb'], 32),
             (vGA, 9), (vTA, 5), (vRR, 1), (vEa, 3)):
    V.release(b, n)

com = Seq()
com('Ljoin:')
vB2 = V.alloc(8, 2)
vGt = V.alloc(2, 2)
vH0 = V.alloc(56, 2)
vCF = V.alloc(128, 2)
vH = (vH0, vCF)
aC = 224
com.wait('udma')
com(f'ds_write_b32 v{vUz+1}, v{vZ} offset:{L_U + 508}')
com.add(bar('*lds'))
stamp(com, 'cv0')


def cv_reads(bb):
    b = vCF + 64 * (bb & 1)
    r = []
    for a in range(8):
        for hh in range(2):
            r.append(f'ds_read_b64 {vr(b+4*a+2*hh,2)}, v{vFa} offset:{64*(59-8*a-bb) + 8*hh}')
        r.append(f'ds_read_b128 {vr(b+32+4*a,4)}, v{vGa} offset:{512*a + 64*(3-bb)}')
    return r


def cv_mfma(bb):
    b = vCF + 64 * (bb & 1)
    r, first = [], set()
    key = (lambda x: (x[0] + x[1], x[0])) if bb == 3 else (lambda x: (max(x), x[0] + x[1], x[0]))
    order = sorted(((a, d) for a in range(8) for d in range(8 - a)), key=key)
    for a, d in order:
        c = aC + 4 * (a + d)
        cc = '0' if (bb == 0 and a + d not in first) else ar(c, 4)
        first.add(a + d)
        r.append(f'v_mfma_f32_16x16x32_bf16 {ar(c,4)}, {vr(b+4*a,4)}, {vr(b+32+4*d,4)}, {cc}')
    return r


def h_load(L):
    sg, ks = divmod(L, 14)
    if HS == 1:
        return Seq()(f'buffer_load_dwordx4 {vr(vH[sg&1]+4*ks,4)}, v{vL16+ks//4}, {srd(SWS)}, s{sH+sg} offen offset:{1024*(ks%4)} sc1')
    s = Seq()(f'buffer_load_dwordx4 {vr(vH[sg&1]+4*ks,4)}, v{vL16+1+(ks%6)//2}, {srd(SWS)}, s{sH+sg} offen offset:{2048*(ks%2)} sc1')
    if ks % 6 == 5:
        s(f's_add_u32 s{sH+sg}, s{sH+sg}, 12288')
    return s


hflag = Seq()
hflag.wait('hst?')
flag_set(hflag, sFH)
small = Seq()
g_ld = f'buffer_load_dwordx2 {vr(vGt,2)}, v{vGo}, {srd(SWS)}, s{sGs} offen sc1'
small(g_ld)
for j in range(4):
    small(f'global_load_dwordx2 {vr(vB2+2*j,2)}, v{vBa}, {ptr(P_B2)} offset:{32*j}')

C = Gaps([x for bb in range(4) for x in cv_mfma(bb)], cap=8, maxlds=1)
need = 3 * [[0, 1, 4, 9, 16, 24, 30, 34]] + [[0, 1, 3, 6, 10, 15, 21, 28]]
LEAD = 8
cr = [(36 * bb + need[bb][a] - LEAD, x) for bb in range(4) for a in range(8) for x in cv_reads(bb)[3 * a: 3 * a + 3]]
nxt_free, prelude, placed = 143, [], []
for dl, x in reversed(cr):
    g = min(dl, nxt_free)
    if g < 0:
        prelude.insert(0, x)
    else:
        placed.append((g, x))
        nxt_free = g - 1
for g, x in placed:
    C.put(g, x)
for bb in range(4):
    for a in range(8):
        if 36 * bb + need[bb][a] > 0:
            C.reserve(36 * bb + need[bb][a] - 1, 4)
CT = OPT['ct']
assert CT >= 9
g0, dma_end = 0, 0
dma_at = {k: -46 for k in range(9)}
for k in range(3, CT + 1):
    g0 = max(g0, dma_at[k] + 44)
    p = C.fill(w2_tr(k), g0, min(g0 + 12, 144))
    g0 = p[-1] + 1
    if k == 9:
        tr9 = p[-1]
    if k < 8:
        d0 = max(p[-1] + 6, dma_end + 4)
        dma_end = dma_at[k + 6] = C.fill(w2_dma(k + 6), d0, d0 + 16, step=4)[-1]
print('w2 dma gaps', dma_at, 'last tr', g0)
red = [Seq()(f'ds_write_b128 v{vRa}, {ar(aC+4*c,4)} offset:{16384*(c//4) + 1024*(c%4)}') for c in range(8)]
for c, g in enumerate((129, 131, 133, 135, 137, 139, 142)):
    assert g > tr9 and g >= 108 + (c + 1) * (c + 2) // 2 + 4
    C.put(g, red[c])
C.fill(singles(small), 1, 14, step=2)
C.put(OPT['hfg'], hflag)
if OPT['vp']:
    hld = f'buffer_load_dword v{vPF}, v{vPA}, {srd(SWS)}, s{sFHp} offen sc1'
    C.fill(singles(Seq()(f'v_min_u32 v{vPA}, 6, v{vL}\nv_lshlrev_b32 v{vPA}, 2, v{vPA}')), 14, 30)
    C.put(OPT['hpg'], hld)
    hc = [Seq()(f'v_cmp_ne_u32 vcc, s{sNON}, v{vPF}')]
    retry(hc[0], 's_cbranch_vccnz', 's_cbranch_vccz', '\n'.join([hld, 's_waitcnt vmcnt(0)', hc[0].l[0].text]))
else:
    C.put(OPT['hpg'], spoll_issue(7, sFHp))
    hc = spoll_check(7, sFHp)
if OPT['nochk']:
    hc[-1].l[-2] = Ins('s_nop 0')
p = C.fill(hc, OPT['hcg'], OPT['hcg'] + 8)
g0 = max(p[-1], dma_end) + 1
NC = min(14, (144 - g0) // OPT['hs'])
C.fill([h_load(L) for L in range(NC)], g0, 144, step=OPT['hs'])
print('h loads in conv', NC)
print('conv over', C.over())
for x in prelude:
    com(x)
for g in range(0, 144, 12):
    com.add(C.emit(g, g + 12))
    if g < 132:
        stamp(com, f'c{g+12}', 4)
stamp(com, 'cv1')
NH0 = NC + OPT['nb4']
hl1 = [h_load(L) for L in range(NC, NH0)]
q = vCF + 56
for k in range(4):
    com(f'v_mov_b32 v{q+32+4*k+2}, s{sNON}')
    com(f'v_mov_b32 v{q+32+4*k+3}, s{sNON}')
com.add(red[7])
com.add(cat(hl1[:3]))
com.add(bar('*lds'))
rr = Seq()
for si in range(2):
    for e in range(2):
        for p in range(2):
            rr(f'ds_read_b128 {vr(q+16*si+8*e+4*p,4)}, v{vRa+1+e} offset:{2048*si + 4096*p}')
com.add(rr)
com.add(cat(hl1[3:6]))
for si in range(2):
    b = q + 16 * si
    for e in range(2):
        for k in range(2):
            com(f'v_pk_add_f32 {vr(b+8*e+2*k,2)}, {vr(b+8*e+2*k,2)}, {vr(b+8*e+4+2*k,2)}')
    for k in range(2):
        o = q + 32 + 8 * si + 4 * k
        com(f'v_cvt_pk_bf16_f32 v{o}, v{b+8+2*k}, v{b+8+2*k+1}')
        com(f'v_cvt_pk_bf16_f32 v{o+1}, v{b+2*k}, v{b+2*k+1}')
com.add(cat(hl1[6:]))
LATE = OPT['asg'] > 60
apark = [Seq()(f'v_accvgpr_write_b32 a{224+k}, v{q+32+k}') for k in range(16)]
ast = [Seq()(f'buffer_store_dwordx4 {ar(224+8*si+4*k,4) if LATE else vr(q+32+8*si+4*k,4)}, v{vAo}, {srd(SWS)}, s{sAT} offen offset:{2048*si + 128*k} sc1', tag='atst')
       for si in range(2) for k in range(2)]
if OPT['asg'] < 0:
    com.add(cat(ast))
stamp(com, 'cv2')

vA2, vP, vAa = vCF + 56, vCF + 88, vCF + 120
vPR = t
aL = vA2 + 16
a_ld = [f'buffer_load_dwordx4 {vr(vH0+4*i,4)}, v{vAs}, {srd(SWS)}, s{sAs+i} offen sc1' for i in range(4)]
a_cmp = [f'v_xor_b32 v{vH0+4*i+2}, s{sNON}, v{vH0+4*i+2}' for i in range(4)]
a_cmp += [f'v_or3_b32 v{vH0+3}, v{vH0+2}, v{vH0+6}, v{vH0+10}', f'v_or_b32 v{vH0+3}, v{vH0+3}, v{vH0+14}',
          f'v_cmp_ne_u32 vcc, 0, v{vH0+3}']
a_chk = [Seq()(x) for x in a_cmp]
retry(a_chk[-1], 's_cbranch_vccnz', 's_cbranch_vccz', '\n'.join(a_ld + ['s_waitcnt vmcnt(0)'] + a_cmp))
a_wr = [Seq()(f'ds_write_b64 v{vAd+i%2}, {vr(vH0+4*i,2)} offset:{512*i}', tag='awr') for i in range(4)]


g_chk = Seq()(f'v_cmp_ne_u32 vcc, s{sNON}, v{vGt+1}')
retry(g_chk, 's_cbranch_vccnz', 's_cbranch_vccz', '\n'.join([g_ld, 's_waitcnt vmcnt(0)', g_chk.l[0].text]))


def part_write(sg):
    return [Seq()(f'ds_write_b128 v{vPW}, {vr(vA2+16*(sg&1)+4*j,4)} offset:{16384*sg + 1024*j}', tag=f'pw{sg}') for j in range(4)]


def part_read(sg, dst):
    return [Seq()(f'ds_read_b128 {vr(dst+4*j,4)}, v{vPR+sg} offset:{1024*j}') for j in range(4)]


def unpack(dst, src):
    return [Seq()(f'v_and_b32 v{dst+k}, 0xffff0000, v{src+k//2}' if k % 2 else f'v_lshlrev_b32 v{dst+k}, 16, v{src+k//2}')
            for k in range(16)]


M = Gaps([f'v_mfma_f32_16x16x32_bf16 {vr(vA2+16*(sg&1)+4*j,4)}, {ar(16*ks+4*j,4)}, {vr(vH[sg&1]+4*ks,4)}, '
          f'{vr(vA2+16*(sg&1)+4*j,4) if (ks or sg == 3) else 0}'
          for sg in range(4) for ks in range(14) for j in range(4)], cap=8, maxlds=1)
HD = OPT['hd']
for g in range(3, 223, 4):
    M.reserve(g, 4)
nl = NH0
for step in range(56):
    a0 = max(OPT['asg'], 0) // 4
    for k in range(0 if a0 <= step < a0 + OPT['pause'] else 2 if step % OPT['cu'] == 0 else 1):
        if nl < 56 and nl <= step + HD:
            M.put(4 * step + 2 * k, h_load(nl))
            nl += 1
if OPT['asg'] >= 0:
    M.fill(ast, OPT['asg'], OPT['asg'] + 12, step=2)
M.fill([g for k in range(CT + 1, 14) for g in w2_tr(k)], 0, 40)
M.fill([Seq()(f'v_add_u32 v{vPR+sg}, s{sPR+sg}, v{vL16}') for sg in range(3)] + [g_chk, Seq()(f'v_sub_f32 v{vGt+1}, 1.0, v{vGt}')]
       + (apark if LATE else []) + unpack(vP, vB2), 20 if LATE else max(30, OPT['asg'] + 14), 110)
assert OPT['alg'] >= 128
M.fill([Seq()(x) for x in a_ld], OPT['alg'], OPT['alg'] + 14, step=3)
for sg in range(3):
    for j, g_ in enumerate(part_write(sg)):
        M.put(56 * (sg + 1) + 5 + (4 if sg == 0 else 3) * j, g_)
M.put(112 + 21, bar('pw1'))
M.fill(part_read(0, vP + 16) + part_read(1, aL), 112 + 22, 112 + 32)
M.fill([Seq()(f'v_add_f32 v{vP+k}, v{vP+k}, v{vP+16+k}') for k in range(16)]
       + [Seq()(f'v_add_f32 v{aL+k}, v{aL+k}, v{vP+k}') for k in range(16)], 112 + 34, 167)
AF = OPT['afg']
p = M.fill(a_chk + a_wr, OPT['acg'], AF - 1)
M.put(AF, bar('pw2', 'awr'))
M.fill([Seq()(f'ds_read_b64_tr_b16 {vr(vAa+2*j,2)}, v{vAr} offset:{4096*j}') for j in range(4)] + part_read(2, vP), AF + 1, min(AF + 7, 223))
M.fill(unpack(vP + 16, vAa) + [Seq()(f'v_mul_f32 v{vP+16+k}, v{vGt}, v{vP+16+k}') for k in range(16)]
       + [Seq()(f'v_fma_f32 v{vP+k}, v{vP+k}, v{vGt+1}, v{vP+16+k}') for k in range(16)], min(AF + 8, 223), 224)
print('gemm2 over', M.over())
for sg in range(4):
    for g in range(56 * sg, 56 * sg + 56, 14):
        com.add(M.emit(g, g + 14))
        if (g + 14) % 56:
            stamp(com, f'm{g+14}', 4)
    stamp(com, f'g2s{sg}')
for j in range(4):
    for i in range(0, 4, 2):
        k = 4 * j + i
        com(f'v_pk_fma_f32 {vr(vP+k,2)}, {vr(aL+k,2)}, {vr(vGt,2)}, {vr(vP+k,2)} op_sel:[0,1,0] op_sel_hi:[1,1,1]')
for j in range(4):
    com(f'v_cvt_pk_bf16_f32 v{vAa+2*j}, v{vP+4*j}, v{vP+4*j+1}')
    com(f'v_cvt_pk_bf16_f32 v{vAa+2*j+1}, v{vP+4*j+2}, v{vP+4*j+3}')
for j in range(4):
    com(f'ds_write_b64 v{vOw+j}, {vr(vAa+2*j,2)}')
for r in range(2):
    com(f'ds_read_b128 {vr(vP+16+4*r,4)}, v{vOr} offset:{1024*r}')
for r in range(2):
    com(f'buffer_store_dwordx4 {vr(vP+16+4*r,4)}, v{vOa}, {srd(SOUT)}, s{sO0+r} offen' + ('', ' sc1', ' nt', ' sc0 sc1')[OPT['osc']])
if OPT['stamps']:
    com.wait('*vm')
    stamp(com, 'end')
    com('s_waitcnt lgkmcnt(0)')
    stamp(com, 'x')
    com(f'''
s_waitcnt lgkmcnt(0)
s_memrealtime s[{sSTAMP}:{sSTAMP+1}]
v_writelane_b32 v{vST}, s{sSTAMP}, 63
s_getreg_b32 s{sT0}, hwreg(HW_REG_XCC_ID)
v_writelane_b32 v{vST}, s{sT0}, 61
s_getreg_b32 s{sT0}, hwreg(HW_REG_HW_ID)
v_writelane_b32 v{vST}, s{sT0}, 60
s_lshl2_add_u32 s{sT0}, s2, s{sWV}
s_lshl_b32 s{sT0}, s{sT0}, 8
s_add_u32 s{sT0}, s{sT0}, {WS_ST}
v_lshlrev_b32 v{t}, 2, v{vL}
buffer_store_dword v{vST}, v{t}, {srd(SWS)}, s{sT0} offen''')
if PROBE is not None:
    com.wait('*vm')
    stamp(com, 'end')
    role = PROBE.split(':')[1]
    com(f'''
s_waitcnt lgkmcnt(0)
s_cmp_ge_u32 s2, 224
{'s_cbranch_scc1 Lend' if role == 'm' else 's_cbranch_scc0 Lend' if role == 's' else 's_nop 0'}
v_readfirstlane_b32 s{sT1}, v{vST}
{dict(n=f's_sub_u32 s{sT0}, s{sSTAMP}, s{sNON}', r=f's_sub_u32 s{sT0}, s{sNON}, s{sT1}', s=f's_sub_u32 s{sT0}, s{sSTAMP}, s{sT1}')[PROBE.split(':')[2]]}
s_max_i32 s{sT0}, s{sT0}, 0
s_min_i32 s{sT0}, s{sT0}, 0x2000
s_lshl_b32 s{sT0}, s{sT0}, 2
s_memrealtime s[{sT2}:{sT3}]
s_waitcnt lgkmcnt(0)
s_add_u32 s{sT0}, s{sT0}, s{sT2}
Lprobe:
s_memrealtime s[{sT2}:{sT3}]
s_waitcnt lgkmcnt(0)
s_sub_u32 s{sT1}, s{sT2}, s{sT0}
s_cmp_lt_i32 s{sT1}, 0
s_cbranch_scc1 Lprobe''')
com('Lend:')
com('s_endpgm')

check_order(checks[0][0], main.l, checks[0][1])
check_order(checks[1][0], sp.l, checks[1][1])
for x in (main, sp, com):
    insert_m0(x.l)
if OPT['stamps']:
    p0 = finish_stamps(pro.l, None)
    p1 = finish_stamps(main.l, p0)
    assert p1 == finish_stamps(sp.l, p0)
    finish_stamps(com.l, p1)
    stamp_names.remove('x')
paths = (pro.l + main.l + com.l, pro.l + sp.l + com.l)
for p in paths:
    resolve_waits(p)
for p in paths:
    resolve_waits(p)
for p in paths:
    fix_hazards(p)

ref = open('gated_mix__ssm_conv_s4d__mixer_channel_mlp__prompt.s.ref').read().split('\n')
head = [l for l in ref if l.startswith(';') and '@launch' not in l]
txt = '\n'.join(head) + f'\n; @launch grid=(256,1,1) block=(256,1,1) lds={LDS_SIZE}\n'
txt += f'''.amdgcn_target "amdgcn-amd-amdhsa--gfx950"
.text
.p2align 12
.fill {(4096 - 768) // 4}, 4, 0xbf810000      ; the entry then starts a 4 KB page (instruction prefetch stops at page ends)
.globl {NAME}
.p2align 8
.type {NAME},@function
{NAME}:
'''
txt += render(pro.l) + render(main.l) + render(com.l) + ''.join(outline) + '.p2align 12\n' + render(sp.l)
txt += f'''Lcode_end:
    s_endpgm
.section .rodata,"a"
.p2align 6
.amdhsa_kernel {NAME}
  .amdhsa_next_free_vgpr 512
  .amdhsa_next_free_sgpr 102
  .amdhsa_accum_offset 256
  .amdhsa_group_segment_fixed_size 0
  .amdhsa_kernarg_size 128
  .amdhsa_user_sgpr_count 2
  .amdhsa_user_sgpr_kernarg_segment_ptr 1
  .amdhsa_system_sgpr_workgroup_id_x 1
.end_amdhsa_kernel
'''
open(sys.argv[1], 'w').write(txt)
if OPT['stamps']:
    open(sys.argv[1] + '.stamps', 'w').write(' '.join(stamp_names))
print('vgpr high water', V.hw, 'instr', [sum(1 for i in p.l if i.kind != 'meta') for p in (pro, main, com, sp)],
      'nops', sum(i.pre for p in (pro, main, com) for i in p.l))
```

```python
import re

REG_RE = re.compile(r'^(?:-|\|)?(?:abs\(|neg\()?([vas])(?:(\d+)|\[(\d+):(\d+)\])\)?\|?$')
TRANS = ('v_exp_f32', 'v_log_f32', 'v_rcp_f32', 'v_rsq_f32', 'v_sqrt_f32', 'v_sin_f32', 'v_cos_f32')


def regs_of(op):
    op = op.strip()
    if op in ('vcc', 'exec'):
        return [op]
    if op in ('vcc_lo', 'vcc_hi'):
        return ['vcc']
    if op in ('exec_lo', 'exec_hi'):
        return ['exec']
    if op == 'm0':
        return ['m0']
    m = REG_RE.match(op)
    if not m:
        return []
    k = m.group(1)
    if m.group(2) is not None:
        return [k + m.group(2)]
    return [k + str(i) for i in range(int(m.group(3)), int(m.group(4)) + 1)]


class Ins:
    __slots__ = ('text', 'tag', 'kind', 'mn', 'dst', 'src', 'a', 'b', 'c', 'passes', 'vm', 'lgkm', 'wide_store',
                 'data', 'pre', 'wait_tags', 'nvm', 'nlgkm', 'm0')

    def __init__(self, text, tag=None):
        self.text = text.strip()
        self.tag = tag
        self.pre = 0
        self.nvm = None
        self.nlgkm = None
        self.wait_tags = None
        self.m0 = None
        self.dst, self.src = [], []
        self.a = self.b = self.c = None
        self.passes = 0
        self.vm = self.lgkm = False
        self.wide_store = False
        self.data = []
        t = self.text.split(';')[0].strip()
        if t == '' or t.endswith(':') or t.startswith('.'):
            self.kind = 'meta'
            self.mn = ''
            return
        parts = t.split(None, 1)
        mn = parts[0]
        for suf in ('_e32', '_e64', '_dpp', '_sdwa'):
            if mn.endswith(suf):
                mn = mn[:-len(suf)]
        self.mn = mn
        rest = parts[1] if len(parts) > 1 else ''
        ops, depth, cur = [], 0, ''
        for ch in rest:
            if ch == '[':
                depth += 1
            if ch == ']':
                depth -= 1
            if ch == ',' and depth == 0:
                ops.append(cur.strip())
                cur = ''
            else:
                cur += ch
        if cur.strip():
            ops.append(cur.strip())
        mods = ''
        if ops:
            last = ops[-1].split(None, 1)
            ops[-1] = last[0]
            mods = last[1] if len(last) > 1 else ''
        R = [regs_of(o) for o in ops]
        flat = lambda l: [r for x in l for r in x]
        if mn.startswith('v_mfma'):
            self.kind = 'mfma'
            self.dst = R[0]
            self.a, self.b, self.c = R[1], R[2], R[3]
            self.src = R[1] + R[2] + R[3]
            self.passes = 8 if '32x32' in mn else 4
        elif mn.startswith('v_'):
            self.kind = 'valu'
            self.dst = R[0]
            self.src = flat(R[1:])
            if mn.startswith(('v_fmac', 'v_dot2c', 'v_pk_fmac', 'v_writelane')) or 'dpp' in parts[0] or 'row_' in mods or 'quad_perm' in mods:
                self.src += R[0]
            if mn.startswith(('v_swap', 'v_permlane16_swap', 'v_permlane32_swap')):
                self.dst = R[0] + R[1]
                self.src = R[0] + R[1]
            if mn.startswith(('v_add_co', 'v_sub_co', 'v_addc_co', 'v_subb_co')):
                self.dst = R[0] + R[1]
                self.src = flat(R[2:])
            if 'row_' in mods or 'quad_perm' in mods or 'wave_' in mods:
                self.kind = 'valu'
                self.data = ['dpp']
        elif mn.startswith('ds_'):
            self.kind = 'ds'
            self.lgkm = True
            if mn.startswith(('ds_read', 'ds_bpermute', 'ds_permute', 'ds_swizzle')):
                self.dst = R[0]
                self.src = flat(R[1:])
                if 'd16' in mn:
                    self.src += R[0]
            else:
                self.src = flat(R)
            if 'addtid' in mn:
                self.src.append('m0')
        elif mn.startswith(('buffer_', 'global_')):
            self.kind = 'vmem'
            self.vm = True
            islds = 'lds' in mods.split() or '_lds_' in mn
            if 'load' in mn and not islds:
                self.dst = R[0]
                self.src = flat(R[1:])
                if 'd16' in mn:
                    self.src += R[0]
            else:
                self.src = flat(R)
                if islds:
                    self.src.append('m0')
                if 'store' in mn and ('x4' in mn or 'x3' in mn):
                    self.wide_store = True
                    self.data = R[0] if mn.startswith('buffer_') else R[1]
        elif mn.startswith('s_'):
            self.kind = 'salu'
            if mn.startswith(('s_load', 's_memtime', 's_memrealtime', 's_buffer_load')):
                self.kind = 'smem'
                self.dst = R[0]
                self.src = flat(R[1:])
            elif mn.startswith('s_atomic'):
                self.kind = 'smem'
                self.src = flat(R)
            elif mn.startswith(('s_cmp', 's_cbranch', 's_branch', 's_waitcnt', 's_barrier', 's_nop', 's_sleep',
                                's_endpgm', 's_setprio', 's_bitcmp')):
                self.src = flat(R)
            else:
                self.dst = R[0]
                self.src = flat(R[1:])
                if 'saveexec' in mn:
                    self.dst = self.dst + ['exec']
        else:
            raise ValueError('unknown instr: ' + text)

    def states(self):
        n = self.pre
        if self.nvm is not None or self.nlgkm is not None:
            n += 1
        if self.kind == 'meta':
            return n
        if self.mn == 's_nop':
            return n + int(self.text.split()[1]) + 1
        return n + 1


class Wait(Ins):
    def __init__(self, tags):
        super().__init__('; wait ' + ' '.join(tags))
        self.wait_tags = list(tags)


class Seq:
    def __init__(self):
        self.l = []

    def __call__(self, text, tag=None, m0=None):
        for ln in text.strip('\n').split('\n'):
            if ln.strip() == '':
                continue
            self.l.append(Ins(ln, tag))
            self.l[-1].m0 = m0
        return self

    def wait(self, *tags):
        self.l.append(Wait(tags))
        return self

    def add(self, other):
        self.l.extend(other.l if isinstance(other, Seq) else other)
        return self

    def __len__(self):
        return len(self.l)


def sprinkle(main, groups, start=0, end=None):
    items = main.l
    end = len(items) if end is None else end
    n = len(groups)
    out = Seq()
    pos = [start + (end - start) * k // n for k in range(n)] if n else []
    k = 0
    for i, it in enumerate(items):
        while k < n and pos[k] == i:
            out.add(groups[k])
            k += 1
        out.l.append(it)
    while k < n:
        out.add(groups[k])
        k += 1
    return out


def check_order(canon, path, extra=None):
    pos = {id(it): k for k, it in enumerate(path)}
    extra = extra or {}
    rw = []
    for it in canon:
        if it.kind == 'meta':
            continue
        assert id(it) in pos, 'missing ' + it.text
        ed, es = extra.get(id(it), ((), ()))
        rw.append((it, set(it.dst) | set(ed), (set(it.src) | set(es)) - {'m0'}))
    for i, (a, ad, as_) in enumerate(rw):
        for b, bd, bs in rw[i + 1:]:
            if (ad & (bd | bs)) or (as_ & bd):
                assert pos[id(a)] < pos[id(b)], 'order violated: %s | %s' % (a.text, b.text)


def insert_m0(items):
    out, cur = [], None
    for it in items:
        if it.kind == 'meta' and it.text.endswith(':') and not it.text.startswith('Lback'):
            cur = None
        assert 'm0' not in it.dst
        if 'm0' in it.src:
            assert it.m0, it.text
            if it.m0 != cur:
                cur = it.m0
                k = len(out)
                while k and out[k - 1].kind == 'meta' and out[k - 1].wait_tags is not None:
                    k -= 1
                p = out[k - 1]
                if p.kind in ('mfma', 'valu', 'ds', 'vmem') and 'm0' not in p.src:
                    k -= 1
                elif p.kind == 'salu' and p.mn.startswith(('s_add_u32', 's_mul', 's_lshl', 's_and', 's_mov')):
                    k -= 1
                else:
                    k = len(out)
                out.insert(k, Ins(cur))
        out.append(it)
    items[:] = out


def resolve_waits(path):
    vmq, lq = [], []
    smem = []

    def need(it, nvm=None, nl=None):
        if nvm is not None:
            nvm = min(nvm, 63)
            it.nvm = nvm if it.nvm is None else min(it.nvm, nvm)
        if nl is not None:
            nl = min(nl, 15)
            it.nlgkm = nl if it.nlgkm is None else min(it.nlgkm, nl)

    seen_tags = set()
    for it in path:
        touched = set(it.dst) | set(it.src)
        if it.wait_tags is not None:
            for t in it.wait_tags:
                if t == '*vm':
                    if vmq:
                        need(it, nvm=0)
                    continue
                if t == '*lgkm':
                    if lq or smem:
                        need(it, nl=0)
                    continue
                if t == '*lds':
                    if lq:
                        need(it, nl=0)
                    continue
                opt = t.endswith('?')
                t = t.rstrip('?')
                assert opt or t in seen_tags, 'wait on unknown tag ' + t
                for q, isvm in ((vmq, True), (lq, False)):
                    idx = [i for i, o in enumerate(q) if o.tag == t]
                    if idx:
                        n = len(q) - 1 - idx[-1]
                        need(it, nvm=n) if isvm else need(it, nl=n)
        elif touched:
            if any(set(o.dst) & touched for o in smem):
                need(it, nl=0)
            for q, isvm in ((vmq, True), (lq, False)):
                idx = [i for i, o in enumerate(q) if set(o.dst) & touched]
                if idx and ((it.vm and isvm) or (it.lgkm and not isvm)):
                    idx = [i for i in idx if set(q[i].dst) & set(it.src)]
                if idx:
                    n = len(q) - 1 - idx[-1]
                    need(it, nvm=n) if isvm else need(it, nl=n)
        nvm, nl = it.nvm, it.nlgkm
        if it.mn == 's_waitcnt':
            m = re.search(r'vmcnt\((\d+)\)', it.text)
            if m:
                nvm = int(m.group(1)) if nvm is None else min(nvm, int(m.group(1)))
            m = re.search(r'lgkmcnt\((\d+)\)', it.text)
            if m:
                nl = int(m.group(1)) if nl is None else min(nl, int(m.group(1)))
        if nvm is not None:
            del vmq[:max(0, len(vmq) - nvm)]
        if nl is not None:
            del lq[:max(0, len(lq) - nl)]
            if nl == 0:
                smem.clear()
        if it.tag:
            seen_tags.add(it.tag)
        if it.vm:
            vmq.append(it)
        if it.lgkm:
            lq.append(it)
        if it.kind == 'smem':
            smem.append(it)


def fix_hazards(path):
    hist = []

    def dist_needed(p, c):
        pd, cs, cd = set(p.dst), set(c.src), set(c.dst)
        n = 0
        if p.kind == 'valu':
            vd = {r for r in pd if r[0] in 'va' and r != 'vcc'}
            sd = pd - vd
            if c.kind == 'mfma' and vd & cs:
                n = max(n, 2)
            if c.kind == 'valu':
                if p.mn in TRANS and vd & cs:
                    n = max(n, 1)
                if c.mn in ('v_readfirstlane_b32', 'v_readlane_b32') and vd & cs:
                    n = max(n, 1)
                if (c.data == ['dpp'] or c.mn.startswith('v_permlane')) and vd & cs:
                    n = max(n, 2)
                if sd & cs:
                    n = max(n, 4 if c.mn in ('v_readlane_b32', 'v_writelane_b32') else 2)
            if c.kind in ('vmem', 'ds') and p.mn in TRANS and vd & cs:
                n = max(n, 1)
            if c.kind == 'vmem' and sd & cs:
                n = max(n, 5)
            if c.kind in ('salu', 'smem') and sd & cs:
                n = max(n, 2)
            if 'exec' in pd:
                n = max(n, 5)
        if p.kind == 'salu' and 'm0' in pd and 'm0' in cs and c.kind in ('vmem', 'ds'):
            n = max(n, 1)
        if p.kind == 'mfma':
            big = {4: 8, 8: 12}[p.passes]
            if c.kind == 'mfma':
                if pd & (set(c.a) | set(c.b)):
                    n = max(n, big)
                if pd & set(c.c):
                    if not (p.dst == c.c and p.passes == c.passes):
                        n = max(n, big - 2)
                elif pd & cd:
                    n = max(n, big)
            elif c.kind in ('valu', 'vmem', 'ds'):
                if pd & (cs | cd):
                    n = max(n, big)
                if set(p.c) & cd:
                    n = max(n, {4: 3, 8: 7}[p.passes])
        if p.wide_store and set(p.data) & cd:
            n = max(n, 2)
        return n

    for it in path:
        if it.kind != 'meta':
            d = it.pre + (1 if (it.nvm is not None or it.nlgkm is not None) else 0)
            short = 0
            for p in reversed(hist):
                if d >= 12:
                    break
                if p.kind != 'meta':
                    short = max(short, dist_needed(p, it) - d)
                d += p.states()
            if short > 0:
                it.pre += short
        hist.append(it)
        if len(hist) > 40:
            del hist[0]


def render(items):
    out = []
    for it in items:
        n = it.pre
        while n > 0:
            k = min(n, 16)
            out.append('    s_nop %d' % (k - 1))
            n -= k
        w = []
        if it.nvm is not None:
            w.append('vmcnt(%d)' % it.nvm)
        if it.nlgkm is not None:
            w.append('lgkmcnt(%d)' % it.nlgkm)
        if w:
            out.append('    s_waitcnt ' + ' '.join(w))
        if it.wait_tags is not None:
            continue
        out.append(it.text if (it.kind == 'meta' and it.text.endswith(':')) else '    ' + it.text)
    return '\n'.join(out) + '\n'


def weave(main, fill, start=0, end=None, late=False, gaps=None):
    idx = [i for i, it in enumerate(main.l) if it.kind == 'mfma']
    end = len(idx) if end is None else end
    gaps = list(range(start, end)) if gaps is None else list(gaps)
    n = len(fill)
    where = {}
    for k, g in enumerate(fill):
        gp = gaps[k * len(gaps) // n]
        if late:
            pos = (idx[gp + 1] - 1) if gp + 1 < len(idx) else len(main.l) - 1
        else:
            pos = idx[gp]
        where.setdefault(pos, []).append(g)
    out = Seq()
    for i, it in enumerate(main.l):
        out.l.append(it)
        for g in where.get(i, []):
            out.add(g)
    return out


def singles(seq):
    out, cur = [], Seq()
    for it in seq.l:
        cur.l.append(it)
        if it.wait_tags is None and it.kind != 'meta':
            out.append(cur)
            cur = Seq()
    if len(cur):
        out.append(cur)
    return out


def icost(it):
    if it.kind == 'meta':
        return 4 if it.wait_tags is not None else 0
    if it.mn in TRANS:
        return 8
    if it.kind == 'mfma':
        return 16 if it.passes == 4 else 32
    if it.mn.startswith('ds_write'):
        return 24 if '128' in it.mn else 4 if 'addtid' in it.mn else 12
    return 4


class Gaps:
    def __init__(self, mfmas, cap, maxlds=99):
        self.m = [Ins(x) if isinstance(x, str) else x for x in mfmas]
        n = len(self.m)
        self.mem = [[] for _ in range(n)]
        self.alu = [[] for _ in range(n)]
        self.load = [0] * n
        self.nlds = [0] * n
        self.cap = cap
        self.maxlds = maxlds

    @staticmethod
    def _info(g):
        ismem = any(it.kind in ('ds', 'vmem') or it.mn == 's_barrier' for it in g.l)
        return ismem, sum(icost(it) for it in g.l), sum(it.kind == 'ds' for it in g.l)

    def put(self, gap, g, cost=None):
        if isinstance(g, str):
            g = Seq()(g)
        ismem, c, nl = self._info(g)
        (self.mem if ismem else self.alu)[gap].append(g)
        self.load[gap] += c if cost is None else cost
        self.nlds[gap] += nl

    def reserve(self, gap, cost):
        self.load[gap] += cost

    def fill(self, groups, g0, g1, step=0):
        for slack in range(0, 400, 4):
            load, nlds = list(self.load), list(self.nlds)
            g, alu_here, plan = g0, False, []
            for grp in groups:
                ismem, c, nl = self._info(grp)
                while g < g1 and ((load[g] + c > self.cap + slack and load[g] > 0) or (ismem and alu_here)
                                  or (nl and nlds[g] + nl > self.maxlds + slack // 4)):
                    g, alu_here = g + 1, False
                if g >= g1:
                    break
                plan.append(g)
                load[g] += c
                nlds[g] += nl
                alu_here = alu_here or not ismem
                if step:
                    g, alu_here = g + step, False
            else:
                for grp, gp in zip(groups, plan):
                    self.put(gp, grp)
                return plan
        raise RuntimeError('cannot place stream')

    def spread(self, groups, g0, g1):
        slots = [g for g in range(g0, g1) for _ in range(max(0, (self.cap - self.load[g]) // 4))]
        need = len(groups) - len(slots)
        lvl = 0
        while need > 0:
            cand = [g for g in range(g0, g1) if self.load[g] <= self.cap + lvl]
            k = min(need, len(cand))
            slots += [cand[i * len(cand) // k] for i in range(k)]
            need -= k
            lvl += 4
        slots.sort()
        for grp, gp in zip(groups, slots):
            assert not self._info(grp)[0]
            self.put(gp, grp)
        return slots[:len(groups)]

    def over(self):
        return sum(max(0, l - self.cap) for l in self.load)

    def emit(self, lo=0, hi=None):
        s = Seq()
        for i in range(lo, len(self.m) if hi is None else hi):
            s.l.append(self.m[i])
            for g in self.mem[i] + self.alu[i]:
                s.add(g)
        return s


class Regs:
    def __init__(self, kind, lo, hi):
        self.kind = kind
        self.free = set(range(lo, hi))
        self.hw = lo

    def alloc(self, n=1, align=None):
        align = align or (1 if n == 1 else 2 if n == 2 else 4 if self.kind == 's' else 2)
        for b in sorted(self.free):
            if b % align == 0 and all(b + i in self.free for i in range(n)):
                for i in range(n):
                    self.free.remove(b + i)
                self.hw = max(self.hw, b + n)
                return b
        raise RuntimeError('out of %s registers (need %d)' % (self.kind, n))

    def release(self, b, n=1):
        for i in range(n):
            assert b + i not in self.free, 'double free %d' % (b + i)
            self.free.add(b + i)


def vr(b, n=1, k='v'):
    return '%s%d' % (k, b) if n == 1 else '%s[%d:%d]' % (k, b, b + n - 1)


def ar(b, n=1):
    return vr(b, n, 'a')


def sr(b, n=1):
    return vr(b, n, 's')
```

```python
import sys, struct, math
from asmlib import *

NAME = 'gated_mix__ssm_conv_s4d__mixer_channel_mlp__prompt_kernel'
OPT = dict(stamps=0, rt=0, rot=1, touch=1, tlb=0, early=10, nk=19, res=40, lst=9, hd=27, osc=0, up=-1, ud=0, pcg=170,
           hfg=22, hpg=76, hcg=116, alg=118, acg=184, afg=196, ct=10, nb4=8, asg=-1, skipw=0, c3=1, gs0=4, gsp=13, pause=6, hs=3, cu=99, ua=80, nost=0, hsk=0, nochk=0, vp=1, ng=2, ds=4, d00=2, smg=60, tw=12, lead=8, atl=0, als=8, wtl=1, t1=0, te=0, cord=1, eo=0, iw=1)
PROBE = None
for a in sys.argv[2:]:
    k, v = a.split('=')
    if k == 'probe':
        PROBE = v
        continue
    assert k in OPT, k
    OPT[k] = int(v)


def f32(x):
    return '0x%08x' % struct.unpack('<I', struct.pack('<f', x))[0]


FU, FH, FDUMMY = 0x10000, 0x1000, 0x9000
WS_TP = 0x80000
WS_TS = 0x88000
WS_G = 0x90000
WS_FP = 0x98000
WS_ST = 0xA0000
WS_UT = 0x200000
HS = 2 if OPT['hsk'] else 1
WS_AT = 0x400000
WS_H = 0x800000 + (512 if OPT['hsk'] else 0)
WS_SIZE = 0x10000000
L_X, L_W = 32768, 98304
PART = 8192
O_T = 4352
L_U = 32768
L_E = 65536
LDS_SIZE = 163840

P_U, P_LA, P_AI, P_CR, P_CI, P_DT, P_DS, P_BX, P_W1, P_B1, P_W2, P_B2, P_GW, P_OUT, P_DBG, P_WS = [4 + 2 * i for i in range(16)]
SX, SW1, SW2, SWS, SOUT = 36, 40, 44, 48, 52
sXCD, sJ, sWV, sBH = 56, 57, 58, 59
sT0, sT1, sT2, sT3 = 60, 61, 62, 63
sNON, sNON1 = 64, 65
sM, sXb, sWb, sKC, sXk, sWk = 66, 67, 68, 69, 70, 71
sHst, sHst2, sFH, sTB1, sCB1, sW2l = 72, 73, 74, 75, 76, 77
sP4, sCNT, sTB2, sNB, sCH, sT4 = 78, 79, 80, 81, 82, 83
sF = 84
sSTAMP = 100
sUt, sUo, sFU, sFUp = 3, 98, 99, 13
sDT, sDS = 96, 97
sT5 = 91
sUs, sUm = 4, 5
sSEL0, sSEL1 = 18, 19
sH = 6
sPR = 10
sAT, sFHp, sAT2, sGs = 14, 15, 16, 17
sAs = 92
sO0, sO1 = 20, 21
srd = lambda b: 's[%d:%d]' % (b, b + 3)
ptr = lambda b: 's[%d:%d]' % (b, b + 1)

V = Regs('v', 0, 256)
vTID, vL, vZ, vST, vN, vG, vNON, vPF = [V.alloc() for _ in range(8)]
vT = V.alloc(8, 4)
vZ2 = V.alloc(4, 4)
vL16 = V.alloc(4, 1)
vPA = V.alloc()
vW2s = V.alloc(4, 1)
vTr = V.alloc(8, 1)
vFa, vGa = V.alloc(), V.alloc()
vUz = V.alloc(2, 1)
vX = V.alloc(16, 1)
vPAR, vPo, vXs, vWs = vX, vX + 6, vX + 8, vX + 12
vRa, vAd, vPW, vAr, vOw, vOr, vOa, vBa, vGo, vAs = vX, vX + 3, vX + 5, vX + 6, vX + 7, vX + 11, vX + 12, vX + 13, vX + 14, vX + 15
vAo = V.alloc()
t = vT

outline = []
stamp_names = []
nlab = [0]
checks = []


def stamp(s, name, lvl=1):
    if PROBE is not None and name == 'karg':
        s(f'v_mov_b32 v{vST}, s{sSTAMP}')
    if PROBE is not None and name in (PROBE.split(':')[0], 'start'):
        s(f's_memrealtime s[{sSTAMP}:{sSTAMP+1}]')
        s.l[-1].kind, s.l[-1].dst = 'salu', []
    if OPT['stamps'] < lvl or (OPT['stamps'] == 4 and lvl in (2, 3)):
        return
    if name not in stamp_names:
        stamp_names.append(name)
    s(f's_mem{"real" if OPT["rt"] else ""}time s[{sSTAMP}:{sSTAMP+1}]', tag='stamp:' + name)
    s.l[-1].kind, s.l[-1].dst = 'salu', []


def finish_stamps(items, prev):
    out = []
    for it in items:
        if it.tag and it.tag.startswith('stamp:'):
            if prev is not None:
                out.append(Ins(f'v_writelane_b32 v{vST}, s{sSTAMP}, {stamp_names.index(prev)}'))
            prev = it.tag[6:]
        out.append(it)
    items[:] = out
    return prev


def retry(s, branch, exit_branch, body):
    k = nlab[0]
    nlab[0] += 1
    s(f'{branch} Lretry{k}')
    s(f'Lback{k}:')
    body = '\n'.join('    ' + l.strip() for l in body.strip().split('\n'))
    outline.append(f'''Lretry{k}:
    s_mov_b32 s{sCNT}, 0x40000
Lloop{k}:
    s_sleep 2
{body}
    {exit_branch} Lback{k}
    s_sub_u32 s{sCNT}, s{sCNT}, 1
    s_cbranch_scc0 Lloop{k}
    s_branch Lback{k}
''')


def cat(groups):
    s = Seq()
    for g in groups:
        s.add(g)
    return s


def chunks(seq, n):
    return [Seq().add(seq.l[i:i + n]) for i in range(0, len(seq), n)]


def bar(*tags):
    s = Seq()
    if tags:
        s.wait(*tags)
    s('s_barrier')
    return s


def nonce_issue():
    return Seq()(f'global_load_dword v{vNON}, v{vZ}, {ptr(P_DBG)} sc1')


def nonce_check():
    s = Seq()
    s(f'v_readfirstlane_b32 s{sNON}, v{vNON}')
    s(f's_cmp_eq_u32 s{sNON}, 0')
    retry(s, 's_cbranch_scc1', 's_cbranch_scc0', f'''
global_load_dword v{vNON}, v{vZ}, {ptr(P_DBG)} sc1
s_waitcnt vmcnt(0)
v_readfirstlane_b32 s{sNON}, v{vNON}
s_nop 3
s_cmp_eq_u32 s{sNON}, 0''')
    s(f's_mov_b32 s{sNON1}, s{sNON}')
    return s


def flag_set(s, soff):
    s(f's_atomic_swap s{sNON}, {ptr(P_WS)}, s{soff}')


def spoll_issue(n, soff):
    return Seq()(f's_load_dwordx{8 if n <= 8 else 16} s[{sF}:{sF + (7 if n <= 8 else 15)}], {ptr(P_WS)}, s{soff} glc')


def spoll_check(n, soff):
    l = []
    for k in range(0, n - 1, 2):
        l.append(f's_xor_b64 s[{sF+k}:{sF+k+1}], s[{sF+k}:{sF+k+1}], s[{sNON}:{sNON1}]')
    if n % 2:
        l.append(f's_xor_b32 s{sF+n-1}, s{sF+n-1}, s{sNON}')
        l.append(f's_or_b32 s{sF}, s{sF}, s{sF+n-1}')
    for k in range(2, n - 1, 2):
        l.append(f's_or_b64 s[{sF}:{sF+1}], s[{sF}:{sF+1}], s[{sF+k}:{sF+k+1}]')
    g = [Seq()(x) for x in l]
    retry(g[-1], 's_cbranch_scc1', 's_cbranch_scc0', '\n'.join([spoll_issue(n, soff).l[0].text, 's_waitcnt lgkmcnt(0)'] + l))
    return g


pro = Seq()
pro('s_cmp_ge_u32 s2, 0x100\ns_cbranch_scc1 Lend')
if OPT['stamps']:
    pro(f'''
s_memrealtime s[{sSTAMP}:{sSTAMP+1}]
s_waitcnt lgkmcnt(0)
s_add_u32 s{sT0}, s{sSTAMP}, 0x500
s_and_b32 s{sT0}, s{sT0}, 0xfffffc00
Lsync:
s_memrealtime s[{sSTAMP}:{sSTAMP+1}]
s_waitcnt lgkmcnt(0)
s_sub_u32 s{sT1}, s{sSTAMP}, s{sT0}
s_cmp_lt_i32 s{sT1}, 0
s_cbranch_scc1 Lsync
v_mov_b32 v{vST}, 0
v_writelane_b32 v{vST}, s{sSTAMP}, 62''')
stamp(pro, 'start')
pro(f'''
s_load_dwordx2 s[{SX}:{SX+1}], s[0:1], 0
s_load_dwordx2 s[{SW1}:{SW1+1}], s[0:1], 64
s_load_dwordx16 s[4:19], s[0:1], 0
s_load_dwordx16 s[20:35], s[0:1], 64
s_getpc_b64 s[{sT2}:{sT3}]
Lpc:
s_cmp_ge_u32 s2, 224
s_cbranch_scc1 Lspare
''')


def pro_body(s):
    s(f'''
v_lshrrev_b32 v{t}, 6, v{vTID}
v_and_b32 v{vL}, 63, v{vTID}
v_readfirstlane_b32 s{sWV}, v{t}
v_mov_b32 v{vZ}, 0
s_and_b32 s{sXCD}, s2, 7
s_lshr_b32 s{sJ}, s2, 3
s_lshl2_add_u32 s{sT0}, s{sJ}, s{sWV}
s_mul_i32 s{sT0}, s{sT0}, 384
v_and_b32 v{t+1}, 3, v{vL}
v_lshl_add_u32 v{t+1}, v{t+1}, 7, s{sT0}
v_min_u32 v{t+1}, Lcode_end-Lpc-4, v{t+1}
global_load_dword v{vPF}, v{t+1}, s[{sT2}:{sT3}]
s_lshl_b32 s{sT0}, s2, 9
v_lshl_add_u32 v{vPo}, v{vTID}, 1, s{sT0}
s_lshl_b32 s{sCNT}, s2, 2
v_lshlrev_b32 v{vL16}, 4, v{vL}
v_and_b32 v{vN}, 15, v{vL}
v_lshrrev_b32 v{vG}, 4, v{vL}
s_mov_b32 s{SX+2}, 0x200000
s_mov_b32 s{SX+3}, 0x20000
s_mov_b32 s{SW1+2}, {512*3584}
s_mov_b32 s{SW1+3}, 0x20000
s_lshl_b32 s{sM}, s{sWV}, 12
s_lshl_b32 s{sP4}, s{sWV}, 13
s_lshl_b32 s{sT5}, s{sWV}, 11
s_and_b32 s{sBH}, s{sWV}, 1
s_lshr_b32 s{sT0}, s{sXCD}, 1
s_and_b32 s{sT1}, s{sJ}, 7
s_lshl3_add_u32 s{sUo}, s{sT0}, s{sT1}
s_and_b32 s{sT0}, s{sXCD}, 1
s_lshr_b32 s{sT1}, s{sJ}, 3
s_lshl2_add_u32 s{sFU}, s{sT0}, s{sT1}
s_lshl2_add_u32 s{sUt}, s{sUo}, s{sWV}
s_lshl_b32 s{sUt}, s{sUt}, 7
s_add_u32 s{sUt}, s{sUt}, s{sFU}
s_lshl_b32 s{sUt}, s{sUt}, 7
s_lshl_b32 s{sT0}, s{sWV}, 1
v_and_b32 v{t+2}, 7, v{vL}
v_xor_b32 v{t+2}, s{sT0}, v{t+2}
v_lshrrev_b32 v{t+3}, 3, v{vL}
v_lshlrev_b32 v{t+3}, 10, v{t+3}
v_lshl_add_u32 v{vFa}, v{t+2}, 4, v{t+3}
v_xor_b32 v{vGa}, 16, v{vFa}
v_add_u32 v{vGa}, 7168, v{vGa}
''')


def ut_loads(lds):
    s = Seq()
    for i in range(2):
        s(f'buffer_load_dwordx4 v{(vFa, vGa)[i]}, {srd(SX)}, s{sUt} offen offset:{1024*i} lds', tag='utl',
          m0=f's_add_u32 m0, s{sT5}, {lds}')
    return s


def ut_setup(lds):
    s = Seq()
    s(f'''
v_and_b32 v{t}, 7, v{vL}
v_lshrrev_b32 v{t+1}, 5, v{vL}
v_lshl_add_u32 v{t+1}, s{sWV}, 1, v{t+1}
v_xor_b32 v{t+1}, v{t+1}, v{t}
v_lshlrev_b32 v{t+1}, 4, v{t+1}
v_lshl_add_u32 v{t+1}, v{t}, 10, v{t+1}
v_bfe_u32 v{t+2}, v{vL}, 3, 2
v_lshl_add_u32 v{t+1}, v{t+2}, 2, v{t+1}
v_add_u32 v{vUz}, {lds}, v{t+1}
v_lshrrev_b32 v{t+1}, 3, v{vL}
v_lshlrev_b32 v{t+1}, 13, v{t+1}
v_lshl_add_u32 v{vUz+1}, v{t}, 4, v{t+1}
s_lshl2_add_u32 s{sT0}, s{sFU}, s{sWV}
s_lshl_b32 s{sT0}, s{sT0}, 9
s_lshl_b32 s{sFU}, s{sFU}, 5
s_add_u32 s{sFU}, s{sFU}, s{sUo}
s_lshl_b32 s{sFU}, s{sFU}, 4
s_add_u32 s{sFU}, s{sFU}, {FU}
s_add_u32 s{sUo}, s{sUo}, s{sT0}
s_lshl_b32 s{sUo}, s{sUo}, 7
s_add_u32 s{sUo}, s{sUo}, {WS_UT}
s_add_u32 s{sUt}, s{sUo}, 4096
s_mov_b32 s{sSEL0}, 0x05040100
s_mov_b32 s{sSEL1}, 0x07060302
''')
    return s


def ut_work(r):
    a, b = bar('utl'), Seq()
    for k in range(4):
        a(f'ds_read2_b32 {vr(r+2*k,2)}, v{vUz} offset0:{64*k} offset1:{64*k+32}')
    for c in range(2):
        for k in range(4):
            b(f'v_perm_b32 v{r+8+4*c+k}, v{r+2*k+1}, v{r+2*k}, s{sSEL0+c}')
    for c in range(2):
        b(f's_nop 0' if OPT['nost'] else f'buffer_store_dwordx4 {vr(r+8+4*c,4)}, v{vUz+1}, {srd(SWS)}, s{(sUo, sUt)[c]} offen sc1', tag='utst')
    return a, b


def fu_flag():
    k = nlab[0]
    nlab[0] += 1
    return Seq()(f'''
s_cmp_lg_u32 s{sWV}, 0
s_cbranch_scc1 Lback{k}
s_atomic_swap s{sNON}, {ptr(P_WS)}, s{sFU}
Lback{k}:''')


def param_loads(s):
    for i, p in enumerate((P_LA, P_AI, P_CR, P_CI)):
        s(f'global_load_ushort v{vPAR+i}, v{vPo}, {ptr(p)}')


def scalar_params(s):
    s(f's_load_dword s{sDT}, {ptr(P_DT)}, s{sCNT}')
    s(f's_load_dword s{sDS}, {ptr(P_DS)}, s{sCNT}')


def setup_a():
    s = Seq()
    for b, p, n in ((SW2, P_W2, 1792 * 1024), (SWS, P_WS, WS_SIZE), (SOUT, P_OUT, 0x200000)):
        s(f'''
s_mov_b64 s[{b}:{b+1}], s[{p}:{p+1}]
s_mov_b32 s{b+2}, {n}
s_mov_b32 s{b+3}, 0x20000''')
    s(f'''
s_lshl2_add_u32 s{sT1}, s2, s{sWV}
s_mul_i32 s{sT1}, s{sT1}, 1792
v_lshlrev_b32 v{t+7}, 7, v{vN}
s_lshl2_add_u32 s{sT2}, s{sJ}, s{sWV}
''')
    if OPT['tlb'] == 1:
        s(f'''
v_min_u32 v{t+6}, 8, v{vL}
v_lshlrev_b32 v{t+6}, 21, v{t+6}
v_or_b32 v{t+6}, 0x100000, v{t+6}''')
    if OPT['tlb'] == 2:
        s(f'''
s_lshl_b32 s{sT3}, s{sT2}, 7
s_add_u32 s{sT3}, s{sT3}, s{sXCD}
s_lshl_b32 s{sT4}, s{sT3}, 7
s_lshl_b32 s{sT3}, s{sT3}, 10
v_and_b32 v{t+6}, 1, v{vL}
v_lshl_add_u32 v{t+6}, v{t+6}, 16, s{sT3}''')
    s(f'''
s_mul_i32 s{sT2}, s{sT2}, {14*1024}
v_min_u32 v{vAo}, 13, v{vL}
v_lshlrev_b32 v{vAo}, 10, v{vAo}''')
    if OPT['c3']:
        s(f'buffer_load_dword v{vPF}, v{vAo}, {srd(SW2)}, s{sT2} offen offset:384')
    if OPT['t1']:
        s(f'buffer_load_dword v{vPF}, v{t+7}, {srd(SW1)}, s{sT1} offen')
    if OPT['touch']:
        s(f'buffer_load_dword v{vPF}, v{t+7}, {srd(SW2)}, s{sT1} offen')
    if OPT['tlb']:
        s(f'buffer_load_dword v{vPF}, v{t+6}, {srd(SWS)}, 0 offen sc1')
    if OPT['tlb'] == 2:
        s(f'buffer_load_dword v{vPF}, v{vZ}, {srd(SOUT)}, s{sT4} offen sc1')
    return s


vGA = V.alloc(9, 1)
vTA = V.alloc(5, 1)
vRR = V.alloc()
vEa = V.alloc(3, 1)


def setup_k():
    s = Seq()
    s(f'''
v_mul_u32_u24 v{t}, 272, v{vN}
v_lshl_add_u32 v{t}, v{vG}, 4, v{t}
v_add_u32 v{vRR}, s{sP4}, v{t}
s_add_u32 s{sT1}, s{sP4}, {O_T}
v_mov_b32 v{vEa+2}, s{sT1}
v_lshlrev_b32 v{vEa}, 4, v{vTID}
v_bfe_u32 v{t}, v{vL}, 2, 2
v_bfe_u32 v{t+1}, v{vL}, 2, 1
v_lshlrev_b32 v{t}, 13, v{t}
v_lshl_add_u32 v{t}, v{t+1}, 7, v{t}
v_and_b32 v{t+1}, 3, v{vL}
v_lshl_add_u32 v{vEa+1}, v{t+1}, 4, v{t}
v_mov_b32 v{vZ2}, 0
v_mov_b32 v{vZ2+1}, 0
v_mov_b32 v{vZ2+2}, 0
v_mov_b32 v{vZ2+3}, 0
v_lshrrev_b32 v{t}, 1, v{vG}
v_and_b32 v{t+1}, 1, v{vG}
v_mul_u32_u24 v{t+1}, 400, v{t+1}
v_lshl_add_u32 v{t+1}, v{t}, 4, v{t+1}
v_add_u32 v{t+1}, v{t+1}, v{vN}
v_lshl_add_u32 v{vTA}, v{t+1}, 2, s{sT1}
v_add_u32 v{vTA+1}, 800, v{vTA}
v_sub_u32 v{t+1}, 2, v{t}
v_lshlrev_b32 v{t+1}, v{t+1}, v{vN}
v_lshrrev_b32 v{t+2}, 3, v{t+1}
v_and_b32 v{t+1}, 7, v{t+1}
v_mul_u32_u24 v{t+1}, 100, v{t+1}
v_lshl_add_u32 v{t+2}, v{vG}, 3, v{t+2}
v_add3_u32 v{t+1}, v{t+1}, v{t+2}, 32
v_lshl_add_u32 v{vTA+2}, v{t+1}, 2, s{sT1}
v_mul_u32_u24 v{t}, 784, v{t}
v_sub_u32 v{t}, 800, v{t}
v_add_u32 v{vTA+3}, v{vTA+2}, v{t}
v_and_b32 v{t}, 7, v{vN}
v_mul_u32_u24 v{t}, 100, v{t}
v_lshrrev_b32 v{t+1}, 3, v{vN}
v_lshl_add_u32 v{t+1}, v{vG}, 3, v{t+1}
v_add3_u32 v{t}, v{t}, v{t+1}, 64
v_lshl_add_u32 v{vTA+4}, v{t}, 2, s{sT1}
''')
    return s


def setup_g():
    s = Seq()
    s(f'''
v_lshlrev_b32 v{t+4}, 3, v{vTID}
s_movk_i32 s{sT3}, 128
''')
    for i in range(9):
        g = vGA + i
        s(f'v_sub_u32 v{g}, {2047 - i}, v{t+4}')
        if i == 8:
            s(f'v_max_i32 v{t+5}, 0, v{g}')
            s(f'v_cvt_f32_u32 v{t+5}, v{t+5}')
        else:
            s(f'v_cvt_f32_u32 v{t+5}, v{g}')
        s(f'''
v_cvt_pk_bf16_f32 v{t+5}, v{t+5}, v{vZ}
v_add_u32 v{t+5}, {128 - 0x4300}, v{t+5}
v_med3_i32 v{g}, v{t+5}, v{g}, s{sT3}
v_and_b32 v{t+5}, 7, v{g}
v_ashrrev_i32 v{g}, 3, v{g}
v_mul_u32_u24 v{t+5}, 400, v{t+5}
v_lshl_add_u32 v{g}, v{g}, 2, v{t+5}''')
    return s


def setup_b():
    s = Seq()
    s(f'''
s_lshr_b32 s{sT0}, s{sJ}, 3
s_lshl2_add_u32 s{sTB2}, s{sXCD}, s{sT0}
s_and_b32 s{sNB}, s{sJ}, 7
s_mul_i32 s{sW2l}, s{sWV}, {448*1024}
s_lshl_b32 s{sT0}, s{sNB}, 7
s_add_u32 s{sW2l}, s{sW2l}, s{sT0}
s_sub_u32 s{sW2l}, s{sW2l}, 32768
s_lshr_b32 s{sT0}, s{sWV}, 1
s_lshl1_add_u32 s{sCH}, s2, s{sT0}
v_lshlrev_b32 v{t+2}, 1, v{vG}
v_and_b32 v{t+3}, 7, v{vL}
v_xor_b32 v{t+2}, v{t+2}, v{t+3}
v_lshrrev_b32 v{t+3}, 3, v{vL}
v_lshlrev_b32 v{t+3}, 10, v{t+3}
v_lshl_add_u32 v{vW2s}, v{t+2}, 4, v{t+3}
v_add_u32 v{vW2s+1}, {7168*1}, v{vW2s}
v_add_u32 v{vW2s+2}, {7168*2}, v{vW2s}
v_add_u32 v{vW2s+3}, {7168*3}, v{vW2s}
v_lshrrev_b32 v{t+2}, 2, v{vL}
v_lshlrev_b32 v{t+2}, 7, v{t+2}
v_and_b32 v{t+3}, 3, v{vL}
v_lshl_add_u32 v{t+2}, v{t+3}, 3, v{t+2}
v_bfe_u32 v{t+3}, v{vL}, 3, 2
v_lshl_add_u32 v{t+2}, v{t+3}, 5, v{t+2}
s_add_u32 s{sT0}, s{sM}, {L_E}
v_add_u32 v{vTr}, s{sT0}, v{t+2}
s_sub_u32 s{sT0}, s{sM}, {L_E - L_U}
''')
    for j in range(4):
        if j:
            s(f'v_xor_b32 v{vTr+j}, {32*j}, v{vTr}')
        s(f'v_add_u32 v{vTr+4+j}, s{sT0}, v{vTr+j}')
    s(f'''
v_and_b32 v{t+4}, 1, v{vL}
v_lshrrev_b32 v{t+5}, 1, v{vN}
s_and_b32 s{sT0}, s{sWV}, 2
s_lshl_b32 s{sT0}, s{sT0}, 13
s_lshl_b32 s{sT2}, s{sBH}, 8
s_sub_u32 s{sT0}, s{sT0}, s{sT2}
s_add_u32 s{sT1}, s{sT0}, {56 + 256}
v_mul_u32_u24 v{vFa}, {PART + 128}, v{t+4}
v_lshl_add_u32 v{vFa}, v{vG}, 4, v{vFa}
v_lshlrev_b32 v{t+6}, 3, v{t+5}
v_sub_u32 v{vFa}, v{vFa}, v{t+6}
v_add_u32 v{vFa}, s{sT1}, v{vFa}
s_add_u32 s{sT1}, s{sT0}, {L_U + 512 - 192}
v_mul_u32_u24 v{vGa}, {PART + 32}, v{t+4}
v_lshl_add_u32 v{vGa}, v{vG}, 4, v{vGa}
v_lshl_add_u32 v{vGa}, v{t+5}, 6, v{vGa}
v_add_u32 v{vGa}, s{sT1}, v{vGa}
s_lshr_b32 s{sFUp}, s2, 5
s_lshl_b32 s{sFUp}, s{sFUp}, 9
s_add_u32 s{sFUp}, s{sFUp}, {FU}
v_and_b32 v{vPA}, 31, v{vL}
v_lshlrev_b32 v{vPA}, 4, v{vPA}
s_lshl_b32 s{sT0}, s{sCH}, 12
s_lshl_b32 s{sT1}, s{sBH}, 2
s_sub_u32 s{sT0}, s{sT0}, s{sT1}
s_add_u32 s{sUs}, s{sT0}, {WS_UT}
s_lshl_b32 s{sT1}, s{sBH}, 5
s_add_u32 s{sUm}, s{sP4}, s{sT1}
v_lshl_add_u32 v{vUz}, v{vL}, 3, s{sUm}
s_lshl2_add_u32 s{sT0}, s{sBH}, s{sUm}
v_mov_b32 v{vUz+1}, s{sT0}
''')
    return s


def setup_c():
    s = Seq()
    a, b = t + 4, t + 5
    s(f'''
s_lshl2_add_u32 s{sT3}, s{sTB2}, s{sWV}
s_lshl_b32 s{sFHp}, s{sT3}, 7
s_add_u32 s{sGs}, s{sFHp}, {WS_G}
s_add_u32 s{sFHp}, s{sFHp}, {FH}
s_lshl_b32 s{sT2}, s{sNB}, 7
v_lshl_add_u32 v{vBa}, v{vG}, 3, s{sT2}
v_lshlrev_b32 v{vGo}, 3, v{vN}
v_min_u32 v{vPA}, 6, v{vL}
v_lshlrev_b32 v{vPA}, 2, v{vPA}
s_lshl_b32 s{sO0}, s{sT3}, 14
s_add_u32 s{sO0}, s{sO0}, s{sT2}
v_add_u32 v{vL16+1}, 4096, v{vL16}
v_add_u32 v{vL16+2}, 8192, v{vL16}
v_add_u32 v{vL16+3}, 12288, v{vL16}
s_lshl4_add_u32 s{sT3}, s{sTB2}, s{sWV}
s_mul_i32 s{sT3}, s{sT3}, {14*1024}
s_add_u32 s{sT3}, s{sT3}, {WS_H}''')
    for sg in range(4):
        if sg < 3:
            s(f's_add_u32 s{sT2}, s{sWV}, {sg + 1}\ns_and_b32 s{sT2}, s{sT2}, 3')
        s(f's_mul_i32 s{sT2}, s{sT2 if sg < 3 else sWV}, {56*1024}\ns_add_u32 s{sH+sg}, s{sT2}, s{sT3}')
    s(f'''
v_xor_b32 v{a}, v{vL}, v{vG}
s_add_u32 s{sT2}, s{sM}, {L_E + 2*16384}
v_lshl_add_u32 v{vRa}, v{a}, 4, s{sT2}
v_and_b32 v{a}, 3, v{vL}
v_bfe_u32 v{b}, v{vL}, 2, 3
v_lshlrev_b32 v{b}, 1, v{b}
v_xor_b32 v{b}, v{b}, v{a}
v_lshl_add_u32 v{b}, v{a}, 4, v{b}
v_lshrrev_b32 v{a}, 5, v{vL}
v_lshl_add_u32 v{b}, v{a}, 6, v{b}
s_and_b32 s{sT2}, s{sWV}, 2
s_lshl2_add_u32 s{sT2}, s{sBH}, s{sT2}
s_lshl_b32 s{sT2}, s{sT2}, 12
s_add_u32 s{sT2}, s{sT2}, {L_E + 2*16384}
v_lshl_add_u32 v{vRa+1}, v{b}, 4, s{sT2}
v_xor_b32 v{vRa+2}, 16, v{vRa+1}
v_and_b32 v{a}, 0x380, v{vL16}
v_add_u32 v{vAo}, v{vL16}, v{a}
s_lshl1_add_u32 s{sAT}, s{sCH}, s{sBH}
s_lshl_b32 s{sAT}, s{sAT}, 12
s_add_u32 s{sAT}, s{sAT}, {WS_AT}
''')
    return s


def setup_e():
    s = Seq()
    a, b, c = t + 4, t + 5, t + 6
    s(f'''
s_add_u32 s{sT2}, s{sM}, {L_E}
v_add_u32 v{vPW}, s{sT2}, v{vL16}
s_lshl2_add_u32 s{sT0}, s{sNB}, s{sWV}
s_lshl_b32 s{sT0}, s{sT0}, 9
s_add_u32 s{sT0}, s{sT0}, s{sTB2}
s_lshl_b32 s{sT0}, s{sT0}, 8
s_add_u32 s{sAs}, s{sT0}, {WS_AT}
s_add_u32 s{sAs+1}, s{sAs}, 32768
s_add_u32 s{sAs+2}, s{sAs}, 65536
s_add_u32 s{sAs+3}, s{sAs}, 98304
v_lshlrev_b32 v{a}, 13, v{vG}
v_lshl_add_u32 v{vAs}, v{vN}, 4, v{a}''')
    for sg in range(3):
        s(f'''
s_sub_u32 s{sT0}, s{sM}, {4096 * (sg + 1)}
s_and_b32 s{sT0}, s{sT0}, 0x3000
s_add_u32 s{sT0}, s{sT0}, {L_E + 16384*sg}
v_add_u32 v{t+sg}, s{sT0}, v{vL16}''')
    s(f'''
v_bfe_u32 v{a}, v{vL}, 1, 2
v_lshrrev_b32 v{b}, 5, v{vL}
v_xor_b32 v{a}, v{a}, v{b}
v_lshlrev_b32 v{a}, 5, v{a}
v_lshl_add_u32 v{a}, v{vG}, 7, v{a}
v_and_b32 v{b}, 1, v{vL}
v_lshl_add_u32 v{a}, v{b}, 4, v{a}
v_and_b32 v{b}, 8, v{vL}
s_add_u32 s{sT2}, s{sM}, {L_E + 3*16384}
v_add3_u32 v{vAd}, v{a}, v{b}, s{sT2}
v_xor_b32 v{vAd+1}, 64, v{vAd}
v_and_b32 v{b}, 7, v{vL}
v_lshrrev_b32 v{c}, 3, v{vL}
v_lshlrev_b32 v{vOa}, 10, v{c}
v_lshl_add_u32 v{vOa}, v{b}, 4, v{vOa}
v_xor_b32 v{a}, v{vL}, v{c}
s_add_u32 s{sT2}, s{sM}, {L_E + 4*16384}
v_lshl_add_u32 v{vOr}, v{a}, 4, s{sT2}
v_lshrrev_b32 v{a}, 1, v{vG}
v_xor_b32 v{a}, v{a}, v{b}
v_lshlrev_b32 v{a}, 4, v{a}
v_lshl_add_u32 v{a}, v{vN}, 7, v{a}
v_and_b32 v{b}, 1, v{vG}
v_lshl_add_u32 v{a}, v{b}, 3, v{a}
v_add_u32 v{vOw}, s{sT2}, v{a}
v_xor_b32 v{vOw+1}, 32, v{vOw}
v_xor_b32 v{vOw+2}, 64, v{vOw}
v_xor_b32 v{vOw+3}, 96, v{vOw}
s_lshl_b32 s{sT0}, s{sWV}, 5
s_sub_u32 s{sT2}, {3*16384}, s{sM}
v_xor_b32 v{a}, s{sT0}, v{vTr}
v_add_u32 v{vAr}, s{sT2}, v{a}
s_add_u32 s{sO1}, s{sO0}, 8192
''')
    return s


def kgen(pkC, za, npb=40):
    s = Seq()
    live = {}
    vb = V.alloc(36, 2)
    pb = V.alloc(npb, 2)
    VV, VP, VZ = Regs('v', vb, vb + 36), Regs('v', pb, pb + 32), Regs('v', za, za + 32)
    pool = lambda nm: VP if nm[0] == 'p' else VZ if (nm[0] == 'z' and nm not in ('z128', 'z256', 'z512')) else VV

    def A(name, n=1):
        live[name] = (pool(name).alloc(n), n)
        return live[name][0]

    def F(*names):
        for nm in names:
            pool(nm).release(*live.pop(nm))

    P, canon, extra = {}, [], {}

    def cut(name):
        nonlocal s
        canon.extend(s.l)
        P[name], s = s, Seq()

    la, ai, cr, ci, ld, dsk = [vPAR + i for i in range(6)]
    LOG2E, LOG2E_LO, LN2 = 0x3fb8aa3b, 0x32a5705f, 0x3f317218
    s(f'''
s_lshr_b32 s{sT0}, s{sWV}, 1
s_lshl_b32 s{sT0}, s{sT0}, 4
s_lshr_b32 s{sDT}, s{sDT}, s{sT0}
s_lshr_b32 s{sDS}, s{sDS}, s{sT0}
v_lshlrev_b32 v{ld}, 16, s{sDT}
v_lshlrev_b32 v{dsk}, 16, s{sDS}
s_mov_b32 s{sT0}, {LOG2E:#x}
v_lshlrev_b32 v{la}, 16, v{la}''')
    for k, x in enumerate((la, ld)):
        s(f'v_mul_f32 v{t+2*k}, s{sT0}, v{x}')
    for k, x in enumerate((la, ld)):
        s(f'v_fma_f32 v{t+2*k+1}, v{x}, s{sT0}, -v{t+2*k}')
    for k, x in enumerate((la, ld)):
        s(f'v_exp_f32 v{t+2*k}, v{t+2*k}')
    for k, x in enumerate((la, ld)):
        s(f'v_fmamk_f32 v{t+2*k+1}, v{x}, {LOG2E_LO:#x}, v{t+2*k+1}')
    for k, x in enumerate((la, ld)):
        s(f'v_mul_f32 v{t+2*k+1}, {LN2:#x}, v{t+2*k+1}')
    for k, x in enumerate((la, ld)):
        s(f'v_fma_f32 v{t+2*k}, v{t+2*k}, v{t+2*k+1}, v{t+2*k}')
    for x in (ai, cr, ci):
        s(f'v_lshlrev_b32 v{x}, 16, v{x}')
    s(f'''
v_cvt_pk_bf16_f32 v{t}, v{t}, v{t+2}
v_and_b32 v{ld}, 0xffff0000, v{t}
v_lshlrev_b32 v{la}, 16, v{t}
''')
    val = lambda nm: live[nm][0]
    A('c0', 2)
    s(f'''
v_mul_f32 v{la}, v{la}, v{ld}
v_mul_f32 v{ai}, v{ai}, v{ld}
v_add_f32 v{ld}, v{ld}, v{ld}
v_mul_f32 v{la}, {f32(-1.4426950408889634)}, v{la}
v_mul_f32 v{ai}, 0.15915494, v{ai}
v_mul_f32 v{val('c0')}, v{cr}, v{ld}
v_mul_f32 v{val('c0')+1}, v{ci}, v{ld}
''')
    zs = (('z8', 8.0), ('z1', 1.0), ('z128', 128.0))
    for k, (nm, p) in enumerate(zs):
        A(nm, 2)
        s(f'v_mul_f32 v{t+2*k}, {f32(p)}, v{la}')
        s(f'v_mul_f32 v{t+2*k+1}, {f32(p)}, v{ai}')
    for k, (nm, p) in enumerate(zs):
        s(f'v_fract_f32 v{t+2*k+1}, v{t+2*k+1}')
        s(f'v_exp_f32 v{t+2*k}, v{t+2*k}')
    for k, (nm, p) in enumerate(zs):
        s(f'v_cos_f32 v{val(nm)}, v{t+2*k+1}')
        s(f'v_sin_f32 v{val(nm)+1}, v{t+2*k+1}')
    for k, (nm, p) in enumerate(zs):
        s(f'v_pk_mul_f32 {vr(val(nm),2)}, {vr(val(nm),2)}, {vr(t+2*k,2)} op_sel_hi:[1,0]')
    fr, acc = 160, 224
    s(f'''
s_lshl_b32 s{sT0}, s{sBH}, 6
s_sub_u32 s{sT0}, 64, s{sT0}
v_cmp_eq_u32 vcc, s{sT0}, v{vL}
v_accvgpr_write_b32 a{acc+1}, 0
v_accvgpr_write_b32 a{acc+2}, 0
v_cndmask_b32 v{dsk}, 0, v{dsk}, vcc
v_accvgpr_write_b32 a{acc+3}, 0
v_accvgpr_write_b32 a{acc}, v{dsk}
''')
    mode = {'pk': True}

    def pack(nm):
        p = A('p' + nm)
        s(f'v_cvt_pk_bf16_f32 v{p}, v{val(nm)}, {"-" if nm[0] == "z" else ""}v{val(nm)+1}')

    def mp(lst):
        for d, a, b in lst:
            A(d, 2)
        if mode['pk']:
            for d, a, b in lst:
                s(f'v_pk_mul_f32 {vr(val(d),2)}, {vr(val(a),2)}, {vr(val(b),2)} op_sel_hi:[1,0]')
            for d, a, b in lst:
                s(f'v_pk_fma_f32 {vr(val(d),2)}, {vr(val(a),2)}, {vr(val(b),2)}, {vr(val(d),2)} op_sel:[1,1,0] op_sel_hi:[0,1,1] neg_lo:[1,0,0]')
        else:
            for d, a, b in lst:
                s(f'v_mul_f32 v{val(d)}, v{val(a)}, v{val(b)}')
                s(f'v_mul_f32 v{val(d)+1}, v{val(a)+1}, v{val(b)}')
                s(f'v_fma_f32 v{val(d)}, -v{val(a)+1}, v{val(b)+1}, v{val(d)}')
                s(f'v_fmac_f32 v{val(d)+1}, v{val(a)}, v{val(b)+1}')
        for d, _, _ in lst:
            if d not in ('z256', 'z512'):
                pack(d)

    s(f'v_mov_b32 v{A("pz0")}, 0x3f80')
    pack('z8')
    pack('c0')
    lo_rounds = [[('z16', 'z8', 'z8'), ('z256', 'z128', 'z128')],
                 [('z24', 'z16', 'z8'), ('z32', 'z16', 'z16')],
                 [('z40', 'z8', 'z32'), ('z48', 'z16', 'z32')],
                 [('z56', 'z24', 'z32'), ('z64', 'z32', 'z32')],
                 [('z72', 'z40', 'z32'), ('z80', 'z48', 'z32')],
                 [('z88', 'z56', 'z32'), ('z96', 'z64', 'z32')],
                 [('z104', 'z72', 'z32'), ('z112', 'z80', 'z32'), ('z120', 'z88', 'z32')]]
    def wr(row, names):
        for k, nm in enumerate(names):
            s(f'ds_write_addtid_b32 v{val("p" + nm)} offset:{272*(row+k)}', m0=f's_mov_b32 m0, s{sP4}')
            extra[id(s.l[-1])] = ([f'row{row+k}'], [])

    def rd(tile):
        for ks in range(4):
            s(f'ds_read_b128 {ar(fr+16*tile+4*ks,4)}, v{vRR} offset:{(O_T if tile == 3 else 0) + 64*ks}')
            extra[id(s.l[-1])] = ([], [f'row{r + (16 if tile == 3 else 0)}' for r in range(16)])

    for r, lst in enumerate(lo_rounds):
        mp(lst + [(f'c{r+1}', f'c{r}', 'z1')])
        F(*{2: ['z8', 'z16'], 3: ['z24'], 4: ['z40', 'z48'], 5: ['z56', 'z64', 'z96']}.get(r, []))
    F('z1', 'z32', 'z72', 'z80', 'z88', 'z104', 'z112', 'z120')
    cut('A')
    wr(0, [f'z{8*b}' for b in range(16)])
    cut('wl')
    rd(0)
    cut('rl')
    mp([(f'c{128+o}', f'c{o}', 'z128') for o in range(4)])
    F('c1', 'c3', 'c129', 'c131')
    mp([(f'c{128+o}', f'c{o}', 'z128') for o in range(4, 8)])
    F('z128', 'c5', 'c7', 'c133', 'c135')
    cut('v0')
    F(*[f'pz{8*b}' for b in range(16)])
    t0 = [f'c{h}' for h in list(range(8)) + list(range(128, 136))]
    wr(0, t0)
    cut('w0')
    rd(1)
    cut('r0')
    mp([(f'c{256+o}', f'c{o}', 'z256') for o in (0, 2, 4, 6)])
    F('c0', 'c2', 'c4', 'c6', 'c258', 'c262')
    mp([(f'c{384+o}', f'c{128+o}', 'z256') for o in (0, 2, 4, 6)] + [('z512', 'z256', 'z256')])
    F('c128', 'c130', 'c132', 'c134', 'c386', 'c390')
    mp([(f'c{h+256}', f'c{h}', 'z256') for h in (256, 260, 384, 388)])
    mp([(f'c{h+512}', f'c{h}', 'z512') for h in (256, 260, 384, 388)])
    F('z256', 'c516', 'c644', 'c256', 'c260', 'c384', 'c388', 'c772', 'c900')
    cut('v1')
    wr(0, [f'c{h}' for h in (256, 258, 260, 262, 384, 386, 388, 390, 512, 516, 640, 644, 768, 772, 896, 900)])
    cut('w1')
    rd(2)
    cut('r1')
    F(*['p' + x for x in t0])
    mp([(f'c{h+512}', f'c{h}', 'z512') for h in (512, 640, 768, 896)])
    F('c512', 'c640', 'c768', 'c896')
    mp([(f'c{h+512}', f'c{h}', 'z512') for h in (1024, 1152, 1280, 1408)])
    F('c1024', 'c1152', 'c1280', 'c1408')
    mp([('c2048', 'c1536', 'z512')])
    cut('v2')
    wr(16, [f'c{1024 + 128*k}' for k in range(9)])
    cut('w2')
    rd(3)
    cut('r2')
    for k in range(3):
        for ks in range(4):
            c = ar(acc + 4 * k, 4)
            s(f'v_mfma_f32_16x16x32_bf16 {c}, {ar(fr+16*(k+1)+4*ks,4)}, {ar(fr+4*ks,4)}, {c if (ks or k == 0) else 0}')
    cut('mf')
    s(f'ds_write_b32 v{vEa+2}, v{vZ} offset:{699*4}')
    for k in range(6):
        o0, o1 = (0, 100) if k < 4 else (4 * (k - 4), 4 * (k - 4) + 2)
        s(f'ds_write2_b32 v{vTA+min(k,4)}, a{acc+2*k}, a{acc+2*k+1} offset0:{o0} offset1:{o1}')
    for k, it in enumerate(s.l):
        extra[id(it)] = ([f'row{25+k}'], [])
    cut('wt')
    gv, ov = vb, pb
    for i in range(9):
        for p in range(2):
            s(f'ds_read2st64_b32 {vr(gv+4*i+2*p,2)}, v{vGA+i} offset0:{17 + 32*p} offset1:{17 + 32*(2+p)}')
    cut('rc')
    for i in range(9):
        if pkC:
            s(f'v_pk_add_f32 {vr(gv+4*i,2)}, {vr(gv+4*i,2)}, {vr(gv+4*i+2,2)}')
        else:
            s(f'v_add_f32 v{gv+4*i}, v{gv+4*i}, v{gv+4*i+2}')
            s(f'v_add_f32 v{gv+4*i+1}, v{gv+4*i+1}, v{gv+4*i+3}')
    for c in range(2):
        for o in (1, 0):
            for k in range(4):
                a = gv + 4 * (2 * k + (1 - o)) + c
                s(f'v_cvt_pk_bf16_f32 v{ov+8*c+4*o+k}, v{a}, v{a+4}')
    cut('vc')
    for c in range(2):
        for o in (1, 0):
            s(f'ds_write_b128 v{vEa}, {vr(ov+8*c+4*o,4)} offset:{(2*c+o)*PART + 128*o}')
    s(f'ds_write_b128 v{vEa+1}, {vr(vZ2,4)} offset:4096')
    s(f'ds_write_b64 v{vUz}, {vr(vZ2,2)} offset:{L_U}')
    cut('wc')
    P['vb'], P['pb'] = vb, pb
    checks.append((canon, extra))
    return P


W2E = [2, 'A', 'B', 3, 0, 4, 1, 5, 2, 3, 0, 4, 1, 5]
W2DEP = {8: 0, 9: 3, 10: 4, 11: 5, 12: 6, 13: 7}


def w2_dma(ks):
    g = []
    e = W2E[ks]
    m0 = f's_add_u32 m0, s{sP4}, {L_U + 4096*"AB".index(e)}' if e in ('A', 'B') else f's_add_u32 m0, s{sM}, {L_E + 16384*e}'
    for i in range(4):
        s = Seq()
        if i == 0:
            if ks in W2DEP:
                s.wait(f'tr{W2DEP[ks]}')
            s(f's_add_u32 s{sW2l}, s{sW2l}, 32768')
        if OPT['skipw'] and ks >= 7:
            s('s_nop 0', tag=f'w2d{ks}')
        else:
            s(f'buffer_load_dwordx4 v{vW2s+i}, {srd(SW2)}, s{sW2l} offen offset:{1024*i} lds', tag=f'w2d{ks}', m0=m0)
        g.append(s)
    return g


def w2_tr(ks):
    g = []
    e = W2E[ks]
    win, off = (1, 4096 * 'AB'.index(e)) if e in ('A', 'B') else (e // 4, 16384 * (e % 4))
    for j in range(4):
        for hh in range(2):
            s = Seq()
            if j == 0 and hh == 0:
                s.wait(f'w2d{ks}')
            s(f'ds_read_b64_tr_b16 {ar(16*ks+4*j+2*hh,2)}, v{vTr+4*win+j} offset:{off + 2048*hh}', tag=f'tr{ks}')
            g.append(s)
    return g


def w2_window():
    return Seq()('\n'.join(f'v_add_u32 v{vTr+4+j}, 65536, v{vTr+j}' for j in range(4)))


def u_poll_issue():
    return Seq()(f'buffer_load_dword v{vPF}, v{vPA}, {srd(SWS)}, s{sFUp} offen sc1')


def u_dma():
    s = Seq()
    s(f'v_cmp_ne_u32 vcc, s{sNON}, v{vPF}')
    retry(s, 's_cbranch_vccnz', 's_cbranch_vccz', f'''
buffer_load_dword v{vPF}, v{vPA}, {srd(SWS)}, s{sFUp} offen sc1
s_waitcnt vmcnt(0)
v_cmp_ne_u32 vcc, s{sNON}, v{vPF}''')
    s.wait('tr2')
    for i in range(4):
        s(f'buffer_load_dwordx4 v{vL16}, {srd(SWS)}, s{sUs} offen offset:{1024*i} sc1 lds', tag='udma', m0=f's_add_u32 m0, s{sUm}, {L_U + 512}')
    return s


main = Seq()
vXr = V.alloc(2, 1)
vWr = V.alloc(4, 1)
vACC = V.alloc(64, 2)
vFR = V.alloc(32, 2)
aFR = 96
pro_body(main)
main(f'''
s_mul_i32 s{sT0}, s{sJ}, 9363
s_lshr_b32 s{sT0}, s{sT0}, 16
s_mul_i32 s{sT1}, s{sT0}, 7
s_sub_u32 s{sT1}, s{sJ}, s{sT1}
s_lshr_b32 s{sT2}, s{sXCD}, 1
s_and_b32 s{sT3}, s{sXCD}, 1
s_lshl2_add_u32 s{sT0}, s{sT2}, s{sT0}
s_lshl1_add_u32 s{sKC}, s{sT3}, s{sT2}
s_mul_i32 s{sT3}, s{sT3}, 7
s_add_u32 s{sT1}, s{sT1}, s{sT3}
s_lshl_b32 s{sKC}, s{sKC}, 4
s_and_b32 s{sKC}, s{sKC}, {63 if OPT['rot'] else 0}
s_lshr_b32 s{sT3}, s{sWV}, 1
s_lshl1_add_u32 s{sTB1}, s{sT0}, s{sBH}
s_lshl1_add_u32 s{sCB1}, s{sT1}, s{sT3}
s_lshl2_add_u32 s{sXb}, s{sT0}, s{sWV}
s_lshl_b32 s{sXb}, s{sXb}, 15
s_mul_i32 s{sWb}, s{sWV}, {16*3584}
s_lshl_b32 s{sT1}, s{sT1}, 8
s_add_u32 s{sWb}, s{sWb}, s{sT1}
v_and_b32 v{t+1}, 7, v{vL}
v_xor_b32 v{t}, v{vG}, v{t+1}
v_lshrrev_b32 v{t+1}, 3, v{vL}
v_lshlrev_b32 v{t+1}, 10, v{t+1}
v_lshl_add_u32 v{vXs}, v{t}, 4, v{t+1}
v_xor_b32 v{t}, 64, v{vXs}
v_add_u32 v{vXs+1}, 7168, v{t}
v_add_u32 v{vXs+2}, {2*7168}, v{vXs}
v_add_u32 v{vXs+3}, {3*7168}, v{t}
v_lshlrev_b32 v{t}, 2, v{vG}
v_xor_b32 v{t}, v{t}, v{vN}
v_mul_u32_u24 v{t+1}, 3584, v{vG}
v_lshl_add_u32 v{vWs}, v{t}, 4, v{t+1}
''')
main(f'''
v_add_u32 v{vWs+1}, {4*3584 - 1024}, v{vWs}
v_xor_b32 v{t}, 2, v{t}
v_lshl_add_u32 v{t}, v{t}, 4, v{t+1}
v_add_u32 v{vWs+2}, {(4*3584 - 1024)*2}, v{t}
v_add_u32 v{vWs+3}, {(4*3584 - 1024)*3}, v{t}''')


def stage_loads(st):
    g = []
    for isw in (0, 1):
        for i in range(4):
            s = Seq()
            if i == 0:
                if isw:
                    s(f's_mul_i32 s{sWk}, s{sKC}, {8*3584}')
                    s(f's_add_u32 s{sWk}, s{sWk}, s{sWb}')
                else:
                    s(f's_lshl4_add_u32 s{sXk}, s{sKC}, s{sXb}')
            m0 = f's_add_u32 m0, s{sM}, {(L_W if isw else L_X) + 16384*(st % 4)}'
            if isw:
                s(f'buffer_load_dwordx4 v{vWs+i}, {srd(SW1)}, s{sWk} offen offset:{1024*i} lds', tag=f'st{st}', m0=m0)
            else:
                s(f'buffer_load_dwordx4 v{vXs+i}, {srd(SX)}, s{sXk} offen offset:{1024*i} lds', tag=f'st{st}', m0=m0)
            if isw and i == 1:
                s(f's_add_u32 s{sKC}, s{sKC}, 8')
            if isw and i == 2:
                s(f's_and_b32 s{sKC}, s{sKC}, 63')
            g.append(s)
    return g


LS = [g for st in range(8) for g in stage_loads(st)]
main(f's_or_b32 s{sT0}, s2, s{sWV}')
main('s_waitcnt lgkmcnt(0)')
stamp(main, 'karg')
main(f'''
s_cmp_eq_u32 s{sT0}, 0
s_cbranch_scc1 Lnonce
Lnonce_back:''')
outline.append(f'''Lnonce:
    s_memrealtime s[{sHst}:{sHst2}]
    s_waitcnt lgkmcnt(0)
    s_or_b32 s{sHst}, s{sHst}, 1
    s_atomic_swap s{sHst}, {ptr(P_DBG)}, 0
    s_branch Lnonce_back
''')
L_UT = L_W + 3 * 16384
param_loads(main)
main.add(ut_loads(L_UT))
scalar_params(main)
NE, NK = OPT['early'], OPT['nk']
su = Seq()
su(f'''
v_lshrrev_b32 v{t+1}, 1, v{vN}
v_xor_b32 v{t+1}, v{t+1}, v{vG}
s_lshl_b32 s{sT0}, s{sBH}, 13
s_add_u32 s{sT0}, s{sT0}, {L_X}
v_lshl_add_u32 v{t}, v{vN}, 7, s{sT0}
v_lshl_add_u32 v{vXr}, v{t+1}, 4, v{t}
v_xor_b32 v{vXr+1}, 64, v{vXr}
v_bfe_u32 v{t}, v{vL}, 2, 2
v_lshl_add_u32 v{t+1}, v{vG}, 3, v{t}
v_lshlrev_b32 v{t+1}, 8, v{t+1}
v_and_b32 v{t+2}, 3, v{vL}
v_lshl_add_u32 v{t+1}, v{t+2}, 3, v{t+1}
v_add_u32 v{t+1}, {L_W}, v{t+1}
v_and_b32 v{t+2}, 1, v{vG}
v_lshl_add_u32 v{t}, v{t}, 1, v{t+2}
s_and_b32 s{sT0}, s{sWV}, 2
s_lshl_b32 s{sT0}, s{sT0}, 1
v_xor_b32 v{t}, s{sT0}, v{t}
v_lshl_add_u32 v{vWr}, v{t}, 5, v{t+1}
v_xor_b32 v{vWr+1}, 32, v{vWr}
v_xor_b32 v{vWr+2}, 64, v{vWr}
v_xor_b32 v{vWr+3}, 96, v{vWr}
''')
su.add(setup_k())
sa = setup_a()
ntouch = OPT['touch'] + OPT['tlb'] + OPT['c3'] + OPT['t1']
su.add(setup_g())
su.add(ut_setup(L_UT))
su.add(sa.l[:len(sa) - ntouch])
main.add(cat(LS[:4]))
main.add(sprinkle(su, LS[4:NE], 0, 12 * (NE - 4)))
if OPT['iw']:
    main(';IWARM main')
stamp(main, 'setup')
K = kgen(False, vACC)
vTS = K['pb'] + 16


def kgen_seq(K):
    s = Seq()
    wl, w0, w1 = chunks(K['wl'], 4), chunks(K['w0'], 4), chunks(K['w1'], 4)
    v0, v1, v2 = K['v0'].l, K['v1'].l, K['v2'].l
    s.add(K['A']).add(wl[0]).add(wl[1]).add(v0[:6]).add(wl[2]).add(wl[3]).add(v0[6:20]).add(K['rl']).add(v0[20:])
    s.add(w0[0]).add(v1[:8]).add(w0[1]).add(v1[8:16]).add(w0[2]).add(v1[16:24]).add(w0[3]).add(v1[24:40])
    s.add(K['r0']).add(v1[40:])
    s.add(w1[0]).add(v2[:8]).add(w1[1]).add(v2[8:16]).add(w1[2]).add(v2[16:24]).add(w1[3]).add(v2[24:])
    s.add(K['w2'])
    mf, wt = K['mf'].l, K['wt'].l
    s.add(mf[:4]).add(K['r1']).add(K['r2']).add(mf[4:]).add(wt)
    return s


ka = kgen_seq(K)
ua, ub = ut_work(vFR)
tch = sa.l[len(sa) - ntouch:] if ntouch else []
UA = OPT['ua']
ka.l[UA + 60:UA + 60] = nonce_issue().l
ka.l[UA + 40:UA + 40] = ub.l[-1:]
ka.l[UA + 24:UA + 24] = ub.l[:-1]
ka.l[UA:UA] = ua.l
for k, x in enumerate(tch):
    pos = OPT['te'] + 10 * (len(tch) - k) if OPT['te'] else UA - 12 * (k + 1)
    ka.l[pos:pos] = [x]
if OPT['stamps'] == 3:
    for pos, nm in ((len(ka) - OPT['res'], 'kC'), (170, 'kB'), (60, 'kA'), (8, 'bar')):
        x = Seq()
        stamp(x, nm, 3)
        ka.l[pos:pos] = x.l
    stamp_names[-4:] = stamp_names[:-5:-1]
wt_late = []
if OPT['wtl']:
    wt_late, ka.l = ka.l[-7:], ka.l[:-7]
main.add(sprinkle(ka, LS[NE:NK], len(ka) - OPT['res'], len(ka) - (0 if OPT['wtl'] else 7)))
stamp(main, 'kgenA')


def g1_reads(st, ks):
    o = 16384 * (st % 4)
    b = aFR + 32 * ks
    A = [[f'ds_read_b64_tr_b16 {ar(b+4*k+2*hh,2)}, v{vWr+k} offset:{o + ks*8192 + hh*1024}' for hh in range(2)] for k in range(4)]
    B = [f'ds_read_b128 {ar(b+16+4*k,4)}, v{vXr+ks} offset:{o + k*2048}' for k in range(4)]
    return A[0] + B[::-1] + A[1] + A[2] + A[3]


SNAKE = [(ft, tt if ft % 2 == 0 else 3 - tt) for ft in range(4) for tt in range(4)]


def g1_mfma(st, ks):
    b = aFR + 32 * ks
    r = []
    for ft, tt in SNAKE:
        a = vr(vACC + 16 * tt + 4 * ft, 4)
        r.append(f'v_mfma_f32_16x16x32_bf16 {a}, {ar(b+4*ft,4)}, {ar(b+16+4*tt,4)}, {0 if (st == 0 and ks == 0) else a}')
    return r


pc_addr = Seq()
pc_addr(f'''
v_lshl_add_u32 v{t}, v{vN}, 4, s{sP4}
s_lshl_b32 s{sT0}, s{sCB1}, 10
s_add_u32 s{sT0}, s{sT0}, {WS_FP}
s_lshl_b32 s{sT1}, s{sTB1}, 10
s_add_u32 s{sT4}, s{sT1}, {WS_TS - 2048}
s_add_u32 s{sT1}, s{sT1}, {WS_TP - 1024}''')
pc_m0 = f's_add_u32 m0, s{sP4}, {O_T}'
pc_ld = [f'buffer_load_dwordx4 v{vL16}, {srd(SWS)}, s{(sT0, sT1, sT4)[w]} offen offset:{1024*w} sc1 lds' for w in range(3)]
pcr = [vFR + 4 * k for k in range(8)] + [vTS + 4 * k for k in range(4)]
pc_rd = [f'ds_read_b128 {vr(r,4)}, v{t} offset:{O_T + 256*k}' for k, r in enumerate(pcr)]
pc_cmp = [f'v_xor_b32 v{r+3}, s{sNON}, v{r+3}' for r in pcr]
pc_cmp += [f'v_or3_b32 v{t+1}, v{pcr[0]+3}, v{pcr[1]+3}, v{pcr[2]+3}']
pc_cmp += [f'v_or3_b32 v{t+1}, v{t+1}, v{pcr[k]+3}, v{pcr[min(k+1, 11)]+3}' for k in range(3, 12, 2)]
pc_cmp += [f'v_cmp_ne_u32 vcc, 0, v{t+1}']
pc_chk = [Seq()(x) for x in pc_cmp]
retry(pc_chk[-1], 's_cbranch_vccnz', 's_cbranch_vccz',
      '\n'.join([f's_mov_b32 s{sXk}, m0', pc_m0, 's_nop 0'] + pc_ld + ['s_waitcnt vmcnt(0)'] + pc_rd
                + [f's_mov_b32 m0, s{sXk}', 's_waitcnt lgkmcnt(0)'] + pc_cmp))
sHs = (sHst, sHst2, sXb, sWb)
hadr = Seq()
hadr(f'''
s_mul_i32 s{sHst}, s{sTB1}, {4*56}
s_lshl1_add_u32 s{sHst}, s{sCB1}, s{sHst}
s_lshl_b32 s{sHst}, s{sHst}, 10
s_add_u32 s{sHst}, s{sHst}, {WS_H}
s_add_u32 s{sHst2}, s{sHst}, {56*1024}
s_add_u32 s{sXb}, s{sHst}, {2*56*1024}
s_add_u32 s{sWb}, s{sHst}, {3*56*1024}
s_mul_i32 s{sT2}, s{sCB1}, 9363
s_lshr_b32 s{sT2}, s{sT2}, 16
s_mul_i32 s{sT3}, s{sT2}, 7
s_sub_u32 s{sT3}, s{sCB1}, s{sT3}
s_lshl2_add_u32 s{sFH}, s{sTB1}, s{sT2}
s_lshl_b32 s{sFH}, s{sFH}, 7
s_lshl2_add_u32 s{sFH}, s{sT3}, s{sFH}
s_add_u32 s{sFH}, s{sFH}, {FH}
''')
assert HS == 1

G = Gaps([x for st in range(8) for ks in range(2) for x in g1_mfma(st, ks)] +
         [f'v_mfma_f32_16x16x32_bf16 {vr(vACC+16*tt+4*ft,4)}, {vr(vFR+4*ft,4)}, {vr(vFR+16+4*tt,4)}, {vr(vACC+16*tt+4*ft,4)}'
          for tt in range(4) for ft in range(4)], cap=8, maxlds=1)
BG = 19
for st in range(8):
    b = 32 * st
    G.put(b + BG, bar(f'rd{st}', *([f'st{st+1}', 'utst'] if st < 7 else [])))
    for k, x in enumerate(g1_reads(st, 1)):
        G.put(b + k, Seq()(x, tag=f'rd{st}'))
    if st < 7:
        for k, x in enumerate(g1_reads(st + 1, 0)):
            G.put(b + BG + 1 + k, x)
    for g in (3, 7, 15, 31):
        G.reserve(b + g, 4)
LG = sorted((21, 25, 29, 1, 5, 9, 13, 17, 23, 11, 27)[:OPT['lst']])
lg = [g for g in range(272) if g % 32 in LG]
for i in range(NK, 64):
    while lg[0] <= 32 * (i // 8 - 4) + BG:
        lg.pop(0)
    last_ld = lg.pop(0)
    assert last_ld < 32 * (i // 8 - 1) + BG
    G.put(last_ld, LS[i])
for k, g_ in enumerate(singles(K['rc'])):
    G.put(32 * (1 + k // 6) + 12 + k % 6, g_)
G.put(BG + 1, nonce_check())
G.put(BG + 3, fu_flag())
lg = [g for g in range(max(last_ld + 1, 32 * 4 + BG + 1), 272) if g % 4 == 1]
wat = {}
for ks in (0, 'p', 1, 2, 'u', 3, 4, 5):
    grp = [Seq()(x, tag='pcd', m0=pc_m0) for x in pc_ld] if ks == 'p' else [u_poll_issue()] if ks == 'u' else w2_dma(ks)
    while lg[0] <= {1: 32 * 5 + BG, 4: 32 * 6 + BG, 'p': OPT['pcg']}.get(ks, 0):
        lg.pop(0)
    for g_ in grp:
        wat[ks] = lg.pop(0)
        G.put(wat[ks], g_)
print('late loads', wat)
G.fill(w2_tr(0), 204, 212)
pr = [Seq()(x) for x in pc_rd]
pr[0] = Seq().wait('pcd').add(pr[0])
G.fill(pr, 236, 248)
G.fill(w2_tr(1) + w2_tr(2), 248, 266)
G.put(268, w2_window())
G.fill(pc_chk, 243, 255)
p = G.spread(singles(setup_b()), 24, 128)
p = G.spread(singles(pc_addr) + singles(K['vc']), 128, 200)
assert p[len(pc_addr) - 1] < wat['p'] - 9
p2 = G.spread(singles(hadr), 200, 236)
print('gemm1 over', G.over(), 'last load gap', last_ld, p[-1], p2[-1])
main.add(bar('st0'))
for x in g1_reads(0, 0):
    main(x)
main.add(wt_late)
for st in range(8):
    main.add(G.emit(32 * st, 32 * st + 32))
    stamp(main, f'g1s{st}', 1 if st in (3, 7) else 2)
main.add(G.emit(256))
q = vTS + 16
gx = {k: [] for k in range(8)}
wc = singles(K['wc'])
gx[6] += wc[:3]
gx[7] += wc[3:]
ud = u_dma()
gl_ = [Seq().add(ud.l[:-3])] + singles(Seq().add(ud.l[-3:])) + [g for k in range(6, 6 + OPT['ng']) for g in w2_dma(k)]
pre_gelu, main = main, Seq()
for ti in range(4):
    P = vTS + 4 * ti
    for hh in range(2):
        a = vACC + 16 * ti + 8 * hh
        for k in range(4):
            main(f'v_pk_mul_f32 {vr(q+2*k,2)}, {vr(a+2*k,2)}, {vr(a+2*k,2)}')
        for k in range(4):
            main(f'v_pk_fma_f32 {vr(q+2*k,2)}, {vr(q+2*k,2)}, {vr(P,2)}, {vr(P,2)} op_sel:[0,1,0] op_sel_hi:[1,1,0]')
        for k in range(4):
            main(f'v_pk_mul_f32 {vr(q+2*k,2)}, {vr(q+2*k,2)}, {vr(a+2*k,2)}')
        for k in range(8):
            main(f'v_exp_f32 v{q+k}, v{q+k}')
        for k in range(4):
            main(f'v_pk_fma_f32 {vr(q+2*k,2)}, {vr(q+2*k,2)}, {vr(P+2,2)}, {vr(P+2,2)} op_sel_hi:[1,0,0]')
        for k in range(8):
            main(f'v_rcp_f32 v{q+k}, v{q+k}')
        for k in range(4):
            main(f'v_pk_mul_f32 {vr(q+2*k,2)}, {vr(q+2*k,2)}, {vr(a+2*k,2)}')
        for k in range(4):
            main(f'v_cvt_pk_bf16_f32 v{a+k}, v{q+2*k}, v{q+2*k+1}')
        main(f'buffer_store_dwordx4 {vr(a,4)}, v{vL16}, {srd(SWS)}, s{sHs[ti]} offen offset:{1024*hh} sc1', tag='hst')
        main.add(cat(gx[2 * ti + hh]))
        stamp(main, f'ge{2*ti+hh}', 3)
main = pre_gelu.add(sprinkle(main, gl_, OPT['gs0'], OPT['gs0'] + OPT['gsp'] * len(gl_)))
stamp(main, 'gelu')
for b, n in ((vXr, 2), (vWr, 4), (vACC, 64), (vFR, 32), (K['vb'], 36), (K['pb'], 40)):
    V.release(b, n)

sp = Seq()
sp('Lspare:')
pro_body(sp)
vS = vXs
vB1 = vXs + 6
L_SX, L_SW, L_SG = 32768, 98304, 16384
sp(f'''
s_sub_u32 s{sT4}, s{sJ}, 28
s_lshl2_add_u32 s{sTB1}, s{sXCD}, s{sT4}
s_lshl2_add_u32 s{sXb}, s{sTB1}, s{sWV}
s_lshl_b32 s{sXb}, s{sXb}, 14
s_lshl_b32 s{sT1}, s{sWV}, 2
v_and_b32 v{t}, 31, v{vL}
v_xor_b32 v{t}, s{sT1}, v{t}
v_lshrrev_b32 v{t+1}, 5, v{vL}
v_lshlrev_b32 v{t+1}, 10, v{t+1}
v_lshl_add_u32 v{vS}, v{t}, 4, v{t+1}
v_xor_b32 v{vS+1}, 32, v{vS}
s_waitcnt lgkmcnt(0)
''')
stamp(sp, 'karg')
scalar_params(sp)
wl, xl = [], []
for i in range(4):
    s = Seq()
    s(f's_add_u32 s{sWb}, s{sWb}, {32*3584}')
    for r in range(4):
        s(f'buffer_load_dwordx4 v{vS+2+r}, {srd(SW1)}, s{sWb} offen offset:{1024*r} lds', tag='spw', m0=f's_lshl2_add_u32 m0, s{sM}, {L_SW + 4096*i}')
    wl.append(s)
xs = []
for h in range(2):
    for i in range(8):
        s = Seq()
        s(f's_add_u32 s{sXk}, s{sXb}, {512*h + 2048*i - 1024*(i%4)}')
        s(f'buffer_load_dwordx4 v{vS + i//4}, {srd(SX)}, s{sXk} offen offset:{1024*(i%4)} lds', tag=f'spx{h}',
          m0=f's_add_u32 m0, s{sP4}, {L_SX + 32768*h + 4096*(i//4)}')
        xs.append(s)
L_ST = 16384 + 8192
sp.add(ut_loads(L_ST))
param_loads(sp)
sp.add(cat(xs[:2]))
sp_head, sp = sp, Seq()
vSa = V.alloc(10, 1)
o = V.alloc(8, 2)
vF1 = V.alloc(48, 2)
vD = V.alloc(16, 2)
vONE = V.alloc(4, 2)
vTOK = t + 7
sp(f'''
s_lshr_b32 s{sT1}, s{sXCD}, 1
s_lshl2_add_u32 s{sT0}, s{sT1}, s{sT4}
s_min_u32 s{sT0}, s{sT0}, 13
s_and_b32 s{sT1}, s{sXCD}, 1
s_mul_i32 s{sT1}, s{sT1}, 14
s_add_u32 s{sCB1}, s{sT0}, s{sT1}
s_lshl_b32 s{sT2}, s{sCB1}, 7
s_lshl_b32 s{sT0}, s{sWV}, 5
s_add_u32 s{sT0}, s{sT0}, s{sT2}
v_lshl_add_u32 v{vB1}, v{vN}, 1, s{sT0}
v_lshlrev_b32 v{t}, 1, v{vG}
v_and_b32 v{t+1}, 7, v{vL}
v_xor_b32 v{t}, v{t}, v{t+1}
v_lshrrev_b32 v{t+1}, 3, v{vL}
v_mul_u32_u24 v{t+1}, 3584, v{t+1}
v_lshl_add_u32 v{vS+2}, v{t}, 4, v{t+1}
v_add_u32 v{vS+3}, {(8*3584-1024)*1}, v{vS+2}
v_add_u32 v{vS+4}, {(8*3584-1024)*2}, v{vS+2}
v_add_u32 v{vS+5}, {(8*3584-1024)*3}, v{vS+2}
s_mul_i32 s{sWb}, s{sWV}, {128*3584}
s_add_u32 s{sWb}, s{sWb}, s{sT2}
s_sub_u32 s{sWb}, s{sWb}, {32*3584}
s_mov_b32 s{sFH}, {FDUMMY}
v_mov_b32 v{vX+15}, 0
v_and_b32 v{t}, 7, v{vN}
v_lshrrev_b32 v{t+1}, 3, v{vN}
v_lshl_add_u32 v{t+1}, v{t}, 3, v{t+1}
s_lshl_b32 s{sT0}, s{sWV}, 1
v_add_u32 v{vTOK}, s{sT0}, v{t+1}
v_lshlrev_b32 v{t}, 1, v{t}
v_xor_b32 v{t}, v{t}, v{vG}
v_lshlrev_b32 v{t+1}, 9, v{vTOK}
v_add_u32 v{t+1}, {L_SX}, v{t+1}
v_lshlrev_b32 v{vSa+4}, 4, v{vG}
v_add_u32 v{vSa+4}, {L_SG}, v{vSa+4}
''')
for k in range(4):
    sp(f'v_xor_b32 v{vSa+k}, {4*k}, v{t}')
    sp(f'v_lshl_add_u32 v{vSa+k}, v{vSa+k}, 4, v{t+1}')
    sp(f'v_mov_b32 v{vONE+k}, 0x3f803f80')
sp(f'''
v_lshrrev_b32 v{t}, 2, v{vL}
v_bfe_u32 v{t+1}, v{vL}, 3, 2
v_xor_b32 v{t+1}, s{sWV}, v{t+1}
v_lshlrev_b32 v{t}, 7, v{t}
v_lshl_add_u32 v{t}, v{t+1}, 5, v{t}
v_and_b32 v{t+1}, 3, v{vL}
v_lshl_add_u32 v{t}, v{t+1}, 3, v{t}
v_add_u32 v{vSa+5}, {L_SW}, v{t}
v_lshrrev_b32 v{t}, 2, v{vN}
v_cmp_eq_u32 vcc, v{t}, v{vG}
v_lshlrev_b32 v{t}, 4, v{vTOK}
v_mov_b32 v{t+4}, 0x7ff00000
v_cndmask_b32 v{vSa+9}, v{t+4}, v{t}, vcc
s_lshl_b32 s{sT0}, s{sTB1}, 10
s_add_u32 s{sHst2}, s{sT0}, {WS_TS}
s_add_u32 s{sHst}, s{sT0}, {WS_TP}
''')
sa = setup_a()
sp.add(sa.l[:9])
sp.add(ut_setup(L_ST))
sp.add(setup_k())
sp = sp_head.add(sprinkle(sp, xs[2:9], 0, 100))
K = kgen(True, vF1, 32)
ua, ub = ut_work(vF1 + 32)
rest = cat(wl)
rest(f'global_load_ushort v{vB1}, v{vB1}, {ptr(P_B1)}')
rest(f'global_load_lds_dwordx4 v{vL16}, {ptr(P_GW)}', tag='spw', m0=f's_mov_b32 m0, {L_SG}')
rest = singles(rest)
sp.add(ua)
sp.add(sprinkle(cat([K['A'], setup_g()]), xs[9:] + [nonce_issue()] + rest[:10], 0, 215))
sp.add(bar('spx1'))
stamp(sp, 'setup')
aX = 64
Gs = Gaps([f'v_mfma_f32_16x16x32_bf16 {vr(vD+4*k,4)}, {a}, {ar(aX+4*s_,4)}, {vr(vD+4*k,4) if s_ else 0}'
           for s_ in range(16) for k, a in enumerate((ar(aX + 4 * s_, 4), vr(vONE, 4)))], cap=8, maxlds=1)
rds = [Seq()(f'ds_read_b128 {ar(aX+4*s_,4)}, v{vSa+s_%4} offset:{32768*(s_//8) + 256*((s_//4)%2)}') for s_ in range(16)]
sp.add(cat(rds[:5]))
Gs.fill(rds[5:], 0, 32)
Gs.fill(rest[10:], 0, 32, step=2)
sp.add(Gs.emit())
sp.add(ub)
sp.add(nonce_check())
C0 = -2.0 * math.sqrt(2.0 / math.pi) * math.log2(math.e)
C1 = C0 * 0.044715
sp(f'''
v_and_b32 v{t}, 1, v{vL}
v_cmp_eq_u32 vcc, 1, v{t}
v_and_b32 v{t}, 2, v{vL}
v_cmp_eq_u32 s[{sT0}:{sT1}], 2, v{t}
v_cndmask_b32 v{vD}, v{vD}, v{vD+1}, vcc
v_cndmask_b32 v{vD+2}, v{vD+2}, v{vD+3}, vcc
v_cndmask_b32 v{vD}, v{vD}, v{vD+2}, s[{sT0}:{sT1}]
v_mul_f32 v{vD+4}, {f32(1/512)}, v{vD+4}
v_mul_f32 v{vD}, {f32(1/512)}, v{vD}
v_fma_f32 v{vD}, -v{vD+4}, v{vD+4}, v{vD}
v_mul_f32 v{vD+4}, 0x3e800000, v{vD+4}
v_cvt_pk_bf16_f32 v{o}, -v{vD+4}, -v{vD+4}
v_max_f32 v{vD}, 0, v{vD}
v_add_f32 v{vD}, {f32(1e-5)}, v{vD}
v_and_b32 v{vD+6}, 0xffff0000, v{o}
v_sqrt_f32 v{o+6}, v{vD}
v_rsq_f32 v{vD+1}, v{vD}
v_add_f32 v{vD+6}, v{vD+6}, v{vD+4}
v_mul_f32 v{o+4}, {f32(C0)}, v{vD+1}
v_mul_f32 v{vD+2}, v{vD+1}, v{vD+1}
v_mul_f32 v{o+5}, {f32(C1)}, v{vD+1}
v_mul_f32 v{o+5}, v{o+5}, v{vD+2}
v_mul_f32 v{vD+7}, 0x3e800000, v{o+6}
v_cvt_pk_bf16_f32 v{vD+5}, v{vD+7}, v{vD+7}
v_and_b32 v{vD+5}, 0xffff0000, v{vD+5}
v_sub_f32 v{vD+7}, v{vD+7}, v{vD+5}
v_cvt_pk_bf16_f32 v{o+1}, -v{vD+6}, v{vD+5}
v_cvt_pk_bf16_f32 v{o+2}, v{vD+7}, v{vZ}
v_mov_b32 v{o+3}, s{sNON}
v_mov_b32 v{o+7}, s{sNON}
buffer_store_dwordx4 {vr(o,4)}, v{vSa+9}, {srd(SWS)}, s{sHst} offen sc1
buffer_store_dwordx4 {vr(o+4,4)}, v{vSa+9}, {srd(SWS)}, s{sHst2} offen sc1
''')
stamp(sp, 'kgenA')
sp.add(sa.l[9:])
if OPT['iw']:
    sp(';IWARM spare')
sp.add(bar('spw'))
Gs = Gaps([f'v_mfma_f32_16x16x32_bf16 {vr(vD+12,4)}, {vr(vONE,4)}, {ar(4*s_,4)}, {vr(vD+12,4) if s_ else 0}' for s_ in range(16)], cap=8)
rdw = [Seq()(f'ds_read_b64_tr_b16 {ar(2*s_,2)}, v{vSa+5} offset:{2048*s_}') for s_ in range(32)]
rdw += [Seq()(f'ds_read_b128 {ar(128+4*s_,4)}, v{vSa+4} offset:{64*s_}') for s_ in range(16)]
sp.add(cat(rdw[:16]))
Gs.fill(rdw[16:], 0, 16)
sp.add(Gs.emit())
sp(f'''
v_cmp_gt_u32 vcc, 16, v{vL}
v_mov_b32 v{t+2}, 0x7ff00000
s_lshl2_add_u32 s{sT0}, s{sCB1}, s{sWV}
s_lshl_b32 s{sT0}, s{sT0}, 8
s_add_u32 s{sT0}, s{sT0}, {WS_FP}
v_cndmask_b32 v{t}, v{t+2}, v{vL16}, vcc
v_mov_b32 v{o+2}, v{vB1}
v_cvt_pk_bf16_f32 v{o+1}, v{vD+12}, v{vZ}
v_lshlrev_b32 v{t+3}, 16, v{o+1}
v_lshl_or_b32 v{o+1}, v{vB1}, 16, v{o+1}
v_sub_f32 v{t+4}, v{vD+12}, v{t+3}
v_cvt_pk_bf16_f32 v{o}, v{t+3}, v{t+4}
buffer_store_dwordx4 {vr(o,4)}, v{t}, {srd(SWS)}, s{sT0} offen sc1
''')
stamp(sp, 'g1s3')
gate = Seq()
for s_ in range(16):
    gate(f'v_mfma_f32_16x16x32_bf16 {vr(vD+8,4)}, {ar(128+4*s_,4)}, {ar(aX+4*s_,4)}, {vr(vD+8,4) if s_ else 0}')
sp.add(gate)
sp(f'''
s_lshl_b32 s{sT2}, s{sTB1}, 9
s_add_u32 s{sT2}, s{sT2}, {WS_G}
v_lshrrev_b32 v{t+1}, 1, v{vSa+9}
v_mul_f32 v{vD+8}, {f32(-math.log2(math.e))}, v{vD+8}
v_exp_f32 v{vD+8}, v{vD+8}
v_add_f32 v{vD+8}, 1.0, v{vD+8}
v_rcp_f32 v{o+6}, v{vD+8}
buffer_store_dwordx2 {vr(o+6,2)}, v{t+1}, {srd(SWS)}, s{sT2} offen sc1
''')
sp.add(bar('utst'))
sp.add(fu_flag())
sp.add(setup_b())
ks_ = Seq().add(kgen_seq(K).l[len(K['A']):])
sp.add(ks_)
sp.add(cat(w2_dma(0)))
sp.add(bar('*lds'))
stamp(sp, 'g1s7')
sp.add(K['rc'])
sp.add(cat(w2_dma(1)))
sp.add(K['vc'])
sp.add(K['wc'].l[:5])
sp.add(cat([g for k in range(2, 6) for g in w2_dma(k)]))
sp.add(u_poll_issue())
sp.add(cat(w2_tr(0) + w2_tr(1) + w2_tr(2)))
sp.add(K['wc'].l[5:])
sp.add(w2_window())
sp.add(u_dma())
sp.add(cat([g for k in range(6, 6 + OPT['ng']) for g in w2_dma(k)]))
sp.wait('udma')
stamp(sp, 'gelu')
sp('s_branch Ljoin')
for b, n in ((vF1, 48), (vD, 16), (vONE, 4), (vSa, 10), (o, 8), (K['vb'], 36), (K['pb'], 32),
             (vGA, 9), (vTA, 5), (vRR, 1), (vEa, 3)):
    V.release(b, n)

com = Seq()
com('Ljoin:')
vB2 = V.alloc(8, 2)
vGt = V.alloc(2, 2)
vH0 = V.alloc(56, 2)
vCF = V.alloc(128, 2)
vH = (vH0, vCF)
aC = 224
com.wait('udma')
com(f'ds_write_b32 v{vUz+1}, v{vZ} offset:{L_U + 508}')
com.add(bar('*lds'))
stamp(com, 'cv0')


def cv_reads(bb):
    b = vCF + 64 * (bb & 1)
    r = []
    for a in range(8):
        for hh in range(2):
            r.append(f'ds_read_b64 {vr(b+4*a+2*hh,2)}, v{vFa} offset:{64*(59-8*a-bb) + 8*hh}')
        r.append(f'ds_read_b128 {vr(b+32+4*a,4)}, v{vGa} offset:{512*a + 64*(3-bb)}')
    return r


def cv_mfma(bb):
    b = vCF + 64 * (bb & 1)
    r, first = [], set()
    key = (lambda x: (x[0] + x[1], x[0])) if bb == 3 else (lambda x: (max(x), x[0] - x[1])) if OPT['cord'] else (lambda x: (max(x), x[0] + x[1], x[0]))
    order = sorted(((a, d) for a in range(8) for d in range(8 - a)), key=key)
    for a, d in order:
        c = aC + 4 * (a + d)
        cc = '0' if (bb == 0 and a + d not in first) else ar(c, 4)
        first.add(a + d)
        r.append(f'v_mfma_f32_16x16x32_bf16 {ar(c,4)}, {vr(b+4*a,4)}, {vr(b+32+4*d,4)}, {cc}')
    return r


def h_load(L):
    sg, ks = divmod(L, 14)
    if HS == 1:
        return Seq()(f'buffer_load_dwordx4 {vr(vH[sg&1]+4*ks,4)}, v{vL16+ks//4}, {srd(SWS)}, s{sH+sg} offen offset:{1024*(ks%4)} sc1')
    s = Seq()(f'buffer_load_dwordx4 {vr(vH[sg&1]+4*ks,4)}, v{vL16+1+(ks%6)//2}, {srd(SWS)}, s{sH+sg} offen offset:{2048*(ks%2)} sc1')
    if ks % 6 == 5:
        s(f's_add_u32 s{sH+sg}, s{sH+sg}, 12288')
    return s


hflag = Seq()
hflag.wait('hst?')
flag_set(hflag, sFH)
small = Seq()
g_ld = f'buffer_load_dwordx2 {vr(vGt,2)}, v{vGo}, {srd(SWS)}, s{sGs} offen sc1'
small(g_ld)
for j in range(4):
    small(f'global_load_dwordx2 {vr(vB2+2*j,2)}, v{vBa}, {ptr(P_B2)} offset:{32*j}')

C = Gaps([x for bb in range(4) for x in cv_mfma(bb)], cap=8, maxlds=1)
need = 3 * [[0, 1, 4, 9, 16, 24, 30, 34]] + [[0, 1, 3, 6, 10, 15, 21, 28]]
LEAD = OPT['lead']
cr = [(36 * bb + need[bb][a] - LEAD, x) for bb in range(4) for a in range(8) for x in cv_reads(bb)[3 * a: 3 * a + 3]]
nxt_free, prelude, placed = 143, [], []
for dl, x in reversed(cr):
    g = min(dl, nxt_free)
    if g < 0:
        prelude.insert(0, x)
    else:
        placed.append((g, x))
        nxt_free = g - 1
for g, x in placed:
    C.put(g, x)
for bb in range(4):
    for a in range(8):
        if 36 * bb + need[bb][a] > 0:
            C.reserve(36 * bb + need[bb][a] - 1, 4)
CT = OPT['ct']
assert CT >= 9
DS = OPT['ds']
g0, dma_end = 0, OPT['d00'] - DS
dma_at = {k: -46 for k in range(6 + OPT['ng'])}
for k in range(6 + OPT['ng'], 9):
    dma_end = dma_at[k] = C.fill(w2_dma(k), dma_end + DS, dma_end + 5 * DS, step=DS)[-1]
for k in range(3, CT + 1):
    g0 = max(g0, dma_at[k] + 44)
    p = C.fill(w2_tr(k), g0, min(g0 + OPT['tw'], 144))
    g0 = p[-1] + 1
    if k == 9:
        tr9 = p[-1]
    if k < 8:
        d0 = max(p[-1] + 6, dma_end + DS)
        dma_end = dma_at[k + 6] = C.fill(w2_dma(k + 6), d0, min(d0 + 4 * DS, 144), step=DS)[-1]
print('w2 dma gaps', dma_at, 'last tr', g0)
red = [Seq()(f'ds_write_b128 v{vRa}, {ar(aC+4*c,4)} offset:{16384*(c//4) + 1024*(c%4)}') for c in range(8)]
for c, g in enumerate((129, 131, 133, 135, 137, 139, 142)):
    assert g > tr9 and g >= 108 + (c + 1) * (c + 2) // 2 + 4
    C.put(g, red[c])
if OPT['smg'] < 144:
    C.fill(singles(small), OPT['smg'], OPT['smg'] + 14, step=2)
C.put(OPT['hfg'], hflag)
if OPT['vp']:
    hld = f'buffer_load_dword v{vPF}, v{vPA}, {srd(SWS)}, s{sFHp} offen sc1'
    C.put(OPT['hpg'], hld)
    hc = [Seq()(f'v_cmp_ne_u32 vcc, s{sNON}, v{vPF}')]
    retry(hc[0], 's_cbranch_vccnz', 's_cbranch_vccz', '\n'.join([hld, 's_waitcnt vmcnt(0)', hc[0].l[0].text]))
else:
    C.put(OPT['hpg'], spoll_issue(7, sFHp))
    hc = spoll_check(7, sFHp)
if OPT['nochk']:
    hc[-1].l[-2] = Ins('s_nop 0')
p = C.fill(hc, OPT['hcg'], OPT['hcg'] + 8)
g0 = max(p[-1], dma_end) + 1
NC = min(14, (144 - g0) // OPT['hs'])
C.fill([h_load(L) for L in range(NC)], g0, 144, step=OPT['hs'])
print('h loads in conv', NC)
sc = singles(setup_c())
C.spread(sc[:9], 30, min(OPT['smg'], OPT['hpg']))
C.spread(sc[9:], min(OPT['smg'], OPT['hpg']), g0)
print('conv over', C.over(), C.load if OPT['stamps'] == 4 else '')
for x in prelude:
    com(x)
for g in range(0, 144, 12):
    com.add(C.emit(g, g + 12))
    if g < 132:
        stamp(com, f'c{g+12}', 4)
stamp(com, 'cv1')
NH0 = NC + OPT['nb4']
hl1 = [h_load(L) for L in range(NC, NH0)]
q = vCF + 56
for k in range(4):
    com(f'v_mov_b32 v{q+32+4*k+2}, s{sNON}')
    com(f'v_mov_b32 v{q+32+4*k+3}, s{sNON}')
com.add(red[7])
com.add(cat(hl1[:3]))
com.add(bar('*lds'))
rr = Seq()
for si in range(2):
    for e in range(2):
        for p in range(2):
            rr(f'ds_read_b128 {vr(q+16*si+8*e+4*p,4)}, v{vRa+1+e} offset:{2048*si + 4096*p}')
com.add(rr)
com.add(cat(hl1[3:6]))
for si in range(2):
    b = q + 16 * si
    for e in range(2):
        for k in range(2):
            com(f'v_pk_add_f32 {vr(b+8*e+2*k,2)}, {vr(b+8*e+2*k,2)}, {vr(b+8*e+4+2*k,2)}')
    for k in range(2):
        o = q + 32 + 8 * si + 4 * k
        com(f'v_cvt_pk_bf16_f32 v{o}, v{b+8+2*k}, v{b+8+2*k+1}')
        com(f'v_cvt_pk_bf16_f32 v{o+1}, v{b+2*k}, v{b+2*k+1}')
com.add(cat(hl1[6:]))
LATE = OPT['asg'] > 60
apark = [Seq()(f'v_accvgpr_write_b32 a{224+k}, v{q+32+k}') for k in range(16)]
ast = [Seq()(f'buffer_store_dwordx4 {ar(224+8*si+4*k,4) if LATE else vr(q+32+8*si+4*k,4)}, v{vAo}, {srd(SWS)}, s{sAT} offen offset:{2048*si + 128*k} sc1', tag='atst')
       for si in range(2) for k in range(2)]
if OPT['asg'] < 0:
    com.add(cat(ast))
stamp(com, 'cv2')

vA2, vP, vAa = vCF + 56, vCF + 88, vCF + 120
vPR = t
aL = vA2 + 16
a_ld = [f'buffer_load_dwordx4 {vr(vH0+4*i,4)}, v{vAs}, {srd(SWS)}, s{sAs+i} offen sc1' for i in range(4)]
a_cmp = [f'v_xor_b32 v{vH0+4*i+2}, s{sNON}, v{vH0+4*i+2}' for i in range(4)]
a_cmp += [f'v_or3_b32 v{vH0+3}, v{vH0+2}, v{vH0+6}, v{vH0+10}', f'v_or_b32 v{vH0+3}, v{vH0+3}, v{vH0+14}',
          f'v_cmp_ne_u32 vcc, 0, v{vH0+3}']
a_chk = [Seq()(x) for x in a_cmp]
retry(a_chk[-1], 's_cbranch_vccnz', 's_cbranch_vccz', '\n'.join(a_ld + ['s_waitcnt vmcnt(0)'] + a_cmp))
a_wr = [Seq()(f'ds_write_b64 v{vAd+i%2}, {vr(vH0+4*i,2)} offset:{512*i}', tag='awr') for i in range(4)]


g_chk = Seq()(f'v_cmp_ne_u32 vcc, s{sNON}, v{vGt+1}')
retry(g_chk, 's_cbranch_vccnz', 's_cbranch_vccz', '\n'.join([g_ld, 's_waitcnt vmcnt(0)', g_chk.l[0].text]))


def part_write(sg):
    return [Seq()(f'ds_write_b128 v{vPW}, {vr(vA2+16*(sg&1)+4*j,4)} offset:{16384*sg + 1024*j}', tag=f'pw{sg}') for j in range(4)]


def part_read(sg, dst):
    return [Seq()(f'ds_read_b128 {vr(dst+4*j,4)}, v{vPR+sg} offset:{1024*j}') for j in range(4)]


def unpack(dst, src):
    return [Seq()(f'v_and_b32 v{dst+k}, 0xffff0000, v{src+k//2}' if k % 2 else f'v_lshlrev_b32 v{dst+k}, 16, v{src+k//2}')
            for k in range(16)]


M = Gaps([f'v_mfma_f32_16x16x32_bf16 {vr(vA2+16*(sg&1)+4*j,4)}, {ar(16*ks+4*j,4)}, {vr(vH[sg&1]+4*ks,4)}, '
          f'{vr(vA2+16*(sg&1)+4*j,4) if (ks or sg == 3) else 0}'
          for sg in range(4) for ks in range(14) for j in range(4)], cap=8, maxlds=1)
HD = OPT['hd']
for g in range(3, 223, 4):
    M.reserve(g, 4)
nl = NH0
for step in range(56):
    a0 = max(OPT['asg'], 0) // 4
    for k in range(0 if a0 <= step < a0 + OPT['pause'] else 2 if step % OPT['cu'] == 0 else 1):
        if nl < 56 and nl <= step + HD:
            M.put(4 * step + 2 * k, h_load(nl))
            nl += 1
if OPT['asg'] >= 0:
    M.fill(ast, OPT['asg'], OPT['asg'] + 12, step=2)
M.fill([g for k in range(CT + 1, 14) for g in w2_tr(k)], 0, 4 * CT + 2)
se = singles(setup_e())
M.spread(se[:2], 0, 40)
M.spread(se[2:], 40, 112)
M.fill([g_chk, Seq()(f'v_sub_f32 v{vGt+1}, 1.0, v{vGt}')]
       + (apark if LATE else []) + unpack(vP, vB2), 20 if LATE else max(30, OPT['asg'] + 14), 110)
for i, x in enumerate(a_ld):
    assert OPT['alg'] + OPT['als'] * i >= 116 + 4 * i
    M.put(OPT['alg'] + OPT['als'] * i, x)
for sg in range(3):
    for j, g_ in enumerate(part_write(sg)):
        M.put(56 * (sg + 1) + 5 + (4 if sg == 0 else 3) * j, g_)
M.put(112 + 21, bar('pw1'))
M.fill(part_read(0, vP + 16) + part_read(1, aL), 112 + 22, 112 + 32)
M.fill([Seq()(f'v_add_f32 v{vP+k}, v{vP+k}, v{vP+16+k}') for k in range(16)]
       + [Seq()(f'v_add_f32 v{aL+k}, v{aL+k}, v{vP+k}') for k in range(16)], 112 + 34, 167)
AF = OPT['afg']
p = M.fill(a_chk + a_wr, OPT['acg'], AF - 1)
M.put(AF, bar('pw2', 'awr'))
M.fill([Seq()(f'ds_read_b64_tr_b16 {vr(vAa+2*j,2)}, v{vAr} offset:{4096*j}') for j in range(4)] + part_read(2, vP), AF + 1, min(AF + 7, 223))
M.fill(unpack(vP + 16, vAa) + [Seq()(f'v_mul_f32 v{vP+16+k}, v{vGt}, v{vP+16+k}') for k in range(16)]
       + [Seq()(f'v_fma_f32 v{vP+k}, v{vP+k}, v{vGt+1}, v{vP+16+k}') for k in range(16)], min(AF + 8, 223), 224)
print('gemm2 over', M.over())
for sg in range(4):
    for g in range(56 * sg, 56 * sg + 56, 14):
        com.add(M.emit(g, g + 14))
        if (g + 14) % 56:
            stamp(com, f'm{g+14}', 4)
    stamp(com, f'g2s{sg}')
for j in range(4):
    for i in range(0, 4, 2):
        k = 4 * j + i
        com(f'v_pk_fma_f32 {vr(vP+k,2)}, {vr(aL+k,2)}, {vr(vGt,2)}, {vr(vP+k,2)} op_sel:[0,1,0] op_sel_hi:[1,1,1]')
for j in range(4):
    com(f'v_cvt_pk_bf16_f32 v{vAa+2*j}, v{vP+4*j}, v{vP+4*j+1}')
    com(f'v_cvt_pk_bf16_f32 v{vAa+2*j+1}, v{vP+4*j+2}, v{vP+4*j+3}')
for j in range(4):
    com(f'ds_write_b64 v{vOw+j}, {vr(vAa+2*j,2)}')
for r in range(2):
    com(f'ds_read_b128 {vr(vP+16+4*r,4)}, v{vOr} offset:{1024*r}')
for r in range(2):
    com(f'buffer_store_dwordx4 {vr(vP+16+4*r,4)}, v{vOa}, {srd(SOUT)}, s{sO0+r} offen' + ('', ' sc1', ' nt', ' sc0 sc1')[OPT['osc']])
if OPT['stamps']:
    com.wait('*vm')
    stamp(com, 'end')
    com('s_waitcnt lgkmcnt(0)')
    stamp(com, 'x')
    com(f'''
s_waitcnt lgkmcnt(0)
s_memrealtime s[{sSTAMP}:{sSTAMP+1}]
v_writelane_b32 v{vST}, s{sSTAMP}, 63
s_getreg_b32 s{sT0}, hwreg(HW_REG_XCC_ID)
v_writelane_b32 v{vST}, s{sT0}, 61
s_getreg_b32 s{sT0}, hwreg(HW_REG_HW_ID)
v_writelane_b32 v{vST}, s{sT0}, 60
s_lshl2_add_u32 s{sT0}, s2, s{sWV}
s_lshl_b32 s{sT0}, s{sT0}, 8
s_add_u32 s{sT0}, s{sT0}, {WS_ST}
v_lshlrev_b32 v{t}, 2, v{vL}
buffer_store_dword v{vST}, v{t}, {srd(SWS)}, s{sT0} offen''')
if PROBE is not None:
    com.wait('*vm')
    stamp(com, 'end')
    role = PROBE.split(':')[1]
    com(f'''
s_waitcnt lgkmcnt(0)
s_cmp_ge_u32 s2, 224
{'s_cbranch_scc1 Lend' if role == 'm' else 's_cbranch_scc0 Lend' if role == 's' else 's_nop 0'}
v_readfirstlane_b32 s{sT1}, v{vST}
{dict(n=f's_sub_u32 s{sT0}, s{sSTAMP}, s{sNON}', r=f's_sub_u32 s{sT0}, s{sNON}, s{sT1}', s=f's_sub_u32 s{sT0}, s{sSTAMP}, s{sT1}')[PROBE.split(':')[2]]}
s_max_i32 s{sT0}, s{sT0}, 0
s_min_i32 s{sT0}, s{sT0}, 0x2000
s_lshl_b32 s{sT0}, s{sT0}, 2
s_memrealtime s[{sT2}:{sT3}]
s_waitcnt lgkmcnt(0)
s_add_u32 s{sT0}, s{sT0}, s{sT2}
Lprobe:
s_memrealtime s[{sT2}:{sT3}]
s_waitcnt lgkmcnt(0)
s_sub_u32 s{sT1}, s{sT2}, s{sT0}
s_cmp_lt_i32 s{sT1}, 0
s_cbranch_scc1 Lprobe''')
com('Lend:')
com('s_endpgm')

check_order(checks[0][0], main.l, checks[0][1])
check_order(pc_addr.l + cat(pr).l + cat(pc_chk).l, main.l)
check_order(checks[1][0], sp.l, checks[1][1])
for x in (main, sp, com):
    insert_m0(x.l)
if OPT['stamps']:
    p0 = finish_stamps(pro.l, None)
    p1 = finish_stamps(main.l, p0)
    assert p1 == finish_stamps(sp.l, p0)
    finish_stamps(com.l, p1)
    stamp_names.remove('x')
paths = (pro.l + main.l + com.l, pro.l + sp.l + com.l)
for p in paths:
    resolve_waits(p)
for p in paths:
    resolve_waits(p)
for p in paths:
    fix_hazards(p)

ref = open('gated_mix__ssm_conv_s4d__mixer_channel_mlp__prompt.s.ref').read().split('\n')
head = [l for l in ref if l.startswith(';') and '@launch' not in l]
txt = '\n'.join(head) + f'\n; @launch grid=(256,1,1) block=(256,1,1) lds={LDS_SIZE}\n'
txt += f'''.amdgcn_target "amdgcn-amd-amdhsa--gfx950"
.text
.p2align 12
.fill {((4096 - 768 + 256 * OPT['eo']) % 4096) // 4}, 4, 0xbf810000      ; the entry then starts a 4 KB page (instruction prefetch stops at page ends)
.globl {NAME}
.p2align 8
.type {NAME},@function
{NAME}:
'''
txt += render(pro.l) + render(main.l) + render(com.l) + ''.join(outline) + '.p2align 12\n' + render(sp.l)
txt += f'''Lcode_end:
    s_endpgm
.section .rodata,"a"
.p2align 6
.amdhsa_kernel {NAME}
  .amdhsa_next_free_vgpr 512
  .amdhsa_next_free_sgpr 102
  .amdhsa_accum_offset 256
  .amdhsa_group_segment_fixed_size 0
  .amdhsa_kernarg_size 128
  .amdhsa_user_sgpr_count 2
  .amdhsa_user_sgpr_kernarg_segment_ptr 1
  .amdhsa_system_sgpr_workgroup_id_x 1
.end_amdhsa_kernel
'''


def with_page_stubs(txt):
    import subprocess, re
    disp = {}
    for role in ('main', 'spare'):
        disp[role] = ['s_mov_b64 exec, 0'] + [x for w in range(3) for x in (f's_cmp_eq_u32 s{sWV}, {w}', f's_cbranch_scc1 @{role}{w}')]
        disp[role] += [f's_branch @{role}3']
    disp['main'] += ['Liw_ret:', 's_cmp_ge_u32 s2, 224', 's_cbranch_scc1 Liw_ret_spare', 's_mov_b64 exec, -1']
    disp['spare'] += ['Liw_ret_spare:', 's_mov_b64 exec, -1']
    lines = []
    for l in txt.split('\n'):
        if ';IWARM' in l:
            lines += [x if x.endswith(':') else '    ' + x for x in disp[l.split()[1]]]
        else:
            lines.append(l)
    open('_pg.s', 'w').write(re.sub(r'@(main|spare)\d', 'Lend', '\n'.join(lines)))
    subprocess.run(['clang', '-x', 'assembler', '-target', 'amdgcn-amd-amdhsa', '-mcpu=gfx950', '-c',
                    '_pg.s', '-o', '_pg.o'], check=True)
    dis = subprocess.run(['llvm-objdump', '-d', '-z', '--mcpu=gfx950', '_pg.o'], capture_output=True, text=True).stdout
    dis = dis[dis.index(f'<{NAME}>:'):]
    cut = dis.index('<Lspare>:')
    size = lambda part: [4 * len(m.group(1).split()) for m in re.finditer(r'// [0-9A-F]+: ([0-9A-F ]+)', part)]
    isins = lambda l: l.startswith('    ') and not l.strip().startswith((';', '.'))
    out, pages = [], {'main': [], 'com': [], 'spare': []}
    sec, sizes, addr, seen = None, None, 0, set()
    for l in lines:
        if l == f'{NAME}:':
            sec, sizes, addr = 'main', iter(size(dis[:cut])), 256 * OPT['eo']
        if l == 'Ljoin:':
            sec = 'com'
        if l == 'Lend:':
            sec = None
        if l == 'Lspare:':
            sec, sizes, addr = 'spare', iter(size(dis[cut:])), 0
        if l.startswith('Liw_ret'):
            seen.add(sec)
        if l == 'Lcode_end:':
            sec = None
        if sec and isins(l):
            if addr >= 4096:
                addr -= 4096
                if sec == 'com' or sec in seen:
                    nm = f'Lpg{sum(map(len, pages.values()))}'
                    pages[sec].append(nm)
                    out += [nm + ':', f'    s_cbranch_execz @next{nm}']
                    addr += 4
            addr += next(sizes)
        out.append(l)
    txt = '\n'.join(out)
    nxt = {p: 'Liw_ret' for p in pages['com'] + pages['main']}
    nxt.update({p: 'Liw_ret_spare' for p in pages['spare']})
    for role in ('main', 'spare'):
        own, com_ = list(pages[role]), list(pages['com'])
        while len(own) + len(com_) > 4:
            k = len(own) + len(com_) - 5
            nxt[own[k]] = com_.pop()
        heads = own + com_
        for w in range(4):
            txt = txt.replace(f'@{role}{w}', heads[w] if w < len(heads) else ('Liw_ret' if role == 'main' else 'Liw_ret_spare'))
    for p, n_ in nxt.items():
        txt = txt.replace(f'@next{p}\n', n_ + '\n')
    print('pages', pages)
    return txt


if OPT['iw']:
    txt = with_page_stubs(txt)
open(sys.argv[1], 'w').write(txt)
if OPT['stamps']:
    open(sys.argv[1] + '.stamps', 'w').write(' '.join(stamp_names))
print('vgpr high water', V.hw, 'instr', [sum(1 for i in p.l if i.kind != 'meta') for p in (pro, main, com, sp)],
      'nops', sum(i.pre for p in (pro, main, com) for i in p.l))
```

```python
import sys, struct, math
from asmlib import *

NAME = 'gated_mix__ssm_conv_s4d__mixer_channel_mlp__prompt_kernel'
OPT = dict(stamps=0, rt=0, rot=1, touch=1, tlb=0, early=10, nk=19, res=66, lst=9, hd=27, osc=0, up=-1, ud=0, pcg=170,
           hfg=22, hpg=76, hcg=116, alg=118, acg=184, afg=196, ct=10, nb4=8, asg=-1, skipw=0, c3=0, gs0=4, gsp=13, pause=6, hs=3, cu=99, ua=80, nost=0, hsk=0, nochk=0, vp=1, ng=2, ds=4, d00=2, smg=60, tw=12, lead=8, atl=0, als=8, wtl=0, t1=0, te=0, cord=1, eo=0, iw=1, nm=0, nms=8, lq=4, tl=0, wf=0, c3x=0, rsh=0, rb=6, kf=1, w2s=0, dly=0)
PROBE = None
for a in sys.argv[2:]:
    k, v = a.split('=')
    if k == 'probe':
        PROBE = v
        continue
    assert k in OPT, k
    OPT[k] = int(v)


def f32(x):
    return '0x%08x' % struct.unpack('<I', struct.pack('<f', x))[0]


FU, FH, FDUMMY = 0x10000, 0x1000, 0x9000
WS_TP = 0x80000
WS_TS = 0x88000
WS_G = 0x90000
WS_FP = 0x98000
WS_ST = 0xA0000
WS_UT = 0x200000
HS = 2 if OPT['hsk'] else 1
WS_AT = 0x400000
WS_H = 0x800000 + (512 if OPT['hsk'] else 0)
WS_SIZE = 0x10000000
L_X, L_W = 32768, 98304
PART = 8192
O_T = 4352
L_U = 32768
L_E = 65536
LDS_SIZE = 163840

P_U, P_LA, P_AI, P_CR, P_CI, P_DT, P_DS, P_BX, P_W1, P_B1, P_W2, P_B2, P_GW, P_OUT, P_DBG, P_WS = [4 + 2 * i for i in range(16)]
SX, SW1, SW2, SWS, SOUT = 36, 40, 44, 48, 52
sXCD, sJ, sWV, sBH = 56, 57, 58, 59
sT0, sT1, sT2, sT3 = 60, 61, 62, 63
sNON, sNON1 = 64, 65
sM, sXb, sWb, sKC, sXk, sWk = 66, 67, 68, 69, 70, 71
sHst, sHst2, sFH, sTB1, sCB1, sW2l = 72, 73, 74, 75, 76, 77
sP4, sCNT, sTB2, sNB, sCH, sT4 = 78, 79, 80, 81, 82, 83
sF = 84
sSTAMP = 100
sUt, sUo, sFU, sFUp = 3, 98, 99, 13
sDT, sDS = 96, 97
sT5 = 91
sUs, sUm = 4, 5
sSEL0, sSEL1 = 18, 19
sH = 6
sPR = 10
sAT, sFHp, sAT2, sGs = 14, 15, 16, 17
sAs = 92
sO0, sO1 = 20, 21
srd = lambda b: 's[%d:%d]' % (b, b + 3)
ptr = lambda b: 's[%d:%d]' % (b, b + 1)

V = Regs('v', 0, 256)
vTID, vL, vZ, vST, vN, vG, vNON, vPF = [V.alloc() for _ in range(8)]
vT = V.alloc(8, 4)
vZ2 = V.alloc(4, 4)
vL16 = V.alloc(4, 1)
vPA = V.alloc()
vW2s = V.alloc(4, 1)
vTr = V.alloc(8, 1)
vFa, vGa = V.alloc(), V.alloc()
vUz = V.alloc(2, 1)
vX = V.alloc(16, 1)
vPAR, vPo, vXs, vWs = vX, vX + 6, vX + 8, vX + 12
vRa, vAd, vPW, vAr, vOw, vOr, vOa, vBa, vGo, vAs = vX, vX + 3, vX + 5, vX + 6, vX + 7, vX + 11, vX + 12, vX + 13, vX + 14, vX + 15
vAo = V.alloc()
t = vT

outline = []
stamp_names = []
nlab = [0]
checks = []


def stamp(s, name, lvl=1):
    if PROBE is not None and name == 'karg':
        s(f'v_mov_b32 v{vST}, s{sSTAMP}')
    if PROBE is not None and name in (PROBE.split(':')[0], 'start'):
        s(f's_memrealtime s[{sSTAMP}:{sSTAMP+1}]')
        s.l[-1].kind, s.l[-1].dst = 'salu', []
    if OPT['stamps'] < lvl or (OPT['stamps'] == 4 and lvl in (2, 3)) or (OPT['stamps'] == 5 and lvl in (3, 4)):
        return
    if name not in stamp_names:
        stamp_names.append(name)
    s(f's_mem{"real" if OPT["rt"] else ""}time s[{sSTAMP}:{sSTAMP+1}]', tag='stamp:' + name)
    s.l[-1].kind, s.l[-1].dst = 'salu', []


def finish_stamps(items, prev):
    out = []
    for it in items:
        if it.tag and it.tag.startswith('stamp:'):
            if prev is not None:
                out.append(Ins(f'v_writelane_b32 v{vST}, s{sSTAMP}, {stamp_names.index(prev)}'))
            prev = it.tag[6:]
        out.append(it)
    items[:] = out
    return prev


def retry(s, branch, exit_branch, body):
    k = nlab[0]
    nlab[0] += 1
    s(f'{branch} Lretry{k}')
    s(f'Lback{k}:')
    body = '\n'.join('    ' + l.strip() for l in body.strip().split('\n'))
    outline.append(f'''Lretry{k}:
    s_mov_b32 s{sCNT}, 0x40000
Lloop{k}:
    s_sleep 2
{body}
    {exit_branch} Lback{k}
    s_sub_u32 s{sCNT}, s{sCNT}, 1
    s_cbranch_scc0 Lloop{k}
    s_branch Lback{k}
''')


def cat(groups):
    s = Seq()
    for g in groups:
        s.add(g)
    return s


def chunks(seq, n):
    return [Seq().add(seq.l[i:i + n]) for i in range(0, len(seq), n)]


def bar(*tags):
    s = Seq()
    if tags:
        s.wait(*tags)
    s('s_barrier')
    return s


def nonce_issue():
    return Seq()(f'global_load_dword v{vNON}, v{vZ}, {ptr(P_DBG)} sc1')


def nonce_check():
    s = Seq()
    s(f'v_readfirstlane_b32 s{sNON}, v{vNON}')
    s(f's_cmp_eq_u32 s{sNON}, 0')
    retry(s, 's_cbranch_scc1', 's_cbranch_scc0', f'''
global_load_dword v{vNON}, v{vZ}, {ptr(P_DBG)} sc1
s_waitcnt vmcnt(0)
v_readfirstlane_b32 s{sNON}, v{vNON}
s_nop 3
s_cmp_eq_u32 s{sNON}, 0''')
    s(f's_mov_b32 s{sNON1}, s{sNON}')
    return s


def flag_set(s, soff):
    s(f's_atomic_swap s{sNON}, {ptr(P_WS)}, s{soff}')


def spoll_issue(n, soff):
    return Seq()(f's_load_dwordx{8 if n <= 8 else 16} s[{sF}:{sF + (7 if n <= 8 else 15)}], {ptr(P_WS)}, s{soff} glc')


def spoll_check(n, soff):
    l = []
    for k in range(0, n - 1, 2):
        l.append(f's_xor_b64 s[{sF+k}:{sF+k+1}], s[{sF+k}:{sF+k+1}], s[{sNON}:{sNON1}]')
    if n % 2:
        l.append(f's_xor_b32 s{sF+n-1}, s{sF+n-1}, s{sNON}')
        l.append(f's_or_b32 s{sF}, s{sF}, s{sF+n-1}')
    for k in range(2, n - 1, 2):
        l.append(f's_or_b64 s[{sF}:{sF+1}], s[{sF}:{sF+1}], s[{sF+k}:{sF+k+1}]')
    g = [Seq()(x) for x in l]
    retry(g[-1], 's_cbranch_scc1', 's_cbranch_scc0', '\n'.join([spoll_issue(n, soff).l[0].text, 's_waitcnt lgkmcnt(0)'] + l))
    return g


pro = Seq()
pro('s_cmp_ge_u32 s2, 0x100\ns_cbranch_scc1 Lend')
if OPT['stamps']:
    pro(f'''
s_memrealtime s[{sSTAMP}:{sSTAMP+1}]
s_waitcnt lgkmcnt(0)
s_add_u32 s{sT0}, s{sSTAMP}, 0x500
s_and_b32 s{sT0}, s{sT0}, 0xfffffc00
Lsync:
s_memrealtime s[{sSTAMP}:{sSTAMP+1}]
s_waitcnt lgkmcnt(0)
s_sub_u32 s{sT1}, s{sSTAMP}, s{sT0}
s_cmp_lt_i32 s{sT1}, 0
s_cbranch_scc1 Lsync
v_mov_b32 v{vST}, 0
v_writelane_b32 v{vST}, s{sSTAMP}, 62''')
if OPT['dly']:
    cond = {1: 's_cmp_ge_u32 s2, 224', 2: f's_and_b32 s{sT0}, s2, 15\ns_cmp_eq_u32 s{sT0}, 5', 3: 's_cmp_eq_u32 s2, 0'}[OPT['dly']]
    pro(f'''
{cond}
s_cbranch_scc0 Lnodly
s_mov_b32 s{sT0}, 200
Ldly:
s_sleep 2
s_sub_u32 s{sT0}, s{sT0}, 1
s_cbranch_scc0 Ldly
Lnodly:''')
stamp(pro, 'start')
pro(f'''
s_load_dwordx2 s[{SX}:{SX+1}], s[0:1], 0
s_load_dwordx2 s[{SW1}:{SW1+1}], s[0:1], 64
s_load_dwordx16 s[4:19], s[0:1], 0
s_load_dwordx16 s[20:35], s[0:1], 64
s_getpc_b64 s[{sT2}:{sT3}]
Lpc:
s_cmp_ge_u32 s2, 224
s_cbranch_scc1 Lspare
''')


def pro_body(s):
    s(f'''
v_lshrrev_b32 v{t}, 6, v{vTID}
v_and_b32 v{vL}, 63, v{vTID}
v_readfirstlane_b32 s{sWV}, v{t}
v_mov_b32 v{vZ}, 0
s_and_b32 s{sXCD}, s2, 7
s_lshr_b32 s{sJ}, s2, 3
s_lshl2_add_u32 s{sT0}, s{sJ}, s{sWV}
s_mul_i32 s{sT0}, s{sT0}, 384
v_and_b32 v{t+1}, 3, v{vL}
v_lshl_add_u32 v{t+1}, v{t+1}, 7, s{sT0}
v_min_u32 v{t+1}, Lcode_end-Lpc-4, v{t+1}
global_load_dword v{vPF}, v{t+1}, s[{sT2}:{sT3}]
s_lshl_b32 s{sT0}, s2, 9
v_lshl_add_u32 v{vPo}, v{vTID}, 1, s{sT0}
s_lshl_b32 s{sCNT}, s2, 2
v_lshlrev_b32 v{vL16}, 4, v{vL}
v_and_b32 v{vN}, 15, v{vL}
v_lshrrev_b32 v{vG}, 4, v{vL}
s_mov_b32 s{SX+2}, 0x200000
s_mov_b32 s{SX+3}, 0x20000
s_mov_b32 s{SW1+2}, {512*3584}
s_mov_b32 s{SW1+3}, 0x20000
s_lshl_b32 s{sM}, s{sWV}, 12
s_lshl_b32 s{sP4}, s{sWV}, 13
s_lshl_b32 s{sT5}, s{sWV}, 11
s_and_b32 s{sBH}, s{sWV}, 1
s_lshr_b32 s{sT0}, s{sXCD}, 1
s_and_b32 s{sT1}, s{sJ}, 7
s_lshl3_add_u32 s{sUo}, s{sT0}, s{sT1}
s_and_b32 s{sT0}, s{sXCD}, 1
s_lshr_b32 s{sT1}, s{sJ}, 3
s_lshl2_add_u32 s{sFU}, s{sT0}, s{sT1}
s_lshl2_add_u32 s{sUt}, s{sUo}, s{sWV}
s_lshl_b32 s{sUt}, s{sUt}, 7
s_add_u32 s{sUt}, s{sUt}, s{sFU}
s_lshl_b32 s{sUt}, s{sUt}, 7
s_lshl_b32 s{sT0}, s{sWV}, 1
v_and_b32 v{t+2}, 7, v{vL}
v_xor_b32 v{t+2}, s{sT0}, v{t+2}
v_lshrrev_b32 v{t+3}, 3, v{vL}
v_lshlrev_b32 v{t+3}, 10, v{t+3}
v_lshl_add_u32 v{vFa}, v{t+2}, 4, v{t+3}
v_xor_b32 v{vGa}, 16, v{vFa}
v_add_u32 v{vGa}, 7168, v{vGa}
''')


def ut_loads(lds):
    s = Seq()
    for i in range(2):
        s(f'buffer_load_dwordx4 v{(vFa, vGa)[i]}, {srd(SX)}, s{sUt} offen offset:{1024*i} lds', tag='utl',
          m0=f's_add_u32 m0, s{sT5}, {lds}')
    return s


def ut_setup(lds):
    s = Seq()
    s(f'''
v_and_b32 v{t}, 7, v{vL}
v_lshrrev_b32 v{t+1}, 5, v{vL}
v_lshl_add_u32 v{t+1}, s{sWV}, 1, v{t+1}
v_xor_b32 v{t+1}, v{t+1}, v{t}
v_lshlrev_b32 v{t+1}, 4, v{t+1}
v_lshl_add_u32 v{t+1}, v{t}, 10, v{t+1}
v_bfe_u32 v{t+2}, v{vL}, 3, 2
v_lshl_add_u32 v{t+1}, v{t+2}, 2, v{t+1}
v_add_u32 v{vUz}, {lds}, v{t+1}
v_lshrrev_b32 v{t+1}, 3, v{vL}
v_lshlrev_b32 v{t+1}, 13, v{t+1}
v_lshl_add_u32 v{vUz+1}, v{t}, 4, v{t+1}
s_lshl2_add_u32 s{sT0}, s{sFU}, s{sWV}
s_lshl_b32 s{sT0}, s{sT0}, 9
s_lshl_b32 s{sFU}, s{sFU}, 5
s_add_u32 s{sFU}, s{sFU}, s{sUo}
s_lshl_b32 s{sFU}, s{sFU}, 4
s_add_u32 s{sFU}, s{sFU}, {FU}
s_add_u32 s{sUo}, s{sUo}, s{sT0}
s_lshl_b32 s{sUo}, s{sUo}, 7
s_add_u32 s{sUo}, s{sUo}, {WS_UT}
s_add_u32 s{sUt}, s{sUo}, 4096
s_mov_b32 s{sSEL0}, 0x05040100
s_mov_b32 s{sSEL1}, 0x07060302
''')
    return s


def ut_work(r):
    a, b = bar('utl'), Seq()
    for k in range(4):
        a(f'ds_read2_b32 {vr(r+2*k,2)}, v{vUz} offset0:{64*k} offset1:{64*k+32}')
    for c in range(2):
        for k in range(4):
            b(f'v_perm_b32 v{r+8+4*c+k}, v{r+2*k+1}, v{r+2*k}, s{sSEL0+c}')
    for c in range(2):
        b(f's_nop 0' if OPT['nost'] else f'buffer_store_dwordx4 {vr(r+8+4*c,4)}, v{vUz+1}, {srd(SWS)}, s{(sUo, sUt)[c]} offen sc1', tag='utst')
    return a, b


def fu_flag():
    k = nlab[0]
    nlab[0] += 1
    return Seq()(f'''
s_cmp_lg_u32 s{sWV}, 0
s_cbranch_scc1 Lback{k}
s_atomic_swap s{sNON}, {ptr(P_WS)}, s{sFU}
Lback{k}:''')


def param_loads(s):
    for i, p in enumerate((P_LA, P_AI, P_CR, P_CI)):
        s(f'global_load_ushort v{vPAR+i}, v{vPo}, {ptr(p)}')


def scalar_params(s):
    s(f's_load_dword s{sDT}, {ptr(P_DT)}, s{sCNT}')
    s(f's_load_dword s{sDS}, {ptr(P_DS)}, s{sCNT}')


def setup_a():
    s = Seq()
    for b, p, n in ((SW2, P_W2, 1792 * 1024), (SWS, P_WS, WS_SIZE), (SOUT, P_OUT, 0x200000)):
        s(f'''
s_mov_b64 s[{b}:{b+1}], s[{p}:{p+1}]
s_mov_b32 s{b+2}, {n}
s_mov_b32 s{b+3}, 0x20000''')
    s(f'''
s_lshl2_add_u32 s{sT1}, s2, s{sWV}
s_mul_i32 s{sT1}, s{sT1}, 1792
v_lshlrev_b32 v{t+7}, 7, v{vN}
s_lshl2_add_u32 s{sT2}, s{sJ}, s{sWV}
''')
    if OPT['c3x']:
        assert not OPT['tlb']
        s(f'''
s_lshr_b32 s{sT3}, s{sXCD}, 1
s_lshl_b32 s{sT3}, s{sT3}, 7
s_add_u32 s{sT3}, s{sT3}, s{sT2}
s_lshl_b32 s{sT3}, s{sT3}, 12
v_and_b32 v{t+6}, 3, v{vL}
v_lshlrev_b32 v{t+6}, 10, v{t+6}''')
    if OPT['tlb'] == 1:
        s(f'''
v_min_u32 v{t+6}, 8, v{vL}
v_lshlrev_b32 v{t+6}, 21, v{t+6}
v_or_b32 v{t+6}, 0x100000, v{t+6}''')
    if OPT['tlb'] == 2:
        s(f'''
s_lshl_b32 s{sT3}, s{sT2}, 7
s_add_u32 s{sT3}, s{sT3}, s{sXCD}
s_lshl_b32 s{sT4}, s{sT3}, 7
s_lshl_b32 s{sT3}, s{sT3}, 10
v_and_b32 v{t+6}, 1, v{vL}
v_lshl_add_u32 v{t+6}, v{t+6}, 16, s{sT3}''')
    s(f'''
s_mul_i32 s{sT2}, s{sT2}, {14*1024}
v_min_u32 v{vAo}, 13, v{vL}
v_lshlrev_b32 v{vAo}, 10, v{vAo}''')
    if OPT['c3x']:
        s(f'buffer_load_dword v{vPF}, v{t+6}, {srd(SX)}, s{sT3} offen offset:384')
    if OPT['c3']:
        s(f'buffer_load_dword v{vPF}, v{vAo}, {srd(SW2)}, s{sT2} offen offset:384')
    if OPT['t1']:
        s(f'buffer_load_dword v{vPF}, v{t+7}, {srd(SW1)}, s{sT1} offen')
    if OPT['touch']:
        s(f'buffer_load_dword v{vPF}, v{t+7}, {srd(SW2)}, s{sT1} offen')
    if OPT['tlb']:
        s(f'buffer_load_dword v{vPF}, v{t+6}, {srd(SWS)}, 0 offen sc1')
    if OPT['tlb'] == 2:
        s(f'buffer_load_dword v{vPF}, v{vZ}, {srd(SOUT)}, s{sT4} offen sc1')
    return s


vGA = V.alloc(9, 1)
vTA = V.alloc(5, 1)
vRR = V.alloc()
vEa = V.alloc(3, 1)


def setup_k():
    s = Seq()
    s(f'''
v_mul_u32_u24 v{t}, 272, v{vN}
v_lshl_add_u32 v{t}, v{vG}, 4, v{t}
v_add_u32 v{vRR}, s{sP4}, v{t}
s_add_u32 s{sT1}, s{sP4}, {O_T}
v_mov_b32 v{vEa+2}, s{sT1}
v_lshlrev_b32 v{vEa}, 4, v{vTID}
v_bfe_u32 v{t}, v{vL}, 2, 2
v_bfe_u32 v{t+1}, v{vL}, 2, 1
v_lshlrev_b32 v{t}, 13, v{t}
v_lshl_add_u32 v{t}, v{t+1}, 7, v{t}
v_and_b32 v{t+1}, 3, v{vL}
v_lshl_add_u32 v{vEa+1}, v{t+1}, 4, v{t}
v_mov_b32 v{vZ2}, 0
v_mov_b32 v{vZ2+1}, 0
v_mov_b32 v{vZ2+2}, 0
v_mov_b32 v{vZ2+3}, 0
v_lshrrev_b32 v{t}, 1, v{vG}
v_and_b32 v{t+1}, 1, v{vG}
v_mul_u32_u24 v{t+1}, 400, v{t+1}
v_lshl_add_u32 v{t+1}, v{t}, 4, v{t+1}
v_add_u32 v{t+1}, v{t+1}, v{vN}
v_lshl_add_u32 v{vTA}, v{t+1}, 2, s{sT1}
v_add_u32 v{vTA+1}, 800, v{vTA}
v_sub_u32 v{t+1}, 2, v{t}
v_lshlrev_b32 v{t+1}, v{t+1}, v{vN}
v_lshrrev_b32 v{t+2}, 3, v{t+1}
v_and_b32 v{t+1}, 7, v{t+1}
v_mul_u32_u24 v{t+1}, 100, v{t+1}
v_lshl_add_u32 v{t+2}, v{vG}, 3, v{t+2}
v_add3_u32 v{t+1}, v{t+1}, v{t+2}, 32
v_lshl_add_u32 v{vTA+2}, v{t+1}, 2, s{sT1}
v_mul_u32_u24 v{t}, 784, v{t}
v_sub_u32 v{t}, 800, v{t}
v_add_u32 v{vTA+3}, v{vTA+2}, v{t}
v_and_b32 v{t}, 7, v{vN}
v_mul_u32_u24 v{t}, 100, v{t}
v_lshrrev_b32 v{t+1}, 3, v{vN}
v_lshl_add_u32 v{t+1}, v{vG}, 3, v{t+1}
v_add3_u32 v{t}, v{t}, v{t+1}, 64
v_lshl_add_u32 v{vTA+4}, v{t}, 2, s{sT1}
''')
    return s


def setup_g():
    s = Seq()
    s(f'''
v_lshlrev_b32 v{t+4}, 3, v{vTID}
s_movk_i32 s{sT3}, 128
''')
    for i in range(9):
        g = vGA + i
        s(f'v_sub_u32 v{g}, {2047 - i}, v{t+4}')
        if i == 8:
            s(f'v_max_i32 v{t+5}, 0, v{g}')
            s(f'v_cvt_f32_u32 v{t+5}, v{t+5}')
        else:
            s(f'v_cvt_f32_u32 v{t+5}, v{g}')
        s(f'''
v_cvt_pk_bf16_f32 v{t+5}, v{t+5}, v{vZ}
v_add_u32 v{t+5}, {128 - 0x4300}, v{t+5}
v_med3_i32 v{g}, v{t+5}, v{g}, s{sT3}
v_and_b32 v{t+5}, 7, v{g}
v_ashrrev_i32 v{g}, 3, v{g}
v_mul_u32_u24 v{t+5}, 400, v{t+5}
v_lshl_add_u32 v{g}, v{g}, 2, v{t+5}''')
    return s


def setup_b():
    s = Seq()
    s(f'''
s_mul_i32 s{sW2l}, s{sWV}, {448*1024}
s_lshl_b32 s{sT0}, s{sNB}, 7
s_add_u32 s{sW2l}, s{sW2l}, s{sT0}
s_sub_u32 s{sW2l}, s{sW2l}, 32768
s_lshr_b32 s{sT0}, s{sWV}, 1
s_lshl1_add_u32 s{sCH}, s2, s{sT0}
v_lshlrev_b32 v{t+2}, 1, v{vG}
v_and_b32 v{t+3}, 7, v{vL}
v_xor_b32 v{t+2}, v{t+2}, v{t+3}
v_lshrrev_b32 v{t+3}, 3, v{vL}
v_lshlrev_b32 v{t+3}, 10, v{t+3}
v_lshl_add_u32 v{vW2s}, v{t+2}, 4, v{t+3}
v_add_u32 v{vW2s+1}, {7168*1}, v{vW2s}
v_add_u32 v{vW2s+2}, {7168*2}, v{vW2s}
v_add_u32 v{vW2s+3}, {7168*3}, v{vW2s}
v_lshrrev_b32 v{t+2}, 2, v{vL}
v_lshlrev_b32 v{t+2}, 7, v{t+2}
v_and_b32 v{t+3}, 3, v{vL}
v_lshl_add_u32 v{t+2}, v{t+3}, 3, v{t+2}
v_bfe_u32 v{t+3}, v{vL}, 3, 2
v_lshl_add_u32 v{t+2}, v{t+3}, 5, v{t+2}
s_add_u32 s{sT0}, s{sM}, {L_E}
v_add_u32 v{vTr}, s{sT0}, v{t+2}
s_sub_u32 s{sT0}, s{sM}, {L_E - L_U}
''')
    for j in range(4):
        if j:
            s(f'v_xor_b32 v{vTr+j}, {32*j}, v{vTr}')
        s(f'v_add_u32 v{vTr+4+j}, s{sT0}, v{vTr+j}')
    s(f'''
v_and_b32 v{t+4}, 1, v{vL}
v_lshrrev_b32 v{t+5}, 1, v{vN}
s_and_b32 s{sT0}, s{sWV}, 2
s_lshl_b32 s{sT0}, s{sT0}, 13
s_lshl_b32 s{sT2}, s{sBH}, 8
s_sub_u32 s{sT0}, s{sT0}, s{sT2}
s_add_u32 s{sT1}, s{sT0}, {56 + 256}
v_mul_u32_u24 v{vFa}, {PART + 128}, v{t+4}
v_lshl_add_u32 v{vFa}, v{vG}, 4, v{vFa}
v_lshlrev_b32 v{t+6}, 3, v{t+5}
v_sub_u32 v{vFa}, v{vFa}, v{t+6}
v_add_u32 v{vFa}, s{sT1}, v{vFa}
s_add_u32 s{sT1}, s{sT0}, {L_U + 512 - 192}
v_mul_u32_u24 v{vGa}, {PART + 32}, v{t+4}
v_lshl_add_u32 v{vGa}, v{vG}, 4, v{vGa}
v_lshl_add_u32 v{vGa}, v{t+5}, 6, v{vGa}
v_add_u32 v{vGa}, s{sT1}, v{vGa}
s_lshr_b32 s{sFUp}, s2, 5
s_lshl_b32 s{sFUp}, s{sFUp}, 9
s_add_u32 s{sFUp}, s{sFUp}, {FU}
v_and_b32 v{vPA}, 31, v{vL}
v_lshlrev_b32 v{vPA}, 4, v{vPA}
s_lshl_b32 s{sT0}, s{sCH}, 12
s_lshl_b32 s{sT1}, s{sBH}, 2
s_sub_u32 s{sT0}, s{sT0}, s{sT1}
s_add_u32 s{sUs}, s{sT0}, {WS_UT}
s_lshl_b32 s{sT1}, s{sBH}, 5
s_add_u32 s{sUm}, s{sP4}, s{sT1}
v_lshl_add_u32 v{vUz}, v{vL}, 3, s{sUm}
s_lshl2_add_u32 s{sT0}, s{sBH}, s{sUm}
v_mov_b32 v{vUz+1}, s{sT0}
''')
    return s


def setup_c():
    s = Seq()
    a, b = t + 4, t + 5
    s(f'''
s_lshl2_add_u32 s{sT3}, s{sTB2}, s{sWV}
s_lshl_b32 s{sFHp}, s{sT3}, 7
s_add_u32 s{sGs}, s{sFHp}, {WS_G}
s_add_u32 s{sFHp}, s{sFHp}, {FH}
s_lshl_b32 s{sT2}, s{sNB}, 7
v_lshrrev_b32 v{vBa}, 2, v{vPA}
v_add_u32 v{vBa}, s{sT2}, v{vBa}
v_lshlrev_b32 v{vGo}, 3, v{vN}
v_min_u32 v{vPA}, 6, v{vL}
v_lshlrev_b32 v{vPA}, 2, v{vPA}
s_lshl_b32 s{sO0}, s{sT3}, 14
s_add_u32 s{sO0}, s{sO0}, s{sT2}
v_add_u32 v{vL16+1}, 4096, v{vL16}
v_add_u32 v{vL16+2}, 8192, v{vL16}
v_add_u32 v{vL16+3}, 12288, v{vL16}
s_lshl4_add_u32 s{sT3}, s{sTB2}, s{sWV}
s_mul_i32 s{sT3}, s{sT3}, {14*1024}
s_add_u32 s{sT3}, s{sT3}, {WS_H}''')
    for sg in range(4):
        if sg < 3:
            s(f's_add_u32 s{sT2}, s{sWV}, {sg + 1}\ns_and_b32 s{sT2}, s{sT2}, 3')
        s(f's_mul_i32 s{sT2}, s{sT2 if sg < 3 else sWV}, {56*1024}\ns_add_u32 s{sH+sg}, s{sT2}, s{sT3}')
    s(f'''
v_xor_b32 v{a}, v{vL}, v{vG}
s_add_u32 s{sT2}, s{sM}, {L_E + 2*16384}
v_lshl_add_u32 v{vRa}, v{a}, 4, s{sT2}
v_and_b32 v{a}, 3, v{vL}
v_bfe_u32 v{b}, v{vL}, 2, 3
v_lshlrev_b32 v{b}, 1, v{b}
v_xor_b32 v{b}, v{b}, v{a}
v_lshl_add_u32 v{b}, v{a}, 4, v{b}
v_lshrrev_b32 v{a}, 5, v{vL}
v_lshl_add_u32 v{b}, v{a}, 6, v{b}
s_and_b32 s{sT2}, s{sWV}, 2
s_lshl2_add_u32 s{sT2}, s{sBH}, s{sT2}
s_lshl_b32 s{sT2}, s{sT2}, 12
s_add_u32 s{sT2}, s{sT2}, {L_E + 2*16384}
v_lshl_add_u32 v{vRa+1}, v{b}, 4, s{sT2}
v_xor_b32 v{vRa+2}, 16, v{vRa+1}
v_and_b32 v{a}, 0x380, v{vL16}
v_add_u32 v{vAo}, v{vL16}, v{a}
s_lshl1_add_u32 s{sAT}, s{sCH}, s{sBH}
s_lshl_b32 s{sAT}, s{sAT}, 12
s_add_u32 s{sAT}, s{sAT}, {WS_AT}
''')
    return s


def setup_e():
    s = Seq()
    a, b, c = t + 4, t + 5, t + 6
    s(f'''
s_add_u32 s{sT2}, s{sM}, {L_E}
v_add_u32 v{vPW}, s{sT2}, v{vL16}
s_lshl2_add_u32 s{sT0}, s{sNB}, s{sWV}
s_lshl_b32 s{sT0}, s{sT0}, 9
s_add_u32 s{sT0}, s{sT0}, s{sTB2}
s_lshl_b32 s{sT0}, s{sT0}, 8
s_add_u32 s{sAs}, s{sT0}, {WS_AT}
s_add_u32 s{sAs+1}, s{sAs}, 32768
s_add_u32 s{sAs+2}, s{sAs}, 65536
s_add_u32 s{sAs+3}, s{sAs}, 98304
v_lshlrev_b32 v{a}, 13, v{vG}
v_lshl_add_u32 v{vAs}, v{vN}, 4, v{a}''')
    for sg in range(3):
        s(f'''
s_sub_u32 s{sT0}, s{sM}, {4096 * (sg + 1)}
s_and_b32 s{sT0}, s{sT0}, 0x3000
s_add_u32 s{sT0}, s{sT0}, {L_E + 16384*sg}
v_add_u32 v{t+sg}, s{sT0}, v{vL16}''')
    s(f'''
v_bfe_u32 v{a}, v{vL}, 1, 2
v_lshrrev_b32 v{b}, 5, v{vL}
v_xor_b32 v{a}, v{a}, v{b}
v_lshlrev_b32 v{a}, 5, v{a}
v_lshl_add_u32 v{a}, v{vG}, 7, v{a}
v_and_b32 v{b}, 1, v{vL}
v_lshl_add_u32 v{a}, v{b}, 4, v{a}
v_and_b32 v{b}, 8, v{vL}
s_add_u32 s{sT2}, s{sM}, {L_E + 3*16384}
v_add3_u32 v{vAd}, v{a}, v{b}, s{sT2}
v_xor_b32 v{vAd+1}, 64, v{vAd}
v_and_b32 v{b}, 7, v{vL}
v_lshrrev_b32 v{c}, 3, v{vL}
v_lshlrev_b32 v{vOa}, 10, v{c}
v_lshl_add_u32 v{vOa}, v{b}, 4, v{vOa}
v_xor_b32 v{a}, v{vL}, v{c}
s_add_u32 s{sT2}, s{sM}, {L_E + 4*16384}
v_lshl_add_u32 v{vOr}, v{a}, 4, s{sT2}
v_lshrrev_b32 v{a}, 1, v{vG}
v_xor_b32 v{a}, v{a}, v{b}
v_lshlrev_b32 v{a}, 4, v{a}
v_lshl_add_u32 v{a}, v{vN}, 7, v{a}
v_and_b32 v{b}, 1, v{vG}
v_lshl_add_u32 v{a}, v{b}, 3, v{a}
v_add_u32 v{vOw}, s{sT2}, v{a}
v_xor_b32 v{vOw+1}, 32, v{vOw}
v_xor_b32 v{vOw+2}, 64, v{vOw}
v_xor_b32 v{vOw+3}, 96, v{vOw}
s_lshl_b32 s{sT0}, s{sWV}, 5
s_sub_u32 s{sT2}, {3*16384}, s{sM}
v_xor_b32 v{a}, s{sT0}, v{vTr}
v_add_u32 v{vAr}, s{sT2}, v{a}
s_add_u32 s{sO1}, s{sO0}, 8192
''')
    return s


def kgen(pkC, za, npb=40):
    s = Seq()
    live = {}
    vb = V.alloc(36, 2)
    pb = V.alloc(npb, 2)
    VV, VP, VZ = Regs('v', vb, vb + 36), Regs('v', pb, pb + 32), Regs('v', za, za + 32)
    pool = lambda nm: VP if nm[0] == 'p' else VZ if (nm[0] == 'z' and nm not in ('z128', 'z256', 'z512')) else VV

    def A(name, n=1):
        live[name] = (pool(name).alloc(n), n)
        return live[name][0]

    def F(*names):
        for nm in names:
            pool(nm).release(*live.pop(nm))

    P, canon, extra = {}, [], {}

    def cut(name):
        nonlocal s
        canon.extend(s.l)
        P[name], s = s, Seq()

    la, ai, cr, ci, ld, dsk = [vPAR + i for i in range(6)]
    LOG2E, LOG2E_LO, LN2 = 0x3fb8aa3b, 0x32a5705f, 0x3f317218
    s(f'''
s_lshr_b32 s{sT0}, s{sWV}, 1
s_lshl_b32 s{sT0}, s{sT0}, 4
s_lshr_b32 s{sDT}, s{sDT}, s{sT0}
s_lshr_b32 s{sDS}, s{sDS}, s{sT0}
v_lshlrev_b32 v{ld}, 16, s{sDT}
v_lshlrev_b32 v{dsk}, 16, s{sDS}
s_mov_b32 s{sT0}, {LOG2E:#x}
v_lshlrev_b32 v{la}, 16, v{la}''')
    for k, x in enumerate((la, ld)):
        s(f'v_mul_f32 v{t+2*k}, s{sT0}, v{x}')
    for k, x in enumerate((la, ld)):
        s(f'v_fma_f32 v{t+2*k+1}, v{x}, s{sT0}, -v{t+2*k}')
    for k, x in enumerate((la, ld)):
        s(f'v_exp_f32 v{t+2*k}, v{t+2*k}')
    for k, x in enumerate((la, ld)):
        s(f'v_fmamk_f32 v{t+2*k+1}, v{x}, {LOG2E_LO:#x}, v{t+2*k+1}')
    for k, x in enumerate((la, ld)):
        s(f'v_mul_f32 v{t+2*k+1}, {LN2:#x}, v{t+2*k+1}')
    for k, x in enumerate((la, ld)):
        s(f'v_fma_f32 v{t+2*k}, v{t+2*k}, v{t+2*k+1}, v{t+2*k}')
    for x in (ai, cr, ci):
        s(f'v_lshlrev_b32 v{x}, 16, v{x}')
    s(f'''
v_cvt_pk_bf16_f32 v{t}, v{t}, v{t+2}
v_and_b32 v{ld}, 0xffff0000, v{t}
v_lshlrev_b32 v{la}, 16, v{t}
''')
    val = lambda nm: live[nm][0]
    A('c0', 2)
    s(f'''
v_mul_f32 v{la}, v{la}, v{ld}
v_mul_f32 v{ai}, v{ai}, v{ld}
v_add_f32 v{ld}, v{ld}, v{ld}
v_mul_f32 v{la}, {f32(-1.4426950408889634)}, v{la}
v_mul_f32 v{ai}, 0.15915494, v{ai}
v_mul_f32 v{val('c0')}, v{cr}, v{ld}
v_mul_f32 v{val('c0')+1}, v{ci}, v{ld}
''')
    zs = (('z8', 8.0), ('z1', 1.0), ('z128', 128.0))
    for k, (nm, p) in enumerate(zs):
        A(nm, 2)
        s(f'v_mul_f32 v{t+2*k}, {f32(p)}, v{la}')
        s(f'v_mul_f32 v{t+2*k+1}, {f32(p)}, v{ai}')
    for k, (nm, p) in enumerate(zs):
        s(f'v_fract_f32 v{t+2*k+1}, v{t+2*k+1}')
        s(f'v_exp_f32 v{t+2*k}, v{t+2*k}')
    for k, (nm, p) in enumerate(zs):
        s(f'v_cos_f32 v{val(nm)}, v{t+2*k+1}')
        s(f'v_sin_f32 v{val(nm)+1}, v{t+2*k+1}')
    for k, (nm, p) in enumerate(zs):
        s(f'v_pk_mul_f32 {vr(val(nm),2)}, {vr(val(nm),2)}, {vr(t+2*k,2)} op_sel_hi:[1,0]')
    fr, acc = 160, 224
    s(f'''
s_lshl_b32 s{sT0}, s{sBH}, 6
s_sub_u32 s{sT0}, 64, s{sT0}
v_cmp_eq_u32 vcc, s{sT0}, v{vL}
v_accvgpr_write_b32 a{acc+1}, 0
v_accvgpr_write_b32 a{acc+2}, 0
v_cndmask_b32 v{dsk}, 0, v{dsk}, vcc
v_accvgpr_write_b32 a{acc+3}, 0
v_accvgpr_write_b32 a{acc}, v{dsk}
''')
    mode = {'pk': True}

    def pack(nm):
        p = A('p' + nm)
        s(f'v_cvt_pk_bf16_f32 v{p}, v{val(nm)}, {"-" if nm[0] == "z" else ""}v{val(nm)+1}')

    def mp(lst):
        for d, a, b in lst:
            A(d, 2)
        if mode['pk']:
            for d, a, b in lst:
                s(f'v_pk_mul_f32 {vr(val(d),2)}, {vr(val(a),2)}, {vr(val(b),2)} op_sel_hi:[1,0]')
            for d, a, b in lst:
                s(f'v_pk_fma_f32 {vr(val(d),2)}, {vr(val(a),2)}, {vr(val(b),2)}, {vr(val(d),2)} op_sel:[1,1,0] op_sel_hi:[0,1,1] neg_lo:[1,0,0]')
        else:
            for d, a, b in lst:
                s(f'v_mul_f32 v{val(d)}, v{val(a)}, v{val(b)}')
                s(f'v_mul_f32 v{val(d)+1}, v{val(a)+1}, v{val(b)}')
                s(f'v_fma_f32 v{val(d)}, -v{val(a)+1}, v{val(b)+1}, v{val(d)}')
                s(f'v_fmac_f32 v{val(d)+1}, v{val(a)}, v{val(b)+1}')
        for d, _, _ in lst:
            if d not in ('z256', 'z512'):
                pack(d)

    s(f'v_mov_b32 v{A("pz0")}, 0x3f80')
    pack('z8')
    pack('c0')
    lo_rounds = [[('z16', 'z8', 'z8'), ('z256', 'z128', 'z128')],
                 [('z24', 'z16', 'z8'), ('z32', 'z16', 'z16')],
                 [('z40', 'z8', 'z32'), ('z48', 'z16', 'z32')],
                 [('z56', 'z24', 'z32'), ('z64', 'z32', 'z32')],
                 [('z72', 'z40', 'z32'), ('z80', 'z48', 'z32')],
                 [('z88', 'z56', 'z32'), ('z96', 'z64', 'z32')],
                 [('z104', 'z72', 'z32'), ('z112', 'z80', 'z32'), ('z120', 'z88', 'z32')]]
    def wr(row, names):
        for k, nm in enumerate(names):
            s(f'ds_write_addtid_b32 v{val("p" + nm)} offset:{272*(row+k)}', m0=f's_mov_b32 m0, s{sP4}')
            extra[id(s.l[-1])] = ([f'row{row+k}'], [])

    def rd(tile):
        for ks in range(4):
            s(f'ds_read_b128 {ar(fr+16*tile+4*ks,4)}, v{vRR} offset:{(O_T if tile == 3 else 0) + 64*ks}')
            extra[id(s.l[-1])] = ([], [f'row{r + (16 if tile == 3 else 0)}' for r in range(16)])

    for r, lst in enumerate(lo_rounds):
        mp(lst + [(f'c{r+1}', f'c{r}', 'z1')])
        F(*{2: ['z8', 'z16'], 3: ['z24'], 4: ['z40', 'z48'], 5: ['z56', 'z64', 'z96']}.get(r, []))
    F('z1', 'z32', 'z72', 'z80', 'z88', 'z104', 'z112', 'z120')
    cut('A')
    wr(0, [f'z{8*b}' for b in range(16)])
    cut('wl')
    rd(0)
    cut('rl')
    mp([(f'c{128+o}', f'c{o}', 'z128') for o in range(4)])
    F('c1', 'c3', 'c129', 'c131')
    mp([(f'c{128+o}', f'c{o}', 'z128') for o in range(4, 8)])
    F('z128', 'c5', 'c7', 'c133', 'c135')
    cut('v0')
    F(*[f'pz{8*b}' for b in range(16)])
    t0 = [f'c{h}' for h in list(range(8)) + list(range(128, 136))]
    wr(0, t0)
    cut('w0')
    rd(1)
    cut('r0')
    mp([(f'c{256+o}', f'c{o}', 'z256') for o in (0, 2, 4, 6)])
    F('c0', 'c2', 'c4', 'c6', 'c258', 'c262')
    mp([(f'c{384+o}', f'c{128+o}', 'z256') for o in (0, 2, 4, 6)] + [('z512', 'z256', 'z256')])
    F('c128', 'c130', 'c132', 'c134', 'c386', 'c390')
    mp([(f'c{h+256}', f'c{h}', 'z256') for h in (256, 260, 384, 388)])
    mp([(f'c{h+512}', f'c{h}', 'z512') for h in (256, 260, 384, 388)])
    F('z256', 'c516', 'c644', 'c256', 'c260', 'c384', 'c388', 'c772', 'c900')
    cut('v1')
    wr(0, [f'c{h}' for h in (256, 258, 260, 262, 384, 386, 388, 390, 512, 516, 640, 644, 768, 772, 896, 900)])
    cut('w1')
    rd(2)
    cut('r1')
    F(*['p' + x for x in t0])
    mp([(f'c{h+512}', f'c{h}', 'z512') for h in (512, 640, 768, 896)])
    F('c512', 'c640', 'c768', 'c896')
    mp([(f'c{h+512}', f'c{h}', 'z512') for h in (1024, 1152, 1280, 1408)])
    F('c1024', 'c1152', 'c1280', 'c1408')
    mp([('c2048', 'c1536', 'z512')])
    cut('v2')
    wr(16, [f'c{1024 + 128*k}' for k in range(9)])
    cut('w2')
    rd(3)
    cut('r2')
    for k in range(3):
        for ks in range(4):
            c = ar(acc + 4 * k, 4)
            s(f'v_mfma_f32_16x16x32_bf16 {c}, {ar(fr+16*(k+1)+4*ks,4)}, {ar(fr+4*ks,4)}, {c if (ks or k == 0) else 0}')
    cut('mf')
    s(f'ds_write_b32 v{vEa+2}, v{vZ} offset:{699*4}')
    for k in range(6):
        o0, o1 = (0, 100) if k < 4 else (4 * (k - 4), 4 * (k - 4) + 2)
        s(f'ds_write2_b32 v{vTA+min(k,4)}, a{acc+2*k}, a{acc+2*k+1} offset0:{o0} offset1:{o1}')
    for k, it in enumerate(s.l):
        extra[id(it)] = ([f'row{25+k}'], [])
    cut('wt')
    gv, ov = vb, pb
    for i in range(9):
        for p in range(2):
            s(f'ds_read2st64_b32 {vr(gv+4*i+2*p,2)}, v{vGA+i} offset0:{17 + 32*p} offset1:{17 + 32*(2+p)}')
    cut('rc')
    for i in range(9):
        if pkC:
            s(f'v_pk_add_f32 {vr(gv+4*i,2)}, {vr(gv+4*i,2)}, {vr(gv+4*i+2,2)}')
        else:
            s(f'v_add_f32 v{gv+4*i}, v{gv+4*i}, v{gv+4*i+2}')
            s(f'v_add_f32 v{gv+4*i+1}, v{gv+4*i+1}, v{gv+4*i+3}')
    for c in range(2):
        for o in (1, 0):
            for k in range(4):
                a = gv + 4 * (2 * k + (1 - o)) + c
                s(f'v_cvt_pk_bf16_f32 v{ov+8*c+4*o+k}, v{a}, v{a+4}')
    cut('vc')
    for c in range(2):
        for o in (1, 0):
            s(f'ds_write_b128 v{vEa}, {vr(ov+8*c+4*o,4)} offset:{(2*c+o)*PART + 128*o}')
    s(f'ds_write_b128 v{vEa+1}, {vr(vZ2,4)} offset:4096')
    s(f'ds_write_b64 v{vUz}, {vr(vZ2,2)} offset:{L_U}')
    cut('wc')
    P['vb'], P['pb'] = vb, pb
    checks.append((canon, extra))
    return P


W2E = [2, 'A', 'B', 3, 0, 4, 1, 5, 2, 3, 0, 4, 1, 5]
W2DEP = {8: 0, 9: 3, 10: 4, 11: 5, 12: 6, 13: 7}


def w2_dma(ks):
    g = []
    e = W2E[ks]
    m0 = f's_add_u32 m0, s{sP4}, {L_U + 4096*"AB".index(e)}' if e in ('A', 'B') else f's_add_u32 m0, s{sM}, {L_E + 16384*e}'
    for i in range(4):
        s = Seq()
        if i == 0:
            if ks in W2DEP:
                s.wait(f'tr{W2DEP[ks]}')
            s(f's_add_u32 s{sW2l}, s{sW2l}, 32768')
        if OPT['skipw'] and ks >= 7:
            s('s_nop 0', tag=f'w2d{ks}')
        else:
            s(f'buffer_load_dwordx4 v{vW2s+i}, {srd(SW2)}, s{sW2l} offen offset:{1024*i} lds', tag=f'w2d{ks}', m0=m0)
        g.append(s)
    return g


def w2_tr(ks):
    g = []
    e = W2E[ks]
    win, off = (1, 4096 * 'AB'.index(e)) if e in ('A', 'B') else (e // 4, 16384 * (e % 4))
    for j in range(4):
        for hh in range(2):
            s = Seq()
            if j == 0 and hh == 0:
                s.wait(f'w2d{ks}')
            s(f'ds_read_b64_tr_b16 {ar(16*ks+4*j+2*hh,2)}, v{vTr+4*win+j} offset:{off + 2048*hh}', tag=f'tr{ks}')
            g.append(s)
    return g


def w2_window():
    return Seq()('\n'.join(f'v_add_u32 v{vTr+4+j}, 65536, v{vTr+j}' for j in range(4)))


def u_poll_issue():
    return Seq()(f'buffer_load_dword v{vPF}, v{vPA}, {srd(SWS)}, s{sFUp} offen sc1')


def u_dma():
    s = Seq()
    s(f'v_cmp_ne_u32 vcc, s{sNON}, v{vPF}')
    retry(s, 's_cbranch_vccnz', 's_cbranch_vccz', f'''
buffer_load_dword v{vPF}, v{vPA}, {srd(SWS)}, s{sFUp} offen sc1
s_waitcnt vmcnt(0)
v_cmp_ne_u32 vcc, s{sNON}, v{vPF}''')
    s.wait('tr2')
    for i in range(4):
        s(f'buffer_load_dwordx4 v{vL16}, {srd(SWS)}, s{sUs} offen offset:{1024*i} sc1 lds', tag='udma', m0=f's_add_u32 m0, s{sUm}, {L_U + 512}')
    return s


main = Seq()
vXr = V.alloc(2, 1)
vWr = V.alloc(4, 1)
vACC = V.alloc(64, 2)
vFR = V.alloc(32, 2)
aFR = 96
pro_body(main)
main(f'''
s_mul_i32 s{sT0}, s{sJ}, 9363
s_lshr_b32 s{sT0}, s{sT0}, 16
s_mul_i32 s{sT1}, s{sT0}, 7
s_sub_u32 s{sT1}, s{sJ}, s{sT1}
s_lshl2_add_u32 s{sTB2}, s{sXCD}, s{sT0}
s_cmp_ge_u32 s{sT1}, 3
s_addc_u32 s{sNB}, s{sT1}, 0
s_lshr_b32 s{sT2}, s{sXCD}, 1
s_and_b32 s{sT3}, s{sXCD}, 1
s_lshl2_add_u32 s{sT0}, s{sT2}, s{sT0}
s_lshl1_add_u32 s{sKC}, s{sT3}, s{sT2}
s_mul_i32 s{sT3}, s{sT3}, 7
s_add_u32 s{sT1}, s{sT1}, s{sT3}
s_lshl_b32 s{sKC}, s{sKC}, 4
s_and_b32 s{sKC}, s{sKC}, {63 if OPT['rot'] else 0}
s_lshr_b32 s{sT3}, s{sWV}, 1
s_lshl1_add_u32 s{sTB1}, s{sT0}, s{sBH}
s_lshl1_add_u32 s{sCB1}, s{sT1}, s{sT3}
s_lshl2_add_u32 s{sXb}, s{sT0}, s{sWV}
s_lshl_b32 s{sXb}, s{sXb}, 15
s_mul_i32 s{sWb}, s{sWV}, {16*3584}
s_lshl_b32 s{sT1}, s{sT1}, 8
s_add_u32 s{sWb}, s{sWb}, s{sT1}
v_and_b32 v{t+1}, 7, v{vL}
v_xor_b32 v{t}, v{vG}, v{t+1}
v_lshrrev_b32 v{t+1}, 3, v{vL}
v_lshlrev_b32 v{t+1}, 10, v{t+1}
v_lshl_add_u32 v{vXs}, v{t}, 4, v{t+1}
v_xor_b32 v{t}, 64, v{vXs}
v_add_u32 v{vXs+1}, 7168, v{t}
v_add_u32 v{vXs+2}, {2*7168}, v{vXs}
v_add_u32 v{vXs+3}, {3*7168}, v{t}
v_lshlrev_b32 v{t}, 2, v{vG}
v_xor_b32 v{t}, v{t}, v{vN}
v_mul_u32_u24 v{t+1}, 3584, v{vG}
v_lshl_add_u32 v{vWs}, v{t}, 4, v{t+1}
''')
main(f'''
v_add_u32 v{vWs+1}, {4*3584 - 1024}, v{vWs}
v_xor_b32 v{t}, 2, v{t}
v_lshl_add_u32 v{t}, v{t}, 4, v{t+1}
v_add_u32 v{vWs+2}, {(4*3584 - 1024)*2}, v{t}
v_add_u32 v{vWs+3}, {(4*3584 - 1024)*3}, v{t}''')


def stage_loads(st):
    g = []
    last = 0 if OPT['wf'] else 1
    for isw in (1 - last, last):
        for i in range(4):
            s = Seq()
            if i == 0:
                if isw:
                    s(f's_mul_i32 s{sWk}, s{sKC}, {8*3584}')
                    s(f's_add_u32 s{sWk}, s{sWk}, s{sWb}')
                else:
                    s(f's_lshl4_add_u32 s{sXk}, s{sKC}, s{sXb}')
            m0 = f's_add_u32 m0, s{sM}, {(L_W if isw else L_X) + 16384*(st % 4)}'
            if isw:
                s(f'buffer_load_dwordx4 v{vWs+i}, {srd(SW1)}, s{sWk} offen offset:{1024*i} lds', tag=f'st{st}', m0=m0)
            else:
                s(f'buffer_load_dwordx4 v{vXs+i}, {srd(SX)}, s{sXk} offen offset:{1024*i} lds', tag=f'st{st}', m0=m0)
            if isw == last and i == 1:
                s(f's_add_u32 s{sKC}, s{sKC}, 8')
            if isw == last and i == 2:
                s(f's_and_b32 s{sKC}, s{sKC}, 63')
            g.append(s)
    return g


LS = [g for st in range(8) for g in stage_loads(st)]
main(f's_or_b32 s{sT0}, s2, s{sWV}')
main('s_waitcnt lgkmcnt(0)')
stamp(main, 'karg')
main(f'''
s_cmp_eq_u32 s{sT0}, 0
s_cbranch_scc1 Lnonce
Lnonce_back:''')
outline.append(f'''Lnonce:
    s_memrealtime s[{sHst}:{sHst2}]
    s_waitcnt lgkmcnt(0)
    s_or_b32 s{sHst}, s{sHst}, 1
    s_atomic_swap s{sHst}, {ptr(P_DBG)}, 0
    s_branch Lnonce_back
''')
L_UT = L_W + 3 * 16384
param_loads(main)
main.add(ut_loads(L_UT))
scalar_params(main)
NE, NK = OPT['early'], OPT['nk']
su = Seq()
su(f'''
v_lshrrev_b32 v{t+1}, 1, v{vN}
v_xor_b32 v{t+1}, v{t+1}, v{vG}
s_lshl_b32 s{sT0}, s{sBH}, 13
s_add_u32 s{sT0}, s{sT0}, {L_X}
v_lshl_add_u32 v{t}, v{vN}, 7, s{sT0}
v_lshl_add_u32 v{vXr}, v{t+1}, 4, v{t}
v_xor_b32 v{vXr+1}, 64, v{vXr}
v_bfe_u32 v{t}, v{vL}, 2, 2
v_lshl_add_u32 v{t+1}, v{vG}, 3, v{t}
v_lshlrev_b32 v{t+1}, 8, v{t+1}
v_and_b32 v{t+2}, 3, v{vL}
v_lshl_add_u32 v{t+1}, v{t+2}, 3, v{t+1}
v_add_u32 v{t+1}, {L_W}, v{t+1}
v_and_b32 v{t+2}, 1, v{vG}
v_lshl_add_u32 v{t}, v{t}, 1, v{t+2}
s_and_b32 s{sT0}, s{sWV}, 2
s_lshl_b32 s{sT0}, s{sT0}, 1
v_xor_b32 v{t}, s{sT0}, v{t}
v_lshl_add_u32 v{vWr}, v{t}, 5, v{t+1}
v_xor_b32 v{vWr+1}, 32, v{vWr}
v_xor_b32 v{vWr+2}, 64, v{vWr}
v_xor_b32 v{vWr+3}, 96, v{vWr}
''')
sk = setup_k()
su.add(sk.l[:3] if OPT['kf'] else sk.l)
sa = setup_a()
ntouch = OPT['touch'] + OPT['tlb'] + OPT['c3'] + OPT['t1'] + OPT['c3x']
su.add(setup_g())
su.add(ut_setup(L_UT))
su.add(sa.l[:len(sa) - ntouch])
main.add(cat(LS[:4]))
main.add(sprinkle(su, LS[4:NE], 0, 12 * (NE - 4)))
if OPT['iw']:
    main(';IWARM main')
stamp(main, 'setup')
TL = OPT['tl']
K = kgen(TL > 0, vACC)
vTS = K['pb'] + 16


def kgen_seq(K, f=()):
    s = Seq()
    wl, w0, w1 = chunks(K['wl'], 4), chunks(K['w0'], 4), chunks(K['w1'], 4)
    v0, v1, v2 = K['v0'].l, K['v1'].l, K['v2'].l
    s.add(K['A']).add(wl[0]).add(wl[1]).add(v0[:6]).add(wl[2]).add(wl[3]).add(v0[6:20]).add(K['rl']).add(v0[20:])
    s.add(w0[0]).add(v1[:8]).add(w0[1]).add(v1[8:16]).add(w0[2]).add(v1[16:24]).add(w0[3]).add(v1[24:40])
    s.add(K['r0']).add(v1[40:])
    s.add(w1[0]).add(v2[:8]).add(w1[1]).add(v2[8:16]).add(w1[2]).add(v2[16:24]).add(w1[3]).add(v2[24:])
    s.add(list(f)[:2]).add(K['w2'])
    mf, wt = K['mf'].l, K['wt'].l
    f = list(f)
    s.add(mf[:4]).add(f[13:25]).add(K['r1']).add(K['r2']).add(f[25:]).add(mf[4:]).add(f[2:13]).add(wt)
    return s


ka = kgen_seq(K, sk.l[3:] if OPT['kf'] else ())
ua, ub = ut_work(vFR)
tch = sa.l[len(sa) - ntouch:] if ntouch else []
UA = OPT['ua']
ka.l[UA + 60:UA + 60] = nonce_issue().l
ka.l[UA + 40:UA + 40] = ub.l[-1:]
ka.l[UA + 24:UA + 24] = ub.l[:-1]
ka.l[UA:UA] = ua.l
for k, x in enumerate(tch):
    pos = OPT['te'] + 10 * (len(tch) - k) if OPT['te'] else UA - 12 * (k + 1)
    ka.l[pos:pos] = [x]
if OPT['stamps'] == 3:
    for pos, nm in ((len(ka) - OPT['res'], 'kC'), (170, 'kB'), (60, 'kA'), (8, 'bar')):
        x = Seq()
        stamp(x, nm, 3)
        ka.l[pos:pos] = x.l
    stamp_names[-4:] = stamp_names[:-5:-1]
wt_late = []
if OPT['wtl']:
    wt_late, ka.l = ka.l[-7:], ka.l[:-7]
NM = max(OPT['nm'], NE)
ka = sprinkle(ka, LS[NM:NK], len(ka) - OPT['res'], len(ka) - (0 if OPT['wtl'] else 7))
main.add(sprinkle(ka, LS[NE:NM], 9, 9 + OPT['nms'] * (NM - NE)))
stamp(main, 'kgenA')


def g1_reads(st, ks):
    o = 16384 * (st % 4)
    b = aFR + 32 * ks
    A = [[f'ds_read_b64_tr_b16 {ar(b+4*k+2*hh,2)}, v{vWr+k} offset:{o + ks*8192 + hh*1024}' for hh in range(2)] for k in range(4)]
    B = [f'ds_read_b128 {ar(b+16+4*k,4)}, v{vXr+ks} offset:{o + k*2048}' for k in range(4)]
    return A[0] + B[::-1] + A[1] + A[2] + A[3]


SNAKE = [(ft, tt if ft % 2 == 0 else 3 - tt) for ft in range(4) for tt in range(4)]


def g1_mfma(st, ks):
    b = aFR + 32 * ks
    r = []
    for ft, tt in SNAKE:
        a = vr(vACC + 16 * tt + 4 * ft, 4)
        r.append(f'v_mfma_f32_16x16x32_bf16 {a}, {ar(b+4*ft,4)}, {ar(b+16+4*tt,4)}, {0 if (st == 0 and ks == 0) else a}')
    return r


pc_addr = Seq()
pc_addr(f'''
v_lshl_add_u32 v{t}, v{vN}, 4, s{sP4}
s_lshl_b32 s{sT0}, s{sCB1}, 10
s_add_u32 s{sT0}, s{sT0}, {WS_FP}
s_lshl_b32 s{sT1}, s{sTB1}, 10
s_add_u32 s{sT4}, s{sT1}, {WS_TS - 2048}
s_add_u32 s{sT1}, s{sT1}, {WS_TP - 1024}''')
pc_m0 = f's_add_u32 m0, s{sP4}, {O_T}'
pc_ld = [f'buffer_load_dwordx4 v{vL16}, {srd(SWS)}, s{(sT0, sT1, sT4)[w]} offen offset:{1024*w} sc1 lds' for w in range(3)]
pcr = [vFR + 4 * k for k in range(8)] + [vTS + 4 * k for k in range(4)]
pc_rd = [f'ds_read_b128 {vr(r,4)}, v{t} offset:{O_T + 256*k}' for k, r in enumerate(pcr)]
pc_cmp = [f'v_xor_b32 v{r+3}, s{sNON}, v{r+3}' for r in pcr]
pc_cmp += [f'v_or3_b32 v{t+1}, v{pcr[0]+3}, v{pcr[1]+3}, v{pcr[2]+3}']
pc_cmp += [f'v_or3_b32 v{t+1}, v{t+1}, v{pcr[k]+3}, v{pcr[min(k+1, 11)]+3}' for k in range(3, 12, 2)]
pc_cmp += [f'v_cmp_ne_u32 vcc, 0, v{t+1}']
pc_chk = [Seq()(x) for x in pc_cmp]
retry(pc_chk[-1], 's_cbranch_vccnz', 's_cbranch_vccz',
      '\n'.join([f's_mov_b32 s{sXk}, m0', pc_m0, 's_nop 0'] + pc_ld + ['s_waitcnt vmcnt(0)'] + pc_rd
                + [f's_mov_b32 m0, s{sXk}', 's_waitcnt lgkmcnt(0)'] + pc_cmp))
sHs = (sHst, sHst2, sXb, sWb)
hadr = Seq()
hadr(f'''
s_mul_i32 s{sHst}, s{sTB1}, {4*56}
s_lshl1_add_u32 s{sHst}, s{sCB1}, s{sHst}
s_lshl_b32 s{sHst}, s{sHst}, 10
s_add_u32 s{sHst}, s{sHst}, {WS_H}
s_add_u32 s{sHst2}, s{sHst}, {56*1024}
s_add_u32 s{sXb}, s{sHst}, {2*56*1024}
s_add_u32 s{sWb}, s{sHst}, {3*56*1024}
s_mul_i32 s{sT2}, s{sCB1}, 9363
s_lshr_b32 s{sT2}, s{sT2}, 16
s_mul_i32 s{sT3}, s{sT2}, 7
s_sub_u32 s{sT3}, s{sCB1}, s{sT3}
s_lshl2_add_u32 s{sFH}, s{sTB1}, s{sT2}
s_lshl_b32 s{sFH}, s{sFH}, 7
s_lshl2_add_u32 s{sFH}, s{sT3}, s{sFH}
s_add_u32 s{sFH}, s{sFH}, {FH}
''')
assert HS == 1

G = Gaps([x for st in range(8) for ks in range(2) for x in g1_mfma(st, ks)] +
         [f'v_mfma_f32_16x16x32_bf16 {vr(vACC+16*tt+4*ft,4)}, {vr(vFR+4*ft,4)}, {vr(vFR+16+4*tt,4)}, {vr(vACC+16*tt+4*ft,4)}'
          for tt in range(4) for ft in range(4)], cap=8, maxlds=1)
BG = 19
for st in range(8):
    b = 32 * st
    G.put(b + BG, bar(f'rd{st}', *([f'st{st+1}', 'utst'] if st < 7 else [])))
    for k, x in enumerate(g1_reads(st, 1)):
        G.put(b + k, Seq()(x, tag=f'rd{st}'))
    if st < 7:
        for k, x in enumerate(g1_reads(st + 1, 0)):
            G.put(b + BG + 1 + k, x)
    for g in (3, 7, 15, 31):
        G.reserve(b + g, 4)
LG = sorted((21, 25, 29, 1, 5, 9, 13, 17, 23, 11, 27)[:OPT['lst']])
lg = [g for g in range(272) if g % 32 in LG]
for i in range(NK, 64):
    while lg[0] <= 32 * (i // 8 - 4) + BG:
        lg.pop(0)
    last_ld = lg.pop(0)
    assert last_ld < 32 * (i // 8 - 1) + BG
    G.put(last_ld, LS[i])
if TL:
    for st in (1, 2):
        G.put(32 * st + 13, f'ds_read_b32 v{vPF}, v{vZ}')
else:
    for k, g_ in enumerate(singles(K['rc'])):
        G.put(32 * (1 + k // 6) + 12 + k % 6, g_)
G.put(BG + 1, nonce_check())
G.put(BG + 3, fu_flag())
lg = [g for g in range(max(last_ld + 1, 32 * 4 + BG + 1), 272) if g % OPT['lq'] == 1]
wat = {}
for ks in (0, 'p', 1, 2, 'u', 3, 4, 5):
    grp = [Seq()(x, tag='pcd', m0=pc_m0) for x in pc_ld] if ks == 'p' else [u_poll_issue()] if ks == 'u' else w2_dma(ks)
    while lg[0] <= {1: 32 * 5 + BG, 4: 32 * 6 + BG, 'p': OPT['pcg']}.get(ks, 0):
        lg.pop(0)
    for g_ in grp:
        wat[ks] = lg.pop(0)
        G.put(wat[ks], g_)
print('late loads', wat)
G.fill(w2_tr(0), 204, 212)
pr = [Seq()(x) for x in pc_rd]
pr[0] = Seq().wait('pcd').add(pr[0])
G.fill(pr, 236, 248)
G.fill(w2_tr(1) + w2_tr(2), 248, 266)
G.put(268, w2_window())
G.fill(pc_chk, 243, 255)
p = G.spread(singles(setup_b()), 24, 128)
p = G.spread(singles(pc_addr) + ([] if TL else singles(K['vc'])), 128, 200)
assert p[len(pc_addr) - 1] < wat['p'] - 9
p2 = G.spread(singles(hadr), 200, 236)
print('gemm1 over', G.over(), 'last load gap', last_ld, p[-1], p2[-1])
main.add(bar('st0'))
stamp(main, 'b0', 5)
for x in g1_reads(0, 0):
    main(x)
if not TL:
    main.add(wt_late)
for st in range(8):
    if OPT['stamps'] == 5 and st in (0, 1, 6, 7):
        for lo, hi in ((0, 1), (1, 10), (10, 19), (19, 21), (21, 32)):
            main.add(G.emit(32 * st + lo, 32 * st + hi))
            if hi < 32:
                stamp(main, f's{st}_{hi}', 5)
    else:
        main.add(G.emit(32 * st, 32 * st + 32))
    stamp(main, f'g1s{st}', 1 if st in (3, 7) else 2)
main.add(G.emit(256))
q = vTS + 16
gx = {k: [] for k in range(8)}
wc = singles(K['wc'])
if TL:
    vc, wl_ = K['vc'].l, K['wc'].l
    gx[TL] += [Seq().add(wt_late).add(wl_[4:])]
    gx[min(TL + 1, 7)] += [bar('*lds'), K['rc']]
    gx[min(TL + 2, 7)] += [Seq().add(vc[:13]).add(wl_[:1]).add(vc[13:17]).add(wl_[1:2]).add(vc[17:21]).add(wl_[2:3]).add(vc[21:]).add(wl_[3:4])]
else:
    gx[6] += wc[:3]
    gx[7] += wc[3:]
ud = u_dma()
gl_ = [Seq().add(ud.l[:-3])] + singles(Seq().add(ud.l[-3:])) + [g for k in range(6, 6 + OPT['ng']) for g in w2_dma(k)]
pre_gelu, main = main, Seq()
for ti in range(4):
    P = vTS + 4 * ti
    for hh in range(2):
        a = vACC + 16 * ti + 8 * hh
        for k in range(4):
            main(f'v_pk_mul_f32 {vr(q+2*k,2)}, {vr(a+2*k,2)}, {vr(a+2*k,2)}')
        for k in range(4):
            main(f'v_pk_fma_f32 {vr(q+2*k,2)}, {vr(q+2*k,2)}, {vr(P,2)}, {vr(P,2)} op_sel:[0,1,0] op_sel_hi:[1,1,0]')
        for k in range(4):
            main(f'v_pk_mul_f32 {vr(q+2*k,2)}, {vr(q+2*k,2)}, {vr(a+2*k,2)}')
        for k in range(8):
            main(f'v_exp_f32 v{q+k}, v{q+k}')
        for k in range(4):
            main(f'v_pk_fma_f32 {vr(q+2*k,2)}, {vr(q+2*k,2)}, {vr(P+2,2)}, {vr(P+2,2)} op_sel_hi:[1,0,0]')
        for k in range(8):
            main(f'v_rcp_f32 v{q+k}, v{q+k}')
        for k in range(4):
            main(f'v_pk_mul_f32 {vr(q+2*k,2)}, {vr(q+2*k,2)}, {vr(a+2*k,2)}')
        for k in range(4):
            main(f'v_cvt_pk_bf16_f32 v{a+k}, v{q+2*k}, v{q+2*k+1}')
        main(f'buffer_store_dwordx4 {vr(a,4)}, v{vL16}, {srd(SWS)}, s{sHs[ti]} offen offset:{1024*hh} sc1', tag='hst')
        main.add(cat(gx[2 * ti + hh]))
        stamp(main, f'ge{2*ti+hh}', 3)
main = pre_gelu.add(sprinkle(main, gl_, OPT['gs0'], OPT['gs0'] + OPT['gsp'] * len(gl_)))
stamp(main, 'gelu')
for b, n in ((vXr, 2), (vWr, 4), (vACC, 64), (vFR, 32), (K['vb'], 36), (K['pb'], 40)):
    V.release(b, n)

sp = Seq()
sp('Lspare:')
pro_body(sp)
vS = vXs
vB1 = vXs + 6
L_SX, L_SW, L_SG = 32768, 98304, 16384
sp(f'''
s_sub_u32 s{sT4}, s{sJ}, 28
s_lshl2_add_u32 s{sTB1}, s{sXCD}, s{sT4}
s_lshl2_add_u32 s{sXb}, s{sTB1}, s{sWV}
s_lshl_b32 s{sXb}, s{sXb}, 14
s_lshl_b32 s{sT1}, s{sWV}, 2
v_and_b32 v{t}, 31, v{vL}
v_xor_b32 v{t}, s{sT1}, v{t}
v_lshrrev_b32 v{t+1}, 5, v{vL}
v_lshlrev_b32 v{t+1}, 10, v{t+1}
v_lshl_add_u32 v{vS}, v{t}, 4, v{t+1}
v_xor_b32 v{vS+1}, 32, v{vS}
s_waitcnt lgkmcnt(0)
''')
stamp(sp, 'karg')
scalar_params(sp)
wl, xl = [], []
for i in range(4):
    s = Seq()
    s(f's_add_u32 s{sWb}, s{sWb}, {32*3584}')
    for r in range(4):
        s(f'buffer_load_dwordx4 v{vS+2+r}, {srd(SW1)}, s{sWb} offen offset:{1024*r} lds', tag='spw', m0=f's_lshl2_add_u32 m0, s{sM}, {L_SW + 4096*i}')
    wl.append(s)
xs = []
for h in range(2):
    for i in range(8):
        s = Seq()
        s(f's_add_u32 s{sXk}, s{sXb}, {512*h + 2048*i - 1024*(i%4)}')
        s(f'buffer_load_dwordx4 v{vS + i//4}, {srd(SX)}, s{sXk} offen offset:{1024*(i%4)} lds', tag=f'spx{h}',
          m0=f's_add_u32 m0, s{sP4}, {L_SX + 32768*h + 4096*(i//4)}')
        xs.append(s)
L_ST = 16384 + 8192
sp.add(ut_loads(L_ST))
param_loads(sp)
sp.add(cat(xs[:2]))
sp_head, sp = sp, Seq()
vSa = V.alloc(10, 1)
o = V.alloc(8, 2)
vF1 = V.alloc(48, 2)
vD = V.alloc(16, 2)
vONE = V.alloc(4, 2)
vTOK = t + 7
sp(f'''
s_lshr_b32 s{sT1}, s{sXCD}, 1
s_lshl2_add_u32 s{sT0}, s{sT1}, s{sT4}
s_min_u32 s{sT0}, s{sT0}, 13
s_and_b32 s{sT1}, s{sXCD}, 1
s_mul_i32 s{sT1}, s{sT1}, 14
s_add_u32 s{sCB1}, s{sT0}, s{sT1}
s_lshl_b32 s{sT2}, s{sCB1}, 7
s_lshl_b32 s{sT0}, s{sWV}, 5
s_add_u32 s{sT0}, s{sT0}, s{sT2}
v_lshl_add_u32 v{vB1}, v{vN}, 1, s{sT0}
v_lshlrev_b32 v{t}, 1, v{vG}
v_and_b32 v{t+1}, 7, v{vL}
v_xor_b32 v{t}, v{t}, v{t+1}
v_lshrrev_b32 v{t+1}, 3, v{vL}
v_mul_u32_u24 v{t+1}, 3584, v{t+1}
v_lshl_add_u32 v{vS+2}, v{t}, 4, v{t+1}
v_add_u32 v{vS+3}, {(8*3584-1024)*1}, v{vS+2}
v_add_u32 v{vS+4}, {(8*3584-1024)*2}, v{vS+2}
v_add_u32 v{vS+5}, {(8*3584-1024)*3}, v{vS+2}
s_mul_i32 s{sWb}, s{sWV}, {128*3584}
s_add_u32 s{sWb}, s{sWb}, s{sT2}
s_sub_u32 s{sWb}, s{sWb}, {32*3584}
s_mov_b32 s{sFH}, {FDUMMY}
s_mov_b32 s{sTB2}, s{sTB1}
s_mov_b32 s{sNB}, 3
v_and_b32 v{t}, 7, v{vN}
v_lshrrev_b32 v{t+1}, 3, v{vN}
v_lshl_add_u32 v{t+1}, v{t}, 3, v{t+1}
s_lshl_b32 s{sT0}, s{sWV}, 1
v_add_u32 v{vTOK}, s{sT0}, v{t+1}
v_lshlrev_b32 v{t}, 1, v{t}
v_xor_b32 v{t}, v{t}, v{vG}
v_lshlrev_b32 v{t+1}, 9, v{vTOK}
v_add_u32 v{t+1}, {L_SX}, v{t+1}
v_lshlrev_b32 v{vSa+4}, 4, v{vG}
v_add_u32 v{vSa+4}, {L_SG}, v{vSa+4}
''')
for k in range(4):
    sp(f'v_xor_b32 v{vSa+k}, {4*k}, v{t}')
    sp(f'v_lshl_add_u32 v{vSa+k}, v{vSa+k}, 4, v{t+1}')
    sp(f'v_mov_b32 v{vONE+k}, 0x3f803f80')
sp(f'''
v_lshrrev_b32 v{t}, 2, v{vL}
v_bfe_u32 v{t+1}, v{vL}, 3, 2
v_xor_b32 v{t+1}, s{sWV}, v{t+1}
v_lshlrev_b32 v{t}, 7, v{t}
v_lshl_add_u32 v{t}, v{t+1}, 5, v{t}
v_and_b32 v{t+1}, 3, v{vL}
v_lshl_add_u32 v{t}, v{t+1}, 3, v{t}
v_add_u32 v{vSa+5}, {L_SW}, v{t}
v_lshrrev_b32 v{t}, 2, v{vN}
v_cmp_eq_u32 vcc, v{t}, v{vG}
v_lshlrev_b32 v{t}, 4, v{vTOK}
v_mov_b32 v{t+4}, 0x7ff00000
v_cndmask_b32 v{vSa+9}, v{t+4}, v{t}, vcc
s_lshl_b32 s{sT0}, s{sTB1}, 10
s_add_u32 s{sHst2}, s{sT0}, {WS_TS}
s_add_u32 s{sHst}, s{sT0}, {WS_TP}
''')
sa = setup_a()
sp.add(sa.l[:9])
sp.add(ut_setup(L_ST))
sp.add(setup_k())
sp = sp_head.add(sprinkle(sp, xs[2:9], 0, 100))
K = kgen(True, vF1, 32)
ua, ub = ut_work(vF1 + 32)
rest = cat(wl)
rest(f'global_load_ushort v{vB1}, v{vB1}, {ptr(P_B1)}')
rest(f'global_load_lds_dwordx4 v{vL16}, {ptr(P_GW)}', tag='spw', m0=f's_mov_b32 m0, {L_SG}')
rest = singles(rest)
sp.add(ua)
sp.add(sprinkle(cat([K['A'], setup_g()]), xs[9:] + [nonce_issue()] + rest[:10], 0, 215))
if OPT['iw']:
    sp(';IWARM spare')
sp.add(bar('spx1'))
stamp(sp, 'setup')
aX = 64
Gs = Gaps([f'v_mfma_f32_16x16x32_bf16 {vr(vD+4*k,4)}, {a}, {ar(aX+4*s_,4)}, {vr(vD+4*k,4) if s_ else 0}'
           for s_ in range(16) for k, a in enumerate((ar(aX + 4 * s_, 4), vr(vONE, 4)))], cap=8, maxlds=1)
rds = [Seq()(f'ds_read_b128 {ar(aX+4*s_,4)}, v{vSa+s_%4} offset:{32768*(s_//8) + 256*((s_//4)%2)}') for s_ in range(16)]
sp.add(cat(rds[:5]))
Gs.fill(rds[5:], 0, 32)
Gs.fill(rest[10:], 0, 32, step=2)
sp.add(Gs.emit())
sp.add(ub)
sp.add(nonce_check())
C0 = -2.0 * math.sqrt(2.0 / math.pi) * math.log2(math.e)
C1 = C0 * 0.044715
sp(f'''
v_and_b32 v{t}, 1, v{vL}
v_cmp_eq_u32 vcc, 1, v{t}
v_and_b32 v{t}, 2, v{vL}
v_cmp_eq_u32 s[{sT0}:{sT1}], 2, v{t}
v_cndmask_b32 v{vD}, v{vD}, v{vD+1}, vcc
v_cndmask_b32 v{vD+2}, v{vD+2}, v{vD+3}, vcc
v_cndmask_b32 v{vD}, v{vD}, v{vD+2}, s[{sT0}:{sT1}]
v_mul_f32 v{vD+4}, {f32(1/512)}, v{vD+4}
v_mul_f32 v{vD}, {f32(1/512)}, v{vD}
v_fma_f32 v{vD}, -v{vD+4}, v{vD+4}, v{vD}
v_mul_f32 v{vD+4}, 0x3e800000, v{vD+4}
v_cvt_pk_bf16_f32 v{o}, -v{vD+4}, -v{vD+4}
v_max_f32 v{vD}, 0, v{vD}
v_add_f32 v{vD}, {f32(1e-5)}, v{vD}
v_and_b32 v{vD+6}, 0xffff0000, v{o}
v_sqrt_f32 v{o+6}, v{vD}
v_rsq_f32 v{vD+1}, v{vD}
v_add_f32 v{vD+6}, v{vD+6}, v{vD+4}
v_mul_f32 v{o+4}, {f32(C0)}, v{vD+1}
v_mul_f32 v{vD+2}, v{vD+1}, v{vD+1}
v_mul_f32 v{o+5}, {f32(C1)}, v{vD+1}
v_mul_f32 v{o+5}, v{o+5}, v{vD+2}
v_mul_f32 v{vD+7}, 0x3e800000, v{o+6}
v_cvt_pk_bf16_f32 v{vD+5}, v{vD+7}, v{vD+7}
v_and_b32 v{vD+5}, 0xffff0000, v{vD+5}
v_sub_f32 v{vD+7}, v{vD+7}, v{vD+5}
v_cvt_pk_bf16_f32 v{o+1}, -v{vD+6}, v{vD+5}
v_cvt_pk_bf16_f32 v{o+2}, v{vD+7}, v{vZ}
v_mov_b32 v{o+3}, s{sNON}
v_mov_b32 v{o+7}, s{sNON}
buffer_store_dwordx4 {vr(o,4)}, v{vSa+9}, {srd(SWS)}, s{sHst} offen sc1
buffer_store_dwordx4 {vr(o+4,4)}, v{vSa+9}, {srd(SWS)}, s{sHst2} offen sc1
''')
stamp(sp, 'kgenA')
sp.add(sa.l[9:])
sp.add(bar('spw'))
Gs = Gaps([f'v_mfma_f32_16x16x32_bf16 {vr(vD+12,4)}, {vr(vONE,4)}, {ar(4*s_,4)}, {vr(vD+12,4) if s_ else 0}' for s_ in range(16)], cap=8)
rdw = [Seq()(f'ds_read_b64_tr_b16 {ar(2*s_,2)}, v{vSa+5} offset:{2048*s_}') for s_ in range(32)]
rdw += [Seq()(f'ds_read_b128 {ar(128+4*s_,4)}, v{vSa+4} offset:{64*s_}') for s_ in range(16)]
sp.add(cat(rdw[:16]))
Gs.fill(rdw[16:], 0, 16)
sp.add(Gs.emit())
sp(f'''
v_cmp_gt_u32 vcc, 16, v{vL}
v_mov_b32 v{t+2}, 0x7ff00000
s_lshl2_add_u32 s{sT0}, s{sCB1}, s{sWV}
s_lshl_b32 s{sT0}, s{sT0}, 8
s_add_u32 s{sT0}, s{sT0}, {WS_FP}
v_cndmask_b32 v{t}, v{t+2}, v{vL16}, vcc
v_mov_b32 v{o+2}, v{vB1}
v_cvt_pk_bf16_f32 v{o+1}, v{vD+12}, v{vZ}
v_lshlrev_b32 v{t+3}, 16, v{o+1}
v_lshl_or_b32 v{o+1}, v{vB1}, 16, v{o+1}
v_sub_f32 v{t+4}, v{vD+12}, v{t+3}
v_cvt_pk_bf16_f32 v{o}, v{t+3}, v{t+4}
buffer_store_dwordx4 {vr(o,4)}, v{t}, {srd(SWS)}, s{sT0} offen sc1
''')
stamp(sp, 'g1s3')
gate = Seq()
for s_ in range(16):
    gate(f'v_mfma_f32_16x16x32_bf16 {vr(vD+8,4)}, {ar(128+4*s_,4)}, {ar(aX+4*s_,4)}, {vr(vD+8,4) if s_ else 0}')
sp.add(gate)
sp(f'''
s_lshl_b32 s{sT2}, s{sTB1}, 9
s_add_u32 s{sT2}, s{sT2}, {WS_G}
v_lshrrev_b32 v{t+1}, 1, v{vSa+9}
v_mul_f32 v{vD+8}, {f32(-math.log2(math.e))}, v{vD+8}
v_exp_f32 v{vD+8}, v{vD+8}
v_add_f32 v{vD+8}, 1.0, v{vD+8}
v_rcp_f32 v{o+6}, v{vD+8}
buffer_store_dwordx2 {vr(o+6,2)}, v{t+1}, {srd(SWS)}, s{sT2} offen sc1
''')
sp.add(bar('utst'))
sp.add(fu_flag())
sp.add(setup_b())
ks_ = Seq().add(kgen_seq(K).l[len(K['A']):])
sp.add(ks_)
sp.add(cat(w2_dma(0)))
sp.add(bar('*lds'))
stamp(sp, 'g1s7')
sp.add(K['rc'])
sp.add(cat(w2_dma(1)))
sp.add(K['vc'])
sp.add(K['wc'].l[:5])
sp.add(cat([g for k in range(2, 6) for g in w2_dma(k)]))
sp.add(u_poll_issue())
sp.add(cat(w2_tr(0) + w2_tr(1) + w2_tr(2)))
sp.add(K['wc'].l[5:])
sp.add(w2_window())
sp.add(u_dma())
sp.add(cat([g for k in range(6, 6 + OPT['ng']) for g in w2_dma(k)]))
sp.wait('udma')
stamp(sp, 'gelu')
sp('s_branch Ljoin')
for b, n in ((vF1, 48), (vD, 16), (vONE, 4), (vSa, 10), (o, 8), (K['vb'], 36), (K['pb'], 32),
             (vGA, 9), (vTA, 5), (vRR, 1), (vEa, 3)):
    V.release(b, n)

com = Seq()
com('Ljoin:')
vB2 = V.alloc(8, 2)
vGt = V.alloc(2, 2)
vH0 = V.alloc(56, 2)
vCF = V.alloc(128, 2)
vH = (vH0, vCF)
aC = 224
com.wait('udma')
com(f'ds_write_b32 v{vUz+1}, v{vZ} offset:{L_U + 508}')
com.add(bar('*lds'))
stamp(com, 'cv0')


def cv_reads(bb):
    b = vCF + 64 * (bb & 1)
    r = []
    for a in range(8):
        for hh in range(2):
            r.append(f'ds_read_b64 {vr(b+4*a+2*hh,2)}, v{vFa} offset:{64*(59-8*a-bb) + 8*hh}')
        r.append(f'ds_read_b128 {vr(b+32+4*a,4)}, v{vGa} offset:{512*a + 64*(3-bb)}')
    return r


def cv_mfma(bb):
    b = vCF + 64 * (bb & 1)
    r, first = [], set()
    key = (lambda x: (x[0] + x[1], x[0])) if bb == 3 else (lambda x: (max(x), x[0] - x[1])) if OPT['cord'] else (lambda x: (max(x), x[0] + x[1], x[0]))
    order = sorted(((a, d) for a in range(8) for d in range(8 - a)), key=key)
    for a, d in order:
        c = aC + 4 * (a + d)
        cc = '0' if (bb == 0 and a + d not in first) else ar(c, 4)
        first.add(a + d)
        r.append(f'v_mfma_f32_16x16x32_bf16 {ar(c,4)}, {vr(b+4*a,4)}, {vr(b+32+4*d,4)}, {cc}')
    return r


def h_load(L):
    sg, ks = divmod(L, 14)
    if HS == 1:
        return Seq()(f'buffer_load_dwordx4 {vr(vH[sg&1]+4*ks,4)}, v{vL16+ks//4}, {srd(SWS)}, s{sH+sg} offen offset:{1024*(ks%4)} sc1', tag=f'h{L}')
    s = Seq()(f'buffer_load_dwordx4 {vr(vH[sg&1]+4*ks,4)}, v{vL16+1+(ks%6)//2}, {srd(SWS)}, s{sH+sg} offen offset:{2048*(ks%2)} sc1')
    if ks % 6 == 5:
        s(f's_add_u32 s{sH+sg}, s{sH+sg}, 12288')
    return s


hflag = Seq()
hflag.wait('hst?')
flag_set(hflag, sFH)
small = Seq()
g_ld = f'buffer_load_dwordx2 {vr(vGt,2)}, v{vGo}, {srd(SWS)}, s{sGs} offen sc1'
small(g_ld)
small(f'global_load_lds_dword v{vBa}, {ptr(P_B2)}', tag='b2d', m0=f's_add_u32 m0, s{sP4}, 7680')

C = Gaps([x for bb in range(4) for x in cv_mfma(bb)], cap=8, maxlds=1)
need = 3 * [[0, 1, 4, 9, 16, 24, 30, 34]] + [[0, 1, 3, 6, 10, 15, 21, 28]]
LEAD = OPT['lead']
cr = [(36 * bb + need[bb][a] - LEAD, x) for bb in range(4) for a in range(8) for x in cv_reads(bb)[3 * a: 3 * a + 3]]
nxt_free, prelude, placed = 143, [], []
for dl, x in reversed(cr):
    g = min(dl, nxt_free)
    if g < 0:
        prelude.insert(0, x)
    else:
        placed.append((g, x))
        nxt_free = g - 1
for g, x in placed:
    C.put(g, x)
for bb in range(4):
    for a in range(8):
        if 36 * bb + need[bb][a] > 0:
            C.reserve(36 * bb + need[bb][a] - 1, 4)
CT = OPT['ct']
assert CT >= 9
DS = OPT['ds']
g0, dma_end = 0, OPT['d00'] - DS
dma_at = {k: -46 for k in range(6 + OPT['ng'])}
for k in range(6 + OPT['ng'], 9):
    dma_end = dma_at[k] = C.fill(w2_dma(k), dma_end + DS, dma_end + 5 * DS, step=DS)[-1]
for k in range(3, CT + 1):
    g0 = max(g0, dma_at[k] + 44)
    p = C.fill(w2_tr(k), g0, min(g0 + OPT['tw'], 144))
    g0 = p[-1] + 1
    if k == 9:
        tr9 = p[-1]
    if k < 8:
        d0 = max(p[-1] + 6, dma_end + DS)
        dma_end = dma_at[k + 6] = C.fill(w2_dma(k + 6), d0, min(d0 + 4 * DS, 144), step=DS)[-1]
print('w2 dma gaps', dma_at, 'last tr', g0)
red = [Seq()(f'ds_write_b128 v{vRa}, {ar(aC+4*c,4)} offset:{16384*(c//4) + 1024*(c%4)}') for c in range(8)]
for c, g in enumerate((129, 131, 133, 135, 137, 139, 142)):
    assert g > tr9 and g >= 108 + (c + 1) * (c + 2) // 2 + 4
    C.put(g, red[c])
if OPT['smg'] < 144:
    C.fill(singles(small), OPT['smg'], OPT['smg'] + 14, step=2)
C.put(OPT['hfg'], hflag)
if OPT['vp']:
    hld = f'buffer_load_dword v{vPF}, v{vPA}, {srd(SWS)}, s{sFHp} offen sc1'
    C.put(OPT['hpg'], hld)
    hc = [Seq()(f'v_cmp_ne_u32 vcc, s{sNON}, v{vPF}')]
    retry(hc[0], 's_cbranch_vccnz', 's_cbranch_vccz', '\n'.join([hld, 's_waitcnt vmcnt(0)', hc[0].l[0].text]))
else:
    C.put(OPT['hpg'], spoll_issue(7, sFHp))
    hc = spoll_check(7, sFHp)
if OPT['nochk']:
    hc[-1].l[-2] = Ins('s_nop 0')
p = C.fill(hc, OPT['hcg'], OPT['hcg'] + 8)
g0 = max(p[-1], dma_end) + 1
NC = min(14, (144 - g0) // OPT['hs'])
C.fill([h_load(L) for L in range(NC)], g0, 144, step=OPT['hs'])
print('h loads in conv', NC)
sc = singles(setup_c())
C.spread(sc[:10], 30, min(OPT['smg'], OPT['hpg']))
C.spread(sc[10:], min(OPT['smg'], OPT['hpg']), g0)
print('conv over', C.over(), C.load if OPT['stamps'] == 4 else '')
for x in prelude:
    com(x)
for g in range(0, 144, 12):
    com.add(C.emit(g, g + 12))
    if g < 132:
        stamp(com, f'c{g+12}', 4)
stamp(com, 'cv1')
NH0 = NC + OPT['nb4']
hl1 = [h_load(L) for L in range(NC, NH0)]
RSH = OPT['rsh']
q = vCF + 72 if RSH else vCF + 56
tagm = [Seq()(f'v_mov_b32 v{q+32+4*k+d}, s{sNON}') for k in range(4) for d in (2, 3)]
rr = [Seq()(f'ds_read_b128 {vr(q+16*si+8*e+4*p,4)}, v{vRa+1+e} offset:{2048*si + 4096*p}')
      for si in range(2) for e in range(2) for p in range(2)]
rv = Seq()
for si in range(2):
    b = q + 16 * si
    for e in range(2):
        for k in range(2):
            if RSH:
                rv(f'v_add_f32 v{b+8*e+2*k}, v{b+8*e+2*k}, v{b+8*e+4+2*k}\nv_add_f32 v{b+8*e+2*k+1}, v{b+8*e+2*k+1}, v{b+8*e+5+2*k}')
            else:
                rv(f'v_pk_add_f32 {vr(b+8*e+2*k,2)}, {vr(b+8*e+2*k,2)}, {vr(b+8*e+4+2*k,2)}')
    for k in range(2):
        o = q + 32 + 8 * si + 4 * k
        rv(f'v_cvt_pk_bf16_f32 v{o}, v{b+8+2*k}, v{b+8+2*k+1}')
        rv(f'v_cvt_pk_bf16_f32 v{o+1}, v{b+2*k}, v{b+2*k+1}')
if RSH:
    com.add(cat(hl1))
else:
    com.add(cat(tagm))
    com.add(red[7])
    com.add(cat(hl1[:3]))
    com.add(bar('*lds'))
    com.add(cat(rr))
    com.add(cat(hl1[3:6]))
    com.add(rv)
    com.add(cat(hl1[6:]))
LATE = OPT['asg'] > 60
apark = [Seq()(f'v_accvgpr_write_b32 a{224+k}, v{q+32+k}') for k in range(16)]
ast = [Seq()(f'buffer_store_dwordx4 {ar(224+8*si+4*k,4) if LATE else vr(q+32+8*si+4*k,4)}, v{vAo}, {srd(SWS)}, s{sAT} offen offset:{2048*si + 128*k} sc1', tag='atst')
       for si in range(2) for k in range(2)]
if OPT['asg'] < 0:
    com.add(cat(ast))
stamp(com, 'cv2')

vA2, vP, vAa = vCF + 56, vCF + 88, vCF + 120
vPR = t
aL = vA2 + 16
a_ld = [f'buffer_load_dwordx4 {vr(vH0+4*i,4)}, v{vAs}, {srd(SWS)}, s{sAs+i} offen sc1' for i in range(4)]
a_cmp = [f'v_xor_b32 v{vH0+4*i+2}, s{sNON}, v{vH0+4*i+2}' for i in range(4)]
a_cmp += [f'v_or3_b32 v{vH0+3}, v{vH0+2}, v{vH0+6}, v{vH0+10}', f'v_or_b32 v{vH0+3}, v{vH0+3}, v{vH0+14}',
          f'v_cmp_ne_u32 vcc, 0, v{vH0+3}']
a_chk = [Seq()(x) for x in a_cmp]
retry(a_chk[-1], 's_cbranch_vccnz', 's_cbranch_vccz', '\n'.join(a_ld + ['s_waitcnt vmcnt(0)'] + a_cmp))
a_wr = [Seq()(f'ds_write_b64 v{vAd+i%2}, {vr(vH0+4*i,2)} offset:{512*i}', tag='awr') for i in range(4)]


g_chk = Seq()(f'v_cmp_ne_u32 vcc, s{sNON}, v{vGt+1}')
retry(g_chk, 's_cbranch_vccnz', 's_cbranch_vccz', '\n'.join([g_ld, 's_waitcnt vmcnt(0)', g_chk.l[0].text]))


def part_write(sg):
    return [Seq()(f'ds_write_b128 v{vPW}, {vr(vA2+16*(sg&1)+4*j,4)} offset:{16384*sg + 1024*j}', tag=f'pw{sg}') for j in range(4)]


def part_read(sg, dst):
    return [Seq()(f'ds_read_b128 {vr(dst+4*j,4)}, v{vPR+sg} offset:{1024*j}') for j in range(4)]


def unpack(dst, src):
    return [Seq()(f'v_and_b32 v{dst+k}, 0xffff0000, v{src+k//2}' if k % 2 else f'v_lshlrev_b32 v{dst+k}, 16, v{src+k//2}')
            for k in range(16)]


M = Gaps([f'v_mfma_f32_16x16x32_bf16 {vr(vA2+16*(sg&1)+4*j,4)}, {ar(16*ks+4*j,4)}, {vr(vH[sg&1]+4*ks,4)}, '
          f'{vr(vA2+16*(sg&1)+4*j,4) if (ks or sg == 3) else 0}'
          for sg in range(4) for ks in range(14) for j in range(4)], cap=8, maxlds=1)
HD = OPT['hd']
for g in range(3, 223, 4):
    L = (g + 1) // 4
    if not OPT['w2s']:
        M.reserve(g, 4)
    elif L % 2 == 0:
        M.put(g, Seq().wait(f'h{L+1}'))
nl = NH0
for step in range(56):
    a0 = max(OPT['asg'], 0) // 4
    for k in range(0 if a0 <= step < a0 + OPT['pause'] else 2 if step % OPT['cu'] == 0 else 1):
        if nl < 56 and nl <= step + HD:
            M.put(4 * step + 2 * k, h_load(nl))
            nl += 1
if RSH:
    RB = OPT['rb']
    red[7].l[0].tag = 'red7'
    M.put(2, red[7])
    M.put(RB, bar('red7'))
    M.fill(rr, RB + 1, RB + 10)
    M.spread(tagm, 0, RB + 8)
    p = M.spread(singles(rv), RB + 10, OPT['asg'])
if OPT['asg'] >= 0:
    M.fill(ast, OPT['asg'], OPT['asg'] + 12, step=2)
M.fill([g for k in range(CT + 1, 14) for g in w2_tr(k)], OPT['rb'] + 10 if RSH else 0, 4 * CT + 2)
se = singles(setup_e())
M.spread(se[:2] + [Seq()(f'v_lshl_add_u32 v{vBa}, v{vG}, 3, s{sP4}')], 0, 40)
b2r = [Seq()(f'ds_read_b64 {vr(vB2+2*j,2)}, v{vBa} offset:{7680 + 32*j}') for j in range(4)]
b2r[0] = Seq().wait('b2d').add(b2r[0])
M.fill(b2r, 44, 56)
M.spread(se[2:], 40, 112)
M.fill([g_chk, Seq()(f'v_sub_f32 v{vGt+1}, 1.0, v{vGt}')]
       + (apark if LATE else []) + unpack(vP, vB2), 64, 116)
for i, x in enumerate(a_ld):
    assert OPT['alg'] + OPT['als'] * i >= 116 + 4 * i
    M.put(OPT['alg'] + OPT['als'] * i, x)
for sg in range(3):
    for j, g_ in enumerate(part_write(sg)):
        M.put(56 * (sg + 1) + 5 + (4 if sg == 0 else 3) * j, g_)
M.put(112 + 21, bar('pw1'))
M.fill(part_read(0, vP + 16) + part_read(1, aL), 112 + 22, 112 + 32)
M.fill([Seq()(f'v_add_f32 v{vP+k}, v{vP+k}, v{vP+16+k}') for k in range(16)]
       + [Seq()(f'v_add_f32 v{aL+k}, v{aL+k}, v{vP+k}') for k in range(16)], 112 + 34, 167)
AF = OPT['afg']
p = M.fill(a_chk + a_wr, OPT['acg'], AF - 1)
M.put(AF, bar('pw2', 'awr'))
M.fill([Seq()(f'ds_read_b64_tr_b16 {vr(vAa+2*j,2)}, v{vAr} offset:{4096*j}') for j in range(4)] + part_read(2, vP), AF + 1, min(AF + 7, 223))
M.fill(unpack(vP + 16, vAa) + [Seq()(f'v_mul_f32 v{vP+16+k}, v{vGt}, v{vP+16+k}') for k in range(16)]
       + [Seq()(f'v_fma_f32 v{vP+k}, v{vP+k}, v{vGt+1}, v{vP+16+k}') for k in range(16)], min(AF + 8, 223), 224)
print('gemm2 over', M.over())
for sg in range(4):
    for g in range(56 * sg, 56 * sg + 56, 14):
        com.add(M.emit(g, g + 14))
        if (g + 14) % 56:
            stamp(com, f'm{g+14}', 4)
    stamp(com, f'g2s{sg}')
for j in range(4):
    for i in range(0, 4, 2):
        k = 4 * j + i
        com(f'v_pk_fma_f32 {vr(vP+k,2)}, {vr(aL+k,2)}, {vr(vGt,2)}, {vr(vP+k,2)} op_sel:[0,1,0] op_sel_hi:[1,1,1]')
for j in range(4):
    com(f'v_cvt_pk_bf16_f32 v{vAa+2*j}, v{vP+4*j}, v{vP+4*j+1}')
    com(f'v_cvt_pk_bf16_f32 v{vAa+2*j+1}, v{vP+4*j+2}, v{vP+4*j+3}')
for j in range(4):
    com(f'ds_write_b64 v{vOw+j}, {vr(vAa+2*j,2)}')
for r in range(2):
    com(f'ds_read_b128 {vr(vP+16+4*r,4)}, v{vOr} offset:{1024*r}')
for r in range(2):
    com(f'buffer_store_dwordx4 {vr(vP+16+4*r,4)}, v{vOa}, {srd(SOUT)}, s{sO0+r} offen' + ('', ' sc1', ' nt', ' sc0 sc1')[OPT['osc']])
if OPT['stamps']:
    com.wait('*vm')
    stamp(com, 'end')
    com('s_waitcnt lgkmcnt(0)')
    stamp(com, 'x')
    com(f'''
s_waitcnt lgkmcnt(0)
s_memrealtime s[{sSTAMP}:{sSTAMP+1}]
v_writelane_b32 v{vST}, s{sSTAMP}, 63
s_getreg_b32 s{sT0}, hwreg(HW_REG_XCC_ID)
v_writelane_b32 v{vST}, s{sT0}, 61
s_getreg_b32 s{sT0}, hwreg(HW_REG_HW_ID)
v_writelane_b32 v{vST}, s{sT0}, 60
s_lshl2_add_u32 s{sT0}, s2, s{sWV}
s_lshl_b32 s{sT0}, s{sT0}, 8
s_add_u32 s{sT0}, s{sT0}, {WS_ST}
v_lshlrev_b32 v{t}, 2, v{vL}
buffer_store_dword v{vST}, v{t}, {srd(SWS)}, s{sT0} offen''')
if PROBE is not None:
    com.wait('*vm')
    stamp(com, 'end')
    role = PROBE.split(':')[1]
    com(f'''
s_waitcnt lgkmcnt(0)
s_cmp_ge_u32 s2, 224
{'s_cbranch_scc1 Lend' if role == 'm' else 's_cbranch_scc0 Lend' if role == 's' else 's_nop 0'}
v_readfirstlane_b32 s{sT1}, v{vST}
{dict(n=f's_sub_u32 s{sT0}, s{sSTAMP}, s{sNON}', r=f's_sub_u32 s{sT0}, s{sNON}, s{sT1}', s=f's_sub_u32 s{sT0}, s{sSTAMP}, s{sT1}')[PROBE.split(':')[2]]}
s_max_i32 s{sT0}, s{sT0}, 0
s_min_i32 s{sT0}, s{sT0}, 0x2000
s_lshl_b32 s{sT0}, s{sT0}, 2
s_memrealtime s[{sT2}:{sT3}]
s_waitcnt lgkmcnt(0)
s_add_u32 s{sT0}, s{sT0}, s{sT2}
Lprobe:
s_memrealtime s[{sT2}:{sT3}]
s_waitcnt lgkmcnt(0)
s_sub_u32 s{sT1}, s{sT2}, s{sT0}
s_cmp_lt_i32 s{sT1}, 0
s_cbranch_scc1 Lprobe''')
com('Lend:')
com('s_endpgm')

check_order(checks[0][0], main.l, checks[0][1])
check_order(pc_addr.l + cat(pr).l + cat(pc_chk).l, main.l)
check_order(checks[1][0], sp.l, checks[1][1])
for x in (main, sp, com):
    insert_m0(x.l)
if OPT['stamps']:
    p0 = finish_stamps(pro.l, None)
    p1 = finish_stamps(main.l, p0)
    assert p1 == finish_stamps(sp.l, p0)
    finish_stamps(com.l, p1)
    stamp_names.remove('x')
paths = (pro.l + main.l + com.l, pro.l + sp.l + com.l)
for p in paths:
    resolve_waits(p)
for p in paths:
    resolve_waits(p)
for p in paths:
    fix_hazards(p)

ref = open('gated_mix__ssm_conv_s4d__mixer_channel_mlp__prompt.s.ref').read().split('\n')
head = [l for l in ref if l.startswith(';') and '@launch' not in l]
txt = '\n'.join(head) + f'\n; @launch grid=(256,1,1) block=(256,1,1) lds={LDS_SIZE}\n'
txt += f'''.amdgcn_target "amdgcn-amd-amdhsa--gfx950"
.text
.p2align 12
.fill {((4096 - 768 + 256 * OPT['eo']) % 4096) // 4}, 4, 0xbf810000      ; the entry then starts a 4 KB page (instruction prefetch stops at page ends)
.globl {NAME}
.p2align 8
.type {NAME},@function
{NAME}:
'''
txt += render(pro.l) + render(main.l) + render(com.l) + ''.join(outline) + '.p2align 12\n' + render(sp.l)
txt += f'''Lcode_end:
    s_endpgm
.section .rodata,"a"
.p2align 6
.amdhsa_kernel {NAME}
  .amdhsa_next_free_vgpr 512
  .amdhsa_next_free_sgpr 102
  .amdhsa_accum_offset 256
  .amdhsa_group_segment_fixed_size 0
  .amdhsa_kernarg_size 128
  .amdhsa_user_sgpr_count 2
  .amdhsa_user_sgpr_kernarg_segment_ptr 1
  .amdhsa_system_sgpr_workgroup_id_x 1
.end_amdhsa_kernel
'''


def with_page_stubs(txt):
    import subprocess, re
    disp = {}
    for role in ('main', 'spare'):
        disp[role] = [f's_mov_b32 s0, {int(role == "spare")}', 's_mov_b64 exec, 0'] + [x for w in range(3) for x in (f's_cmp_eq_u32 s{sWV}, {w}', f's_cbranch_scc1 @{role}{w}')]
        disp[role] += [f's_branch @{role}3']
    disp['main'] += ['Liw_ret:', 's_cmp_eq_u32 s0, 1', 's_cbranch_scc1 Liw_ret_spare', 's_mov_b64 exec, -1']
    disp['spare'] += ['Liw_ret_spare:', 's_mov_b64 exec, -1']
    lines = []
    for l in txt.split('\n'):
        if ';IWARM' in l:
            lines += [x if x.endswith(':') else '    ' + x for x in disp[l.split()[1]]]
        else:
            lines.append(l)
    open('_pg.s', 'w').write(re.sub(r'@(main|spare)\d', 'Lend', '\n'.join(lines)))
    subprocess.run(['clang', '-x', 'assembler', '-target', 'amdgcn-amd-amdhsa', '-mcpu=gfx950', '-c',
                    '_pg.s', '-o', '_pg.o'], check=True)
    dis = subprocess.run(['llvm-objdump', '-d', '-z', '--mcpu=gfx950', '_pg.o'], capture_output=True, text=True).stdout
    dis = dis[dis.index(f'<{NAME}>:'):]
    cut = dis.index('<Lspare>:')
    size = lambda part: [4 * len(m.group(1).split()) for m in re.finditer(r'// [0-9A-F]+: ([0-9A-F ]+)', part)]
    isins = lambda l: l.startswith('    ') and not l.strip().startswith((';', '.'))
    out, pages = [], {'main': [], 'com': [], 'spare': []}
    sec, sizes, addr, seen = None, None, 0, set()
    for l in lines:
        if l == f'{NAME}:':
            sec, sizes, addr = 'main', iter(size(dis[:cut])), 256 * OPT['eo']
        if l == 'Ljoin:':
            sec = 'com'
        if l == 'Lend:':
            sec = None
        if l == 'Lspare:':
            sec, sizes, addr = 'spare', iter(size(dis[cut:])), 0
        if l == 'Lcode_end:':
            sec = None
        if sec and isins(l):
            if addr >= 4096:
                addr -= 4096
                if sec == 'com' or sec in seen:
                    nm = f'Lpg{sum(map(len, pages.values()))}'
                    pages[sec].append(nm)
                    out += [nm + ':', f'    s_cbranch_execz @next{nm}']
                    addr += 4
            addr += next(sizes)
        out.append(l)
        if l.strip() == 's_mov_b64 exec, -1':
            seen.add(sec)
    txt = '\n'.join(out)
    nxt = {p: 'Liw_ret' for p in pages['com'] + pages['main']}
    nxt.update({p: 'Liw_ret_spare' for p in pages['spare']})
    for role in ('main', 'spare'):
        own, com_ = list(pages[role]), list(pages['com'])
        while len(own) + len(com_) > 4:
            k = len(own) + len(com_) - 5
            nxt[own[k]] = com_.pop()
        heads = own + com_
        for w in range(4):
            txt = txt.replace(f'@{role}{w}', heads[w] if w < len(heads) else ('Liw_ret' if role == 'main' else 'Liw_ret_spare'))
    for p, n_ in nxt.items():
        txt = txt.replace(f'@next{p}\n', n_ + '\n')
    print('pages', pages)
    return txt


if OPT['iw']:
    txt = with_page_stubs(txt)
open(sys.argv[1], 'w').write(txt)
if OPT['stamps']:
    open(sys.argv[1] + '.stamps', 'w').write(' '.join(stamp_names))
print('vgpr high water', V.hw, 'instr', [sum(1 for i in p.l if i.kind != 'meta') for p in (pro, main, com, sp)],
      'nops', sum(i.pre for p in (pro, main, com) for i in p.l))
```

```python
import sys, struct, math
from asmlib import *

NAME = 'gated_mix__ssm_conv_s4d__mixer_channel_mlp__prompt_kernel'
OPT = dict(stamps=0, rt=0, rot=1, touch=1, tlb=0, early=10, nk=19, res=66, lst=9, hd=27, osc=1, up=-1, ud=0, pcg=170,
           hfg=22, hpg=76, hcg=116, alg=118, acg=184, afg=196, ct=10, nb4=8, asg=-1, skipw=0, c3=0, gs0=4, gsp=13, pause=6, hs=3, cu=99, ua=80, nost=0, hsk=0, nochk=0, vp=1, ng=2, ds=4, d00=2, smg=60, tw=12, lead=8, atl=0, als=8, wtl=0, t1=0, te=0, cord=1, eo=0, iw=1, nm=0, nms=8, lq=4, tl=0, wf=0, c3x=0, rsh=0, rb=6, kf=1, w2s=0, dly=0, nw=0)
PROBE = None
for a in sys.argv[2:]:
    k, v = a.split('=')
    if k == 'probe':
        PROBE = v
        continue
    assert k in OPT, k
    OPT[k] = int(v)


def f32(x):
    return '0x%08x' % struct.unpack('<I', struct.pack('<f', x))[0]


FU, FH, FDUMMY = 0x10000, 0x1000, 0x9000
WS_TP = 0x80000
WS_TS = 0x88000
WS_G = 0x90000
WS_FP = 0x98000
WS_ST = 0xA0000
WS_UT = 0x200000
HS = 2 if OPT['hsk'] else 1
WS_AT = 0x400000
WS_H = 0x800000 + (512 if OPT['hsk'] else 0)
WS_SIZE = 0x10000000
L_X, L_W = 32768, 98304
PART = 8192
O_T = 4352
L_U = 32768
L_E = 65536
LDS_SIZE = 163840

P_U, P_LA, P_AI, P_CR, P_CI, P_DT, P_DS, P_BX, P_W1, P_B1, P_W2, P_B2, P_GW, P_OUT, P_DBG, P_WS = [4 + 2 * i for i in range(16)]
SX, SW1, SW2, SWS, SOUT = 36, 40, 44, 48, 52
sXCD, sJ, sWV, sBH = 56, 57, 58, 59
sT0, sT1, sT2, sT3 = 60, 61, 62, 63
sNON, sNON1 = 64, 65
sM, sXb, sWb, sKC, sXk, sWk = 66, 67, 68, 69, 70, 71
sHst, sHst2, sFH, sTB1, sCB1, sW2l = 72, 73, 74, 75, 76, 77
sP4, sCNT, sTB2, sNB, sCH, sT4 = 78, 79, 80, 81, 82, 83
sF = 84
sSTAMP = 100
sUt, sUo, sFU, sFUp = 3, 98, 99, 13
sDT, sDS = 96, 97
sT5 = 91
sUs, sUm = 4, 5
sSEL0, sSEL1 = 18, 19
sH = 6
sPR = 10
sAT, sFHp, sAT2, sGs = 14, 15, 16, 17
sAs = 92
sO0, sO1 = 20, 21
srd = lambda b: 's[%d:%d]' % (b, b + 3)
ptr = lambda b: 's[%d:%d]' % (b, b + 1)

V = Regs('v', 0, 256)
vTID, vL, vZ, vST, vN, vG, vNON, vPF = [V.alloc() for _ in range(8)]
vT = V.alloc(8, 4)
vZ2 = V.alloc(4, 4)
vL16 = V.alloc(4, 1)
vPA = V.alloc()
vW2s = V.alloc(4, 1)
vTr = V.alloc(8, 1)
vFa, vGa = V.alloc(), V.alloc()
vUz = V.alloc(2, 1)
vX = V.alloc(16, 1)
vPAR, vPo, vXs, vWs = vX, vX + 6, vX + 8, vX + 12
vRa, vAd, vPW, vAr, vOw, vOr, vOa, vBa, vGo, vAs = vX, vX + 3, vX + 5, vX + 6, vX + 7, vX + 11, vX + 12, vX + 13, vX + 14, vX + 15
vAo = V.alloc()
t = vT

outline = []
stamp_names = []
nlab = [0]
checks = []


def stamp(s, name, lvl=1):
    if OPT['dly'] >= 7 and name not in ('start', 'end', 'x'):
        nlab[0] += 1
        s('s_sleep 0')
        s.l[-1].text = (f's_cmp_lg_u32 s{sWV}, {(nlab[0] * (OPT["dly"] - 6) + OPT["dly"]) % 4}\n    s_cbranch_scc1 Lback_w{nlab[0]}\n'
                        f'    s_sleep 40\nLback_w{nlab[0]}:')
    if PROBE is not None and name == 'karg':
        s(f'v_mov_b32 v{vST}, s{sSTAMP}')
    if PROBE is not None and name in (PROBE.split(':')[0], 'start'):
        s(f's_memrealtime s[{sSTAMP}:{sSTAMP+1}]')
        s.l[-1].kind, s.l[-1].dst = 'salu', []
    if OPT['stamps'] < lvl or (OPT['stamps'] == 4 and lvl in (2, 3)) or (OPT['stamps'] == 5 and lvl in (3, 4)):
        return
    if name not in stamp_names:
        stamp_names.append(name)
    s(f's_mem{"real" if OPT["rt"] else ""}time s[{sSTAMP}:{sSTAMP+1}]', tag='stamp:' + name)
    s.l[-1].kind, s.l[-1].dst = 'salu', []


def finish_stamps(items, prev):
    out = []
    for it in items:
        if it.tag and it.tag.startswith('stamp:'):
            if prev is not None:
                out.append(Ins(f'v_writelane_b32 v{vST}, s{sSTAMP}, {stamp_names.index(prev)}'))
            prev = it.tag[6:]
        out.append(it)
    items[:] = out
    return prev


def retry(s, branch, exit_branch, body):
    k = nlab[0]
    nlab[0] += 1
    s(f'{branch} Lretry{k}')
    s(f'Lback{k}:')
    body = '\n'.join('    ' + l.strip() for l in body.strip().split('\n'))
    outline.append(f'''Lretry{k}:
    s_mov_b32 s{sCNT}, 0x40000
Lloop{k}:
    s_sleep 2
{body}
    {exit_branch} Lback{k}
    s_sub_u32 s{sCNT}, s{sCNT}, 1
    s_cbranch_scc0 Lloop{k}
    s_branch Lback{k}
''')


def cat(groups):
    s = Seq()
    for g in groups:
        s.add(g)
    return s


def chunks(seq, n):
    return [Seq().add(seq.l[i:i + n]) for i in range(0, len(seq), n)]


def bar(*tags):
    s = Seq()
    if tags:
        s.wait(*tags)
    s('s_barrier')
    return s


def nonce_issue():
    return Seq()(f'global_load_dword v{vNON}, v{vZ}, {ptr(P_DBG)} sc1')


def nonce_check():
    s = Seq()
    s(f'v_readfirstlane_b32 s{sNON}, v{vNON}')
    s(f's_cmp_eq_u32 s{sNON}, 0')
    retry(s, 's_cbranch_scc1', 's_cbranch_scc0', f'''
global_load_dword v{vNON}, v{vZ}, {ptr(P_DBG)} sc1
s_waitcnt vmcnt(0)
v_readfirstlane_b32 s{sNON}, v{vNON}
s_nop 3
s_cmp_eq_u32 s{sNON}, 0''')
    s(f's_mov_b32 s{sNON1}, s{sNON}')
    return s


def flag_set(s, soff):
    s(f's_atomic_swap s{sNON}, {ptr(P_WS)}, s{soff}')


def spoll_issue(n, soff):
    return Seq()(f's_load_dwordx{8 if n <= 8 else 16} s[{sF}:{sF + (7 if n <= 8 else 15)}], {ptr(P_WS)}, s{soff} glc')


def spoll_check(n, soff):
    l = []
    for k in range(0, n - 1, 2):
        l.append(f's_xor_b64 s[{sF+k}:{sF+k+1}], s[{sF+k}:{sF+k+1}], s[{sNON}:{sNON1}]')
    if n % 2:
        l.append(f's_xor_b32 s{sF+n-1}, s{sF+n-1}, s{sNON}')
        l.append(f's_or_b32 s{sF}, s{sF}, s{sF+n-1}')
    for k in range(2, n - 1, 2):
        l.append(f's_or_b64 s[{sF}:{sF+1}], s[{sF}:{sF+1}], s[{sF+k}:{sF+k+1}]')
    g = [Seq()(x) for x in l]
    retry(g[-1], 's_cbranch_scc1', 's_cbranch_scc0', '\n'.join([spoll_issue(n, soff).l[0].text, 's_waitcnt lgkmcnt(0)'] + l))
    return g


pro = Seq()
pro('s_cmp_ge_u32 s2, 0x100\ns_cbranch_scc1 Lend')
if OPT['stamps']:
    pro(f'''
s_memrealtime s[{sSTAMP}:{sSTAMP+1}]
s_waitcnt lgkmcnt(0)
s_add_u32 s{sT0}, s{sSTAMP}, 0x500
s_and_b32 s{sT0}, s{sT0}, 0xfffffc00
Lsync:
s_memrealtime s[{sSTAMP}:{sSTAMP+1}]
s_waitcnt lgkmcnt(0)
s_sub_u32 s{sT1}, s{sSTAMP}, s{sT0}
s_cmp_lt_i32 s{sT1}, 0
s_cbranch_scc1 Lsync
v_mov_b32 v{vST}, 0
v_writelane_b32 v{vST}, s{sSTAMP}, 62''')


def delay(s, which):
    if OPT['dly'] not in which:
        return
    cond = {1: 's_cmp_ge_u32 s2, 224', 3: 's_cmp_eq_u32 s2, 0'}.get(OPT['dly'], f's_and_b32 s{sCNT}, s2, 15\ns_cmp_eq_u32 s{sCNT}, 5')
    s(f'''
{cond}
s_cbranch_scc0 Lback_nodly
s_mov_b32 s{sCNT}, 200
Lback_dly:
s_sleep 2
s_sub_u32 s{sCNT}, s{sCNT}, 1
s_cbranch_scc0 Lback_dly
Lback_nodly:''')


delay(pro, (1, 2, 3))
stamp(pro, 'start')
pro(f'''
s_load_dwordx2 s[{SX}:{SX+1}], s[0:1], 0
s_load_dwordx2 s[{SW1}:{SW1+1}], s[0:1], 64
s_load_dwordx16 s[4:19], s[0:1], 0
s_load_dwordx16 s[20:35], s[0:1], 64
s_getpc_b64 s[{sT2}:{sT3}]
Lpc:
s_cmp_ge_u32 s2, 224
s_cbranch_scc1 Lspare
''')


def pro_body(s):
    s(f'''
v_lshrrev_b32 v{t}, 6, v{vTID}
v_and_b32 v{vL}, 63, v{vTID}
v_readfirstlane_b32 s{sWV}, v{t}
v_mov_b32 v{vZ}, 0
s_and_b32 s{sXCD}, s2, 7
s_lshr_b32 s{sJ}, s2, 3
s_lshl2_add_u32 s{sT0}, s{sJ}, s{sWV}
s_mul_i32 s{sT0}, s{sT0}, 384
v_and_b32 v{t+1}, 3, v{vL}
v_lshl_add_u32 v{t+1}, v{t+1}, 7, s{sT0}
v_min_u32 v{t+1}, Lcode_end-Lpc-4, v{t+1}
global_load_dword v{vPF}, v{t+1}, s[{sT2}:{sT3}]
s_lshl_b32 s{sT0}, s2, 9
v_lshl_add_u32 v{vPo}, v{vTID}, 1, s{sT0}
s_lshl_b32 s{sCNT}, s2, 2
v_lshlrev_b32 v{vL16}, 4, v{vL}
v_and_b32 v{vN}, 15, v{vL}
v_lshrrev_b32 v{vG}, 4, v{vL}
s_mov_b32 s{SX+2}, 0x200000
s_mov_b32 s{SX+3}, 0x20000
s_mov_b32 s{SW1+2}, {512*3584}
s_mov_b32 s{SW1+3}, 0x20000
s_lshl_b32 s{sM}, s{sWV}, 12
s_lshl_b32 s{sP4}, s{sWV}, 13
s_lshl_b32 s{sT5}, s{sWV}, 11
s_and_b32 s{sBH}, s{sWV}, 1
s_lshr_b32 s{sT0}, s{sXCD}, 1
s_and_b32 s{sT1}, s{sJ}, 7
s_lshl3_add_u32 s{sUo}, s{sT0}, s{sT1}
s_and_b32 s{sT0}, s{sXCD}, 1
s_lshr_b32 s{sT1}, s{sJ}, 3
s_lshl2_add_u32 s{sFU}, s{sT0}, s{sT1}
s_lshl2_add_u32 s{sUt}, s{sUo}, s{sWV}
s_lshl_b32 s{sUt}, s{sUt}, 7
s_add_u32 s{sUt}, s{sUt}, s{sFU}
s_lshl_b32 s{sUt}, s{sUt}, 7
s_lshl_b32 s{sT0}, s{sWV}, 1
v_and_b32 v{t+2}, 7, v{vL}
v_xor_b32 v{t+2}, s{sT0}, v{t+2}
v_lshrrev_b32 v{t+3}, 3, v{vL}
v_lshlrev_b32 v{t+3}, 10, v{t+3}
v_lshl_add_u32 v{vFa}, v{t+2}, 4, v{t+3}
v_xor_b32 v{vGa}, 16, v{vFa}
v_add_u32 v{vGa}, 7168, v{vGa}
''')


def ut_loads(lds):
    s = Seq()
    for i in range(2):
        s(f'buffer_load_dwordx4 v{(vFa, vGa)[i]}, {srd(SX)}, s{sUt} offen offset:{1024*i} lds', tag='utl',
          m0=f's_add_u32 m0, s{sT5}, {lds}')
    return s


def ut_setup(lds):
    s = Seq()
    s(f'''
v_and_b32 v{t}, 7, v{vL}
v_lshrrev_b32 v{t+1}, 5, v{vL}
v_lshl_add_u32 v{t+1}, s{sWV}, 1, v{t+1}
v_xor_b32 v{t+1}, v{t+1}, v{t}
v_lshlrev_b32 v{t+1}, 4, v{t+1}
v_lshl_add_u32 v{t+1}, v{t}, 10, v{t+1}
v_bfe_u32 v{t+2}, v{vL}, 3, 2
v_lshl_add_u32 v{t+1}, v{t+2}, 2, v{t+1}
v_add_u32 v{vUz}, {lds}, v{t+1}
v_lshrrev_b32 v{t+1}, 3, v{vL}
v_lshlrev_b32 v{t+1}, 13, v{t+1}
v_lshl_add_u32 v{vUz+1}, v{t}, 4, v{t+1}
s_lshl2_add_u32 s{sT0}, s{sFU}, s{sWV}
s_lshl_b32 s{sT0}, s{sT0}, 9
s_lshl_b32 s{sFU}, s{sFU}, 5
s_add_u32 s{sFU}, s{sFU}, s{sUo}
s_lshl_b32 s{sFU}, s{sFU}, 4
s_add_u32 s{sFU}, s{sFU}, {FU}
s_add_u32 s{sUo}, s{sUo}, s{sT0}
s_lshl_b32 s{sUo}, s{sUo}, 7
s_add_u32 s{sUo}, s{sUo}, {WS_UT}
s_add_u32 s{sUt}, s{sUo}, 4096
s_mov_b32 s{sSEL0}, 0x05040100
s_mov_b32 s{sSEL1}, 0x07060302
''')
    return s


def ut_work(r):
    a, b = bar('utl'), Seq()
    for k in range(4):
        a(f'ds_read2_b32 {vr(r+2*k,2)}, v{vUz} offset0:{64*k} offset1:{64*k+32}')
    for c in range(2):
        for k in range(4):
            b(f'v_perm_b32 v{r+8+4*c+k}, v{r+2*k+1}, v{r+2*k}, s{sSEL0+c}')
    for c in range(2):
        b(f's_nop 0' if OPT['nost'] else f'buffer_store_dwordx4 {vr(r+8+4*c,4)}, v{vUz+1}, {srd(SWS)}, s{(sUo, sUt)[c]} offen sc1', tag='utst')
    return a, b


def fu_flag():
    k = nlab[0]
    nlab[0] += 1
    return Seq()(f'''
s_cmp_lg_u32 s{sWV}, 0
s_cbranch_scc1 Lback{k}
s_atomic_swap s{sNON}, {ptr(P_WS)}, s{sFU}
Lback{k}:''')


def param_loads(s):
    for i, p in enumerate((P_LA, P_AI, P_CR, P_CI)):
        s(f'global_load_ushort v{vPAR+i}, v{vPo}, {ptr(p)}')


def scalar_params(s):
    s(f's_load_dword s{sDT}, {ptr(P_DT)}, s{sCNT}')
    s(f's_load_dword s{sDS}, {ptr(P_DS)}, s{sCNT}')


def setup_a():
    s = Seq()
    for b, p, n in ((SW2, P_W2, 1792 * 1024), (SWS, P_WS, WS_SIZE), (SOUT, P_OUT, 0x200000)):
        s(f'''
s_mov_b64 s[{b}:{b+1}], s[{p}:{p+1}]
s_mov_b32 s{b+2}, {n}
s_mov_b32 s{b+3}, 0x20000''')
    s(f'''
s_lshl2_add_u32 s{sT1}, s2, s{sWV}
s_mul_i32 s{sT1}, s{sT1}, 1792
v_lshlrev_b32 v{t+7}, 7, v{vN}
s_lshl2_add_u32 s{sT2}, s{sJ}, s{sWV}
''')
    if OPT['c3x']:
        assert not OPT['tlb']
        s(f'''
s_lshr_b32 s{sT3}, s{sXCD}, 1
s_lshl_b32 s{sT3}, s{sT3}, 7
s_add_u32 s{sT3}, s{sT3}, s{sT2}
s_lshl_b32 s{sT3}, s{sT3}, 12
v_and_b32 v{t+6}, 3, v{vL}
v_lshlrev_b32 v{t+6}, 10, v{t+6}''')
    if OPT['tlb'] == 1:
        s(f'''
v_min_u32 v{t+6}, 8, v{vL}
v_lshlrev_b32 v{t+6}, 21, v{t+6}
v_or_b32 v{t+6}, 0x100000, v{t+6}''')
    if OPT['tlb'] == 2:
        s(f'''
s_lshl_b32 s{sT3}, s{sT2}, 7
s_add_u32 s{sT3}, s{sT3}, s{sXCD}
s_lshl_b32 s{sT4}, s{sT3}, 7
s_lshl_b32 s{sT3}, s{sT3}, 10
v_and_b32 v{t+6}, 1, v{vL}
v_lshl_add_u32 v{t+6}, v{t+6}, 16, s{sT3}''')
    s(f'''
s_mul_i32 s{sT2}, s{sT2}, {14*1024}
v_min_u32 v{vAo}, 13, v{vL}
v_lshlrev_b32 v{vAo}, 10, v{vAo}''')
    if OPT['c3x']:
        s(f'buffer_load_dword v{vPF}, v{t+6}, {srd(SX)}, s{sT3} offen offset:384')
    if OPT['c3']:
        s(f'buffer_load_dword v{vPF}, v{vAo}, {srd(SW2)}, s{sT2} offen offset:384')
    if OPT['t1']:
        s(f'buffer_load_dword v{vPF}, v{t+7}, {srd(SW1)}, s{sT1} offen')
    if OPT['touch']:
        s(f'buffer_load_dword v{vPF}, v{t+7}, {srd(SW2)}, s{sT1} offen')
    if OPT['tlb']:
        s(f'buffer_load_dword v{vPF}, v{t+6}, {srd(SWS)}, 0 offen sc1')
    if OPT['tlb'] == 2:
        s(f'buffer_load_dword v{vPF}, v{vZ}, {srd(SOUT)}, s{sT4} offen sc1')
    return s


vGA = V.alloc(9, 1)
vTA = V.alloc(5, 1)
vRR = V.alloc()
vEa = V.alloc(3, 1)


def setup_k():
    s = Seq()
    s(f'''
v_mul_u32_u24 v{t}, 272, v{vN}
v_lshl_add_u32 v{t}, v{vG}, 4, v{t}
v_add_u32 v{vRR}, s{sP4}, v{t}
s_add_u32 s{sT1}, s{sP4}, {O_T}
v_mov_b32 v{vEa+2}, s{sT1}
v_lshlrev_b32 v{vEa}, 4, v{vTID}
v_bfe_u32 v{t}, v{vL}, 2, 2
v_bfe_u32 v{t+1}, v{vL}, 2, 1
v_lshlrev_b32 v{t}, 13, v{t}
v_lshl_add_u32 v{t}, v{t+1}, 7, v{t}
v_and_b32 v{t+1}, 3, v{vL}
v_lshl_add_u32 v{vEa+1}, v{t+1}, 4, v{t}
v_mov_b32 v{vZ2}, 0
v_mov_b32 v{vZ2+1}, 0
v_mov_b32 v{vZ2+2}, 0
v_mov_b32 v{vZ2+3}, 0
v_lshrrev_b32 v{t}, 1, v{vG}
v_and_b32 v{t+1}, 1, v{vG}
v_mul_u32_u24 v{t+1}, 400, v{t+1}
v_lshl_add_u32 v{t+1}, v{t}, 4, v{t+1}
v_add_u32 v{t+1}, v{t+1}, v{vN}
v_lshl_add_u32 v{vTA}, v{t+1}, 2, s{sT1}
v_add_u32 v{vTA+1}, 800, v{vTA}
v_sub_u32 v{t+1}, 2, v{t}
v_lshlrev_b32 v{t+1}, v{t+1}, v{vN}
v_lshrrev_b32 v{t+2}, 3, v{t+1}
v_and_b32 v{t+1}, 7, v{t+1}
v_mul_u32_u24 v{t+1}, 100, v{t+1}
v_lshl_add_u32 v{t+2}, v{vG}, 3, v{t+2}
v_add3_u32 v{t+1}, v{t+1}, v{t+2}, 32
v_lshl_add_u32 v{vTA+2}, v{t+1}, 2, s{sT1}
v_mul_u32_u24 v{t}, 784, v{t}
v_sub_u32 v{t}, 800, v{t}
v_add_u32 v{vTA+3}, v{vTA+2}, v{t}
v_and_b32 v{t}, 7, v{vN}
v_mul_u32_u24 v{t}, 100, v{t}
v_lshrrev_b32 v{t+1}, 3, v{vN}
v_lshl_add_u32 v{t+1}, v{vG}, 3, v{t+1}
v_add3_u32 v{t}, v{t}, v{t+1}, 64
v_lshl_add_u32 v{vTA+4}, v{t}, 2, s{sT1}
''')
    return s


def setup_g():
    s = Seq()
    s(f'''
v_lshlrev_b32 v{t+4}, 3, v{vTID}
s_movk_i32 s{sT3}, 128
''')
    for i in range(9):
        g = vGA + i
        s(f'v_sub_u32 v{g}, {2047 - i}, v{t+4}')
        if i == 8:
            s(f'v_max_i32 v{t+5}, 0, v{g}')
            s(f'v_cvt_f32_u32 v{t+5}, v{t+5}')
        else:
            s(f'v_cvt_f32_u32 v{t+5}, v{g}')
        s(f'''
v_cvt_pk_bf16_f32 v{t+5}, v{t+5}, v{vZ}
v_add_u32 v{t+5}, {128 - 0x4300}, v{t+5}
v_med3_i32 v{g}, v{t+5}, v{g}, s{sT3}
v_and_b32 v{t+5}, 7, v{g}
v_ashrrev_i32 v{g}, 3, v{g}
v_mul_u32_u24 v{t+5}, 400, v{t+5}
v_lshl_add_u32 v{g}, v{g}, 2, v{t+5}''')
    return s


def setup_b():
    s = Seq()
    s(f'''
s_mul_i32 s{sW2l}, s{sWV}, {448*1024}
s_lshl_b32 s{sT0}, s{sNB}, 7
s_add_u32 s{sW2l}, s{sW2l}, s{sT0}
s_sub_u32 s{sW2l}, s{sW2l}, 32768
s_lshr_b32 s{sT0}, s{sWV}, 1
s_lshl1_add_u32 s{sCH}, s2, s{sT0}
v_lshlrev_b32 v{t+2}, 1, v{vG}
v_and_b32 v{t+3}, 7, v{vL}
v_xor_b32 v{t+2}, v{t+2}, v{t+3}
v_lshrrev_b32 v{t+3}, 3, v{vL}
v_lshlrev_b32 v{t+3}, 10, v{t+3}
v_lshl_add_u32 v{vW2s}, v{t+2}, 4, v{t+3}
v_add_u32 v{vW2s+1}, {7168*1}, v{vW2s}
v_add_u32 v{vW2s+2}, {7168*2}, v{vW2s}
v_add_u32 v{vW2s+3}, {7168*3}, v{vW2s}
v_lshrrev_b32 v{t+2}, 2, v{vL}
v_lshlrev_b32 v{t+2}, 7, v{t+2}
v_and_b32 v{t+3}, 3, v{vL}
v_lshl_add_u32 v{t+2}, v{t+3}, 3, v{t+2}
v_bfe_u32 v{t+3}, v{vL}, 3, 2
v_lshl_add_u32 v{t+2}, v{t+3}, 5, v{t+2}
s_add_u32 s{sT0}, s{sM}, {L_E}
v_add_u32 v{vTr}, s{sT0}, v{t+2}
s_sub_u32 s{sT0}, s{sM}, {L_E - L_U}
''')
    for j in range(4):
        if j:
            s(f'v_xor_b32 v{vTr+j}, {32*j}, v{vTr}')
        s(f'v_add_u32 v{vTr+4+j}, s{sT0}, v{vTr+j}')
    s(f'''
v_and_b32 v{t+4}, 1, v{vL}
v_lshrrev_b32 v{t+5}, 1, v{vN}
s_and_b32 s{sT0}, s{sWV}, 2
s_lshl_b32 s{sT0}, s{sT0}, 13
s_lshl_b32 s{sT2}, s{sBH}, 8
s_sub_u32 s{sT0}, s{sT0}, s{sT2}
s_add_u32 s{sT1}, s{sT0}, {56 + 256}
v_mul_u32_u24 v{vFa}, {PART + 128}, v{t+4}
v_lshl_add_u32 v{vFa}, v{vG}, 4, v{vFa}
v_lshlrev_b32 v{t+6}, 3, v{t+5}
v_sub_u32 v{vFa}, v{vFa}, v{t+6}
v_add_u32 v{vFa}, s{sT1}, v{vFa}
s_add_u32 s{sT1}, s{sT0}, {L_U + 512 - 192}
v_mul_u32_u24 v{vGa}, {PART + 32}, v{t+4}
v_lshl_add_u32 v{vGa}, v{vG}, 4, v{vGa}
v_lshl_add_u32 v{vGa}, v{t+5}, 6, v{vGa}
v_add_u32 v{vGa}, s{sT1}, v{vGa}
s_lshr_b32 s{sFUp}, s2, 5
s_lshl_b32 s{sFUp}, s{sFUp}, 9
s_add_u32 s{sFUp}, s{sFUp}, {FU}
v_and_b32 v{vPA}, 31, v{vL}
v_lshlrev_b32 v{vPA}, 4, v{vPA}
s_lshl_b32 s{sT0}, s{sCH}, 12
s_lshl_b32 s{sT1}, s{sBH}, 2
s_sub_u32 s{sT0}, s{sT0}, s{sT1}
s_add_u32 s{sUs}, s{sT0}, {WS_UT}
s_lshl_b32 s{sT1}, s{sBH}, 5
s_add_u32 s{sUm}, s{sP4}, s{sT1}
v_lshl_add_u32 v{vUz}, v{vL}, 3, s{sUm}
s_lshl2_add_u32 s{sT0}, s{sBH}, s{sUm}
v_mov_b32 v{vUz+1}, s{sT0}
''')
    return s


def setup_c():
    s = Seq()
    a, b = t + 4, t + 5
    s(f'''
s_lshl2_add_u32 s{sT3}, s{sTB2}, s{sWV}
s_lshl_b32 s{sFHp}, s{sT3}, 7
s_add_u32 s{sGs}, s{sFHp}, {WS_G}
s_add_u32 s{sFHp}, s{sFHp}, {FH}
s_lshl_b32 s{sT2}, s{sNB}, 7
v_lshrrev_b32 v{vBa}, 2, v{vPA}
v_add_u32 v{vBa}, s{sT2}, v{vBa}
v_lshlrev_b32 v{vGo}, 3, v{vN}
v_min_u32 v{vPA}, 6, v{vL}
v_lshlrev_b32 v{vPA}, 2, v{vPA}
s_lshl_b32 s{sO0}, s{sT3}, 14
s_add_u32 s{sO0}, s{sO0}, s{sT2}
v_add_u32 v{vL16+1}, 4096, v{vL16}
v_add_u32 v{vL16+2}, 8192, v{vL16}
v_add_u32 v{vL16+3}, 12288, v{vL16}
s_lshl4_add_u32 s{sT3}, s{sTB2}, s{sWV}
s_mul_i32 s{sT3}, s{sT3}, {14*1024}
s_add_u32 s{sT3}, s{sT3}, {WS_H}''')
    for sg in range(4):
        if sg < 3:
            s(f's_add_u32 s{sT2}, s{sWV}, {sg + 1}\ns_and_b32 s{sT2}, s{sT2}, 3')
        s(f's_mul_i32 s{sT2}, s{sT2 if sg < 3 else sWV}, {56*1024}\ns_add_u32 s{sH+sg}, s{sT2}, s{sT3}')
    s(f'''
v_xor_b32 v{a}, v{vL}, v{vG}
s_add_u32 s{sT2}, s{sM}, {L_E + 2*16384}
v_lshl_add_u32 v{vRa}, v{a}, 4, s{sT2}
v_and_b32 v{a}, 3, v{vL}
v_bfe_u32 v{b}, v{vL}, 2, 3
v_lshlrev_b32 v{b}, 1, v{b}
v_xor_b32 v{b}, v{b}, v{a}
v_lshl_add_u32 v{b}, v{a}, 4, v{b}
v_lshrrev_b32 v{a}, 5, v{vL}
v_lshl_add_u32 v{b}, v{a}, 6, v{b}
s_and_b32 s{sT2}, s{sWV}, 2
s_lshl2_add_u32 s{sT2}, s{sBH}, s{sT2}
s_lshl_b32 s{sT2}, s{sT2}, 12
s_add_u32 s{sT2}, s{sT2}, {L_E + 2*16384}
v_lshl_add_u32 v{vRa+1}, v{b}, 4, s{sT2}
v_xor_b32 v{vRa+2}, 16, v{vRa+1}
v_and_b32 v{a}, 0x380, v{vL16}
v_add_u32 v{vAo}, v{vL16}, v{a}
s_lshl1_add_u32 s{sAT}, s{sCH}, s{sBH}
s_lshl_b32 s{sAT}, s{sAT}, 12
s_add_u32 s{sAT}, s{sAT}, {WS_AT}
''')
    return s


def setup_e():
    s = Seq()
    a, b, c = t + 4, t + 5, t + 6
    s(f'''
s_add_u32 s{sT2}, s{sM}, {L_E}
v_add_u32 v{vPW}, s{sT2}, v{vL16}
s_lshl2_add_u32 s{sT0}, s{sNB}, s{sWV}
s_lshl_b32 s{sT0}, s{sT0}, 9
s_add_u32 s{sT0}, s{sT0}, s{sTB2}
s_lshl_b32 s{sT0}, s{sT0}, 8
s_add_u32 s{sAs}, s{sT0}, {WS_AT}
s_add_u32 s{sAs+1}, s{sAs}, 32768
s_add_u32 s{sAs+2}, s{sAs}, 65536
s_add_u32 s{sAs+3}, s{sAs}, 98304
v_lshlrev_b32 v{a}, 13, v{vG}
v_lshl_add_u32 v{vAs}, v{vN}, 4, v{a}''')
    for sg in range(3):
        s(f'''
s_sub_u32 s{sT0}, s{sM}, {4096 * (sg + 1)}
s_and_b32 s{sT0}, s{sT0}, 0x3000
s_add_u32 s{sT0}, s{sT0}, {L_E + 16384*sg}
v_add_u32 v{t+sg}, s{sT0}, v{vL16}''')
    s(f'''
v_bfe_u32 v{a}, v{vL}, 1, 2
v_lshrrev_b32 v{b}, 5, v{vL}
v_xor_b32 v{a}, v{a}, v{b}
v_lshlrev_b32 v{a}, 5, v{a}
v_lshl_add_u32 v{a}, v{vG}, 7, v{a}
v_and_b32 v{b}, 1, v{vL}
v_lshl_add_u32 v{a}, v{b}, 4, v{a}
v_and_b32 v{b}, 8, v{vL}
s_add_u32 s{sT2}, s{sM}, {L_E + 3*16384}
v_add3_u32 v{vAd}, v{a}, v{b}, s{sT2}
v_xor_b32 v{vAd+1}, 64, v{vAd}
v_and_b32 v{b}, 7, v{vL}
v_lshrrev_b32 v{c}, 3, v{vL}
v_lshlrev_b32 v{vOa}, 10, v{c}
v_lshl_add_u32 v{vOa}, v{b}, 4, v{vOa}
v_xor_b32 v{a}, v{vL}, v{c}
s_add_u32 s{sT2}, s{sM}, {L_E + 4*16384}
v_lshl_add_u32 v{vOr}, v{a}, 4, s{sT2}
v_lshrrev_b32 v{a}, 1, v{vG}
v_xor_b32 v{a}, v{a}, v{b}
v_lshlrev_b32 v{a}, 4, v{a}
v_lshl_add_u32 v{a}, v{vN}, 7, v{a}
v_and_b32 v{b}, 1, v{vG}
v_lshl_add_u32 v{a}, v{b}, 3, v{a}
v_add_u32 v{vOw}, s{sT2}, v{a}
v_xor_b32 v{vOw+1}, 32, v{vOw}
v_xor_b32 v{vOw+2}, 64, v{vOw}
v_xor_b32 v{vOw+3}, 96, v{vOw}
s_lshl_b32 s{sT0}, s{sWV}, 5
s_sub_u32 s{sT2}, {3*16384}, s{sM}
v_xor_b32 v{a}, s{sT0}, v{vTr}
v_add_u32 v{vAr}, s{sT2}, v{a}
s_add_u32 s{sO1}, s{sO0}, 8192
''')
    return s


def kgen(pkC, za, npb=40):
    s = Seq()
    live = {}
    vb = V.alloc(36, 2)
    pb = V.alloc(npb, 2)
    VV, VP, VZ = Regs('v', vb, vb + 36), Regs('v', pb, pb + 32), Regs('v', za, za + 32)
    pool = lambda nm: VP if nm[0] == 'p' else VZ if (nm[0] == 'z' and nm not in ('z128', 'z256', 'z512')) else VV

    def A(name, n=1):
        live[name] = (pool(name).alloc(n), n)
        return live[name][0]

    def F(*names):
        for nm in names:
            pool(nm).release(*live.pop(nm))

    P, canon, extra = {}, [], {}

    def cut(name):
        nonlocal s
        canon.extend(s.l)
        P[name], s = s, Seq()

    la, ai, cr, ci, ld, dsk = [vPAR + i for i in range(6)]
    LOG2E, LOG2E_LO, LN2 = 0x3fb8aa3b, 0x32a5705f, 0x3f317218
    s(f'''
s_lshr_b32 s{sT0}, s{sWV}, 1
s_lshl_b32 s{sT0}, s{sT0}, 4
s_lshr_b32 s{sDT}, s{sDT}, s{sT0}
s_lshr_b32 s{sDS}, s{sDS}, s{sT0}
v_lshlrev_b32 v{ld}, 16, s{sDT}
v_lshlrev_b32 v{dsk}, 16, s{sDS}
s_mov_b32 s{sT0}, {LOG2E:#x}
v_lshlrev_b32 v{la}, 16, v{la}''')
    for k, x in enumerate((la, ld)):
        s(f'v_mul_f32 v{t+2*k}, s{sT0}, v{x}')
    for k, x in enumerate((la, ld)):
        s(f'v_fma_f32 v{t+2*k+1}, v{x}, s{sT0}, -v{t+2*k}')
    for k, x in enumerate((la, ld)):
        s(f'v_exp_f32 v{t+2*k}, v{t+2*k}')
    for k, x in enumerate((la, ld)):
        s(f'v_fmamk_f32 v{t+2*k+1}, v{x}, {LOG2E_LO:#x}, v{t+2*k+1}')
    for k, x in enumerate((la, ld)):
        s(f'v_mul_f32 v{t+2*k+1}, {LN2:#x}, v{t+2*k+1}')
    for k, x in enumerate((la, ld)):
        s(f'v_fma_f32 v{t+2*k}, v{t+2*k}, v{t+2*k+1}, v{t+2*k}')
    for x in (ai, cr, ci):
        s(f'v_lshlrev_b32 v{x}, 16, v{x}')
    s(f'''
v_cvt_pk_bf16_f32 v{t}, v{t}, v{t+2}
v_and_b32 v{ld}, 0xffff0000, v{t}
v_lshlrev_b32 v{la}, 16, v{t}
''')
    val = lambda nm: live[nm][0]
    A('c0', 2)
    s(f'''
v_mul_f32 v{la}, v{la}, v{ld}
v_mul_f32 v{ai}, v{ai}, v{ld}
v_add_f32 v{ld}, v{ld}, v{ld}
v_mul_f32 v{la}, {f32(-1.4426950408889634)}, v{la}
v_mul_f32 v{ai}, 0.15915494, v{ai}
v_mul_f32 v{val('c0')}, v{cr}, v{ld}
v_mul_f32 v{val('c0')+1}, v{ci}, v{ld}
''')
    zs = (('z8', 8.0), ('z1', 1.0), ('z128', 128.0))
    for k, (nm, p) in enumerate(zs):
        A(nm, 2)
        s(f'v_mul_f32 v{t+2*k}, {f32(p)}, v{la}')
        s(f'v_mul_f32 v{t+2*k+1}, {f32(p)}, v{ai}')
    for k, (nm, p) in enumerate(zs):
        s(f'v_fract_f32 v{t+2*k+1}, v{t+2*k+1}')
        s(f'v_exp_f32 v{t+2*k}, v{t+2*k}')
    for k, (nm, p) in enumerate(zs):
        s(f'v_cos_f32 v{val(nm)}, v{t+2*k+1}')
        s(f'v_sin_f32 v{val(nm)+1}, v{t+2*k+1}')
    for k, (nm, p) in enumerate(zs):
        s(f'v_pk_mul_f32 {vr(val(nm),2)}, {vr(val(nm),2)}, {vr(t+2*k,2)} op_sel_hi:[1,0]')
    fr, acc = 160, 224
    s(f'''
s_lshl_b32 s{sT0}, s{sBH}, 6
s_sub_u32 s{sT0}, 64, s{sT0}
v_cmp_eq_u32 vcc, s{sT0}, v{vL}
v_accvgpr_write_b32 a{acc+1}, 0
v_accvgpr_write_b32 a{acc+2}, 0
v_cndmask_b32 v{dsk}, 0, v{dsk}, vcc
v_accvgpr_write_b32 a{acc+3}, 0
v_accvgpr_write_b32 a{acc}, v{dsk}
''')
    mode = {'pk': True}

    def pack(nm):
        p = A('p' + nm)
        s(f'v_cvt_pk_bf16_f32 v{p}, v{val(nm)}, {"-" if nm[0] == "z" else ""}v{val(nm)+1}')

    def mp(lst):
        for d, a, b in lst:
            A(d, 2)
        if mode['pk']:
            for d, a, b in lst:
                s(f'v_pk_mul_f32 {vr(val(d),2)}, {vr(val(a),2)}, {vr(val(b),2)} op_sel_hi:[1,0]')
            for d, a, b in lst:
                s(f'v_pk_fma_f32 {vr(val(d),2)}, {vr(val(a),2)}, {vr(val(b),2)}, {vr(val(d),2)} op_sel:[1,1,0] op_sel_hi:[0,1,1] neg_lo:[1,0,0]')
        else:
            for d, a, b in lst:
                s(f'v_mul_f32 v{val(d)}, v{val(a)}, v{val(b)}')
                s(f'v_mul_f32 v{val(d)+1}, v{val(a)+1}, v{val(b)}')
                s(f'v_fma_f32 v{val(d)}, -v{val(a)+1}, v{val(b)+1}, v{val(d)}')
                s(f'v_fmac_f32 v{val(d)+1}, v{val(a)}, v{val(b)+1}')
        for d, _, _ in lst:
            if d not in ('z256', 'z512'):
                pack(d)

    s(f'v_mov_b32 v{A("pz0")}, 0x3f80')
    pack('z8')
    pack('c0')
    lo_rounds = [[('z16', 'z8', 'z8'), ('z256', 'z128', 'z128')],
                 [('z24', 'z16', 'z8'), ('z32', 'z16', 'z16')],
                 [('z40', 'z8', 'z32'), ('z48', 'z16', 'z32')],
                 [('z56', 'z24', 'z32'), ('z64', 'z32', 'z32')],
                 [('z72', 'z40', 'z32'), ('z80', 'z48', 'z32')],
                 [('z88', 'z56', 'z32'), ('z96', 'z64', 'z32')],
                 [('z104', 'z72', 'z32'), ('z112', 'z80', 'z32'), ('z120', 'z88', 'z32')]]
    def wr(row, names):
        for k, nm in enumerate(names):
            s(f'ds_write_addtid_b32 v{val("p" + nm)} offset:{272*(row+k)}', m0=f's_mov_b32 m0, s{sP4}')
            extra[id(s.l[-1])] = ([f'row{row+k}'], [])

    def rd(tile):
        for ks in range(4):
            s(f'ds_read_b128 {ar(fr+16*tile+4*ks,4)}, v{vRR} offset:{(O_T if tile == 3 else 0) + 64*ks}')
            extra[id(s.l[-1])] = ([], [f'row{r + (16 if tile == 3 else 0)}' for r in range(16)])

    for r, lst in enumerate(lo_rounds):
        mp(lst + [(f'c{r+1}', f'c{r}', 'z1')])
        F(*{2: ['z8', 'z16'], 3: ['z24'], 4: ['z40', 'z48'], 5: ['z56', 'z64', 'z96']}.get(r, []))
    F('z1', 'z32', 'z72', 'z80', 'z88', 'z104', 'z112', 'z120')
    cut('A')
    wr(0, [f'z{8*b}' for b in range(16)])
    cut('wl')
    rd(0)
    cut('rl')
    mp([(f'c{128+o}', f'c{o}', 'z128') for o in range(4)])
    F('c1', 'c3', 'c129', 'c131')
    mp([(f'c{128+o}', f'c{o}', 'z128') for o in range(4, 8)])
    F('z128', 'c5', 'c7', 'c133', 'c135')
    cut('v0')
    F(*[f'pz{8*b}' for b in range(16)])
    t0 = [f'c{h}' for h in list(range(8)) + list(range(128, 136))]
    wr(0, t0)
    cut('w0')
    rd(1)
    cut('r0')
    mp([(f'c{256+o}', f'c{o}', 'z256') for o in (0, 2, 4, 6)])
    F('c0', 'c2', 'c4', 'c6', 'c258', 'c262')
    mp([(f'c{384+o}', f'c{128+o}', 'z256') for o in (0, 2, 4, 6)] + [('z512', 'z256', 'z256')])
    F('c128', 'c130', 'c132', 'c134', 'c386', 'c390')
    mp([(f'c{h+256}', f'c{h}', 'z256') for h in (256, 260, 384, 388)])
    mp([(f'c{h+512}', f'c{h}', 'z512') for h in (256, 260, 384, 388)])
    F('z256', 'c516', 'c644', 'c256', 'c260', 'c384', 'c388', 'c772', 'c900')
    cut('v1')
    wr(0, [f'c{h}' for h in (256, 258, 260, 262, 384, 386, 388, 390, 512, 516, 640, 644, 768, 772, 896, 900)])
    cut('w1')
    rd(2)
    cut('r1')
    F(*['p' + x for x in t0])
    mp([(f'c{h+512}', f'c{h}', 'z512') for h in (512, 640, 768, 896)])
    F('c512', 'c640', 'c768', 'c896')
    mp([(f'c{h+512}', f'c{h}', 'z512') for h in (1024, 1152, 1280, 1408)])
    F('c1024', 'c1152', 'c1280', 'c1408')
    mp([('c2048', 'c1536', 'z512')])
    cut('v2')
    wr(16, [f'c{1024 + 128*k}' for k in range(9)])
    cut('w2')
    rd(3)
    cut('r2')
    for k in range(3):
        for ks in range(4):
            c = ar(acc + 4 * k, 4)
            s(f'v_mfma_f32_16x16x32_bf16 {c}, {ar(fr+16*(k+1)+4*ks,4)}, {ar(fr+4*ks,4)}, {c if (ks or k == 0) else 0}')
    cut('mf')
    s(f'ds_write_b32 v{vEa+2}, v{vZ} offset:{699*4}')
    for k in range(6):
        o0, o1 = (0, 100) if k < 4 else (4 * (k - 4), 4 * (k - 4) + 2)
        s(f'ds_write2_b32 v{vTA+min(k,4)}, a{acc+2*k}, a{acc+2*k+1} offset0:{o0} offset1:{o1}')
    for k, it in enumerate(s.l):
        extra[id(it)] = ([f'row{25+k}'], [])
    cut('wt')
    gv, ov = vb, pb
    for i in range(9):
        for p in range(2):
            s(f'ds_read2st64_b32 {vr(gv+4*i+2*p,2)}, v{vGA+i} offset0:{17 + 32*p} offset1:{17 + 32*(2+p)}')
    cut('rc')
    for i in range(9):
        if pkC:
            s(f'v_pk_add_f32 {vr(gv+4*i,2)}, {vr(gv+4*i,2)}, {vr(gv+4*i+2,2)}')
        else:
            s(f'v_add_f32 v{gv+4*i}, v{gv+4*i}, v{gv+4*i+2}')
            s(f'v_add_f32 v{gv+4*i+1}, v{gv+4*i+1}, v{gv+4*i+3}')
    for c in range(2):
        for o in (1, 0):
            for k in range(4):
                a = gv + 4 * (2 * k + (1 - o)) + c
                s(f'v_cvt_pk_bf16_f32 v{ov+8*c+4*o+k}, v{a}, v{a+4}')
    cut('vc')
    for c in range(2):
        for o in (1, 0):
            s(f'ds_write_b128 v{vEa}, {vr(ov+8*c+4*o,4)} offset:{(2*c+o)*PART + 128*o}')
    s(f'ds_write_b128 v{vEa+1}, {vr(vZ2,4)} offset:4096')
    s(f'ds_write_b64 v{vUz}, {vr(vZ2,2)} offset:{L_U}')
    cut('wc')
    P['vb'], P['pb'] = vb, pb
    checks.append((canon, extra))
    return P


W2E = [2, 'A', 'B', 3, 0, 4, 1, 5, 2, 3, 0, 4, 1, 5]
W2DEP = {8: 0, 9: 3, 10: 4, 11: 5, 12: 6, 13: 7}


def w2_dma(ks):
    g = []
    e = W2E[ks]
    m0 = f's_add_u32 m0, s{sP4}, {L_U + 4096*"AB".index(e)}' if e in ('A', 'B') else f's_add_u32 m0, s{sM}, {L_E + 16384*e}'
    for i in range(4):
        s = Seq()
        if i == 0:
            if ks in W2DEP:
                s.wait(f'tr{W2DEP[ks]}')
            s(f's_add_u32 s{sW2l}, s{sW2l}, 32768')
        if OPT['skipw'] and ks >= 7:
            s('s_nop 0', tag=f'w2d{ks}')
        else:
            s(f'buffer_load_dwordx4 v{vW2s+i}, {srd(SW2)}, s{sW2l} offen offset:{1024*i} lds', tag=f'w2d{ks}', m0=m0)
        g.append(s)
    return g


def w2_tr(ks):
    g = []
    e = W2E[ks]
    win, off = (1, 4096 * 'AB'.index(e)) if e in ('A', 'B') else (e // 4, 16384 * (e % 4))
    for j in range(4):
        for hh in range(2):
            s = Seq()
            if j == 0 and hh == 0:
                s.wait(f'w2d{ks}')
            s(f'ds_read_b64_tr_b16 {ar(16*ks+4*j+2*hh,2)}, v{vTr+4*win+j} offset:{off + 2048*hh}', tag=f'tr{ks}')
            g.append(s)
    return g


def w2_window():
    return Seq()('\n'.join(f'v_add_u32 v{vTr+4+j}, 65536, v{vTr+j}' for j in range(4)))


def u_poll_issue():
    return Seq()(f'buffer_load_dword v{vPF}, v{vPA}, {srd(SWS)}, s{sFUp} offen sc1')


def u_dma():
    s = Seq()
    s(f'v_cmp_ne_u32 vcc, s{sNON}, v{vPF}')
    retry(s, 's_cbranch_vccnz', 's_cbranch_vccz', f'''
buffer_load_dword v{vPF}, v{vPA}, {srd(SWS)}, s{sFUp} offen sc1
s_waitcnt vmcnt(0)
v_cmp_ne_u32 vcc, s{sNON}, v{vPF}''')
    s.wait('tr2')
    for i in range(4):
        s(f'buffer_load_dwordx4 v{vL16}, {srd(SWS)}, s{sUs} offen offset:{1024*i} sc1 lds', tag='udma', m0=f's_add_u32 m0, s{sUm}, {L_U + 512}')
    return s


main = Seq()
vXr = V.alloc(2, 1)
vWr = V.alloc(4, 1)
vACC = V.alloc(64, 2)
vFR = V.alloc(32, 2)
aFR = 96
pro_body(main)
main(f'''
s_mul_i32 s{sT0}, s{sJ}, 9363
s_lshr_b32 s{sT0}, s{sT0}, 16
s_mul_i32 s{sT1}, s{sT0}, 7
s_sub_u32 s{sT1}, s{sJ}, s{sT1}
s_lshl2_add_u32 s{sTB2}, s{sXCD}, s{sT0}
s_cmp_ge_u32 s{sT1}, 3
s_addc_u32 s{sNB}, s{sT1}, 0
s_lshr_b32 s{sT2}, s{sXCD}, 1
s_and_b32 s{sT3}, s{sXCD}, 1
s_lshl2_add_u32 s{sT0}, s{sT2}, s{sT0}
s_lshl1_add_u32 s{sKC}, s{sT3}, s{sT2}
s_mul_i32 s{sT3}, s{sT3}, 7
s_add_u32 s{sT1}, s{sT1}, s{sT3}
s_lshl_b32 s{sKC}, s{sKC}, 4
s_and_b32 s{sKC}, s{sKC}, {63 if OPT['rot'] else 0}
s_lshr_b32 s{sT3}, s{sWV}, 1
s_lshl1_add_u32 s{sTB1}, s{sT0}, s{sBH}
s_lshl1_add_u32 s{sCB1}, s{sT1}, s{sT3}
s_lshl2_add_u32 s{sXb}, s{sT0}, s{sWV}
s_lshl_b32 s{sXb}, s{sXb}, 15
s_mul_i32 s{sWb}, s{sWV}, {16*3584}
s_lshl_b32 s{sT1}, s{sT1}, 8
s_add_u32 s{sWb}, s{sWb}, s{sT1}
v_and_b32 v{t+1}, 7, v{vL}
v_xor_b32 v{t}, v{vG}, v{t+1}
v_lshrrev_b32 v{t+1}, 3, v{vL}
v_lshlrev_b32 v{t+1}, 10, v{t+1}
v_lshl_add_u32 v{vXs}, v{t}, 4, v{t+1}
v_xor_b32 v{t}, 64, v{vXs}
v_add_u32 v{vXs+1}, 7168, v{t}
v_add_u32 v{vXs+2}, {2*7168}, v{vXs}
v_add_u32 v{vXs+3}, {3*7168}, v{t}
v_lshlrev_b32 v{t}, 2, v{vG}
v_xor_b32 v{t}, v{t}, v{vN}
v_mul_u32_u24 v{t+1}, 3584, v{vG}
v_lshl_add_u32 v{vWs}, v{t}, 4, v{t+1}
''')
main(f'''
v_add_u32 v{vWs+1}, {4*3584 - 1024}, v{vWs}
v_xor_b32 v{t}, 2, v{t}
v_lshl_add_u32 v{t}, v{t}, 4, v{t+1}
v_add_u32 v{vWs+2}, {(4*3584 - 1024)*2}, v{t}
v_add_u32 v{vWs+3}, {(4*3584 - 1024)*3}, v{t}''')


def stage_loads(st):
    g = []
    last = 0 if OPT['wf'] else 1
    for isw in (1 - last, last):
        for i in range(4):
            s = Seq()
            if i == 0:
                if isw:
                    s(f's_mul_i32 s{sWk}, s{sKC}, {8*3584}')
                    s(f's_add_u32 s{sWk}, s{sWk}, s{sWb}')
                else:
                    s(f's_lshl4_add_u32 s{sXk}, s{sKC}, s{sXb}')
            m0 = f's_add_u32 m0, s{sM}, {(L_W if isw else L_X) + 16384*(st % 4)}'
            if isw:
                s(f'buffer_load_dwordx4 v{vWs+i}, {srd(SW1)}, s{sWk} offen offset:{1024*i} lds', tag=f'st{st}', m0=m0)
            else:
                s(f'buffer_load_dwordx4 v{vXs+i}, {srd(SX)}, s{sXk} offen offset:{1024*i} lds', tag=f'st{st}', m0=m0)
            if isw == last and i == 1:
                s(f's_add_u32 s{sKC}, s{sKC}, 8')
            if isw == last and i == 2:
                s(f's_and_b32 s{sKC}, s{sKC}, 63')
            g.append(s)
    return g


LS = [g for st in range(8) for g in stage_loads(st)]
main(f's_or_b32 s{sT0}, s2, s{sWV}')
main('s_waitcnt lgkmcnt(0)')
stamp(main, 'karg')
main(f'''
s_cmp_eq_u32 s{sT0}, 0
s_cbranch_scc1 Lnonce
Lnonce_back:''')
outline.append(f'''Lnonce:
    s_memrealtime s[{sHst}:{sHst2}]
    s_waitcnt lgkmcnt(0)
    s_or_b32 s{sHst}, s{sHst}, 1
    s_atomic_swap s{sHst}, {ptr(P_DBG)}, 0
    s_branch Lnonce_back
''')
L_UT = L_W + 3 * 16384
param_loads(main)
main.add(ut_loads(L_UT))
scalar_params(main)
NE, NK = OPT['early'], OPT['nk']
su = Seq()
su(f'''
v_lshrrev_b32 v{t+1}, 1, v{vN}
v_xor_b32 v{t+1}, v{t+1}, v{vG}
s_lshl_b32 s{sT0}, s{sBH}, 13
s_add_u32 s{sT0}, s{sT0}, {L_X}
v_lshl_add_u32 v{t}, v{vN}, 7, s{sT0}
v_lshl_add_u32 v{vXr}, v{t+1}, 4, v{t}
v_xor_b32 v{vXr+1}, 64, v{vXr}
v_bfe_u32 v{t}, v{vL}, 2, 2
v_lshl_add_u32 v{t+1}, v{vG}, 3, v{t}
v_lshlrev_b32 v{t+1}, 8, v{t+1}
v_and_b32 v{t+2}, 3, v{vL}
v_lshl_add_u32 v{t+1}, v{t+2}, 3, v{t+1}
v_add_u32 v{t+1}, {L_W}, v{t+1}
v_and_b32 v{t+2}, 1, v{vG}
v_lshl_add_u32 v{t}, v{t}, 1, v{t+2}
s_and_b32 s{sT0}, s{sWV}, 2
s_lshl_b32 s{sT0}, s{sT0}, 1
v_xor_b32 v{t}, s{sT0}, v{t}
v_lshl_add_u32 v{vWr}, v{t}, 5, v{t+1}
v_xor_b32 v{vWr+1}, 32, v{vWr}
v_xor_b32 v{vWr+2}, 64, v{vWr}
v_xor_b32 v{vWr+3}, 96, v{vWr}
''')
sk = setup_k()
su.add(sk.l[:3] if OPT['kf'] else sk.l)
sa = setup_a()
ntouch = OPT['touch'] + OPT['tlb'] + OPT['c3'] + OPT['t1'] + OPT['c3x']
su.add(setup_g())
su.add(ut_setup(L_UT))
su.add(sa.l[:len(sa) - ntouch])
main.add(cat(LS[:4]))
main.add(sprinkle(su, LS[4:NE], 0, 12 * (NE - 4)))
if OPT['iw']:
    main(';IWARM main')
stamp(main, 'setup')
TL = OPT['tl']
K = kgen(TL > 0, vACC)
vTS = K['pb'] + 16


def kgen_seq(K, f=()):
    s = Seq()
    wl, w0, w1 = chunks(K['wl'], 4), chunks(K['w0'], 4), chunks(K['w1'], 4)
    v0, v1, v2 = K['v0'].l, K['v1'].l, K['v2'].l
    s.add(K['A']).add(wl[0]).add(wl[1]).add(v0[:6]).add(wl[2]).add(wl[3]).add(v0[6:20]).add(K['rl']).add(v0[20:])
    s.add(w0[0]).add(v1[:8]).add(w0[1]).add(v1[8:16]).add(w0[2]).add(v1[16:24]).add(w0[3]).add(v1[24:40])
    s.add(K['r0']).add(v1[40:])
    s.add(w1[0]).add(v2[:8]).add(w1[1]).add(v2[8:16]).add(w1[2]).add(v2[16:24]).add(w1[3]).add(v2[24:])
    s.add(list(f)[:2]).add(K['w2'])
    mf, wt = K['mf'].l, K['wt'].l
    f = list(f)
    s.add(mf[:4]).add(f[13:25]).add(K['r1']).add(K['r2']).add(f[25:]).add(mf[4:]).add(f[2:13]).add(wt)
    return s


ka = kgen_seq(K, sk.l[3:] if OPT['kf'] else ())
ua, ub = ut_work(vFR)
tch = sa.l[len(sa) - ntouch:] if ntouch else []
UA = OPT['ua']
ka.l[UA + 60:UA + 60] = nonce_issue().l
ka.l[UA + 40:UA + 40] = ub.l[-1:]
ka.l[UA + 24:UA + 24] = ub.l[:-1]
ka.l[UA:UA] = ua.l
for k, x in enumerate(tch):
    pos = OPT['te'] + 10 * (len(tch) - k) if OPT['te'] else UA - 12 * (k + 1)
    ka.l[pos:pos] = [x]
if OPT['stamps'] == 3:
    for pos, nm in ((len(ka) - OPT['res'], 'kC'), (170, 'kB'), (60, 'kA'), (8, 'bar')):
        x = Seq()
        stamp(x, nm, 3)
        ka.l[pos:pos] = x.l
    stamp_names[-4:] = stamp_names[:-5:-1]
wt_late = []
if OPT['wtl']:
    wt_late, ka.l = ka.l[-7:], ka.l[:-7]
NM = max(OPT['nm'], NE)
ka = sprinkle(ka, LS[NM:NK], len(ka) - OPT['res'], len(ka) - (0 if OPT['wtl'] else 7))
main.add(sprinkle(ka, LS[NE:NM], 9, 9 + OPT['nms'] * (NM - NE)))
stamp(main, 'kgenA')


def g1_reads(st, ks):
    o = 16384 * (st % 4)
    b = aFR + 32 * ks
    A = [[f'ds_read_b64_tr_b16 {ar(b+4*k+2*hh,2)}, v{vWr+k} offset:{o + ks*8192 + hh*1024}' for hh in range(2)] for k in range(4)]
    B = [f'ds_read_b128 {ar(b+16+4*k,4)}, v{vXr+ks} offset:{o + k*2048}' for k in range(4)]
    return A[0] + B[::-1] + A[1] + A[2] + A[3]


SNAKE = [(ft, tt if ft % 2 == 0 else 3 - tt) for ft in range(4) for tt in range(4)]


def g1_mfma(st, ks):
    b = aFR + 32 * ks
    r = []
    for ft, tt in SNAKE:
        a = vr(vACC + 16 * tt + 4 * ft, 4)
        r.append(f'v_mfma_f32_16x16x32_bf16 {a}, {ar(b+4*ft,4)}, {ar(b+16+4*tt,4)}, {0 if (st == 0 and ks == 0) else a}')
    return r


pc_addr = Seq()
pc_addr(f'''
v_lshl_add_u32 v{t}, v{vN}, 4, s{sP4}
s_lshl_b32 s{sT0}, s{sCB1}, 10
s_add_u32 s{sT0}, s{sT0}, {WS_FP}
s_lshl_b32 s{sT1}, s{sTB1}, 10
s_add_u32 s{sT4}, s{sT1}, {WS_TS - 2048}
s_add_u32 s{sT1}, s{sT1}, {WS_TP - 1024}''')
pc_m0 = f's_add_u32 m0, s{sP4}, {O_T}'
pc_ld = [f'buffer_load_dwordx4 v{vL16}, {srd(SWS)}, s{(sT0, sT1, sT4)[w]} offen offset:{1024*w} sc1 lds' for w in range(3)]
pcr = [vFR + 4 * k for k in range(8)] + [vTS + 4 * k for k in range(4)]
pc_rd = [f'ds_read_b128 {vr(r,4)}, v{t} offset:{O_T + 256*k}' for k, r in enumerate(pcr)]
pc_cmp = [f'v_xor_b32 v{r+3}, s{sNON}, v{r+3}' for r in pcr]
pc_cmp += [f'v_or3_b32 v{t+1}, v{pcr[0]+3}, v{pcr[1]+3}, v{pcr[2]+3}']
pc_cmp += [f'v_or3_b32 v{t+1}, v{t+1}, v{pcr[k]+3}, v{pcr[min(k+1, 11)]+3}' for k in range(3, 12, 2)]
pc_cmp += [f'v_cmp_ne_u32 vcc, 0, v{t+1}']
pc_chk = [Seq()(x) for x in pc_cmp]
retry(pc_chk[-1], 's_cbranch_vccnz', 's_cbranch_vccz',
      '\n'.join([f's_mov_b32 s{sXk}, m0', pc_m0, 's_nop 0'] + pc_ld + ['s_waitcnt vmcnt(0)'] + pc_rd
                + [f's_mov_b32 m0, s{sXk}', 's_waitcnt lgkmcnt(0)'] + pc_cmp))
sHs = (sHst, sHst2, sXb, sWb)
hadr = Seq()
hadr(f'''
s_mul_i32 s{sHst}, s{sTB1}, {4*56}
s_lshl1_add_u32 s{sHst}, s{sCB1}, s{sHst}
s_lshl_b32 s{sHst}, s{sHst}, 10
s_add_u32 s{sHst}, s{sHst}, {WS_H}
s_add_u32 s{sHst2}, s{sHst}, {56*1024}
s_add_u32 s{sXb}, s{sHst}, {2*56*1024}
s_add_u32 s{sWb}, s{sHst}, {3*56*1024}
s_mul_i32 s{sT2}, s{sCB1}, 9363
s_lshr_b32 s{sT2}, s{sT2}, 16
s_mul_i32 s{sT3}, s{sT2}, 7
s_sub_u32 s{sT3}, s{sCB1}, s{sT3}
s_lshl2_add_u32 s{sFH}, s{sTB1}, s{sT2}
s_lshl_b32 s{sFH}, s{sFH}, 7
s_lshl2_add_u32 s{sFH}, s{sT3}, s{sFH}
s_add_u32 s{sFH}, s{sFH}, {FH}
''')
assert HS == 1

G = Gaps([x for st in range(8) for ks in range(2) for x in g1_mfma(st, ks)] +
         [f'v_mfma_f32_16x16x32_bf16 {vr(vACC+16*tt+4*ft,4)}, {vr(vFR+4*ft,4)}, {vr(vFR+16+4*tt,4)}, {vr(vACC+16*tt+4*ft,4)}'
          for tt in range(4) for ft in range(4)], cap=8, maxlds=1)
BG = 19
for st in range(8):
    b = 32 * st
    G.put(b + BG, bar(f'rd{st}', *([f'st{st+1}', 'utst'] if st < 7 else [])))
    for k, x in enumerate(g1_reads(st, 1)):
        G.put(b + k, Seq()(x, tag=f'rd{st}'))
    if st < 7:
        for k, x in enumerate(g1_reads(st + 1, 0)):
            G.put(b + BG + 1 + k, x)
    for g in (3, 7, 15, 31):
        G.reserve(b + g, 4)
LG = sorted((21, 25, 29, 1, 5, 9, 13, 17, 23, 11, 27)[:OPT['lst']])
lg = [g for g in range(272) if g % 32 in LG]
for i in range(NK, 64):
    while lg[0] <= 32 * (i // 8 - 4) + BG:
        lg.pop(0)
    last_ld = lg.pop(0)
    assert last_ld < 32 * (i // 8 - 1) + BG
    G.put(last_ld, LS[i])
if TL:
    for st in (1, 2):
        G.put(32 * st + 13, f'ds_read_b32 v{vPF}, v{vZ}')
else:
    for k, g_ in enumerate(singles(K['rc'])):
        G.put(32 * (1 + k // 6) + 12 + k % 6, g_)
G.put(BG + 1, nonce_check())
G.put(BG + 3, fu_flag())
lg = [g for g in range(max(last_ld + 1, 32 * 4 + BG + 1), 272) if g % OPT['lq'] == 1]
wat = {}
for ks in (0, 'p', 1, 2, 'u', 3, 4, 5):
    grp = [Seq()(x, tag='pcd', m0=pc_m0) for x in pc_ld] if ks == 'p' else [u_poll_issue()] if ks == 'u' else w2_dma(ks)
    while lg[0] <= {1: 32 * 5 + BG, 4: 32 * 6 + BG, 'p': OPT['pcg']}.get(ks, 0):
        lg.pop(0)
    for g_ in grp:
        wat[ks] = lg.pop(0)
        G.put(wat[ks], g_)
print('late loads', wat)
G.fill(w2_tr(0), 204, 212)
pr = [Seq()(x) for x in pc_rd]
pr[0] = Seq().wait('pcd').add(pr[0])
G.fill(pr, 236, 248)
G.fill(w2_tr(1) + w2_tr(2), 248, 266)
G.put(268, w2_window())
G.fill(pc_chk, 243, 255)
p = G.spread(singles(setup_b()), 24, 128)
p = G.spread(singles(pc_addr) + ([] if TL else singles(K['vc'])), 128, 200)
assert p[len(pc_addr) - 1] < wat['p'] - 9
p2 = G.spread(singles(hadr), 200, 236)
print('gemm1 over', G.over(), 'last load gap', last_ld, p[-1], p2[-1])
main.add(bar('st0'))
stamp(main, 'b0', 5)
for x in g1_reads(0, 0):
    main(x)
if not TL:
    main.add(wt_late)
for st in range(8):
    if OPT['stamps'] == 5 and st in (0, 1, 6, 7):
        for lo, hi in ((0, 1), (1, 10), (10, 19), (19, 21), (21, 32)):
            main.add(G.emit(32 * st + lo, 32 * st + hi))
            if hi < 32:
                stamp(main, f's{st}_{hi}', 5)
    else:
        main.add(G.emit(32 * st, 32 * st + 32))
    stamp(main, f'g1s{st}', 1 if st in (3, 7) else 2)
main.add(G.emit(256))
delay(main, (4,))
q = vTS + 16
gx = {k: [] for k in range(8)}
wc = singles(K['wc'])
if TL:
    vc, wl_ = K['vc'].l, K['wc'].l
    gx[TL] += [Seq().add(wt_late).add(wl_[4:])]
    gx[min(TL + 1, 7)] += [bar('*lds'), K['rc']]
    gx[min(TL + 2, 7)] += [Seq().add(vc[:13]).add(wl_[:1]).add(vc[13:17]).add(wl_[1:2]).add(vc[17:21]).add(wl_[2:3]).add(vc[21:]).add(wl_[3:4])]
else:
    gx[6] += wc[:3]
    gx[7] += wc[3:]
ud = u_dma()
gl_ = [Seq().add(ud.l[:-3])] + singles(Seq().add(ud.l[-3:])) + [g for k in range(6, 6 + OPT['ng']) for g in w2_dma(k)]
pre_gelu, main = main, Seq()
for ti in range(4):
    P = vTS + 4 * ti
    for hh in range(2):
        a = vACC + 16 * ti + 8 * hh
        for k in range(4):
            main(f'v_pk_mul_f32 {vr(q+2*k,2)}, {vr(a+2*k,2)}, {vr(a+2*k,2)}')
        for k in range(4):
            main(f'v_pk_fma_f32 {vr(q+2*k,2)}, {vr(q+2*k,2)}, {vr(P,2)}, {vr(P,2)} op_sel:[0,1,0] op_sel_hi:[1,1,0]')
        for k in range(4):
            main(f'v_pk_mul_f32 {vr(q+2*k,2)}, {vr(q+2*k,2)}, {vr(a+2*k,2)}')
        for k in range(8):
            main(f'v_exp_f32 v{q+k}, v{q+k}')
        for k in range(4):
            main(f'v_pk_fma_f32 {vr(q+2*k,2)}, {vr(q+2*k,2)}, {vr(P+2,2)}, {vr(P+2,2)} op_sel_hi:[1,0,0]')
        for k in range(8):
            main(f'v_rcp_f32 v{q+k}, v{q+k}')
        for k in range(4):
            main(f'v_pk_mul_f32 {vr(q+2*k,2)}, {vr(q+2*k,2)}, {vr(a+2*k,2)}')
        for k in range(4):
            main(f'v_cvt_pk_bf16_f32 v{a+k}, v{q+2*k}, v{q+2*k+1}')
        main(f'buffer_store_dwordx4 {vr(a,4)}, v{vL16}, {srd(SWS)}, s{sHs[ti]} offen offset:{1024*hh} sc1', tag='hst')
        main.add(cat(gx[2 * ti + hh]))
        stamp(main, f'ge{2*ti+hh}', 3)
main = pre_gelu.add(sprinkle(main, gl_, OPT['gs0'], OPT['gs0'] + OPT['gsp'] * len(gl_)))
stamp(main, 'gelu')
for b, n in ((vXr, 2), (vWr, 4), (vACC, 64), (vFR, 32), (K['vb'], 36), (K['pb'], 40)):
    V.release(b, n)

sp = Seq()
sp('Lspare:')
pro_body(sp)
vS = vXs
vB1 = vXs + 6
L_SX, L_SW, L_SG = 32768, 98304, 16384
sp(f'''
s_sub_u32 s{sT4}, s{sJ}, 28
s_lshl2_add_u32 s{sTB1}, s{sXCD}, s{sT4}
s_lshl2_add_u32 s{sXb}, s{sTB1}, s{sWV}
s_lshl_b32 s{sXb}, s{sXb}, 14
s_lshl_b32 s{sT1}, s{sWV}, 2
v_and_b32 v{t}, 31, v{vL}
v_xor_b32 v{t}, s{sT1}, v{t}
v_lshrrev_b32 v{t+1}, 5, v{vL}
v_lshlrev_b32 v{t+1}, 10, v{t+1}
v_lshl_add_u32 v{vS}, v{t}, 4, v{t+1}
v_xor_b32 v{vS+1}, 32, v{vS}
s_waitcnt lgkmcnt(0)
''')
stamp(sp, 'karg')
scalar_params(sp)
wl, xl = [], []
for i in range(4):
    s = Seq()
    s(f's_add_u32 s{sWb}, s{sWb}, {32*3584}')
    for r in range(4):
        s(f'buffer_load_dwordx4 v{vS+2+r}, {srd(SW1)}, s{sWb} offen offset:{1024*r} lds', tag='spw', m0=f's_lshl2_add_u32 m0, s{sM}, {L_SW + 4096*i}')
    wl.append(s)
xs = []
for h in range(2):
    for i in range(8):
        s = Seq()
        s(f's_add_u32 s{sXk}, s{sXb}, {512*h + 2048*i - 1024*(i%4)}')
        s(f'buffer_load_dwordx4 v{vS + i//4}, {srd(SX)}, s{sXk} offen offset:{1024*(i%4)} lds', tag=f'spx{h}',
          m0=f's_add_u32 m0, s{sP4}, {L_SX + 32768*h + 4096*(i//4)}')
        xs.append(s)
L_ST = 16384 + 8192
sp.add(ut_loads(L_ST))
param_loads(sp)
sp.add(cat(xs[:2]))
sp_head, sp = sp, Seq()
vSa = V.alloc(10, 1)
o = V.alloc(8, 2)
vF1 = V.alloc(48, 2)
vD = V.alloc(16, 2)
vONE = V.alloc(4, 2)
vTOK = t + 7
sp(f'''
s_lshr_b32 s{sT1}, s{sXCD}, 1
s_lshl2_add_u32 s{sT0}, s{sT1}, s{sT4}
s_min_u32 s{sT0}, s{sT0}, 13
s_and_b32 s{sT1}, s{sXCD}, 1
s_mul_i32 s{sT1}, s{sT1}, 14
s_add_u32 s{sCB1}, s{sT0}, s{sT1}
s_lshl_b32 s{sT2}, s{sCB1}, 7
s_lshl_b32 s{sT0}, s{sWV}, 5
s_add_u32 s{sT0}, s{sT0}, s{sT2}
v_lshl_add_u32 v{vB1}, v{vN}, 1, s{sT0}
v_lshlrev_b32 v{t}, 1, v{vG}
v_and_b32 v{t+1}, 7, v{vL}
v_xor_b32 v{t}, v{t}, v{t+1}
v_lshrrev_b32 v{t+1}, 3, v{vL}
v_mul_u32_u24 v{t+1}, 3584, v{t+1}
v_lshl_add_u32 v{vS+2}, v{t}, 4, v{t+1}
v_add_u32 v{vS+3}, {(8*3584-1024)*1}, v{vS+2}
v_add_u32 v{vS+4}, {(8*3584-1024)*2}, v{vS+2}
v_add_u32 v{vS+5}, {(8*3584-1024)*3}, v{vS+2}
s_mul_i32 s{sWb}, s{sWV}, {128*3584}
s_add_u32 s{sWb}, s{sWb}, s{sT2}
s_sub_u32 s{sWb}, s{sWb}, {32*3584}
s_mov_b32 s{sFH}, {FDUMMY}
s_mov_b32 s{sTB2}, s{sTB1}
s_mov_b32 s{sNB}, 3
v_and_b32 v{t}, 7, v{vN}
v_lshrrev_b32 v{t+1}, 3, v{vN}
v_lshl_add_u32 v{t+1}, v{t}, 3, v{t+1}
s_lshl_b32 s{sT0}, s{sWV}, 1
v_add_u32 v{vTOK}, s{sT0}, v{t+1}
v_lshlrev_b32 v{t}, 1, v{t}
v_xor_b32 v{t}, v{t}, v{vG}
v_lshlrev_b32 v{t+1}, 9, v{vTOK}
v_add_u32 v{t+1}, {L_SX}, v{t+1}
v_lshlrev_b32 v{vSa+4}, 4, v{vG}
v_add_u32 v{vSa+4}, {L_SG}, v{vSa+4}
''')
for k in range(4):
    sp(f'v_xor_b32 v{vSa+k}, {4*k}, v{t}')
    sp(f'v_lshl_add_u32 v{vSa+k}, v{vSa+k}, 4, v{t+1}')
    sp(f'v_mov_b32 v{vONE+k}, 0x3f803f80')
sp(f'''
v_lshrrev_b32 v{t}, 2, v{vL}
v_bfe_u32 v{t+1}, v{vL}, 3, 2
v_xor_b32 v{t+1}, s{sWV}, v{t+1}
v_lshlrev_b32 v{t}, 7, v{t}
v_lshl_add_u32 v{t}, v{t+1}, 5, v{t}
v_and_b32 v{t+1}, 3, v{vL}
v_lshl_add_u32 v{t}, v{t+1}, 3, v{t}
v_add_u32 v{vSa+5}, {L_SW}, v{t}
v_lshrrev_b32 v{t}, 2, v{vN}
v_cmp_eq_u32 vcc, v{t}, v{vG}
v_lshlrev_b32 v{t}, 4, v{vTOK}
v_mov_b32 v{t+4}, 0x7ff00000
v_cndmask_b32 v{vSa+9}, v{t+4}, v{t}, vcc
s_lshl_b32 s{sT0}, s{sTB1}, 10
s_add_u32 s{sHst2}, s{sT0}, {WS_TS}
s_add_u32 s{sHst}, s{sT0}, {WS_TP}
''')
sa = setup_a()
sp.add(sa.l[:9])
sp.add(ut_setup(L_ST))
sp.add(setup_k())
sp = sp_head.add(sprinkle(sp, xs[2:9], 0, 100))
K = kgen(True, vF1, 32)
ua, ub = ut_work(vF1 + 32)
rest = cat(wl)
rest(f'global_load_ushort v{vB1}, v{vB1}, {ptr(P_B1)}')
rest(f'global_load_lds_dwordx4 v{vL16}, {ptr(P_GW)}', tag='spw', m0=f's_mov_b32 m0, {L_SG}')
rest = singles(rest)
sp.add(ua)
sp.add(sprinkle(cat([K['A'], setup_g()]), xs[9:] + [nonce_issue()] + rest[:10], 0, 215))
if OPT['iw']:
    sp(';IWARM spare')
sp.add(bar('spx1'))
stamp(sp, 'setup')
aX = 64
Gs = Gaps([f'v_mfma_f32_16x16x32_bf16 {vr(vD+4*k,4)}, {a}, {ar(aX+4*s_,4)}, {vr(vD+4*k,4) if s_ else 0}'
           for s_ in range(16) for k, a in enumerate((ar(aX + 4 * s_, 4), vr(vONE, 4)))], cap=8, maxlds=1)
rds = [Seq()(f'ds_read_b128 {ar(aX+4*s_,4)}, v{vSa+s_%4} offset:{32768*(s_//8) + 256*((s_//4)%2)}') for s_ in range(16)]
sp.add(cat(rds[:5]))
Gs.fill(rds[5:], 0, 32)
Gs.fill(rest[10:], 0, 32, step=2)
sp.add(Gs.emit())
sp.add(ub)
sp.add(nonce_check())
C0 = -2.0 * math.sqrt(2.0 / math.pi) * math.log2(math.e)
C1 = C0 * 0.044715
sp(f'''
v_and_b32 v{t}, 1, v{vL}
v_cmp_eq_u32 vcc, 1, v{t}
v_and_b32 v{t}, 2, v{vL}
v_cmp_eq_u32 s[{sT0}:{sT1}], 2, v{t}
v_cndmask_b32 v{vD}, v{vD}, v{vD+1}, vcc
v_cndmask_b32 v{vD+2}, v{vD+2}, v{vD+3}, vcc
v_cndmask_b32 v{vD}, v{vD}, v{vD+2}, s[{sT0}:{sT1}]
v_mul_f32 v{vD+4}, {f32(1/512)}, v{vD+4}
v_mul_f32 v{vD}, {f32(1/512)}, v{vD}
v_fma_f32 v{vD}, -v{vD+4}, v{vD+4}, v{vD}
v_mul_f32 v{vD+4}, 0x3e800000, v{vD+4}
v_cvt_pk_bf16_f32 v{o}, -v{vD+4}, -v{vD+4}
v_max_f32 v{vD}, 0, v{vD}
v_add_f32 v{vD}, {f32(1e-5)}, v{vD}
v_and_b32 v{vD+6}, 0xffff0000, v{o}
v_sqrt_f32 v{o+6}, v{vD}
v_rsq_f32 v{vD+1}, v{vD}
v_add_f32 v{vD+6}, v{vD+6}, v{vD+4}
v_mul_f32 v{o+4}, {f32(C0)}, v{vD+1}
v_mul_f32 v{vD+2}, v{vD+1}, v{vD+1}
v_mul_f32 v{o+5}, {f32(C1)}, v{vD+1}
v_mul_f32 v{o+5}, v{o+5}, v{vD+2}
v_mul_f32 v{vD+7}, 0x3e800000, v{o+6}
v_cvt_pk_bf16_f32 v{vD+5}, v{vD+7}, v{vD+7}
v_and_b32 v{vD+5}, 0xffff0000, v{vD+5}
v_sub_f32 v{vD+7}, v{vD+7}, v{vD+5}
v_cvt_pk_bf16_f32 v{o+1}, -v{vD+6}, v{vD+5}
v_cvt_pk_bf16_f32 v{o+2}, v{vD+7}, v{vZ}
v_mov_b32 v{o+3}, s{sNON}
v_mov_b32 v{o+7}, s{sNON}
buffer_store_dwordx4 {vr(o,4)}, v{vSa+9}, {srd(SWS)}, s{sHst} offen sc1
buffer_store_dwordx4 {vr(o+4,4)}, v{vSa+9}, {srd(SWS)}, s{sHst2} offen sc1
''')
stamp(sp, 'kgenA')
sp.add(sa.l[9:])
sp.add(bar('spw'))
Gs = Gaps([f'v_mfma_f32_16x16x32_bf16 {vr(vD+12,4)}, {vr(vONE,4)}, {ar(4*s_,4)}, {vr(vD+12,4) if s_ else 0}' for s_ in range(16)], cap=8)
rdw = [Seq()(f'ds_read_b64_tr_b16 {ar(2*s_,2)}, v{vSa+5} offset:{2048*s_}') for s_ in range(32)]
rdw += [Seq()(f'ds_read_b128 {ar(128+4*s_,4)}, v{vSa+4} offset:{64*s_}') for s_ in range(16)]
sp.add(cat(rdw[:16]))
Gs.fill(rdw[16:], 0, 16)
sp.add(Gs.emit())
sp(f'''
v_cmp_gt_u32 vcc, 16, v{vL}
v_mov_b32 v{t+2}, 0x7ff00000
s_lshl2_add_u32 s{sT0}, s{sCB1}, s{sWV}
s_lshl_b32 s{sT0}, s{sT0}, 8
s_add_u32 s{sT0}, s{sT0}, {WS_FP}
v_cndmask_b32 v{t}, v{t+2}, v{vL16}, vcc
v_mov_b32 v{o+2}, v{vB1}
v_cvt_pk_bf16_f32 v{o+1}, v{vD+12}, v{vZ}
v_lshlrev_b32 v{t+3}, 16, v{o+1}
v_lshl_or_b32 v{o+1}, v{vB1}, 16, v{o+1}
v_sub_f32 v{t+4}, v{vD+12}, v{t+3}
v_cvt_pk_bf16_f32 v{o}, v{t+3}, v{t+4}
buffer_store_dwordx4 {vr(o,4)}, v{t}, {srd(SWS)}, s{sT0} offen sc1
''')
stamp(sp, 'g1s3')
gate = Seq()
for s_ in range(16):
    gate(f'v_mfma_f32_16x16x32_bf16 {vr(vD+8,4)}, {ar(128+4*s_,4)}, {ar(aX+4*s_,4)}, {vr(vD+8,4) if s_ else 0}')
sp.add(gate)
sp(f'''
s_lshl_b32 s{sT2}, s{sTB1}, 9
s_add_u32 s{sT2}, s{sT2}, {WS_G}
v_lshrrev_b32 v{t+1}, 1, v{vSa+9}
v_mul_f32 v{vD+8}, {f32(-math.log2(math.e))}, v{vD+8}
v_exp_f32 v{vD+8}, v{vD+8}
v_add_f32 v{vD+8}, 1.0, v{vD+8}
v_rcp_f32 v{o+6}, v{vD+8}
buffer_store_dwordx2 {vr(o+6,2)}, v{t+1}, {srd(SWS)}, s{sT2} offen sc1
''')
SPG = len(sp)
sp.add(bar('utst'))
sp.add(fu_flag())
if OPT['dly'] == 6:
    gst = sp.l.pop(SPG - 1)
    delay(sp, (6,))
    sp.l.append(gst)
sp.add(setup_b())
ks_ = Seq().add(kgen_seq(K).l[len(K['A']):])
sp.add(ks_)
sp.add(cat(w2_dma(0)))
sp.add(bar('*lds'))
stamp(sp, 'g1s7')
sp.add(K['rc'])
sp.add(cat(w2_dma(1)))
sp.add(K['vc'])
sp.add(K['wc'].l[:5])
sp.add(cat([g for k in range(2, 6) for g in w2_dma(k)]))
sp.add(u_poll_issue())
sp.add(cat(w2_tr(0) + w2_tr(1) + w2_tr(2)))
sp.add(K['wc'].l[5:])
sp.add(w2_window())
sp.add(u_dma())
sp.add(cat([g for k in range(6, 6 + OPT['ng']) for g in w2_dma(k)]))
sp.wait('udma')
stamp(sp, 'gelu')
sp('s_branch Ljoin')
for b, n in ((vF1, 48), (vD, 16), (vONE, 4), (vSa, 10), (o, 8), (K['vb'], 36), (K['pb'], 32),
             (vGA, 9), (vTA, 5), (vRR, 1), (vEa, 3)):
    V.release(b, n)

com = Seq()
com('Ljoin:')
vB2 = V.alloc(8, 2)
vGt = V.alloc(2, 2)
vH0 = V.alloc(56, 2)
vCF = V.alloc(128, 2)
vH = (vH0, vCF)
aC = 224
com.wait('udma')
com(f'ds_write_b32 v{vUz+1}, v{vZ} offset:{L_U + 508}')
com.add(bar('*lds'))
stamp(com, 'cv0')


def cv_reads(bb):
    b = vCF + 64 * (bb & 1)
    r = []
    for a in range(8):
        for hh in range(2):
            r.append(f'ds_read_b64 {vr(b+4*a+2*hh,2)}, v{vFa} offset:{64*(59-8*a-bb) + 8*hh}')
        r.append(f'ds_read_b128 {vr(b+32+4*a,4)}, v{vGa} offset:{512*a + 64*(3-bb)}')
    return r


def cv_mfma(bb):
    b = vCF + 64 * (bb & 1)
    r, first = [], set()
    key = (lambda x: (x[0] + x[1], x[0])) if bb == 3 else (lambda x: (max(x), x[0] - x[1])) if OPT['cord'] else (lambda x: (max(x), x[0] + x[1], x[0]))
    order = sorted(((a, d) for a in range(8) for d in range(8 - a)), key=key)
    for a, d in order:
        c = aC + 4 * (a + d)
        cc = '0' if (bb == 0 and a + d not in first) else ar(c, 4)
        first.add(a + d)
        r.append(f'v_mfma_f32_16x16x32_bf16 {ar(c,4)}, {vr(b+4*a,4)}, {vr(b+32+4*d,4)}, {cc}')
    return r


def h_load(L):
    sg, ks = divmod(L, 14)
    if HS == 1:
        return Seq()(f'buffer_load_dwordx4 {vr(vH[sg&1]+4*ks,4)}, v{vL16+ks//4}, {srd(SWS)}, s{sH+sg} offen offset:{1024*(ks%4)} sc1', tag=f'h{L}')
    s = Seq()(f'buffer_load_dwordx4 {vr(vH[sg&1]+4*ks,4)}, v{vL16+1+(ks%6)//2}, {srd(SWS)}, s{sH+sg} offen offset:{2048*(ks%2)} sc1')
    if ks % 6 == 5:
        s(f's_add_u32 s{sH+sg}, s{sH+sg}, 12288')
    return s


hflag = Seq()
hflag.wait('hst?')
flag_set(hflag, sFH)
small = Seq()
g_ld = f'buffer_load_dwordx2 {vr(vGt,2)}, v{vGo}, {srd(SWS)}, s{sGs} offen sc1'
small(g_ld)
small(f'global_load_lds_dword v{vBa}, {ptr(P_B2)}', tag='b2d', m0=f's_add_u32 m0, s{sP4}, 7680')

C = Gaps([x for bb in range(4) for x in cv_mfma(bb)], cap=8, maxlds=1)
need = 3 * [[0, 1, 4, 9, 16, 24, 30, 34]] + [[0, 1, 3, 6, 10, 15, 21, 28]]
LEAD = OPT['lead']
cr = [(36 * bb + need[bb][a] - LEAD, x) for bb in range(4) for a in range(8) for x in cv_reads(bb)[3 * a: 3 * a + 3]]
nxt_free, prelude, placed = 143, [], []
for dl, x in reversed(cr):
    g = min(dl, nxt_free)
    if g < 0:
        prelude.insert(0, x)
    else:
        placed.append((g, x))
        nxt_free = g - 1
for g, x in placed:
    C.put(g, x)
for bb in range(4):
    for a in range(8):
        if 36 * bb + need[bb][a] > 0:
            C.reserve(36 * bb + need[bb][a] - 1, 4)
CT = OPT['ct']
assert CT >= 9
DS = OPT['ds']
g0, dma_end = 0, OPT['d00'] - DS
dma_at = {k: -46 for k in range(6 + OPT['ng'])}
for k in range(6 + OPT['ng'], 9):
    dma_end = dma_at[k] = C.fill(w2_dma(k), dma_end + DS, dma_end + 5 * DS, step=DS)[-1]
for k in range(3, CT + 1):
    g0 = max(g0, dma_at[k] + 44)
    p = C.fill(w2_tr(k), g0, min(g0 + OPT['tw'], 144))
    g0 = p[-1] + 1
    if k == 9:
        tr9 = p[-1]
    if k < 8:
        d0 = max(p[-1] + 6, dma_end + DS)
        dma_end = dma_at[k + 6] = C.fill(w2_dma(k + 6), d0, min(d0 + 4 * DS, 144), step=DS)[-1]
print('w2 dma gaps', dma_at, 'last tr', g0)
red = [Seq()(f'ds_write_b128 v{vRa}, {ar(aC+4*c,4)} offset:{16384*(c//4) + 1024*(c%4)}') for c in range(8)]
for c, g in enumerate((129, 131, 133, 135, 137, 139, 142)):
    assert g > tr9 and g >= 108 + (c + 1) * (c + 2) // 2 + 4
    C.put(g, red[c])
if OPT['smg'] < 144:
    C.fill(singles(small), OPT['smg'], OPT['smg'] + 14, step=2)
C.put(OPT['hfg'], hflag)
if OPT['vp']:
    hld = f'buffer_load_dword v{vPF}, v{vPA}, {srd(SWS)}, s{sFHp} offen sc1'
    C.put(OPT['hpg'], hld)
    hc = [Seq()(f'v_cmp_ne_u32 vcc, s{sNON}, v{vPF}')]
    retry(hc[0], 's_cbranch_vccnz', 's_cbranch_vccz', '\n'.join([hld, 's_waitcnt vmcnt(0)', hc[0].l[0].text]))
else:
    C.put(OPT['hpg'], spoll_issue(7, sFHp))
    hc = spoll_check(7, sFHp)
if OPT['nochk']:
    hc[-1].l[-2] = Ins('s_nop 0')
p = C.fill(hc, OPT['hcg'], OPT['hcg'] + 8)
g0 = max(p[-1], dma_end) + 1
NC = min(14, (144 - g0) // OPT['hs'])
C.fill([h_load(L) for L in range(NC)], g0, 144, step=OPT['hs'])
print('h loads in conv', NC)
sc = singles(setup_c())
C.spread(sc[:10], 30, min(OPT['smg'], OPT['hpg']))
C.spread(sc[10:], min(OPT['smg'], OPT['hpg']), g0)
print('conv over', C.over(), C.load if OPT['stamps'] == 4 else '')
for x in prelude:
    com(x)
for g in range(0, 144, 12):
    com.add(C.emit(g, g + 12))
    if g < 132:
        stamp(com, f'c{g+12}', 4)
stamp(com, 'cv1')
NH0 = NC + OPT['nb4']
hl1 = [h_load(L) for L in range(NC, NH0)]
RSH = OPT['rsh']
q = vCF + 72 if RSH else vCF + 56
tagm = [Seq()(f'v_mov_b32 v{q+32+4*k+d}, s{sNON}') for k in range(4) for d in (2, 3)]
rr = [Seq()(f'ds_read_b128 {vr(q+16*si+8*e+4*p,4)}, v{vRa+1+e} offset:{2048*si + 4096*p}')
      for si in range(2) for e in range(2) for p in range(2)]
rv = Seq()
for si in range(2):
    b = q + 16 * si
    for e in range(2):
        for k in range(2):
            if RSH:
                rv(f'v_add_f32 v{b+8*e+2*k}, v{b+8*e+2*k}, v{b+8*e+4+2*k}\nv_add_f32 v{b+8*e+2*k+1}, v{b+8*e+2*k+1}, v{b+8*e+5+2*k}')
            else:
                rv(f'v_pk_add_f32 {vr(b+8*e+2*k,2)}, {vr(b+8*e+2*k,2)}, {vr(b+8*e+4+2*k,2)}')
    for k in range(2):
        o = q + 32 + 8 * si + 4 * k
        rv(f'v_cvt_pk_bf16_f32 v{o}, v{b+8+2*k}, v{b+8+2*k+1}')
        rv(f'v_cvt_pk_bf16_f32 v{o+1}, v{b+2*k}, v{b+2*k+1}')
if RSH:
    com.add(cat(hl1))
else:
    com.add(cat(tagm))
    com.add(red[7])
    com.add(cat(hl1[:3]))
    com.add(bar('*lds'))
    com.add(cat(rr))
    com.add(cat(hl1[3:6]))
    com.add(rv)
    com.add(cat(hl1[6:]))
LATE = OPT['asg'] > 60
apark = [Seq()(f'v_accvgpr_write_b32 a{224+k}, v{q+32+k}') for k in range(16)]
ast = [Seq()(f'buffer_store_dwordx4 {ar(224+8*si+4*k,4) if LATE else vr(q+32+8*si+4*k,4)}, v{vAo}, {srd(SWS)}, s{sAT} offen offset:{2048*si + 128*k} sc1', tag='atst')
       for si in range(2) for k in range(2)]
delay(com, (5,))
if OPT['asg'] < 0:
    com.add(cat(ast))
stamp(com, 'cv2')

vA2, vP, vAa = vCF + 56, vCF + 88, vCF + 120
vPR = t
aL = vA2 + 16
a_ld = [f'buffer_load_dwordx4 {vr(vH0+4*i,4)}, v{vAs}, {srd(SWS)}, s{sAs+i} offen sc1' for i in range(4)]
a_cmp = [f'v_xor_b32 v{vH0+4*i+2}, s{sNON}, v{vH0+4*i+2}' for i in range(4)]
a_cmp += [f'v_or3_b32 v{vH0+3}, v{vH0+2}, v{vH0+6}, v{vH0+10}', f'v_or_b32 v{vH0+3}, v{vH0+3}, v{vH0+14}',
          f'v_cmp_ne_u32 vcc, 0, v{vH0+3}']
a_chk = [Seq()(x) for x in a_cmp]
retry(a_chk[-1], 's_cbranch_vccnz', 's_cbranch_vccz', '\n'.join(a_ld + ['s_waitcnt vmcnt(0)'] + a_cmp))
a_wr = [Seq()(f'ds_write_b64 v{vAd+i%2}, {vr(vH0+4*i,2)} offset:{512*i}', tag='awr') for i in range(4)]


g_chk = Seq()(f'v_cmp_ne_u32 vcc, s{sNON}, v{vGt+1}')
retry(g_chk, 's_cbranch_vccnz', 's_cbranch_vccz', '\n'.join([g_ld, 's_waitcnt vmcnt(0)', g_chk.l[0].text]))


def part_write(sg):
    return [Seq()(f'ds_write_b128 v{vPW}, {vr(vA2+16*(sg&1)+4*j,4)} offset:{16384*sg + 1024*j}', tag=f'pw{sg}') for j in range(4)]


def part_read(sg, dst):
    return [Seq()(f'ds_read_b128 {vr(dst+4*j,4)}, v{vPR+sg} offset:{1024*j}') for j in range(4)]


def unpack(dst, src):
    return [Seq()(f'v_and_b32 v{dst+k}, 0xffff0000, v{src+k//2}' if k % 2 else f'v_lshlrev_b32 v{dst+k}, 16, v{src+k//2}')
            for k in range(16)]


M = Gaps([f'v_mfma_f32_16x16x32_bf16 {vr(vA2+16*(sg&1)+4*j,4)}, {ar(16*ks+4*j,4)}, {vr(vH[sg&1]+4*ks,4)}, '
          f'{vr(vA2+16*(sg&1)+4*j,4) if (ks or sg == 3) else 0}'
          for sg in range(4) for ks in range(14) for j in range(4)], cap=8, maxlds=1)
HD = OPT['hd']
for g in range(3, 223, 4):
    L = (g + 1) // 4
    if not OPT['w2s']:
        M.reserve(g, 4)
    elif L % 2 == 0:
        M.put(g, Seq().wait(f'h{L+1}'))
nl = NH0
for step in range(56):
    a0 = max(OPT['asg'], 0) // 4
    for k in range(0 if a0 <= step < a0 + OPT['pause'] else 2 if step % OPT['cu'] == 0 else 1):
        if nl < 56 and nl <= step + HD:
            M.put(4 * step + 2 * k, h_load(nl))
            nl += 1
if RSH:
    RB = OPT['rb']
    red[7].l[0].tag = 'red7'
    M.put(2, red[7])
    M.put(RB, bar('red7'))
    M.fill(rr, RB + 1, RB + 10)
    M.spread(tagm, 0, RB + 8)
    p = M.spread(singles(rv), RB + 10, OPT['asg'])
if OPT['asg'] >= 0:
    M.fill(ast, OPT['asg'], OPT['asg'] + 12, step=2)
M.fill([g for k in range(CT + 1, 14) for g in w2_tr(k)], OPT['rb'] + 10 if RSH else 0, 4 * CT + 2)
se = singles(setup_e())
M.spread(se[:2] + [Seq()(f'v_lshl_add_u32 v{vBa}, v{vG}, 3, s{sP4}')], 0, 40)
b2r = [Seq()(f'ds_read_b64 {vr(vB2+2*j,2)}, v{vBa} offset:{7680 + 32*j}') for j in range(4)]
b2r[0] = Seq().wait('b2d').add(b2r[0])
M.fill(b2r, 44, 56)
M.spread(se[2:], 40, 112)
M.fill([g_chk, Seq()(f'v_sub_f32 v{vGt+1}, 1.0, v{vGt}')]
       + (apark if LATE else []) + unpack(vP, vB2), 64, 116)
for i, x in enumerate(a_ld):
    assert OPT['alg'] + OPT['als'] * i >= 116 + 4 * i
    M.put(OPT['alg'] + OPT['als'] * i, x)
for sg in range(3):
    for j, g_ in enumerate(part_write(sg)):
        M.put(56 * (sg + 1) + 5 + (4 if sg == 0 else 3) * j, g_)
M.put(112 + 21, bar('pw1'))
M.fill(part_read(0, vP + 16) + part_read(1, aL), 112 + 22, 112 + 32)
M.fill([Seq()(f'v_add_f32 v{vP+k}, v{vP+k}, v{vP+16+k}') for k in range(16)]
       + [Seq()(f'v_add_f32 v{aL+k}, v{aL+k}, v{vP+k}') for k in range(16)], 112 + 34, 167)
AF = OPT['afg']
p = M.fill(a_chk + a_wr, OPT['acg'], AF - 1)
M.put(AF, bar('pw2', 'awr'))
M.fill([Seq()(f'ds_read_b64_tr_b16 {vr(vAa+2*j,2)}, v{vAr} offset:{4096*j}') for j in range(4)] + part_read(2, vP), AF + 1, min(AF + 7, 223))
M.fill(unpack(vP + 16, vAa) + [Seq()(f'v_mul_f32 v{vP+16+k}, v{vGt}, v{vP+16+k}') for k in range(16)]
       + [Seq()(f'v_fma_f32 v{vP+k}, v{vP+k}, v{vGt+1}, v{vP+16+k}') for k in range(16)], min(AF + 8, 223), 224)
print('gemm2 over', M.over())
for sg in range(4):
    for g in range(56 * sg, 56 * sg + 56, 14):
        com.add(M.emit(g, g + 14))
        if (g + 14) % 56:
            stamp(com, f'm{g+14}', 4)
    stamp(com, f'g2s{sg}')
for j in range(4):
    for i in range(0, 4, 2):
        k = 4 * j + i
        com(f'v_pk_fma_f32 {vr(vP+k,2)}, {vr(aL+k,2)}, {vr(vGt,2)}, {vr(vP+k,2)} op_sel:[0,1,0] op_sel_hi:[1,1,1]')
for j in range(4):
    com(f'v_cvt_pk_bf16_f32 v{vAa+2*j}, v{vP+4*j}, v{vP+4*j+1}')
    com(f'v_cvt_pk_bf16_f32 v{vAa+2*j+1}, v{vP+4*j+2}, v{vP+4*j+3}')
for j in range(4):
    com(f'ds_write_b64 v{vOw+j}, {vr(vAa+2*j,2)}')
for r in range(2):
    com(f'ds_read_b128 {vr(vP+16+4*r,4)}, v{vOr} offset:{1024*r}')
for r in range(2):
    com(f'buffer_store_dwordx4 {vr(vP+16+4*r,4)}, v{vOa}, {srd(SOUT)}, s{sO0+r} offen' + ('', ' sc1', ' nt', ' sc0 sc1')[OPT['osc']])
if OPT['stamps']:
    if not OPT['nw']:
        com.wait('*vm')
    stamp(com, 'end')
    com('s_waitcnt lgkmcnt(0)')
    stamp(com, 'x')
    com(f'''
s_waitcnt lgkmcnt(0)
s_memrealtime s[{sSTAMP}:{sSTAMP+1}]
v_writelane_b32 v{vST}, s{sSTAMP}, 63
s_getreg_b32 s{sT0}, hwreg(HW_REG_XCC_ID)
v_writelane_b32 v{vST}, s{sT0}, 61
s_getreg_b32 s{sT0}, hwreg(HW_REG_HW_ID)
v_writelane_b32 v{vST}, s{sT0}, 60
s_lshl2_add_u32 s{sT0}, s2, s{sWV}
s_lshl_b32 s{sT0}, s{sT0}, 8
s_add_u32 s{sT0}, s{sT0}, {WS_ST}
v_lshlrev_b32 v{t}, 2, v{vL}
buffer_store_dword v{vST}, v{t}, {srd(SWS)}, s{sT0} offen''' + ('', ' sc1', ' nt', ' sc0 sc1')[OPT['osc']])
if PROBE is not None:
    com.wait('*vm')
    stamp(com, 'end')
    role = PROBE.split(':')[1]
    com(f'''
s_waitcnt lgkmcnt(0)
s_cmp_ge_u32 s2, 224
{'s_cbranch_scc1 Lend' if role == 'm' else 's_cbranch_scc0 Lend' if role == 's' else 's_nop 0'}
v_readfirstlane_b32 s{sT1}, v{vST}
{dict(n=f's_sub_u32 s{sT0}, s{sSTAMP}, s{sNON}', r=f's_sub_u32 s{sT0}, s{sNON}, s{sT1}', s=f's_sub_u32 s{sT0}, s{sSTAMP}, s{sT1}')[PROBE.split(':')[2]]}
s_max_i32 s{sT0}, s{sT0}, 0
s_min_i32 s{sT0}, s{sT0}, 0x2000
s_lshl_b32 s{sT0}, s{sT0}, 2
s_memrealtime s[{sT2}:{sT3}]
s_waitcnt lgkmcnt(0)
s_add_u32 s{sT0}, s{sT0}, s{sT2}
Lprobe:
s_memrealtime s[{sT2}:{sT3}]
s_waitcnt lgkmcnt(0)
s_sub_u32 s{sT1}, s{sT2}, s{sT0}
s_cmp_lt_i32 s{sT1}, 0
s_cbranch_scc1 Lprobe''')
com('Lend:')
com('s_endpgm')

check_order(checks[0][0], main.l, checks[0][1])
check_order(pc_addr.l + cat(pr).l + cat(pc_chk).l, main.l)
check_order(checks[1][0], sp.l, checks[1][1])
for x in (main, sp, com):
    insert_m0(x.l)
if OPT['stamps']:
    p0 = finish_stamps(pro.l, None)
    p1 = finish_stamps(main.l, p0)
    assert p1 == finish_stamps(sp.l, p0)
    finish_stamps(com.l, p1)
    stamp_names.remove('x')
paths = (pro.l + main.l + com.l, pro.l + sp.l + com.l)
for p in paths:
    resolve_waits(p)
for p in paths:
    resolve_waits(p)
for p in paths:
    fix_hazards(p)

ref = open('gated_mix__ssm_conv_s4d__mixer_channel_mlp__prompt.s.ref').read().split('\n')
head = [l for l in ref if l.startswith(';') and '@launch' not in l]
txt = '\n'.join(head) + f'\n; @launch grid=(256,1,1) block=(256,1,1) lds={LDS_SIZE}\n'
txt += f'''.amdgcn_target "amdgcn-amd-amdhsa--gfx950"
.text
.p2align 12
.fill {((4096 - 768 + 256 * OPT['eo']) % 4096) // 4}, 4, 0xbf810000      ; the entry then starts a 4 KB page (instruction prefetch stops at page ends)
.globl {NAME}
.p2align 8
.type {NAME},@function
{NAME}:
'''
txt += render(pro.l) + render(main.l) + render(com.l) + ''.join(outline) + '.p2align 12\n' + render(sp.l)
txt += f'''Lcode_end:
    s_endpgm
.section .rodata,"a"
.p2align 6
.amdhsa_kernel {NAME}
  .amdhsa_next_free_vgpr 512
  .amdhsa_next_free_sgpr 102
  .amdhsa_accum_offset 256
  .amdhsa_group_segment_fixed_size 0
  .amdhsa_kernarg_size 128
  .amdhsa_user_sgpr_count 2
  .amdhsa_user_sgpr_kernarg_segment_ptr 1
  .amdhsa_system_sgpr_workgroup_id_x 1
.end_amdhsa_kernel
'''


def with_page_stubs(txt):
    import subprocess, re
    disp = {}
    for role in ('main', 'spare'):
        disp[role] = [f's_mov_b32 s0, {int(role == "spare")}', 's_mov_b64 exec, 0'] + [x for w in range(3) for x in (f's_cmp_eq_u32 s{sWV}, {w}', f's_cbranch_scc1 @{role}{w}')]
        disp[role] += [f's_branch @{role}3']
    disp['main'] += ['Liw_ret:', 's_cmp_eq_u32 s0, 1', 's_cbranch_scc1 Liw_ret_spare', 's_mov_b64 exec, -1']
    disp['spare'] += ['Liw_ret_spare:', 's_mov_b64 exec, -1']
    lines = []
    for l in txt.split('\n'):
        if ';IWARM' in l:
            lines += [x if x.endswith(':') else '    ' + x for x in disp[l.split()[1]]]
        else:
            lines.append(l)
    open('_pg.s', 'w').write(re.sub(r'@(main|spare)\d', 'Lend', '\n'.join(lines)))
    subprocess.run(['clang', '-x', 'assembler', '-target', 'amdgcn-amd-amdhsa', '-mcpu=gfx950', '-c',
                    '_pg.s', '-o', '_pg.o'], check=True)
    dis = subprocess.run(['llvm-objdump', '-d', '-z', '--mcpu=gfx950', '_pg.o'], capture_output=True, text=True).stdout
    dis = dis[dis.index(f'<{NAME}>:'):]
    cut = dis.index('<Lspare>:')
    size = lambda part: [4 * len(m.group(1).split()) for m in re.finditer(r'// [0-9A-F]+: ([0-9A-F ]+)', part)]
    isins = lambda l: l.startswith('    ') and not l.strip().startswith((';', '.'))
    out, pages = [], {'main': [], 'com': [], 'spare': []}
    sec, sizes, addr, seen = None, None, 0, set()
    for l in lines:
        if l == f'{NAME}:':
            sec, sizes, addr = 'main', iter(size(dis[:cut])), 256 * OPT['eo']
        if l == 'Ljoin:':
            sec = 'com'
        if l == 'Lend:':
            sec = None
        if l == 'Lspare:':
            sec, sizes, addr = 'spare', iter(size(dis[cut:])), 0
        if l == 'Lcode_end:':
            sec = None
        if sec and isins(l):
            if addr >= 4096:
                addr -= 4096
                if sec == 'com' or sec in seen:
                    nm = f'Lpg{sum(map(len, pages.values()))}'
                    pages[sec].append(nm)
                    out += [nm + ':', f'    s_cbranch_execz @next{nm}']
                    addr += 4
            addr += next(sizes)
        out.append(l)
        if l.strip() == 's_mov_b64 exec, -1':
            seen.add(sec)
    txt = '\n'.join(out)
    nxt = {p: 'Liw_ret' for p in pages['com'] + pages['main']}
    nxt.update({p: 'Liw_ret_spare' for p in pages['spare']})
    for role in ('main', 'spare'):
        own, com_ = list(pages[role]), list(pages['com'])
        while len(own) + len(com_) > 4:
            k = len(own) + len(com_) - 5
            nxt[own[k]] = com_.pop()
        heads = own + com_
        for w in range(4):
            txt = txt.replace(f'@{role}{w}', heads[w] if w < len(heads) else ('Liw_ret' if role == 'main' else 'Liw_ret_spare'))
    for p, n_ in nxt.items():
        txt = txt.replace(f'@next{p}\n', n_ + '\n')
    print('pages', pages)
    return txt


if OPT['iw']:
    txt = with_page_stubs(txt)
open(sys.argv[1], 'w').write(txt)
if OPT['stamps']:
    open(sys.argv[1] + '.stamps', 'w').write(' '.join(stamp_names))
print('vgpr high water', V.hw, 'instr', [sum(1 for i in p.l if i.kind != 'meta') for p in (pro, main, com, sp)],
      'nops', sum(i.pre for p in (pro, main, com) for i in p.l))
```

```python
import sys, struct, math
from asmlib import *

NAME = 'gated_mix__ssm_conv_s4d__mixer_channel_mlp__prompt_kernel'
OPT = dict(stamps=0, rt=0, rot=1, touch=1, tlb=0, early=9, nk=19, res=66, lst=9, hd=27, osc=1, up=-1, ud=0, pcg=170,
           hfg=22, hpg=80, hcg=116, alg=118, acg=184, afg=196, ct=9, nb4=8, asg=-1, skipw=0, c3=0, gs0=4, gsp=13, pause=6, hs=3, cu=99, ua=80, nost=0, hsk=0, nochk=0, vp=1, ng=2, ds=4, d00=2, smg=60, tw=12, lead=8, atl=0, als=8, wtl=0, t1=0, te=0, cord=1, eo=0, iw=1, nm=0, nms=8, lq=4, tl=0, wf=0, c3x=0, c3s=1, pb=0, fe=0, slp=2, fhl=0, tsp=0, al=0, alr=6, alm=99, rsh=0, rb=6, kf=1, w2s=0, dly=0, nw=0)
PROBE = None
for a in sys.argv[2:]:
    k, v = a.split('=')
    if k == 'probe':
        PROBE = v
        continue
    assert k in OPT, k
    OPT[k] = int(v)


def f32(x):
    return '0x%08x' % struct.unpack('<I', struct.pack('<f', x))[0]


FU, FH, FDUMMY = 0x10000, 0x20000, 0x9000
FHS = 7 if OPT['fhl'] else 2
WS_TP = 0x80000
WS_TS = 0x88000
WS_G = 0x90000
WS_FP = 0x98000
WS_ST = 0xA0000
WS_UT = 0x200000
HS = 2 if OPT['hsk'] else 1
WS_AT = 0x400000
WS_H = 0x800000 + (512 if OPT['hsk'] else 0)
WS_SIZE = 0x10000000
L_X, L_W = 32768, 98304
PART = 8192
O_T = 4352
L_U = 32768
L_E = 65536
LDS_SIZE = 163840

P_U, P_LA, P_AI, P_CR, P_CI, P_DT, P_DS, P_BX, P_W1, P_B1, P_W2, P_B2, P_GW, P_OUT, P_DBG, P_WS = [4 + 2 * i for i in range(16)]
SX, SW1, SW2, SWS, SOUT = 36, 40, 44, 48, 52
sXCD, sJ, sWV, sBH = 56, 57, 58, 59
sT0, sT1, sT2, sT3 = 60, 61, 62, 63
sNON, sNON1 = 64, 65
sM, sXb, sWb, sKC, sXk, sWk = 66, 67, 68, 69, 70, 71
sHst, sHst2, sFH, sTB1, sCB1, sW2l = 72, 73, 74, 75, 76, 77
sP4, sCNT, sTB2, sNB, sCH, sT4 = 78, 79, 80, 81, 82, 83
sF = 84
sSTAMP = 100
sUt, sUo, sFU, sFUp = 3, 98, 99, 13
sDT, sDS = 96, 97
sT5 = 91
sUs, sUm = 4, 5
sSEL0, sSEL1 = 18, 19
sH = 6
sPR = 10
sAT, sFHp, sAT2, sGs = 14, 15, 16, 17
sAs = 92
sO0, sO1 = 20, 21
srd = lambda b: 's[%d:%d]' % (b, b + 3)
ptr = lambda b: 's[%d:%d]' % (b, b + 1)

V = Regs('v', 0, 256)
vTID, vL, vZ, vST, vN, vG, vNON, vPF = [V.alloc() for _ in range(8)]
vT = V.alloc(8, 4)
vZ2 = V.alloc(4, 4)
vL16 = V.alloc(4, 1)
vPA = V.alloc()
vW2s = V.alloc(4, 1)
vTr = V.alloc(8, 1)
vFa, vGa = V.alloc(), V.alloc()
vUz = V.alloc(2, 1)
vX = V.alloc(16, 1)
vPAR, vPo, vXs, vWs = vX, vX + 6, vX + 8, vX + 12
vRa, vAd, vPW, vAr, vOw, vOr, vOa, vBa, vGo, vAs = vX, vX + 3, vX + 5, vX + 6, vX + 7, vX + 11, vX + 12, vX + 13, vX + 14, vX + 15
vAo = V.alloc()
t = vT

outline = []
stamp_names = []
nlab = [0]
checks = []


def stamp(s, name, lvl=1):
    note = {('karg', 0): 'first loads', ('setup', 0): 'Kgen / statistics', ('b0', 0): 'GEMM1', ('g1s7', 0): 'LayerNorm update, GELU (main) / W2 staging (spare)',
            ('cv0', 0): 'convolution', ('cv1', 0): 'reduference', ('cv2', 0): 'GEMM2', ('g2s3', 0): 'gated mix, output'}.get((name, 0))
    if note:
        s('; ---- ' + note.replace('reduference', 'sum of the two half convolutions, a -> ws'))
    if OPT['dly'] >= 7 and name not in ('start', 'end', 'x'):
        nlab[0] += 1
        s('s_sleep 0')
        s.l[-1].text = (f's_cmp_lg_u32 s{sWV}, {(nlab[0] * (OPT["dly"] - 6) + OPT["dly"]) % 4}\n    s_cbranch_scc1 Lback_w{nlab[0]}\n'
                        f'    s_sleep 40\nLback_w{nlab[0]}:')
    if PROBE is not None and name == 'karg':
        s(f'v_mov_b32 v{vST}, s{sSTAMP}')
    if PROBE is not None and name in (PROBE.split(':')[0], 'start'):
        s(f's_memrealtime s[{sSTAMP}:{sSTAMP+1}]')
        s.l[-1].kind, s.l[-1].dst = 'salu', []
    if OPT['stamps'] < lvl or (OPT['stamps'] == 4 and lvl in (2, 3)) or (OPT['stamps'] == 5 and lvl in (3, 4)):
        return
    if name not in stamp_names:
        stamp_names.append(name)
    s(f's_mem{"real" if OPT["rt"] else ""}time s[{sSTAMP}:{sSTAMP+1}]', tag='stamp:' + name)
    s.l[-1].kind, s.l[-1].dst = 'salu', []


def finish_stamps(items, prev):
    out = []
    for it in items:
        if it.tag and it.tag.startswith('stamp:'):
            if prev is not None:
                out.append(Ins(f'v_writelane_b32 v{vST}, s{sSTAMP}, {stamp_names.index(prev)}'))
            prev = it.tag[6:]
        out.append(it)
    items[:] = out
    return prev


def retry(s, branch, exit_branch, body):
    k = nlab[0]
    nlab[0] += 1
    s(f'{branch} Lretry{k}')
    s(f'Lback{k}:')
    body = '\n'.join('    ' + l.strip() for l in body.strip().split('\n'))
    outline.append(f'''Lretry{k}:
    s_mov_b32 s{sCNT}, 0x40000
Lloop{k}:
    s_sleep {OPT['slp']}
{body}
    {exit_branch} Lback{k}
    s_sub_u32 s{sCNT}, s{sCNT}, 1
    s_cbranch_scc0 Lloop{k}
    s_branch Lback{k}
''')


def cat(groups):
    s = Seq()
    for g in groups:
        s.add(g)
    return s


def chunks(seq, n):
    return [Seq().add(seq.l[i:i + n]) for i in range(0, len(seq), n)]


def bar(*tags):
    s = Seq()
    if tags:
        s.wait(*tags)
    s('s_barrier')
    return s


def nonce_issue():
    return Seq()(f'global_load_dword v{vNON}, v{vZ}, {ptr(P_DBG)} sc1')


def nonce_check():
    s = Seq()
    s(f'v_readfirstlane_b32 s{sNON}, v{vNON}')
    s(f's_cmp_eq_u32 s{sNON}, 0')
    retry(s, 's_cbranch_scc1', 's_cbranch_scc0', f'''
global_load_dword v{vNON}, v{vZ}, {ptr(P_DBG)} sc1
s_waitcnt vmcnt(0)
v_readfirstlane_b32 s{sNON}, v{vNON}
s_nop 3
s_cmp_eq_u32 s{sNON}, 0''')
    s(f's_mov_b32 s{sNON1}, s{sNON}')
    return s


def flag_set(s, soff):
    s(f's_atomic_swap s{sNON}, {ptr(P_WS)}, s{soff}')


def spoll_issue(n, soff):
    return Seq()(f's_load_dwordx{8 if n <= 8 else 16} s[{sF}:{sF + (7 if n <= 8 else 15)}], {ptr(P_WS)}, s{soff} glc')


def spoll_check(n, soff):
    l = []
    for k in range(0, n - 1, 2):
        l.append(f's_xor_b64 s[{sF+k}:{sF+k+1}], s[{sF+k}:{sF+k+1}], s[{sNON}:{sNON1}]')
    if n % 2:
        l.append(f's_xor_b32 s{sF+n-1}, s{sF+n-1}, s{sNON}')
        l.append(f's_or_b32 s{sF}, s{sF}, s{sF+n-1}')
    for k in range(2, n - 1, 2):
        l.append(f's_or_b64 s[{sF}:{sF+1}], s[{sF}:{sF+1}], s[{sF+k}:{sF+k+1}]')
    g = [Seq()(x) for x in l]
    retry(g[-1], 's_cbranch_scc1', 's_cbranch_scc0', '\n'.join([spoll_issue(n, soff).l[0].text, 's_waitcnt lgkmcnt(0)'] + l))
    return g


pro = Seq()
pro('s_cmp_ge_u32 s2, 0x100\ns_cbranch_scc1 Lend')
if OPT['stamps']:
    pro(f'''
s_memrealtime s[{sSTAMP}:{sSTAMP+1}]
s_waitcnt lgkmcnt(0)
s_add_u32 s{sT0}, s{sSTAMP}, 0x500
s_and_b32 s{sT0}, s{sT0}, 0xfffffc00
Lsync:
s_memrealtime s[{sSTAMP}:{sSTAMP+1}]
s_waitcnt lgkmcnt(0)
s_sub_u32 s{sT1}, s{sSTAMP}, s{sT0}
s_cmp_lt_i32 s{sT1}, 0
s_cbranch_scc1 Lsync
v_mov_b32 v{vST}, 0
v_writelane_b32 v{vST}, s{sSTAMP}, 62''')


def delay(s, which):
    if OPT['dly'] not in which:
        return
    cond = {1: 's_cmp_ge_u32 s2, 224', 3: 's_cmp_eq_u32 s2, 0'}.get(OPT['dly'], f's_and_b32 s{sCNT}, s2, 15\ns_cmp_eq_u32 s{sCNT}, 5')
    s(f'''
{cond}
s_cbranch_scc0 Lback_nodly
s_mov_b32 s{sCNT}, 200
Lback_dly:
s_sleep 2
s_sub_u32 s{sCNT}, s{sCNT}, 1
s_cbranch_scc0 Lback_dly
Lback_nodly:''')


delay(pro, (1, 2, 3))
stamp(pro, 'start')
pro(f'''
s_load_dwordx2 s[{SX}:{SX+1}], s[0:1], 0
s_load_dwordx2 s[{SW1}:{SW1+1}], s[0:1], 64
s_load_dwordx16 s[4:19], s[0:1], 0
s_load_dwordx16 s[20:35], s[0:1], 64
s_getpc_b64 s[{sT2}:{sT3}]
Lpc:
s_cmp_ge_u32 s2, 224
s_cbranch_scc1 Lspare
''')


def pro_body(s):
    s(f'''
v_lshrrev_b32 v{t}, 6, v{vTID}
v_and_b32 v{vL}, 63, v{vTID}
v_readfirstlane_b32 s{sWV}, v{t}
v_mov_b32 v{vZ}, 0
s_and_b32 s{sXCD}, s2, 7
s_lshr_b32 s{sJ}, s2, 3
s_lshl2_add_u32 s{sT0}, s{sJ}, s{sWV}
s_mul_i32 s{sT0}, s{sT0}, 384
v_and_b32 v{t+1}, 3, v{vL}
v_lshl_add_u32 v{t+1}, v{t+1}, 7, s{sT0}
v_min_u32 v{t+1}, Lcode_end-Lpc-4, v{t+1}
global_load_dword v{vPF}, v{t+1}, s[{sT2}:{sT3}]
s_lshl_b32 s{sT0}, s2, 9
v_lshl_add_u32 v{vPo}, v{vTID}, 1, s{sT0}
s_lshl_b32 s{sCNT}, s2, 2
v_lshlrev_b32 v{vL16}, 4, v{vL}
v_and_b32 v{vN}, 15, v{vL}
v_lshrrev_b32 v{vG}, 4, v{vL}
s_mov_b32 s{SX+2}, 0x200000
s_mov_b32 s{SX+3}, 0x20000
s_mov_b32 s{SW1+2}, {512*3584}
s_mov_b32 s{SW1+3}, 0x20000
s_lshl_b32 s{sM}, s{sWV}, 12
s_lshl_b32 s{sP4}, s{sWV}, 13
s_lshl_b32 s{sT5}, s{sWV}, 11
s_and_b32 s{sBH}, s{sWV}, 1
s_lshr_b32 s{sT0}, s{sXCD}, 1
s_and_b32 s{sT1}, s{sJ}, 7
s_lshl3_add_u32 s{sUo}, s{sT0}, s{sT1}
s_and_b32 s{sT0}, s{sXCD}, 1
s_lshr_b32 s{sT1}, s{sJ}, 3
s_lshl2_add_u32 s{sFU}, s{sT0}, s{sT1}
s_lshl2_add_u32 s{sUt}, s{sUo}, s{sWV}
s_lshl_b32 s{sUt}, s{sUt}, 7
s_add_u32 s{sUt}, s{sUt}, s{sFU}
s_lshl_b32 s{sUt}, s{sUt}, 7
s_lshl_b32 s{sT0}, s{sWV}, 1
v_and_b32 v{t+2}, 7, v{vL}
v_xor_b32 v{t+2}, s{sT0}, v{t+2}
v_lshrrev_b32 v{t+3}, 3, v{vL}
v_lshlrev_b32 v{t+3}, 10, v{t+3}
v_lshl_add_u32 v{vFa}, v{t+2}, 4, v{t+3}
v_xor_b32 v{vGa}, 16, v{vFa}
v_add_u32 v{vGa}, 7168, v{vGa}
''')


def ut_loads(lds):
    s = Seq()
    for i in range(2):
        s(f'buffer_load_dwordx4 v{(vFa, vGa)[i]}, {srd(SX)}, s{sUt} offen offset:{1024*i} lds', tag='utl',
          m0=f's_add_u32 m0, s{sT5}, {lds}')
    return s


def ut_setup(lds):
    s = Seq()
    s(f'''
v_and_b32 v{t}, 7, v{vL}
v_lshrrev_b32 v{t+1}, 5, v{vL}
v_lshl_add_u32 v{t+1}, s{sWV}, 1, v{t+1}
v_xor_b32 v{t+1}, v{t+1}, v{t}
v_lshlrev_b32 v{t+1}, 4, v{t+1}
v_lshl_add_u32 v{t+1}, v{t}, 10, v{t+1}
v_bfe_u32 v{t+2}, v{vL}, 3, 2
v_lshl_add_u32 v{t+1}, v{t+2}, 2, v{t+1}
v_add_u32 v{vUz}, {lds}, v{t+1}
v_lshrrev_b32 v{t+1}, 3, v{vL}
v_lshlrev_b32 v{t+1}, 13, v{t+1}
v_lshl_add_u32 v{vUz+1}, v{t}, 4, v{t+1}
s_lshl2_add_u32 s{sT0}, s{sFU}, s{sWV}
s_lshl_b32 s{sT0}, s{sT0}, 9
s_lshl_b32 s{sFU}, s{sFU}, 5
s_add_u32 s{sFU}, s{sFU}, s{sUo}
s_lshl_b32 s{sFU}, s{sFU}, 4
s_add_u32 s{sFU}, s{sFU}, {FU}
s_add_u32 s{sUo}, s{sUo}, s{sT0}
s_lshl_b32 s{sUo}, s{sUo}, 7
s_add_u32 s{sUo}, s{sUo}, {WS_UT}
s_add_u32 s{sUt}, s{sUo}, 4096
s_mov_b32 s{sSEL0}, 0x05040100
s_mov_b32 s{sSEL1}, 0x07060302
''')
    return s


def ut_work(r):
    a, b = bar('utl'), Seq()
    for k in range(4):
        a(f'ds_read2_b32 {vr(r+2*k,2)}, v{vUz} offset0:{64*k} offset1:{64*k+32}')
    for c in range(2):
        for k in range(4):
            b(f'v_perm_b32 v{r+8+4*c+k}, v{r+2*k+1}, v{r+2*k}, s{sSEL0+c}')
    for c in range(2):
        b(f's_nop 0' if OPT['nost'] else f'buffer_store_dwordx4 {vr(r+8+4*c,4)}, v{vUz+1}, {srd(SWS)}, s{(sUo, sUt)[c]} offen sc1', tag='utst')
    return a, b


def fu_flag():
    k = nlab[0]
    nlab[0] += 1
    return Seq()(f'''
s_cmp_lg_u32 s{sWV}, 0
s_cbranch_scc1 Lback{k}
s_atomic_swap s{sNON}, {ptr(P_WS)}, s{sFU}
Lback{k}:''')


def param_loads(s):
    for i, p in enumerate((P_LA, P_AI, P_CR, P_CI)):
        s(f'global_load_ushort v{vPAR+i}, v{vPo}, {ptr(p)}')


def scalar_params(s):
    s(f's_load_dword s{sDT}, {ptr(P_DT)}, s{sCNT}')
    s(f's_load_dword s{sDS}, {ptr(P_DS)}, s{sCNT}')


def setup_a():
    s = Seq()
    for b, p, n in ((SW2, P_W2, 1792 * 1024), (SWS, P_WS, WS_SIZE), (SOUT, P_OUT, 0x200000)):
        s(f'''
s_mov_b64 s[{b}:{b+1}], s[{p}:{p+1}]
s_mov_b32 s{b+2}, {n}
s_mov_b32 s{b+3}, 0x20000''')
    s(f'''
s_lshl2_add_u32 s{sT1}, s2, s{sWV}
s_mul_i32 s{sT1}, s{sT1}, 1792
v_lshlrev_b32 v{t+7}, 7, v{vN}
s_lshl2_add_u32 s{sT2}, s{sJ}, s{sWV}
''')
    if OPT['c3x']:
        assert not OPT['tlb']
        s(f'''
s_lshr_b32 s{sT3}, s{sXCD}, 1
s_lshl_b32 s{sT3}, s{sT3}, 7
s_add_u32 s{sT3}, s{sT3}, s{sT2}
s_lshl_b32 s{sT3}, s{sT3}, 12
v_and_b32 v{t+6}, 3, v{vL}
v_lshlrev_b32 v{t+6}, 10, v{t+6}''')
    if OPT['tlb'] == 1:
        s(f'''
v_min_u32 v{t+6}, 8, v{vL}
v_lshlrev_b32 v{t+6}, 21, v{t+6}
v_or_b32 v{t+6}, 0x100000, v{t+6}''')
    if OPT['tlb'] == 2:
        s(f'''
s_lshl_b32 s{sT3}, s{sT2}, 7
s_add_u32 s{sT3}, s{sT3}, s{sXCD}
s_lshl_b32 s{sT4}, s{sT3}, 7
s_lshl_b32 s{sT3}, s{sT3}, 10
v_and_b32 v{t+6}, 1, v{vL}
v_lshl_add_u32 v{t+6}, v{t+6}, 16, s{sT3}''')
    s(f'''
s_mul_i32 s{sT2}, s{sT2}, {14*1024}
v_min_u32 v{vAo}, 13, v{vL}
v_lshlrev_b32 v{vAo}, 10, v{vAo}''')
    if OPT['c3x']:
        s(f'buffer_load_dword v{vPF}, v{t+6}, {srd(SX)}, s{sT3} offen offset:384')
    if OPT['c3']:
        s(f'buffer_load_dword v{vPF}, v{vAo}, {srd(SW2)}, s{sT2} offen offset:384')
    if OPT['t1']:
        s(f'buffer_load_dword v{vPF}, v{t+7}, {srd(SW1)}, s{sT1} offen')
    if OPT['touch']:
        s(f'buffer_load_dword v{vPF}, v{t+7}, {srd(SW2)}, s{sT1} offen')
    if OPT['tlb']:
        s(f'buffer_load_dword v{vPF}, v{t+6}, {srd(SWS)}, 0 offen sc1')
    if OPT['tlb'] == 2:
        s(f'buffer_load_dword v{vPF}, v{vZ}, {srd(SOUT)}, s{sT4} offen sc1')
    return s


vGA = V.alloc(9, 1)
vTA = V.alloc(5, 1)
vRR = V.alloc()
vEa = V.alloc(3, 1)


def setup_k():
    s = Seq()
    s(f'''
v_mul_u32_u24 v{t}, 272, v{vN}
v_lshl_add_u32 v{t}, v{vG}, 4, v{t}
v_add_u32 v{vRR}, s{sP4}, v{t}
s_add_u32 s{sT1}, s{sP4}, {O_T}
v_mov_b32 v{vEa+2}, s{sT1}
v_lshlrev_b32 v{vEa}, 4, v{vTID}
v_bfe_u32 v{t}, v{vL}, 2, 2
v_bfe_u32 v{t+1}, v{vL}, 2, 1
v_lshlrev_b32 v{t}, 13, v{t}
v_lshl_add_u32 v{t}, v{t+1}, 7, v{t}
v_and_b32 v{t+1}, 3, v{vL}
v_lshl_add_u32 v{vEa+1}, v{t+1}, 4, v{t}
v_mov_b32 v{vZ2}, 0
v_mov_b32 v{vZ2+1}, 0
v_mov_b32 v{vZ2+2}, 0
v_mov_b32 v{vZ2+3}, 0
v_lshrrev_b32 v{t}, 1, v{vG}
v_and_b32 v{t+1}, 1, v{vG}
v_mul_u32_u24 v{t+1}, 400, v{t+1}
v_lshl_add_u32 v{t+1}, v{t}, 4, v{t+1}
v_add_u32 v{t+1}, v{t+1}, v{vN}
v_lshl_add_u32 v{vTA}, v{t+1}, 2, s{sT1}
v_add_u32 v{vTA+1}, 800, v{vTA}
v_sub_u32 v{t+1}, 2, v{t}
v_lshlrev_b32 v{t+1}, v{t+1}, v{vN}
v_lshrrev_b32 v{t+2}, 3, v{t+1}
v_and_b32 v{t+1}, 7, v{t+1}
v_mul_u32_u24 v{t+1}, 100, v{t+1}
v_lshl_add_u32 v{t+2}, v{vG}, 3, v{t+2}
v_add3_u32 v{t+1}, v{t+1}, v{t+2}, 32
v_lshl_add_u32 v{vTA+2}, v{t+1}, 2, s{sT1}
v_mul_u32_u24 v{t}, 784, v{t}
v_sub_u32 v{t}, 800, v{t}
v_add_u32 v{vTA+3}, v{vTA+2}, v{t}
v_and_b32 v{t}, 7, v{vN}
v_mul_u32_u24 v{t}, 100, v{t}
v_lshrrev_b32 v{t+1}, 3, v{vN}
v_lshl_add_u32 v{t+1}, v{vG}, 3, v{t+1}
v_add3_u32 v{t}, v{t}, v{t+1}, 64
v_lshl_add_u32 v{vTA+4}, v{t}, 2, s{sT1}
''')
    return s


def setup_g():
    s = Seq()
    s(f'''
v_lshlrev_b32 v{t+4}, 3, v{vTID}
s_movk_i32 s{sT3}, 128
''')
    for i in range(9):
        g = vGA + i
        s(f'v_sub_u32 v{g}, {2047 - i}, v{t+4}')
        if i == 8:
            s(f'v_max_i32 v{t+5}, 0, v{g}')
            s(f'v_cvt_f32_u32 v{t+5}, v{t+5}')
        else:
            s(f'v_cvt_f32_u32 v{t+5}, v{g}')
        s(f'''
v_cvt_pk_bf16_f32 v{t+5}, v{t+5}, v{vZ}
v_add_u32 v{t+5}, {128 - 0x4300}, v{t+5}
v_med3_i32 v{g}, v{t+5}, v{g}, s{sT3}
v_and_b32 v{t+5}, 7, v{g}
v_ashrrev_i32 v{g}, 3, v{g}
v_mul_u32_u24 v{t+5}, 400, v{t+5}
v_lshl_add_u32 v{g}, v{g}, 2, v{t+5}''')
    return s


def setup_b():
    s = Seq()
    s(f'''
s_mul_i32 s{sW2l}, s{sWV}, {448*1024}
s_lshl_b32 s{sT0}, s{sNB}, 7
s_add_u32 s{sW2l}, s{sW2l}, s{sT0}
s_sub_u32 s{sW2l}, s{sW2l}, 32768
s_lshr_b32 s{sT0}, s{sWV}, 1
s_lshl1_add_u32 s{sCH}, s2, s{sT0}
v_lshlrev_b32 v{t+2}, 1, v{vG}
v_and_b32 v{t+3}, 7, v{vL}
v_xor_b32 v{t+2}, v{t+2}, v{t+3}
v_lshrrev_b32 v{t+3}, 3, v{vL}
v_lshlrev_b32 v{t+3}, 10, v{t+3}
v_lshl_add_u32 v{vW2s}, v{t+2}, 4, v{t+3}
v_add_u32 v{vW2s+1}, {7168*1}, v{vW2s}
v_add_u32 v{vW2s+2}, {7168*2}, v{vW2s}
v_add_u32 v{vW2s+3}, {7168*3}, v{vW2s}
v_lshrrev_b32 v{t+2}, 2, v{vL}
v_lshlrev_b32 v{t+2}, 7, v{t+2}
v_and_b32 v{t+3}, 3, v{vL}
v_lshl_add_u32 v{t+2}, v{t+3}, 3, v{t+2}
v_bfe_u32 v{t+3}, v{vL}, 3, 2
v_lshl_add_u32 v{t+2}, v{t+3}, 5, v{t+2}
s_add_u32 s{sT0}, s{sM}, {L_E}
v_add_u32 v{vTr}, s{sT0}, v{t+2}
s_sub_u32 s{sT0}, s{sM}, {L_E - L_U}
''')
    for j in range(4):
        if j:
            s(f'v_xor_b32 v{vTr+j}, {32*j}, v{vTr}')
        s(f'v_add_u32 v{vTr+4+j}, s{sT0}, v{vTr+j}')
    s(f'''
v_and_b32 v{t+4}, 1, v{vL}
v_lshrrev_b32 v{t+5}, 1, v{vN}
s_and_b32 s{sT0}, s{sWV}, 2
s_lshl_b32 s{sT0}, s{sT0}, 13
s_lshl_b32 s{sT2}, s{sBH}, 8
s_sub_u32 s{sT0}, s{sT0}, s{sT2}
s_add_u32 s{sT1}, s{sT0}, {56 + 256}
v_mul_u32_u24 v{vFa}, {PART + 128}, v{t+4}
v_lshl_add_u32 v{vFa}, v{vG}, 4, v{vFa}
v_lshlrev_b32 v{t+6}, 3, v{t+5}
v_sub_u32 v{vFa}, v{vFa}, v{t+6}
v_add_u32 v{vFa}, s{sT1}, v{vFa}
s_add_u32 s{sT1}, s{sT0}, {L_U + 512 - 192}
v_mul_u32_u24 v{vGa}, {PART + 32}, v{t+4}
v_lshl_add_u32 v{vGa}, v{vG}, 4, v{vGa}
v_lshl_add_u32 v{vGa}, v{t+5}, 6, v{vGa}
v_add_u32 v{vGa}, s{sT1}, v{vGa}
s_lshr_b32 s{sFUp}, s2, 5
s_lshl_b32 s{sFUp}, s{sFUp}, 9
s_add_u32 s{sFUp}, s{sFUp}, {FU}
v_and_b32 v{vPA}, 31, v{vL}
v_lshlrev_b32 v{vPA}, 4, v{vPA}
s_lshl_b32 s{sT0}, s{sCH}, 12
s_lshl_b32 s{sT1}, s{sBH}, 2
s_sub_u32 s{sT0}, s{sT0}, s{sT1}
s_add_u32 s{sUs}, s{sT0}, {WS_UT}
s_lshl_b32 s{sT1}, s{sBH}, 5
s_add_u32 s{sUm}, s{sP4}, s{sT1}
v_lshl_add_u32 v{vUz}, v{vL}, 3, s{sUm}
s_lshl2_add_u32 s{sT0}, s{sBH}, s{sUm}
v_mov_b32 v{vUz+1}, s{sT0}
''')
    return s


def setup_c():
    s = Seq()
    a, b = t + 4, t + 5
    s(f'''
s_lshl2_add_u32 s{sT3}, s{sTB2}, s{sWV}
s_lshl_b32 s{sFHp}, s{sT3}, 7
s_add_u32 s{sGs}, s{sFHp}, {WS_G}
s_lshl_b32 s{sFHp}, s{sFHp}, {3 if OPT['fhl'] else 0}
s_add_u32 s{sFHp}, s{sFHp}, {FH}
s_lshl_b32 s{sT2}, s{sNB}, 7
v_lshrrev_b32 v{vBa}, 2, v{vPA}
v_add_u32 v{vBa}, s{sT2}, v{vBa}
v_lshlrev_b32 v{vGo}, 3, v{vN}
v_min_u32 v{vPA}, 6, v{vL}
v_lshlrev_b32 v{vPA}, {FHS}, v{vPA}
s_lshl_b32 s{sO0}, s{sT3}, 14
s_add_u32 s{sO0}, s{sO0}, s{sT2}
v_add_u32 v{vL16+1}, 4096, v{vL16}
v_add_u32 v{vL16+2}, 8192, v{vL16}
v_add_u32 v{vL16+3}, 12288, v{vL16}
s_lshl4_add_u32 s{sT3}, s{sTB2}, s{sWV}
s_mul_i32 s{sT3}, s{sT3}, {14*1024}
s_add_u32 s{sT3}, s{sT3}, {WS_H}''')
    for sg in range(4):
        if sg < 3:
            s(f's_add_u32 s{sT2}, s{sWV}, {sg + 1}\ns_and_b32 s{sT2}, s{sT2}, 3')
        s(f's_mul_i32 s{sT2}, s{sT2 if sg < 3 else sWV}, {56*1024}\ns_add_u32 s{sH+sg}, s{sT2}, s{sT3}')
    s(f'''
v_xor_b32 v{a}, v{vL}, v{vG}
s_add_u32 s{sT2}, s{sM}, {L_E + 2*16384}
v_lshl_add_u32 v{vRa}, v{a}, 4, s{sT2}
v_and_b32 v{a}, 3, v{vL}
v_bfe_u32 v{b}, v{vL}, 2, 3
v_lshlrev_b32 v{b}, 1, v{b}
v_xor_b32 v{b}, v{b}, v{a}
v_lshl_add_u32 v{b}, v{a}, 4, v{b}
v_lshrrev_b32 v{a}, 5, v{vL}
v_lshl_add_u32 v{b}, v{a}, 6, v{b}
s_and_b32 s{sT2}, s{sWV}, 2
s_lshl2_add_u32 s{sT2}, s{sBH}, s{sT2}
s_lshl_b32 s{sT2}, s{sT2}, 12
s_add_u32 s{sT2}, s{sT2}, {L_E + 2*16384}
v_lshl_add_u32 v{vRa+1}, v{b}, 4, s{sT2}
v_xor_b32 v{vRa+2}, 16, v{vRa+1}
v_and_b32 v{a}, 0x380, v{vL16}
v_add_u32 v{vAo}, v{vL16}, v{a}
s_lshl1_add_u32 s{sAT}, s{sCH}, s{sBH}
s_lshl_b32 s{sAT}, s{sAT}, 12
s_add_u32 s{sAT}, s{sAT}, {WS_AT}
''')
    return s


def setup_e():
    s = Seq()
    a, b, c = t + 4, t + 5, t + 6
    s(f'''
s_add_u32 s{sT2}, s{sM}, {L_E}
v_add_u32 v{vPW}, s{sT2}, v{vL16}
s_lshl2_add_u32 s{sT0}, s{sNB}, s{sWV}
s_lshl_b32 s{sT0}, s{sT0}, 9
s_add_u32 s{sT0}, s{sT0}, s{sTB2}
s_lshl_b32 s{sT0}, s{sT0}, 8
s_add_u32 s{sAs}, s{sT0}, {WS_AT}
s_add_u32 s{sAs+1}, s{sAs}, 32768
s_add_u32 s{sAs+2}, s{sAs}, 65536
s_add_u32 s{sAs+3}, s{sAs}, 98304
v_lshlrev_b32 v{a}, 13, v{vG}
v_lshl_add_u32 v{vAs}, v{vN}, 4, v{a}''')
    for sg in range(3):
        s(f'''
s_sub_u32 s{sT0}, s{sM}, {4096 * (sg + 1)}
s_and_b32 s{sT0}, s{sT0}, 0x3000
s_add_u32 s{sT0}, s{sT0}, {L_E + 16384*sg}
v_add_u32 v{t+sg}, s{sT0}, v{vL16}''')
    s(f'''
v_bfe_u32 v{a}, v{vL}, 1, 2
v_lshrrev_b32 v{b}, 5, v{vL}
v_xor_b32 v{a}, v{a}, v{b}
v_lshlrev_b32 v{a}, 5, v{a}
v_lshl_add_u32 v{a}, v{vG}, 7, v{a}
v_and_b32 v{b}, 1, v{vL}
v_lshl_add_u32 v{a}, v{b}, 4, v{a}
v_and_b32 v{b}, 8, v{vL}
s_add_u32 s{sT2}, s{sM}, {L_E + 3*16384}
v_add3_u32 v{vAd}, v{a}, v{b}, s{sT2}
v_xor_b32 v{vAd+1}, 64, v{vAd}
v_and_b32 v{b}, 7, v{vL}
v_lshrrev_b32 v{c}, 3, v{vL}
v_lshlrev_b32 v{vOa}, 10, v{c}
v_lshl_add_u32 v{vOa}, v{b}, 4, v{vOa}
v_xor_b32 v{a}, v{vL}, v{c}
s_add_u32 s{sT2}, s{sM}, {L_E + 4*16384}
v_lshl_add_u32 v{vOr}, v{a}, 4, s{sT2}
v_lshrrev_b32 v{a}, 1, v{vG}
v_xor_b32 v{a}, v{a}, v{b}
v_lshlrev_b32 v{a}, 4, v{a}
v_lshl_add_u32 v{a}, v{vN}, 7, v{a}
v_and_b32 v{b}, 1, v{vG}
v_lshl_add_u32 v{a}, v{b}, 3, v{a}
v_add_u32 v{vOw}, s{sT2}, v{a}
v_xor_b32 v{vOw+1}, 32, v{vOw}
v_xor_b32 v{vOw+2}, 64, v{vOw}
v_xor_b32 v{vOw+3}, 96, v{vOw}
s_lshl_b32 s{sT0}, s{sWV}, 5
s_sub_u32 s{sT2}, {3*16384}, s{sM}
v_xor_b32 v{a}, s{sT0}, v{vTr}
v_add_u32 v{vAr}, s{sT2}, v{a}
s_add_u32 s{sO1}, s{sO0}, 8192
''')
    return s


def kgen(pkC, za, npb=40):
    s = Seq()
    live = {}
    vb = V.alloc(36, 2)
    pb = V.alloc(npb, 2)
    VV, VP, VZ = Regs('v', vb, vb + 36), Regs('v', pb, pb + 32), Regs('v', za, za + 32)
    pool = lambda nm: VP if nm[0] == 'p' else VZ if (nm[0] == 'z' and nm not in ('z128', 'z256', 'z512')) else VV

    def A(name, n=1):
        live[name] = (pool(name).alloc(n), n)
        return live[name][0]

    def F(*names):
        for nm in names:
            pool(nm).release(*live.pop(nm))

    P, canon, extra = {}, [], {}

    def cut(name):
        nonlocal s
        canon.extend(s.l)
        P[name], s = s, Seq()

    la, ai, cr, ci, ld, dsk = [vPAR + i for i in range(6)]
    LOG2E, LOG2E_LO, LN2 = 0x3fb8aa3b, 0x32a5705f, 0x3f317218
    s(f'''
s_lshr_b32 s{sT0}, s{sWV}, 1
s_lshl_b32 s{sT0}, s{sT0}, 4
s_lshr_b32 s{sDT}, s{sDT}, s{sT0}
s_lshr_b32 s{sDS}, s{sDS}, s{sT0}
v_lshlrev_b32 v{ld}, 16, s{sDT}
v_lshlrev_b32 v{dsk}, 16, s{sDS}
s_mov_b32 s{sT0}, {LOG2E:#x}
v_lshlrev_b32 v{la}, 16, v{la}''')
    for k, x in enumerate((la, ld)):
        s(f'v_mul_f32 v{t+2*k}, s{sT0}, v{x}')
    acc_ = (((1, ld),) if OPT['fe'] else ((0, la), (1, ld)))
    for k, x in acc_:
        s(f'v_fma_f32 v{t+2*k+1}, v{x}, s{sT0}, -v{t+2*k}')
    for k, x in enumerate((la, ld)):
        s(f'v_exp_f32 v{t+2*k}, v{t+2*k}')
    for k, x in acc_:
        s(f'v_fmamk_f32 v{t+2*k+1}, v{x}, {LOG2E_LO:#x}, v{t+2*k+1}')
    for k, x in acc_:
        s(f'v_mul_f32 v{t+2*k+1}, {LN2:#x}, v{t+2*k+1}')
    for k, x in acc_:
        s(f'v_fma_f32 v{t+2*k}, v{t+2*k}, v{t+2*k+1}, v{t+2*k}')
    for x in (ai, cr, ci):
        s(f'v_lshlrev_b32 v{x}, 16, v{x}')
    s(f'''
v_cvt_pk_bf16_f32 v{t}, v{t}, v{t+2}
v_and_b32 v{ld}, 0xffff0000, v{t}
v_lshlrev_b32 v{la}, 16, v{t}
''')
    val = lambda nm: live[nm][0]
    A('c0', 2)
    s(f'''
v_mul_f32 v{la}, v{la}, v{ld}
v_mul_f32 v{ai}, v{ai}, v{ld}
v_add_f32 v{ld}, v{ld}, v{ld}
v_mul_f32 v{la}, {f32(-1.4426950408889634)}, v{la}
v_mul_f32 v{ai}, 0.15915494, v{ai}
v_mul_f32 v{val('c0')}, v{cr}, v{ld}
v_mul_f32 v{val('c0')+1}, v{ci}, v{ld}
''')
    zs = (('z8', 8.0), ('z1', 1.0), ('z128', 128.0))
    for k, (nm, p) in enumerate(zs):
        A(nm, 2)
        s(f'v_mul_f32 v{t+2*k}, {f32(p)}, v{la}')
        s(f'v_mul_f32 v{t+2*k+1}, {f32(p)}, v{ai}')
    for k, (nm, p) in enumerate(zs):
        s(f'v_fract_f32 v{t+2*k+1}, v{t+2*k+1}')
        s(f'v_exp_f32 v{t+2*k}, v{t+2*k}')
    for k, (nm, p) in enumerate(zs):
        s(f'v_cos_f32 v{val(nm)}, v{t+2*k+1}')
        s(f'v_sin_f32 v{val(nm)+1}, v{t+2*k+1}')
    for k, (nm, p) in enumerate(zs):
        s(f'v_pk_mul_f32 {vr(val(nm),2)}, {vr(val(nm),2)}, {vr(t+2*k,2)} op_sel_hi:[1,0]')
    fr, acc = 160, 224
    s(f'''
s_lshl_b32 s{sT0}, s{sBH}, 6
s_sub_u32 s{sT0}, 64, s{sT0}
v_cmp_eq_u32 vcc, s{sT0}, v{vL}
v_accvgpr_write_b32 a{acc+1}, 0
v_accvgpr_write_b32 a{acc+2}, 0
v_cndmask_b32 v{dsk}, 0, v{dsk}, vcc
v_accvgpr_write_b32 a{acc+3}, 0
v_accvgpr_write_b32 a{acc}, v{dsk}
''')
    mode = {'pk': True}

    def pack(nm):
        p = A('p' + nm)
        s(f'v_cvt_pk_bf16_f32 v{p}, v{val(nm)}, {"-" if nm[0] == "z" else ""}v{val(nm)+1}')

    def mp(lst):
        for d, a, b in lst:
            A(d, 2)
        if mode['pk']:
            for d, a, b in lst:
                s(f'v_pk_mul_f32 {vr(val(d),2)}, {vr(val(a),2)}, {vr(val(b),2)} op_sel_hi:[1,0]')
            for d, a, b in lst:
                s(f'v_pk_fma_f32 {vr(val(d),2)}, {vr(val(a),2)}, {vr(val(b),2)}, {vr(val(d),2)} op_sel:[1,1,0] op_sel_hi:[0,1,1] neg_lo:[1,0,0]')
        else:
            for d, a, b in lst:
                s(f'v_mul_f32 v{val(d)}, v{val(a)}, v{val(b)}')
                s(f'v_mul_f32 v{val(d)+1}, v{val(a)+1}, v{val(b)}')
                s(f'v_fma_f32 v{val(d)}, -v{val(a)+1}, v{val(b)+1}, v{val(d)}')
                s(f'v_fmac_f32 v{val(d)+1}, v{val(a)}, v{val(b)+1}')
        for d, _, _ in lst:
            if d not in ('z256', 'z512'):
                pack(d)

    s(f'v_mov_b32 v{A("pz0")}, 0x3f80')
    pack('z8')
    pack('c0')
    lo_rounds = [[('z16', 'z8', 'z8'), ('z256', 'z128', 'z128')],
                 [('z24', 'z16', 'z8'), ('z32', 'z16', 'z16')],
                 [('z40', 'z8', 'z32'), ('z48', 'z16', 'z32')],
                 [('z56', 'z24', 'z32'), ('z64', 'z32', 'z32')],
                 [('z72', 'z40', 'z32'), ('z80', 'z48', 'z32')],
                 [('z88', 'z56', 'z32'), ('z96', 'z64', 'z32')],
                 [('z104', 'z72', 'z32'), ('z112', 'z80', 'z32'), ('z120', 'z88', 'z32')]]
    def wr(row, names):
        for k, nm in enumerate(names):
            s(f'ds_write_addtid_b32 v{val("p" + nm)} offset:{272*(row+k)}', m0=f's_mov_b32 m0, s{sP4}')
            extra[id(s.l[-1])] = ([f'row{row+k}'], [])

    def rd(tile):
        for ks in range(4):
            s(f'ds_read_b128 {ar(fr+16*tile+4*ks,4)}, v{vRR} offset:{(O_T if tile == 3 else 0) + 64*ks}')
            extra[id(s.l[-1])] = ([], [f'row{r + (16 if tile == 3 else 0)}' for r in range(16)])

    for r, lst in enumerate(lo_rounds):
        mp(lst + [(f'c{r+1}', f'c{r}', 'z1')])
        F(*{2: ['z8', 'z16'], 3: ['z24'], 4: ['z40', 'z48'], 5: ['z56', 'z64', 'z96']}.get(r, []))
    F('z1', 'z32', 'z72', 'z80', 'z88', 'z104', 'z112', 'z120')
    cut('A')
    wr(0, [f'z{8*b}' for b in range(16)])
    cut('wl')
    rd(0)
    cut('rl')
    mp([(f'c{128+o}', f'c{o}', 'z128') for o in range(4)])
    F('c1', 'c3', 'c129', 'c131')
    mp([(f'c{128+o}', f'c{o}', 'z128') for o in range(4, 8)])
    F('z128', 'c5', 'c7', 'c133', 'c135')
    cut('v0')
    F(*[f'pz{8*b}' for b in range(16)])
    t0 = [f'c{h}' for h in list(range(8)) + list(range(128, 136))]
    wr(0, t0)
    cut('w0')
    rd(1)
    cut('r0')
    mp([(f'c{256+o}', f'c{o}', 'z256') for o in (0, 2, 4, 6)])
    F('c0', 'c2', 'c4', 'c6', 'c258', 'c262')
    mp([(f'c{384+o}', f'c{128+o}', 'z256') for o in (0, 2, 4, 6)] + [('z512', 'z256', 'z256')])
    F('c128', 'c130', 'c132', 'c134', 'c386', 'c390')
    mp([(f'c{h+256}', f'c{h}', 'z256') for h in (256, 260, 384, 388)])
    mp([(f'c{h+512}', f'c{h}', 'z512') for h in (256, 260, 384, 388)])
    F('z256', 'c516', 'c644', 'c256', 'c260', 'c384', 'c388', 'c772', 'c900')
    cut('v1')
    wr(0, [f'c{h}' for h in (256, 258, 260, 262, 384, 386, 388, 390, 512, 516, 640, 644, 768, 772, 896, 900)])
    cut('w1')
    rd(2)
    cut('r1')
    F(*['p' + x for x in t0])
    mp([(f'c{h+512}', f'c{h}', 'z512') for h in (512, 640, 768, 896)])
    F('c512', 'c640', 'c768', 'c896')
    mp([(f'c{h+512}', f'c{h}', 'z512') for h in (1024, 1152, 1280, 1408)])
    F('c1024', 'c1152', 'c1280', 'c1408')
    mp([('c2048', 'c1536', 'z512')])
    cut('v2')
    wr(16, [f'c{1024 + 128*k}' for k in range(9)])
    cut('w2')
    rd(3)
    cut('r2')
    for k in range(3):
        for ks in range(4):
            c = ar(acc + 4 * k, 4)
            s(f'v_mfma_f32_16x16x32_bf16 {c}, {ar(fr+16*(k+1)+4*ks,4)}, {ar(fr+4*ks,4)}, {c if (ks or k == 0) else 0}')
    cut('mf')
    s(f'ds_write_b32 v{vEa+2}, v{vZ} offset:{699*4}')
    for k in range(6):
        o0, o1 = (0, 100) if k < 4 else (4 * (k - 4), 4 * (k - 4) + 2)
        s(f'ds_write2_b32 v{vTA+min(k,4)}, a{acc+2*k}, a{acc+2*k+1} offset0:{o0} offset1:{o1}')
    for k, it in enumerate(s.l):
        extra[id(it)] = ([f'row{25+k}'], [])
    cut('wt')
    gv, ov = vb, pb
    for i in range(9):
        for p in range(2):
            s(f'ds_read2st64_b32 {vr(gv+4*i+2*p,2)}, v{vGA+i} offset0:{17 + 32*p} offset1:{17 + 32*(2+p)}')
    cut('rc')
    for i in range(9):
        if pkC:
            s(f'v_pk_add_f32 {vr(gv+4*i,2)}, {vr(gv+4*i,2)}, {vr(gv+4*i+2,2)}')
        else:
            s(f'v_add_f32 v{gv+4*i}, v{gv+4*i}, v{gv+4*i+2}')
            s(f'v_add_f32 v{gv+4*i+1}, v{gv+4*i+1}, v{gv+4*i+3}')
    for c in range(2):
        for o in (1, 0):
            for k in range(4):
                a = gv + 4 * (2 * k + (1 - o)) + c
                s(f'v_cvt_pk_bf16_f32 v{ov+8*c+4*o+k}, v{a}, v{a+4}')
    cut('vc')
    for c in range(2):
        for o in (1, 0):
            s(f'ds_write_b128 v{vEa}, {vr(ov+8*c+4*o,4)} offset:{(2*c+o)*PART + 128*o}')
    s(f'ds_write_b128 v{vEa+1}, {vr(vZ2,4)} offset:4096')
    s(f'ds_write_b64 v{vUz}, {vr(vZ2,2)} offset:{L_U}')
    cut('wc')
    P['vb'], P['pb'] = vb, pb
    checks.append((canon, extra))
    return P


W2E = [2, 'A', 'B', 3, 0, 4, 1, 5, 2, 3, 0, 4, 1, 5]
W2DEP = {8: 0, 9: 3, 10: 4, 11: 5, 12: 6, 13: 7}


def w2_dma(ks):
    g = []
    e = W2E[ks]
    m0 = f's_add_u32 m0, s{sP4}, {L_U + 4096*"AB".index(e)}' if e in ('A', 'B') else f's_add_u32 m0, s{sM}, {L_E + 16384*e}'
    for i in range(4):
        s = Seq()
        if i == 0:
            if ks in W2DEP:
                s.wait(f'tr{W2DEP[ks]}')
            s(f's_add_u32 s{sW2l}, s{sW2l}, 32768')
        if OPT['skipw'] and ks >= 7:
            s('s_nop 0', tag=f'w2d{ks}')
        else:
            s(f'buffer_load_dwordx4 v{vW2s+i}, {srd(SW2)}, s{sW2l} offen offset:{1024*i} lds', tag=f'w2d{ks}', m0=m0)
        g.append(s)
    return g


def w2_tr(ks):
    g = []
    e = W2E[ks]
    win, off = (1, 4096 * 'AB'.index(e)) if e in ('A', 'B') else (e // 4, 16384 * (e % 4))
    for j in range(4):
        for hh in range(2):
            s = Seq()
            if j == 0 and hh == 0:
                s.wait(f'w2d{ks}')
            s(f'ds_read_b64_tr_b16 {ar(16*ks+4*j+2*hh,2)}, v{vTr+4*win+j} offset:{off + 2048*hh}', tag=f'tr{ks}')
            g.append(s)
    return g


def w2_window():
    return Seq()('\n'.join(f'v_add_u32 v{vTr+4+j}, 65536, v{vTr+j}' for j in range(4)))


def u_poll_issue():
    return Seq()(f'buffer_load_dword v{vPF}, v{vPA}, {srd(SWS)}, s{sFUp} offen sc1')


def u_dma():
    s = Seq()
    s(f'v_cmp_ne_u32 vcc, s{sNON}, v{vPF}')
    retry(s, 's_cbranch_vccnz', 's_cbranch_vccz', f'''
buffer_load_dword v{vPF}, v{vPA}, {srd(SWS)}, s{sFUp} offen sc1
s_waitcnt vmcnt(0)
v_cmp_ne_u32 vcc, s{sNON}, v{vPF}''')
    s.wait('tr2')
    for i in range(4):
        s(f'buffer_load_dwordx4 v{vL16}, {srd(SWS)}, s{sUs} offen offset:{1024*i} sc1 lds', tag='udma', m0=f's_add_u32 m0, s{sUm}, {L_U + 512}')
    return s


main = Seq()
vXr = V.alloc(2, 1)
vWr = V.alloc(4, 1)
vACC = V.alloc(64, 2)
vFR = V.alloc(32, 2)
aFR = 96
pro_body(main)
main(f'''
s_mul_i32 s{sT0}, s{sJ}, 9363
s_lshr_b32 s{sT0}, s{sT0}, 16
s_mul_i32 s{sT1}, s{sT0}, 7
s_sub_u32 s{sT1}, s{sJ}, s{sT1}
s_lshl2_add_u32 s{sTB2}, s{sXCD}, s{sT0}
s_cmp_ge_u32 s{sT1}, 3
s_addc_u32 s{sNB}, s{sT1}, 0
s_lshr_b32 s{sT2}, s{sXCD}, 1
s_and_b32 s{sT3}, s{sXCD}, 1
s_lshl2_add_u32 s{sT0}, s{sT2}, s{sT0}
s_lshl1_add_u32 s{sKC}, s{sT3}, s{sT2}
s_mul_i32 s{sT3}, s{sT3}, 7
s_add_u32 s{sT1}, s{sT1}, s{sT3}
s_and_b32 s{sXb}, s{sT0}, {(0, 0, 1, 3)[OPT['rot']]}
s_lshl1_add_u32 s{sKC}, s{sKC}, s{sXb}
s_lshl_b32 s{sKC}, s{sKC}, 3
s_and_b32 s{sKC}, s{sKC}, {63 if OPT['rot'] else 0}
s_lshr_b32 s{sT3}, s{sWV}, 1
s_lshl1_add_u32 s{sTB1}, s{sT0}, s{sBH}
s_lshl1_add_u32 s{sCB1}, s{sT1}, s{sT3}
s_lshl2_add_u32 s{sXb}, s{sT0}, s{sWV}
s_lshl_b32 s{sXb}, s{sXb}, 15
s_mul_i32 s{sWb}, s{sWV}, {16*3584}
s_lshl_b32 s{sT1}, s{sT1}, 8
s_add_u32 s{sWb}, s{sWb}, s{sT1}
v_and_b32 v{t+1}, 7, v{vL}
v_xor_b32 v{t}, v{vG}, v{t+1}
v_lshrrev_b32 v{t+1}, 3, v{vL}
v_lshlrev_b32 v{t+1}, 10, v{t+1}
v_lshl_add_u32 v{vXs}, v{t}, 4, v{t+1}
v_xor_b32 v{t}, 64, v{vXs}
v_add_u32 v{vXs+1}, 7168, v{t}
v_add_u32 v{vXs+2}, {2*7168}, v{vXs}
v_add_u32 v{vXs+3}, {3*7168}, v{t}
v_lshlrev_b32 v{t}, 2, v{vG}
v_xor_b32 v{t}, v{t}, v{vN}
v_mul_u32_u24 v{t+1}, 3584, v{vG}
v_lshl_add_u32 v{vWs}, v{t}, 4, v{t+1}
''')
main(f'''
v_add_u32 v{vWs+1}, {4*3584 - 1024}, v{vWs}
v_xor_b32 v{t}, 2, v{t}
v_lshl_add_u32 v{t}, v{t}, 4, v{t+1}
v_add_u32 v{vWs+2}, {(4*3584 - 1024)*2}, v{t}
v_add_u32 v{vWs+3}, {(4*3584 - 1024)*3}, v{t}''')


def stage_loads(st):
    g = []
    last = 0 if OPT['wf'] else 1
    for isw in (1 - last, last):
        for i in range(4):
            s = Seq()
            if i == 0:
                if isw:
                    s(f's_mul_i32 s{sWk}, s{sKC}, {8*3584}')
                    s(f's_add_u32 s{sWk}, s{sWk}, s{sWb}')
                else:
                    s(f's_lshl4_add_u32 s{sXk}, s{sKC}, s{sXb}')
            m0 = f's_add_u32 m0, s{sM}, {(L_W if isw else L_X) + 16384*(st % 4)}'
            if isw:
                s(f'buffer_load_dwordx4 v{vWs+i}, {srd(SW1)}, s{sWk} offen offset:{1024*i} lds', tag=f'st{st}', m0=m0)
            else:
                s(f'buffer_load_dwordx4 v{vXs+i}, {srd(SX)}, s{sXk} offen offset:{1024*i} lds', tag=f'st{st}', m0=m0)
            if isw == last and i == 1:
                s(f's_add_u32 s{sKC}, s{sKC}, 8')
            if isw == last and i == 2:
                s(f's_and_b32 s{sKC}, s{sKC}, 63')
            g.append(s)
    return g


LS = [g for st in range(8) for g in stage_loads(st)]
main(f's_or_b32 s{sT0}, s2, s{sWV}')
main('s_waitcnt lgkmcnt(0)')
stamp(main, 'karg')
main(f'''
s_cmp_eq_u32 s{sT0}, 0
s_cbranch_scc1 Lnonce
Lnonce_back:''')
outline.append(f'''Lnonce:
    s_memrealtime s[{sHst}:{sHst2}]
    s_waitcnt lgkmcnt(0)
    s_or_b32 s{sHst}, s{sHst}, 1
    s_atomic_swap s{sHst}, {ptr(P_DBG)}, 0
    s_branch Lnonce_back
''')
L_UT = L_W + 3 * 16384
param_loads(main)
main.add(ut_loads(L_UT))
scalar_params(main)
NE, NK = OPT['early'], OPT['nk']
su = Seq()
su(f'''
v_lshrrev_b32 v{t+1}, 1, v{vN}
v_xor_b32 v{t+1}, v{t+1}, v{vG}
s_lshl_b32 s{sT0}, s{sBH}, 13
s_add_u32 s{sT0}, s{sT0}, {L_X}
v_lshl_add_u32 v{t}, v{vN}, 7, s{sT0}
v_lshl_add_u32 v{vXr}, v{t+1}, 4, v{t}
v_xor_b32 v{vXr+1}, 64, v{vXr}
v_bfe_u32 v{t}, v{vL}, 2, 2
v_lshl_add_u32 v{t+1}, v{vG}, 3, v{t}
v_lshlrev_b32 v{t+1}, 8, v{t+1}
v_and_b32 v{t+2}, 3, v{vL}
v_lshl_add_u32 v{t+1}, v{t+2}, 3, v{t+1}
v_add_u32 v{t+1}, {L_W}, v{t+1}
v_and_b32 v{t+2}, 1, v{vG}
v_lshl_add_u32 v{t}, v{t}, 1, v{t+2}
s_and_b32 s{sT0}, s{sWV}, 2
s_lshl_b32 s{sT0}, s{sT0}, 1
v_xor_b32 v{t}, s{sT0}, v{t}
v_lshl_add_u32 v{vWr}, v{t}, 5, v{t+1}
v_xor_b32 v{vWr+1}, 32, v{vWr}
v_xor_b32 v{vWr+2}, 64, v{vWr}
v_xor_b32 v{vWr+3}, 96, v{vWr}
''')
sk = setup_k()
su.add(sk.l[:3] if OPT['kf'] else sk.l)
sa = setup_a()
ntouch = OPT['touch'] + OPT['tlb'] + OPT['c3'] + OPT['t1'] + OPT['c3x']
su.add(setup_g())
su.add(ut_setup(L_UT))
su.add(sa.l[:len(sa) - ntouch])
main.add(cat(LS[:4]))
main.add(sprinkle(su, LS[4:NE], 0, 12 * (NE - 4)))
if OPT['iw']:
    main(';IWARM main')
stamp(main, 'setup')
TL = OPT['tl']
K = kgen(TL > 0, vACC)
vTS = K['pb'] + 16


def kgen_seq(K, f=()):
    s = Seq()
    wl, w0, w1 = chunks(K['wl'], 4), chunks(K['w0'], 4), chunks(K['w1'], 4)
    v0, v1, v2 = K['v0'].l, K['v1'].l, K['v2'].l
    s.add(K['A']).add(wl[0]).add(wl[1]).add(v0[:6]).add(wl[2]).add(wl[3]).add(v0[6:20]).add(K['rl']).add(v0[20:])
    s.add(w0[0]).add(v1[:8]).add(w0[1]).add(v1[8:16]).add(w0[2]).add(v1[16:24]).add(w0[3]).add(v1[24:40])
    s.add(K['r0']).add(v1[40:])
    s.add(w1[0]).add(v2[:8]).add(w1[1]).add(v2[8:16]).add(w1[2]).add(v2[16:24]).add(w1[3]).add(v2[24:])
    s.add(list(f)[:2]).add(K['w2'])
    mf, wt = K['mf'].l, K['wt'].l
    f = list(f)
    s.add(mf[:4]).add(f[13:25]).add(K['r1']).add(K['r2']).add(f[25:]).add(mf[4:]).add(f[2:13]).add(wt)
    return s


ka = kgen_seq(K, sk.l[3:] if OPT['kf'] else ())
ua, ub = ut_work(vFR)
tch = sa.l[len(sa) - ntouch:] if ntouch else []
UA = OPT['ua']
ka.l[UA + 60:UA + 60] = nonce_issue().l
ka.l[UA + 40:UA + 40] = ub.l[-1:]
ka.l[UA + 24:UA + 24] = ub.l[:-1]
ka.l[UA:UA] = ua.l
for k, x in enumerate(tch):
    pos = OPT['te'] + 10 * (len(tch) - k) if OPT['te'] else UA - 12 * (k + 1)
    ka.l[pos:pos] = [x]
if OPT['stamps'] == 3:
    for pos, nm in ((len(ka) - OPT['res'], 'kC'), (170, 'kB'), (60, 'kA'), (8, 'bar')):
        x = Seq()
        stamp(x, nm, 3)
        ka.l[pos:pos] = x.l
    stamp_names[-4:] = stamp_names[:-5:-1]
wt_late = []
if OPT['wtl']:
    wt_late, ka.l = ka.l[-7:], ka.l[:-7]
PRE0 = Seq()
if OPT['pb']:
    ka.l[OPT['pb']:OPT['pb']] = [PRE0]
NM = max(OPT['nm'], NE)
ka = sprinkle(ka, LS[NM:NK], len(ka) - OPT['res'], len(ka) - (0 if OPT['wtl'] else 7))
main.add(sprinkle(ka, LS[NE:NM], 9, 9 + OPT['nms'] * (NM - NE)))
stamp(main, 'kgenA')


def g1_reads(st, ks):
    o = 16384 * (st % 4)
    b = aFR + 32 * ks
    A = [[f'ds_read_b64_tr_b16 {ar(b+4*k+2*hh,2)}, v{vWr+k} offset:{o + ks*8192 + hh*1024}' for hh in range(2)] for k in range(4)]
    B = [f'ds_read_b128 {ar(b+16+4*k,4)}, v{vXr+ks} offset:{o + k*2048}' for k in range(4)]
    return A[0] + B[::-1] + A[1] + A[2] + A[3]


SNAKE = [(ft, tt if ft % 2 == 0 else 3 - tt) for ft in range(4) for tt in range(4)]


def g1_mfma(st, ks):
    b = aFR + 32 * ks
    r = []
    for ft, tt in SNAKE:
        a = vr(vACC + 16 * tt + 4 * ft, 4)
        r.append(f'v_mfma_f32_16x16x32_bf16 {a}, {ar(b+4*ft,4)}, {ar(b+16+4*tt,4)}, {0 if (st == 0 and ks == 0) else a}')
    return r


pc_addr = Seq()
pc_addr(f'''
v_lshl_add_u32 v{t}, v{vN}, 4, s{sP4}
s_lshl_b32 s{sT0}, s{sCB1}, 10
s_add_u32 s{sT0}, s{sT0}, {WS_FP}
s_lshl_b32 s{sT1}, s{sTB1}, 10
s_add_u32 s{sT4}, s{sT1}, {WS_TS - 2048}
s_add_u32 s{sT1}, s{sT1}, {WS_TP - 1024}''')
pc_m0 = f's_add_u32 m0, s{sP4}, {O_T}'
pc_ld = [f'buffer_load_dwordx4 v{vL16}, {srd(SWS)}, s{(sT0, sT1, sT4)[w]} offen offset:{1024*w} sc1 lds' for w in range(3)]
pcr = [vFR + 4 * k for k in range(8)] + [vTS + 4 * k for k in range(4)]
pc_rd = [f'ds_read_b128 {vr(r,4)}, v{t} offset:{O_T + 256*k}' for k, r in enumerate(pcr)]
pc_cmp = [f'v_xor_b32 v{r+3}, s{sNON}, v{r+3}' for r in pcr]
pc_cmp += [f'v_or3_b32 v{t+1}, v{pcr[0]+3}, v{pcr[1]+3}, v{pcr[2]+3}']
pc_cmp += [f'v_or3_b32 v{t+1}, v{t+1}, v{pcr[k]+3}, v{pcr[min(k+1, 11)]+3}' for k in range(3, 12, 2)]
pc_cmp += [f'v_cmp_ne_u32 vcc, 0, v{t+1}']
pc_chk = [Seq()(x) for x in pc_cmp]
retry(pc_chk[-1], 's_cbranch_vccnz', 's_cbranch_vccz',
      '\n'.join([f's_mov_b32 s{sXk}, m0', pc_m0, 's_nop 0'] + pc_ld + ['s_waitcnt vmcnt(0)'] + pc_rd
                + [f's_mov_b32 m0, s{sXk}', 's_waitcnt lgkmcnt(0)'] + pc_cmp))
sHs = (sHst, sHst2, sXb, sWb)
hadr = Seq()
hadr(f'''
s_mul_i32 s{sHst}, s{sTB1}, {4*56}
s_lshl1_add_u32 s{sHst}, s{sCB1}, s{sHst}
s_lshl_b32 s{sHst}, s{sHst}, 10
s_add_u32 s{sHst}, s{sHst}, {WS_H}
s_add_u32 s{sHst2}, s{sHst}, {56*1024}
s_add_u32 s{sXb}, s{sHst}, {2*56*1024}
s_add_u32 s{sWb}, s{sHst}, {3*56*1024}
s_mul_i32 s{sT2}, s{sCB1}, 9363
s_lshr_b32 s{sT2}, s{sT2}, 16
s_mul_i32 s{sT3}, s{sT2}, 7
s_sub_u32 s{sT3}, s{sCB1}, s{sT3}
s_lshl2_add_u32 s{sFH}, s{sTB1}, s{sT2}
s_lshl_b32 s{sFH}, s{sFH}, {10 if OPT['fhl'] else 7}
s_lshl_b32 s{sT3}, s{sT3}, {FHS}
s_add_u32 s{sFH}, s{sT3}, s{sFH}
s_add_u32 s{sFH}, s{sFH}, {FH}
''')
assert HS == 1

G = Gaps([x for st in range(8) for ks in range(2) for x in g1_mfma(st, ks)] +
         [f'v_mfma_f32_16x16x32_bf16 {vr(vACC+16*tt+4*ft,4)}, {vr(vFR+4*ft,4)}, {vr(vFR+16+4*tt,4)}, {vr(vACC+16*tt+4*ft,4)}'
          for tt in range(4) for ft in range(4)], cap=8, maxlds=1)
BG = 19
for st in range(8):
    b = 32 * st
    G.put(b + BG, bar(f'rd{st}', *([f'st{st+1}', 'utst'] if st < 7 else [])))
    for k, x in enumerate(g1_reads(st, 1)):
        G.put(b + k, Seq()(x, tag=f'rd{st}'))
    if st < 7:
        for k, x in enumerate(g1_reads(st + 1, 0)):
            G.put(b + BG + 1 + k, x)
    for g in (3, 7, 15, 31):
        G.reserve(b + g, 4)
LG = sorted((21, 25, 29, 1, 5, 9, 13, 17, 23, 11, 27)[:OPT['lst']])
lg = [g for g in range(272) if g % 32 in LG]
for i in range(NK, 64):
    while lg[0] <= 32 * (i // 8 - 4) + BG:
        lg.pop(0)
    last_ld = lg.pop(0)
    assert last_ld < 32 * (i // 8 - 1) + BG
    assert last_ld > BG or i < 28 - 4 * OPT['wf']
    G.put(last_ld, LS[i])
if TL:
    for st in (1, 2):
        G.put(32 * st + 13, f'ds_read_b32 v{vPF}, v{vZ}')
else:
    for k, g_ in enumerate(singles(K['rc'])):
        G.put(32 * (1 + k // 6) + 12 + k % 6, g_)
G.put(BG + 1, nonce_check())
G.put(BG + 3, fu_flag())
lg = [g for g in range(max(last_ld + 1, 32 * 4 + BG + 1), 272) if g % OPT['lq'] == 1]
wat = {}
for ks in (0, 'p', 1, 2, 'u', 3, 4, 5):
    grp = [Seq()(x, tag='pcd', m0=pc_m0) for x in pc_ld] if ks == 'p' else [u_poll_issue()] if ks == 'u' else w2_dma(ks)
    while lg[0] <= {1: 32 * 5 + BG, 4: 32 * 6 + BG, 'p': OPT['pcg']}.get(ks, 0):
        lg.pop(0)
    for g_ in grp:
        wat[ks] = lg.pop(0)
        G.put(wat[ks], g_)
print('late loads', wat)
G.fill(w2_tr(0), 204, 212)
pr = [Seq()(x) for x in pc_rd]
pr[0] = Seq().wait('pcd').add(pr[0])
G.fill(pr, 236, 248)
G.fill(w2_tr(1) + w2_tr(2), 248, 266)
G.put(268, w2_window())
G.fill(pc_chk, 243, 255)
p = G.spread(singles(setup_b()), 24, 128)
p = G.spread(singles(pc_addr) + ([] if TL else singles(K['vc'])), 128, 200)
assert p[len(pc_addr) - 1] < wat['p'] - 9
p2 = G.spread(singles(hadr), 200, 236)
print('gemm1 over', G.over(), 'last load gap', last_ld, p[-1], p2[-1])
PRE0.add(bar('st0'))
for x in g1_reads(0, 0):
    PRE0(x)
if OPT['pb']:
    k_ = main.l.index(PRE0)
    main.l[k_:k_ + 1] = PRE0.l
    assert not any('addtid' in it.mn for it in main.l[:k_])
else:
    main.add(PRE0)
stamp(main, 'b0', 5)
if not TL:
    main.add(wt_late)
for st in range(8):
    if OPT['stamps'] == 5 and st in (0, 1, 6, 7):
        for lo, hi in ((0, 1), (1, 10), (10, 19), (19, 21), (21, 32)):
            main.add(G.emit(32 * st + lo, 32 * st + hi))
            if hi < 32:
                stamp(main, f's{st}_{hi}', 5)
    else:
        main.add(G.emit(32 * st, 32 * st + 32))
    stamp(main, f'g1s{st}', 1 if st in (3, 7) else 2)
main.add(G.emit(256))
delay(main, (4,))
q = vTS + 16
gx = {k: [] for k in range(8)}
wc = singles(K['wc'])
if TL:
    vc, wl_ = K['vc'].l, K['wc'].l
    gx[TL] += [Seq().add(wt_late).add(wl_[4:])]
    gx[min(TL + 1, 7)] += [bar('*lds'), K['rc']]
    gx[min(TL + 2, 7)] += [Seq().add(vc[:13]).add(wl_[:1]).add(vc[13:17]).add(wl_[1:2]).add(vc[17:21]).add(wl_[2:3]).add(vc[21:]).add(wl_[3:4])]
else:
    gx[6] += wc[:3]
    gx[7] += wc[3:]
ud = u_dma()
gl_ = [Seq().add(ud.l[:-3])] + singles(Seq().add(ud.l[-3:])) + [g for k in range(6, 6 + OPT['ng']) for g in w2_dma(k)]
pre_gelu, main = main, Seq()
for ti in range(4):
    P = vTS + 4 * ti
    for hh in range(2):
        a = vACC + 16 * ti + 8 * hh
        for k in range(4):
            main(f'v_pk_mul_f32 {vr(q+2*k,2)}, {vr(a+2*k,2)}, {vr(a+2*k,2)}')
        for k in range(4):
            main(f'v_pk_fma_f32 {vr(q+2*k,2)}, {vr(q+2*k,2)}, {vr(P,2)}, {vr(P,2)} op_sel:[0,1,0] op_sel_hi:[1,1,0]')
        for k in range(4):
            main(f'v_pk_mul_f32 {vr(q+2*k,2)}, {vr(q+2*k,2)}, {vr(a+2*k,2)}')
        for k in range(8):
            main(f'v_exp_f32 v{q+k}, v{q+k}')
        for k in range(4):
            main(f'v_pk_fma_f32 {vr(q+2*k,2)}, {vr(q+2*k,2)}, {vr(P+2,2)}, {vr(P+2,2)} op_sel_hi:[1,0,0]')
        for k in range(8):
            main(f'v_rcp_f32 v{q+k}, v{q+k}')
        for k in range(4):
            main(f'v_pk_mul_f32 {vr(q+2*k,2)}, {vr(q+2*k,2)}, {vr(a+2*k,2)}')
        for k in range(4):
            main(f'v_cvt_pk_bf16_f32 v{a+k}, v{q+2*k}, v{q+2*k+1}')
        main(f'buffer_store_dwordx4 {vr(a,4)}, v{vL16}, {srd(SWS)}, s{sHs[ti]} offen offset:{1024*hh} sc1', tag='hst')
        main.add(cat(gx[2 * ti + hh]))
        stamp(main, f'ge{2*ti+hh}', 3)
main = pre_gelu.add(sprinkle(main, gl_, OPT['gs0'], OPT['gs0'] + OPT['gsp'] * len(gl_)))
stamp(main, 'gelu')
for b, n in ((vXr, 2), (vWr, 4), (vACC, 64), (vFR, 32), (K['vb'], 36), (K['pb'], 40)):
    V.release(b, n)

sp = Seq()
sp('Lspare:')
pro_body(sp)
vS = vXs
vB1 = vXs + 6
L_SX, L_SW, L_SG = 32768, 98304, 16384
sp(f'''
s_sub_u32 s{sT4}, s{sJ}, 28
s_lshl2_add_u32 s{sTB1}, s{sXCD}, s{sT4}
s_lshl2_add_u32 s{sXb}, s{sTB1}, s{sWV}
s_lshl_b32 s{sXb}, s{sXb}, 14
s_lshl_b32 s{sT1}, s{sWV}, 2
v_and_b32 v{t}, 31, v{vL}
v_xor_b32 v{t}, s{sT1}, v{t}
v_lshrrev_b32 v{t+1}, 5, v{vL}
v_lshlrev_b32 v{t+1}, 10, v{t+1}
v_lshl_add_u32 v{vS}, v{t}, 4, v{t+1}
v_xor_b32 v{vS+1}, 32, v{vS}
s_waitcnt lgkmcnt(0)
''')
stamp(sp, 'karg')
scalar_params(sp)
wl, xl = [], []
for i in range(4):
    s = Seq()
    s(f's_add_u32 s{sWb}, s{sWb}, {32*3584}')
    for r in range(4):
        s(f'buffer_load_dwordx4 v{vS+2+r}, {srd(SW1)}, s{sWb} offen offset:{1024*r} lds', tag='spw', m0=f's_lshl2_add_u32 m0, s{sM}, {L_SW + 4096*i}')
    wl.append(s)
xs = []
for h in range(2):
    for i in range(8):
        s = Seq()
        s(f's_add_u32 s{sXk}, s{sXb}, {512*h + 2048*i - 1024*(i%4)}')
        s(f'buffer_load_dwordx4 v{vS + i//4}, {srd(SX)}, s{sXk} offen offset:{1024*(i%4)} lds', tag=f'spx{h}',
          m0=f's_add_u32 m0, s{sP4}, {L_SX + 32768*h + 4096*(i//4)}')
        xs.append(s)
L_ST = 16384 + 8192
sp.add(ut_loads(L_ST))
param_loads(sp)
sp.add(cat(xs[:2]))
sp_head, sp = sp, Seq()
vSa = V.alloc(10, 1)
o = V.alloc(8, 2)
vF1 = V.alloc(48, 2)
vD = V.alloc(16, 2)
vONE = V.alloc(4, 2)
vTOK = t + 7
sp(f'''
s_lshr_b32 s{sT1}, s{sXCD}, 1
s_lshl2_add_u32 s{sT0}, s{sT1}, s{sT4}
s_min_u32 s{sT0}, s{sT0}, 13
s_and_b32 s{sT1}, s{sXCD}, 1
s_mul_i32 s{sT1}, s{sT1}, 14
s_add_u32 s{sCB1}, s{sT0}, s{sT1}
s_lshl_b32 s{sT2}, s{sCB1}, 7
s_lshl_b32 s{sT0}, s{sWV}, 5
s_add_u32 s{sT0}, s{sT0}, s{sT2}
v_lshl_add_u32 v{vB1}, v{vN}, 1, s{sT0}
v_lshlrev_b32 v{t}, 1, v{vG}
v_and_b32 v{t+1}, 7, v{vL}
v_xor_b32 v{t}, v{t}, v{t+1}
v_lshrrev_b32 v{t+1}, 3, v{vL}
v_mul_u32_u24 v{t+1}, 3584, v{t+1}
v_lshl_add_u32 v{vS+2}, v{t}, 4, v{t+1}
v_add_u32 v{vS+3}, {(8*3584-1024)*1}, v{vS+2}
v_add_u32 v{vS+4}, {(8*3584-1024)*2}, v{vS+2}
v_add_u32 v{vS+5}, {(8*3584-1024)*3}, v{vS+2}
s_mul_i32 s{sWb}, s{sWV}, {128*3584}
s_add_u32 s{sWb}, s{sWb}, s{sT2}
s_sub_u32 s{sWb}, s{sWb}, {32*3584}
s_mov_b32 s{sFH}, {FDUMMY}
s_mov_b32 s{sTB2}, s{sTB1}
s_mov_b32 s{sNB}, 3
v_and_b32 v{t}, 7, v{vN}
v_lshrrev_b32 v{t+1}, 3, v{vN}
v_lshl_add_u32 v{t+1}, v{t}, 3, v{t+1}
s_lshl_b32 s{sT0}, s{sWV}, 1
v_add_u32 v{vTOK}, s{sT0}, v{t+1}
v_lshlrev_b32 v{t}, 1, v{t}
v_xor_b32 v{t}, v{t}, v{vG}
v_lshlrev_b32 v{t+1}, 9, v{vTOK}
v_add_u32 v{t+1}, {L_SX}, v{t+1}
v_lshlrev_b32 v{vSa+4}, 4, v{vG}
v_add_u32 v{vSa+4}, {L_SG}, v{vSa+4}
''')
for k in range(4):
    sp(f'v_xor_b32 v{vSa+k}, {4*k}, v{t}')
    sp(f'v_lshl_add_u32 v{vSa+k}, v{vSa+k}, 4, v{t+1}')
    sp(f'v_mov_b32 v{vONE+k}, 0x3f803f80')
sp(f'''
v_lshrrev_b32 v{t}, 2, v{vL}
v_bfe_u32 v{t+1}, v{vL}, 3, 2
v_xor_b32 v{t+1}, s{sWV}, v{t+1}
v_lshlrev_b32 v{t}, 7, v{t}
v_lshl_add_u32 v{t}, v{t+1}, 5, v{t}
v_and_b32 v{t+1}, 3, v{vL}
v_lshl_add_u32 v{t}, v{t+1}, 3, v{t}
v_add_u32 v{vSa+5}, {L_SW}, v{t}
v_lshrrev_b32 v{t}, 2, v{vN}
v_cmp_eq_u32 vcc, v{t}, v{vG}
v_lshlrev_b32 v{t}, 4, v{vTOK}
v_mov_b32 v{t+4}, 0x7ff00000
v_cndmask_b32 v{vSa+9}, v{t+4}, v{t}, vcc
s_lshl_b32 s{sT0}, s{sTB1}, 10
s_add_u32 s{sHst2}, s{sT0}, {WS_TS}
s_add_u32 s{sHst}, s{sT0}, {WS_TP}
''')
sa = setup_a()
sp.add(sa.l[:9])
sp.add(ut_setup(L_ST))
sp.add(setup_k())
sp = sp_head.add(sprinkle(sp, xs[2:9], 0, 100))
K = kgen(True, vF1, 32)
ua, ub = ut_work(vF1 + 32)
rest = cat(wl)
rest(f'global_load_ushort v{vB1}, v{vB1}, {ptr(P_B1)}')
rest(f'global_load_lds_dwordx4 v{vL16}, {ptr(P_GW)}', tag='spw', m0=f's_mov_b32 m0, {L_SG}')
rest = singles(rest)
sp.add(ua)
sp.add(sprinkle(cat([K['A'], setup_g()]), xs[9:] + [nonce_issue()] + rest[:10], 0, 215))
if OPT['iw']:
    sp(';IWARM spare')
sp.add(bar('spx1'))
stamp(sp, 'setup')
aX = 64
Gs = Gaps([f'v_mfma_f32_16x16x32_bf16 {vr(vD+4*k,4)}, {a}, {ar(aX+4*s_,4)}, {vr(vD+4*k,4) if s_ else 0}'
           for s_ in range(16) for k, a in enumerate((ar(aX + 4 * s_, 4), vr(vONE, 4)))], cap=8, maxlds=1)
rds = [Seq()(f'ds_read_b128 {ar(aX+4*s_,4)}, v{vSa+s_%4} offset:{32768*(s_//8) + 256*((s_//4)%2)}') for s_ in range(16)]
sp.add(cat(rds[:5]))
Gs.fill(rds[5:], 0, 32)
Gs.fill(rest[10:], 0, 32, step=2)
sp.add(Gs.emit())
sp.add(ub)
sp.add(nonce_check())
C0 = -2.0 * math.sqrt(2.0 / math.pi) * math.log2(math.e)
C1 = C0 * 0.044715
sp(f'''
v_and_b32 v{t}, 1, v{vL}
v_cmp_eq_u32 vcc, 1, v{t}
v_and_b32 v{t}, 2, v{vL}
v_cmp_eq_u32 s[{sT0}:{sT1}], 2, v{t}
v_cndmask_b32 v{vD}, v{vD}, v{vD+1}, vcc
v_cndmask_b32 v{vD+2}, v{vD+2}, v{vD+3}, vcc
v_cndmask_b32 v{vD}, v{vD}, v{vD+2}, s[{sT0}:{sT1}]
v_mul_f32 v{vD+4}, {f32(1/512)}, v{vD+4}
v_mul_f32 v{vD}, {f32(1/512)}, v{vD}
v_fma_f32 v{vD}, -v{vD+4}, v{vD+4}, v{vD}
v_mul_f32 v{vD+4}, 0x3e800000, v{vD+4}
v_cvt_pk_bf16_f32 v{o}, -v{vD+4}, -v{vD+4}
v_max_f32 v{vD}, 0, v{vD}
v_add_f32 v{vD}, {f32(1e-5)}, v{vD}
v_and_b32 v{vD+6}, 0xffff0000, v{o}
v_sqrt_f32 v{o+6}, v{vD}
v_rsq_f32 v{vD+1}, v{vD}
v_add_f32 v{vD+6}, v{vD+6}, v{vD+4}
v_mul_f32 v{o+4}, {f32(C0)}, v{vD+1}
v_mul_f32 v{vD+2}, v{vD+1}, v{vD+1}
v_mul_f32 v{o+5}, {f32(C1)}, v{vD+1}
v_mul_f32 v{o+5}, v{o+5}, v{vD+2}
v_mul_f32 v{vD+7}, 0x3e800000, v{o+6}
v_cvt_pk_bf16_f32 v{vD+5}, v{vD+7}, v{vD+7}
v_and_b32 v{vD+5}, 0xffff0000, v{vD+5}
v_sub_f32 v{vD+7}, v{vD+7}, v{vD+5}
v_cvt_pk_bf16_f32 v{o+1}, -v{vD+6}, v{vD+5}
v_cvt_pk_bf16_f32 v{o+2}, v{vD+7}, v{vZ}
v_mov_b32 v{o+3}, s{sNON}
v_mov_b32 v{o+7}, s{sNON}
buffer_store_dwordx4 {vr(o,4)}, v{vSa+9}, {srd(SWS)}, s{sHst} offen sc1
buffer_store_dwordx4 {vr(o+4,4)}, v{vSa+9}, {srd(SWS)}, s{sHst2} offen sc1
''')
stamp(sp, 'kgenA')
tsp = Seq()(f'''
s_lshl2_add_u32 s{sT0}, s{sTB1}, s{sWV}
s_mul_i32 s{sT0}, s{sT0}, {112*128}
s_add_u32 s{sT1}, s{sT0}, {56*128}
v_min_u32 v{t}, 55, v{vL}
v_lshlrev_b32 v{t}, 7, v{t}
buffer_load_dword v{vPF}, v{t}, {srd(SW2)}, s{sT0} offen
buffer_load_dword v{vPF}, v{t}, {srd(SW2)}, s{sT1} offen''')
sp.add(sa.l[9:])
if OPT['tsp'] == 1:
    sp.add(tsp)
sp.add(bar('spw'))
Gs = Gaps([f'v_mfma_f32_16x16x32_bf16 {vr(vD+12,4)}, {vr(vONE,4)}, {ar(4*s_,4)}, {vr(vD+12,4) if s_ else 0}' for s_ in range(16)], cap=8)
rdw = [Seq()(f'ds_read_b64_tr_b16 {ar(2*s_,2)}, v{vSa+5} offset:{2048*s_}') for s_ in range(32)]
rdw += [Seq()(f'ds_read_b128 {ar(128+4*s_,4)}, v{vSa+4} offset:{64*s_}') for s_ in range(16)]
sp.add(cat(rdw[:16]))
Gs.fill(rdw[16:], 0, 16)
sp.add(Gs.emit())
sp(f'''
v_cmp_gt_u32 vcc, 16, v{vL}
v_mov_b32 v{t+2}, 0x7ff00000
s_lshl2_add_u32 s{sT0}, s{sCB1}, s{sWV}
s_lshl_b32 s{sT0}, s{sT0}, 8
s_add_u32 s{sT0}, s{sT0}, {WS_FP}
v_cndmask_b32 v{t}, v{t+2}, v{vL16}, vcc
v_mov_b32 v{o+2}, v{vB1}
v_cvt_pk_bf16_f32 v{o+1}, v{vD+12}, v{vZ}
v_lshlrev_b32 v{t+3}, 16, v{o+1}
v_lshl_or_b32 v{o+1}, v{vB1}, 16, v{o+1}
v_sub_f32 v{t+4}, v{vD+12}, v{t+3}
v_cvt_pk_bf16_f32 v{o}, v{t+3}, v{t+4}
buffer_store_dwordx4 {vr(o,4)}, v{t}, {srd(SWS)}, s{sT0} offen sc1
''')
stamp(sp, 'g1s3')
if OPT['tsp'] == 2:
    sp.add(tsp)
gate = Seq()
for s_ in range(16):
    gate(f'v_mfma_f32_16x16x32_bf16 {vr(vD+8,4)}, {ar(128+4*s_,4)}, {ar(aX+4*s_,4)}, {vr(vD+8,4) if s_ else 0}')
sp.add(gate)
sp(f'''
s_lshl_b32 s{sT2}, s{sTB1}, 9
s_add_u32 s{sT2}, s{sT2}, {WS_G}
v_lshrrev_b32 v{t+1}, 1, v{vSa+9}
v_mul_f32 v{vD+8}, {f32(-math.log2(math.e))}, v{vD+8}
v_exp_f32 v{vD+8}, v{vD+8}
v_add_f32 v{vD+8}, 1.0, v{vD+8}
v_rcp_f32 v{o+6}, v{vD+8}
buffer_store_dwordx2 {vr(o+6,2)}, v{t+1}, {srd(SWS)}, s{sT2} offen sc1
''')
SPG = len(sp)
sp.add(bar('utst'))
sp.add(fu_flag())
if OPT['dly'] == 6:
    gst = sp.l.pop(SPG - 1)
    delay(sp, (6,))
    sp.l.append(gst)
if OPT['c3s']:
    sp(f'''
s_and_b32 s{sT0}, s{sJ}, 3
s_lshl2_add_u32 s{sT0}, s{sT0}, s{sWV}
s_mul_i32 s{sT0}, s{sT0}, {112*1024}
s_add_u32 s{sT1}, s{sT0}, {56*1024}
v_min_u32 v{t}, 55, v{vL}
v_lshlrev_b32 v{t}, 10, v{t}
buffer_load_dword v{vPF}, v{t}, {srd(SW2)}, s{sT0} offen offset:384
buffer_load_dword v{vPF}, v{t}, {srd(SW2)}, s{sT1} offen offset:384''')
sp.add(setup_b())
ks_ = Seq().add(kgen_seq(K).l[len(K['A']):])
sp.add(ks_)
sp.add(cat(w2_dma(0)))
sp.add(bar('*lds'))
stamp(sp, 'g1s7')
sp.add(K['rc'])
sp.add(cat(w2_dma(1)))
sp.add(K['vc'])
sp.add(K['wc'].l[:5])
sp.add(cat([g for k in range(2, 6) for g in w2_dma(k)]))
sp.add(u_poll_issue())
sp.add(cat(w2_tr(0) + w2_tr(1) + w2_tr(2)))
sp.add(K['wc'].l[5:])
sp.add(w2_window())
sp.add(u_dma())
sp.add(cat([g for k in range(6, 6 + OPT['ng']) for g in w2_dma(k)]))
sp.wait('udma')
stamp(sp, 'gelu')
sp('s_branch Ljoin')
for b, n in ((vF1, 48), (vD, 16), (vONE, 4), (vSa, 10), (o, 8), (K['vb'], 36), (K['pb'], 32),
             (vGA, 9), (vTA, 5), (vRR, 1), (vEa, 3)):
    V.release(b, n)

com = Seq()
com('Ljoin:')
vB2 = V.alloc(8, 2)
vGt = V.alloc(2, 2)
vH0 = V.alloc(56, 2)
vCF = V.alloc(128, 2)
vH = (vH0, vCF)
aC = 224
com.wait('udma')
com(f'ds_write_b32 v{vUz+1}, v{vZ} offset:{L_U + 508}')
com.add(bar('*lds'))
stamp(com, 'cv0')


def cv_reads(bb):
    b = vCF + 64 * (bb & 1)
    r = []
    for a in range(8):
        for hh in range(2):
            r.append(f'ds_read_b64 {vr(b+4*a+2*hh,2)}, v{vFa} offset:{64*(59-8*a-bb) + 8*hh}')
        r.append(f'ds_read_b128 {vr(b+32+4*a,4)}, v{vGa} offset:{512*a + 64*(3-bb)}')
    return r


def cv_mfma(bb):
    b = vCF + 64 * (bb & 1)
    r, first = [], set()
    key = (lambda x: (x[0] + x[1], x[0])) if bb == 3 else (lambda x: (max(x), x[0] - x[1])) if OPT['cord'] else (lambda x: (max(x), x[0] + x[1], x[0]))
    order = sorted(((a, d) for a in range(8) for d in range(8 - a)), key=key)
    for a, d in order:
        c = aC + 4 * (a + d)
        cc = '0' if (bb == 0 and a + d not in first) else ar(c, 4)
        first.add(a + d)
        r.append(f'v_mfma_f32_16x16x32_bf16 {ar(c,4)}, {vr(b+4*a,4)}, {vr(b+32+4*d,4)}, {cc}')
    return r


def h_load(L):
    sg, ks = divmod(L, 14)
    if HS == 1:
        return Seq()(f'buffer_load_dwordx4 {vr(vH[sg&1]+4*ks,4)}, v{vL16+ks//4}, {srd(SWS)}, s{sH+sg} offen offset:{1024*(ks%4)} sc1', tag=f'h{L}')
    s = Seq()(f'buffer_load_dwordx4 {vr(vH[sg&1]+4*ks,4)}, v{vL16+1+(ks%6)//2}, {srd(SWS)}, s{sH+sg} offen offset:{2048*(ks%2)} sc1')
    if ks % 6 == 5:
        s(f's_add_u32 s{sH+sg}, s{sH+sg}, 12288')
    return s


hflag = Seq()
hflag.wait('hst?')
flag_set(hflag, sFH)
small = Seq()
g_ld = f'buffer_load_dwordx2 {vr(vGt,2)}, v{vGo}, {srd(SWS)}, s{sGs} offen sc1'
small(g_ld)
small(f'global_load_lds_dword v{vBa}, {ptr(P_B2)}', tag='b2d', m0=f's_add_u32 m0, s{sP4}, 7680')

C = Gaps([x for bb in range(4) for x in cv_mfma(bb)], cap=8, maxlds=1)
need = 3 * [[0, 1, 4, 9, 16, 24, 30, 34]] + [[0, 1, 3, 6, 10, 15, 21, 28]]
LEAD = OPT['lead']
cr = [(36 * bb + need[bb][a] - LEAD, x) for bb in range(4) for a in range(8) for x in cv_reads(bb)[3 * a: 3 * a + 3]]
nxt_free, prelude, placed = 143, [], []
for dl, x in reversed(cr):
    g = min(dl, nxt_free)
    if g < 0:
        prelude.insert(0, x)
    else:
        placed.append((g, x))
        nxt_free = g - 1
for g, x in placed:
    C.put(g, x)
for bb in range(4):
    for a in range(8):
        if 36 * bb + need[bb][a] > 0:
            C.reserve(36 * bb + need[bb][a] - 1, 4)
CT = OPT['ct']
assert CT >= 9
DS = OPT['ds']
g0, dma_end = 0, OPT['d00'] - DS
dma_at = {k: -46 for k in range(6 + OPT['ng'])}
for k in range(6 + OPT['ng'], 9):
    dma_end = dma_at[k] = C.fill(w2_dma(k), dma_end + DS, dma_end + 5 * DS, step=DS)[-1]
for k in range(3, CT + 1):
    g0 = max(g0, dma_at[k] + 44)
    p = C.fill(w2_tr(k), g0, min(g0 + OPT['tw'], 144))
    g0 = p[-1] + 1
    if k == 9:
        tr9 = p[-1]
    if k < 8:
        d0 = max(p[-1] + 6, dma_end + DS)
        dma_end = dma_at[k + 6] = C.fill(w2_dma(k + 6), d0, min(d0 + 4 * DS, 144), step=DS)[-1]
print('w2 dma gaps', dma_at, 'last tr', g0)
red = [Seq()(f'ds_write_b128 v{vRa}, {ar(aC+4*c,4)} offset:{16384*(c//4) + 1024*(c%4)}') for c in range(8)]
for c, g in enumerate((129, 131, 133, 135, 137, 139, 142)):
    assert g > tr9 and g >= 108 + (c + 1) * (c + 2) // 2 + 4
    C.put(g, red[c])
if OPT['smg'] < 144:
    C.fill(singles(small), OPT['smg'], OPT['smg'] + 14, step=2)
C.put(OPT['hfg'], hflag)
if OPT['vp']:
    hld = f'buffer_load_dword v{vPF}, v{vPA}, {srd(SWS)}, s{sFHp} offen sc1'
    C.put(OPT['hpg'], hld)
    hc = [Seq()(f'v_cmp_ne_u32 vcc, s{sNON}, v{vPF}')]
    retry(hc[0], 's_cbranch_vccnz', 's_cbranch_vccz', '\n'.join([hld, 's_waitcnt vmcnt(0)', hc[0].l[0].text]))
else:
    C.put(OPT['hpg'], spoll_issue(7, sFHp))
    hc = spoll_check(7, sFHp)
if OPT['nochk']:
    hc[-1].l[-2] = Ins('s_nop 0')
p = C.fill(hc, OPT['hcg'], OPT['hcg'] + 8)
g0 = max(p[-1], dma_end) + 1
NC = min(14, (144 - g0) // OPT['hs'])
C.fill([h_load(L) for L in range(NC)], g0, 144, step=OPT['hs'])
print('h loads in conv', NC)
sc = singles(setup_c())
C.spread(sc[:11], 30, min(OPT['smg'], OPT['hpg']))
C.spread(sc[11:], min(OPT['smg'], OPT['hpg']), g0)
print('conv over', C.over(), C.load if OPT['stamps'] == 4 else '')
for x in prelude:
    com(x)
for g in range(0, 144, 12):
    com.add(C.emit(g, g + 12))
    if g < 132:
        stamp(com, f'c{g+12}', 4)
stamp(com, 'cv1')
NH0 = NC + OPT['nb4']
hl1 = [h_load(L) for L in range(NC, NH0)]
RSH = OPT['rsh']
q = vCF + 72 if RSH else vCF + 56
tagm = [Seq()(f'v_mov_b32 v{q+32+4*k+d}, s{sNON}') for k in range(4) for d in (2, 3)]
rr = [Seq()(f'ds_read_b128 {vr(q+16*si+8*e+4*p,4)}, v{vRa+1+e} offset:{2048*si + 4096*p}')
      for si in range(2) for e in range(2) for p in range(2)]
rv = Seq()
for si in range(2):
    b = q + 16 * si
    for e in range(2):
        for k in range(2):
            if RSH:
                rv(f'v_add_f32 v{b+8*e+2*k}, v{b+8*e+2*k}, v{b+8*e+4+2*k}\nv_add_f32 v{b+8*e+2*k+1}, v{b+8*e+2*k+1}, v{b+8*e+5+2*k}')
            else:
                rv(f'v_pk_add_f32 {vr(b+8*e+2*k,2)}, {vr(b+8*e+2*k,2)}, {vr(b+8*e+4+2*k,2)}')
    for k in range(2):
        o = q + 32 + 8 * si + 4 * k
        rv(f'v_cvt_pk_bf16_f32 v{o}, v{b+8+2*k}, v{b+8+2*k+1}')
        rv(f'v_cvt_pk_bf16_f32 v{o+1}, v{b+2*k}, v{b+2*k+1}')
if RSH:
    com.add(cat(hl1))
else:
    com.add(cat(tagm))
    com.add(red[7])
    com.add(cat(hl1[:3]))
    com.add(bar('*lds'))
    com.add(cat(rr))
    com.add(cat(hl1[3:6]))
    com.add(rv)
    com.add(cat(hl1[6:]))
LATE = OPT['asg'] > 60
apark = [Seq()(f'v_accvgpr_write_b32 a{224+k}, v{q+32+k}') for k in range(16)]
ast = [Seq()(f'buffer_store_dwordx4 {ar(224+8*si+4*k,4) if LATE else vr(q+32+8*si+4*k,4)}, v{vAo}, {srd(SWS)}, s{sAT} offen offset:{2048*si + 128*k} sc1', tag='atst')
       for si in range(2) for k in range(2)]
delay(com, (5,))
if OPT['asg'] < 0:
    com.add(cat(ast))
stamp(com, 'cv2')

vA2, vP, vAa = vCF + 56, vCF + 88, vCF + 120
vPR = t
aL = vA2 + 16
a_ld = [f'buffer_load_dwordx4 {vr(vH0+4*i,4)}, v{vAs}, {srd(SWS)}, s{sAs+i} offen sc1' for i in range(4)]
a_cmp = [f'v_xor_b32 v{vH0+4*i+2}, s{sNON}, v{vH0+4*i+2}' for i in range(4)]
a_cmp += [f'v_or3_b32 v{vH0+3}, v{vH0+2}, v{vH0+6}, v{vH0+10}', f'v_or_b32 v{vH0+3}, v{vH0+3}, v{vH0+14}',
          f'v_cmp_ne_u32 vcc, 0, v{vH0+3}']
a_chk = [Seq()(x) for x in a_cmp]
retry(a_chk[-1], 's_cbranch_vccnz', 's_cbranch_vccz', '\n'.join(a_ld + ['s_waitcnt vmcnt(0)'] + a_cmp))
a_wr = [Seq()(f'ds_write_b64 v{vAd+i%2}, {vr(vH0+4*i,2)} offset:{512*i}', tag='awr') for i in range(4)]


g_chk = Seq()(f'v_cmp_ne_u32 vcc, s{sNON}, v{vGt+1}')
retry(g_chk, 's_cbranch_vccnz', 's_cbranch_vccz', '\n'.join([g_ld, 's_waitcnt vmcnt(0)', g_chk.l[0].text]))


def part_write(sg):
    return [Seq()(f'ds_write_b128 v{vPW}, {vr(vA2+16*(sg&1)+4*j,4)} offset:{16384*sg + 1024*j}', tag=f'pw{sg}') for j in range(4)]


def part_read(sg, dst):
    return [Seq()(f'ds_read_b128 {vr(dst+4*j,4)}, v{vPR+sg} offset:{1024*j}') for j in range(4)]


def unpack(dst, src):
    return [Seq()(f'v_and_b32 v{dst+k}, 0xffff0000, v{src+k//2}' if k % 2 else f'v_lshlrev_b32 v{dst+k}, 16, v{src+k//2}')
            for k in range(16)]


M = Gaps([f'v_mfma_f32_16x16x32_bf16 {vr(vA2+16*(sg&1)+4*j,4)}, {ar(16*ks+4*j,4)}, {vr(vH[sg&1]+4*ks,4)}, '
          f'{vr(vA2+16*(sg&1)+4*j,4) if (ks or sg == 3) else 0}'
          for sg in range(4) for ks in range(14) for j in range(4)], cap=8, maxlds=1)
HD = OPT['hd']
for g in range(3, 223, 4):
    L = (g + 1) // 4
    if not OPT['w2s']:
        M.reserve(g, 4)
    elif L % 2 == 0:
        M.put(g, Seq().wait(f'h{L+1}'))
nl = NH0
for step in range(56):
    a0 = max(OPT['asg'], 0) // 4
    for k in range(0 if a0 <= step < a0 + OPT['pause'] else 2 if step % OPT['cu'] == 0 else 1):
        if nl < 56 and nl <= step + HD:
            M.put(4 * step + 2 * k, h_load(nl))
            nl += 1
if RSH:
    RB = OPT['rb']
    red[7].l[0].tag = 'red7'
    M.put(2, red[7])
    M.put(RB, bar('red7'))
    M.fill(rr, RB + 1, RB + 10)
    M.spread(tagm, 0, RB + 8)
    p = M.spread(singles(rv), RB + 10, OPT['asg'])
if OPT['asg'] >= 0:
    M.fill(ast, OPT['asg'], OPT['asg'] + 12, step=2)
M.fill([g for k in range(CT + 1, 14) for g in w2_tr(k)], OPT['rb'] + 10 if RSH else 0, 4 * CT + 2)
se = singles(setup_e())
M.spread(se[:2] + [Seq()(f'v_lshl_add_u32 v{vBa}, v{vG}, 3, s{sP4}')], 0, 40)
b2r = [Seq()(f'ds_read_b64 {vr(vB2+2*j,2)}, v{vBa} offset:{7680 + 32*j}') for j in range(4)]
b2r[0] = Seq().wait('b2d').add(b2r[0])
M.fill(b2r, 44, 56)
M.spread(se[2:], 40, 112)
M.fill([g_chk, Seq()(f'v_sub_f32 v{vGt+1}, 1.0, v{vGt}')]
       + (apark if LATE else []) + unpack(vP, vB2), 64, 116)
for i, x in enumerate(a_ld):
    assert OPT['alg'] + OPT['als'] * i >= 116 + 4 * i
    M.put(OPT['alg'] + OPT['als'] * i, x)
for sg in range(3):
    for j, g_ in enumerate(part_write(sg)):
        M.put(56 * (sg + 1) + 5 + (4 if sg == 0 else 3) * j, g_)
M.put(112 + 21, bar('pw1'))
M.fill(part_read(0, vP + 16) + part_read(1, aL), 112 + 22, 112 + 32)
M.fill([Seq()(f'v_add_f32 v{vP+k}, v{vP+k}, v{vP+16+k}') for k in range(16)]
       + [Seq()(f'v_add_f32 v{aL+k}, v{aL+k}, v{vP+k}') for k in range(16)], 112 + 34, 167)
AF = OPT['afg']
p = M.fill(a_chk + a_wr, OPT['acg'], AF - 1)
M.put(AF, bar('pw2', 'awr'))
M.fill([Seq()(f'ds_read_b64_tr_b16 {vr(vAa+2*j,2)}, v{vAr} offset:{4096*j}') for j in range(4)] + part_read(2, vP), AF + 1, min(AF + 7, 223))
M.fill(unpack(vP + 16, vAa) + [Seq()(f'v_mul_f32 v{vP+16+k}, v{vGt}, v{vP+16+k}') for k in range(16)]
       + [Seq()(f'v_fma_f32 v{vP+k}, v{vP+k}, v{vGt+1}, v{vP+16+k}') for k in range(16)], min(AF + 8, 223), 224)
print('gemm2 over', M.over())
for sg in range(4):
    for g in range(56 * sg, 56 * sg + 56, 14):
        com.add(M.emit(g, g + 14))
        if (g + 14) % 56:
            stamp(com, f'm{g+14}', 4)
    stamp(com, f'g2s{sg}')
for j in range(4):
    for i in range(0, 4, 2):
        k = 4 * j + i
        com(f'v_pk_fma_f32 {vr(vP+k,2)}, {vr(aL+k,2)}, {vr(vGt,2)}, {vr(vP+k,2)} op_sel:[0,1,0] op_sel_hi:[1,1,1]')
for j in range(4):
    com(f'v_cvt_pk_bf16_f32 v{vAa+2*j}, v{vP+4*j}, v{vP+4*j+1}')
    com(f'v_cvt_pk_bf16_f32 v{vAa+2*j+1}, v{vP+4*j+2}, v{vP+4*j+3}')
for j in range(4):
    com(f'ds_write_b64 v{vOw+j}, {vr(vAa+2*j,2)}')
for r in range(2):
    com(f'ds_read_b128 {vr(vP+16+4*r,4)}, v{vOr} offset:{1024*r}')
for r in range(2):
    com(f'buffer_store_dwordx4 {vr(vP+16+4*r,4)}, v{vOa}, {srd(SOUT)}, s{sO0+r} offen' + ('', ' sc1', ' nt', ' sc0 sc1')[OPT['osc']])
if OPT['stamps']:
    if not OPT['nw']:
        com.wait('*vm')
    stamp(com, 'end')
    com('s_waitcnt lgkmcnt(0)')
    stamp(com, 'x')
    com(f'''
s_waitcnt lgkmcnt(0)
s_memrealtime s[{sSTAMP}:{sSTAMP+1}]
v_writelane_b32 v{vST}, s{sSTAMP}, 63
s_getreg_b32 s{sT0}, hwreg(HW_REG_XCC_ID)
v_writelane_b32 v{vST}, s{sT0}, 61
s_getreg_b32 s{sT0}, hwreg(HW_REG_HW_ID)
v_writelane_b32 v{vST}, s{sT0}, 60
s_lshl2_add_u32 s{sT0}, s2, s{sWV}
s_lshl_b32 s{sT0}, s{sT0}, 8
s_add_u32 s{sT0}, s{sT0}, {WS_ST}
v_lshlrev_b32 v{t}, 2, v{vL}
buffer_store_dword v{vST}, v{t}, {srd(SWS)}, s{sT0} offen''' + ('', ' sc1', ' nt', ' sc0 sc1')[OPT['osc']])
if PROBE is not None:
    com.wait('*vm')
    stamp(com, 'end')
    role = PROBE.split(':')[1]
    com(f'''
s_waitcnt lgkmcnt(0)
s_cmp_ge_u32 s2, 224
{'s_cbranch_scc1 Lend' if role == 'm' else 's_cbranch_scc0 Lend' if role == 's' else 's_nop 0'}
v_readfirstlane_b32 s{sT1}, v{vST}
{dict(n=f's_sub_u32 s{sT0}, s{sSTAMP}, s{sNON}', r=f's_sub_u32 s{sT0}, s{sNON}, s{sT1}', s=f's_sub_u32 s{sT0}, s{sSTAMP}, s{sT1}')[PROBE.split(':')[2]]}
s_max_i32 s{sT0}, s{sT0}, 0
s_min_i32 s{sT0}, s{sT0}, 0x2000
s_lshl_b32 s{sT0}, s{sT0}, 2
s_memrealtime s[{sT2}:{sT3}]
s_waitcnt lgkmcnt(0)
s_add_u32 s{sT0}, s{sT0}, s{sT2}
Lprobe:
s_memrealtime s[{sT2}:{sT3}]
s_waitcnt lgkmcnt(0)
s_sub_u32 s{sT1}, s{sT2}, s{sT0}
s_cmp_lt_i32 s{sT1}, 0
s_cbranch_scc1 Lprobe''')
com('Lend:')
com('s_endpgm')

check_order(checks[0][0], main.l, checks[0][1])
check_order(pc_addr.l + cat(pr).l + cat(pc_chk).l, main.l)
check_order(checks[1][0], sp.l, checks[1][1])
for x in (main, sp, com):
    insert_m0(x.l)
if OPT['stamps']:
    p0 = finish_stamps(pro.l, None)
    p1 = finish_stamps(main.l, p0)
    assert p1 == finish_stamps(sp.l, p0)
    finish_stamps(com.l, p1)
    stamp_names.remove('x')
paths = (pro.l + main.l + com.l, pro.l + sp.l + com.l)
for p in paths:
    resolve_waits(p)
for p in paths:
    resolve_waits(p)
for p in paths:
    fix_hazards(p)

ref = open('gated_mix__ssm_conv_s4d__mixer_channel_mlp__prompt.s.ref').read().split('\n')
head = [l for l in ref if l.startswith(';') and '@launch' not in l]
txt = '\n'.join(head) + f'\n; @launch grid=(256,1,1) block=(256,1,1) lds={LDS_SIZE}\n'
txt += ''';
;   every workgroup : transposes a 64x64 tile of u into ws; evaluates the S4D kernel of its 2 channels at the 641 distinct
;   workgroups <224 : GEMM1 128x128 on raw x (LayerNorm applied as a rank-2 update + per-token scale), tanh-GELU, h -> ws
;   every workgroup : causal convolution of its 2 channels as block-Toeplitz MFMAs, a -> ws;
; the stores completed; the tag is unique per launch and is published through d_debug.  All waits are bounded.
'''
txt += f'''.amdgcn_target "amdgcn-amd-amdhsa--gfx950"
.text
.p2align 12
.fill {((4096 - 768 + 256 * OPT['eo']) % 4096) // 4}, 4, 0xbf810000      ; the entry then starts a 4 KB page (instruction prefetch stops at page ends)
.globl {NAME}
.p2align 8
.type {NAME},@function
{NAME}:
'''
txt += render(pro.l) + render(main.l) + render(com.l) + ''.join(outline) + '.p2align 12\n' + render(sp.l)
txt += f'''Lcode_end:
    s_endpgm
.section .rodata,"a"
.p2align 6
.amdhsa_kernel {NAME}
  .amdhsa_next_free_vgpr 512
  .amdhsa_next_free_sgpr 102
  .amdhsa_accum_offset 256
  .amdhsa_group_segment_fixed_size 0
  .amdhsa_kernarg_size 128
  .amdhsa_user_sgpr_count 2
  .amdhsa_user_sgpr_kernarg_segment_ptr 1
  .amdhsa_system_sgpr_workgroup_id_x 1
.end_amdhsa_kernel
'''


def with_page_stubs(txt):
    import subprocess, re, os
    tmp = os.environ.get('PGTMP', '_pg')
    disp = {}
    for role in ('main', 'spare'):
        disp[role] = [f's_mov_b32 s0, {int(role == "spare")}', 's_mov_b64 exec, 0'] + [x for w in range(3) for x in (f's_cmp_eq_u32 s{sWV}, {w}', f's_cbranch_scc1 @{role}{w}')]
        disp[role] += [f's_branch @{role}3']
    disp['main'] += ['Liw_ret:', 's_cmp_eq_u32 s0, 1', 's_cbranch_scc1 Liw_ret_spare', 's_mov_b64 exec, -1']
    disp['spare'] += ['Liw_ret_spare:', 's_mov_b64 exec, -1']
    lines = []
    for l in txt.split('\n'):
        if ';IWARM' in l:
            lines += [x if x.endswith(':') else '    ' + x for x in disp[l.split()[1]]]
        else:
            lines.append(l)
    open(tmp + '.s', 'w').write(re.sub(r'@(main|spare)\d', 'Lend', '\n'.join(lines)))
    subprocess.run(['clang', '-x', 'assembler', '-target', 'amdgcn-amd-amdhsa', '-mcpu=gfx950', '-c',
                    tmp + '.s', '-o', tmp + '.o'], check=True)
    dis = subprocess.run(['llvm-objdump', '-d', '-z', '--mcpu=gfx950', tmp + '.o'], capture_output=True, text=True).stdout
    dis = dis[dis.index(f'<{NAME}>:'):]
    cut = dis.index('<Lspare>:')
    size = lambda part: [4 * len(m.group(1).split()) for m in re.finditer(r'// [0-9A-F]+: ([0-9A-F ]+)', part)]
    isins = lambda l: l.startswith('    ') and not l.strip().startswith((';', '.'))
    out, pages = [], {'main': [], 'com': [], 'spare': []}
    sec, sizes, addr, seen = None, None, 0, set()
    szl, it_ = {}, None
    for k, l in enumerate(lines):
        if l == f'{NAME}:':
            it_ = iter(size(dis[:cut]))
        if l == 'Lend:' or l == 'Lcode_end:':
            it_ = None
        if l == 'Lspare:':
            it_ = iter(size(dis[cut:]))
        if it_ and isins(l):
            szl[k] = next(it_)
    small, nfix = [], [0, 0]
    for k, l in enumerate(lines):
        if l == f'{NAME}:':
            sec, sizes, addr = 'main', iter(size(dis[:cut])), 256 * OPT['eo']
        if l == 'Ljoin:':
            sec = 'com'
        if l == 'Lend:':
            sec = None
        if l == 'Lspare:':
            sec, sizes, addr = 'spare', iter(size(dis[cut:])), 0
        if l == 'Lcode_end:':
            sec = None
        if sec and isins(l):
            if addr >= 4096:
                addr -= 4096
                if sec == 'com' or sec in seen:
                    nm = f'Lpg{sum(map(len, pages.values()))}'
                    pages[sec].append(nm)
                    out += [nm + ':', f'    s_cbranch_execz @next{nm}']
                    addr += 4
                    small.append(len(out) - 1)
            sz = next(sizes)
            if sz == 8 and addr % 8 == 4 and OPT['al']:
                wide = [i for i in small if re.match(r'\s+v_(?!readfirstlane|nop)\w+ ', out[i]) and '_e64' not in out[i]]
                run = []
                for kk in range(k, len(lines)):
                    if szl.get(kk, 8) == 4:
                        break
                    if kk in szl:
                        run.append(lines[kk])
                nm_ = sum('mfma' in x for x in run)
                failed = False
                if wide and not any(i > wide[-1] and 'execz' in out[i] for i in small):
                    out[wide[-1]] = re.sub(r'^(\s+v_\w+)', r'\1_e64', out[wide[-1]])
                    nfix[0] += 1
                elif OPT['al'] >= 2 and len(run) >= (OPT['alm'] if nm_ else OPT['alr']):
                    out.append('    s_nop 0')
                    nfix[1] += 1
                else:
                    failed = True
                if not failed:
                    addr += 4
            addr += sz
            if sz == 4:
                small.append(len(out))
            else:
                small = []
        out.append(l)
        if l.strip() == 's_mov_b64 exec, -1':
            seen.add(sec)
    txt = '\n'.join(out)
    nxt = {p: 'Liw_ret' for p in pages['com'] + pages['main']}
    nxt.update({p: 'Liw_ret_spare' for p in pages['spare']})
    for role in ('main', 'spare'):
        own, com_ = list(pages[role]), list(pages['com'])
        while len(own) + len(com_) > 4:
            k = len(own) + len(com_) - 5
            nxt[own[k]] = com_.pop()
        heads = own + com_
        for w in range(4):
            txt = txt.replace(f'@{role}{w}', heads[w] if w < len(heads) else ('Liw_ret' if role == 'main' else 'Liw_ret_spare'))
    for p, n_ in nxt.items():
        txt = txt.replace(f'@next{p}\n', n_ + '\n')
    print('pages', pages, 'aligned', nfix)
    return txt


if OPT['iw']:
    txt = with_page_stubs(txt)
open(sys.argv[1], 'w').write(txt)
if OPT['stamps']:
    open(sys.argv[1] + '.stamps', 'w').write(' '.join(stamp_names))
print('vgpr high water', V.hw, 'instr', [sum(1 for i in p.l if i.kind != 'meta') for p in (pro, main, com, sp)],
      'nops', sum(i.pre for p in (pro, main, com) for i in p.l))
```

```python
import sys, struct, math
from asmlib import *

NAME = 'gated_mix__ssm_conv_s4d__mixer_channel_mlp__prompt_kernel'
OPT = dict(stamps=0, rt=0, rot=1, touch=1, tlb=0, early=9, nk=19, res=66, lst=9, hd=27, osc=1, up=-1, ud=0, pcg=170,
           hfg=22, hpg=80, hcg=116, alg=118, acg=184, afg=196, ct=9, nb4=8, asg=-1, skipw=0, c3=0, gs0=4, gsp=13, pause=6, hs=3, cu=99, ua=80, nost=0, hsk=0, nochk=0, vp=1, ng=2, ds=4, d00=2, smg=60, tw=12, lead=8, atl=0, als=8, wtl=0, t1=0, te=0, cord=1, eo=0, iw=1, nm=0, nms=8, lq=4, tl=0, wf=0, c3x=0, c3s=1, pb=0, fe=0, slp=2, fhl=0, tsp=0, bd=-1, bs=12, pf=0, ni=1, pw=0, wc6=3, r2=0, ngl=0, iwp=0, sbe=0, vf=0, dte=0, al=0, alr=6, alm=99, rsh=0, rb=6, kf=1, w2s=0, dly=0, nw=0)
PROBE = None
for a in sys.argv[2:]:
    k, v = a.split('=')
    if k == 'probe':
        PROBE = v
        continue
    assert k in OPT, k
    OPT[k] = int(v)


def f32(x):
    return '0x%08x' % struct.unpack('<I', struct.pack('<f', x))[0]


FU, FH, FDUMMY = 0x10000, 0x20000, 0x9000
FHS = 7 if OPT['fhl'] else 2
WS_TP = 0x80000
WS_TS = 0x88000
WS_G = 0x90000
WS_FP = 0x98000
WS_ST = 0xA0000
WS_UT = 0x200000
HS = 2 if OPT['hsk'] else 1
WS_AT = 0x400000
WS_H = 0x800000 + (512 if OPT['hsk'] else 0)
WS_SIZE = 0x10000000
L_X, L_W = 32768, 98304
PART = 8192
O_T = 4352
L_U = 32768
L_E = 65536
LDS_SIZE = 163840

P_U, P_LA, P_AI, P_CR, P_CI, P_DT, P_DS, P_BX, P_W1, P_B1, P_W2, P_B2, P_GW, P_OUT, P_DBG, P_WS = [4 + 2 * i for i in range(16)]
SX, SW1, SW2, SWS, SOUT = 36, 40, 44, 48, 52
sXCD, sJ, sWV, sBH = 56, 57, 58, 59
sT0, sT1, sT2, sT3 = 60, 61, 62, 63
sNON, sNON1 = 64, 65
sM, sXb, sWb, sKC, sXk, sWk = 66, 67, 68, 69, 70, 71
sHst, sHst2, sFH, sTB1, sCB1, sW2l = 72, 73, 74, 75, 76, 77
sP4, sCNT, sTB2, sNB, sCH, sT4 = 78, 79, 80, 81, 82, 83
sF = 84
sSTAMP = 100
sUt, sUo, sFU, sFUp = 3, 98, 99, 13
sDT, sDS = 96, 97
sT5 = 91
sUs, sUm = 4, 5
sSEL0, sSEL1 = 18, 19
sH = 6
sPR = 10
sAT, sFHp, sAT2, sGs = 14, 15, 16, 17
sAs = 92
sO0, sO1 = 20, 21
srd = lambda b: 's[%d:%d]' % (b, b + 3)
ptr = lambda b: 's[%d:%d]' % (b, b + 1)

V = Regs('v', 0, 256)
vTID, vL, vZ, vST, vN, vG, vNON, vPF = [V.alloc() for _ in range(8)]
vT = V.alloc(8, 4)
vZ2 = V.alloc(4, 4)
vL16 = V.alloc(4, 1)
vPA = V.alloc()
vW2s = V.alloc(4, 1)
vTr = V.alloc(8, 1)
vFa, vGa = V.alloc(), V.alloc()
vUz = V.alloc(2, 1)
vX = V.alloc(16, 1)
vPAR, vPo, vXs, vWs = vX, vX + 6, vX + 8, vX + 12
vRa, vAd, vPW, vAr, vOw, vOr, vOa, vBa, vGo, vAs = vX, vX + 3, vX + 5, vX + 6, vX + 7, vX + 11, vX + 12, vX + 13, vX + 14, vX + 15
vAo = V.alloc()
t = vT

outline = []
stamp_names = []
nlab = [0]
checks = []


def stamp(s, name, lvl=1):
    note = {('karg', 0): 'first loads', ('setup', 0): 'Kgen / statistics', ('b0', 0): 'GEMM1', ('g1s7', 0): 'LayerNorm update, GELU (main) / W2 staging (spare)',
            ('cv0', 0): 'convolution', ('cv1', 0): 'reduference', ('cv2', 0): 'GEMM2', ('g2s3', 0): 'gated mix, output'}.get((name, 0))
    if note:
        s('; ---- ' + note.replace('reduference', 'sum of the two half convolutions, a -> ws'))
    if OPT['dly'] >= 7 and name not in ('start', 'end', 'x'):
        nlab[0] += 1
        s('s_sleep 0')
        s.l[-1].text = (f's_cmp_lg_u32 s{sWV}, {(nlab[0] * (OPT["dly"] - 6) + OPT["dly"]) % 4}\n    s_cbranch_scc1 Lback_w{nlab[0]}\n'
                        f'    s_sleep 40\nLback_w{nlab[0]}:')
    if PROBE is not None and name == 'karg':
        s(f'v_mov_b32 v{vST}, s{sSTAMP}')
    if PROBE is not None and name in (PROBE.split(':')[0], 'start'):
        s(f's_memrealtime s[{sSTAMP}:{sSTAMP+1}]')
        s.l[-1].kind, s.l[-1].dst = 'salu', []
    if OPT['stamps'] < lvl or (OPT['stamps'] == 4 and lvl in (2, 3)) or (OPT['stamps'] == 5 and lvl in (3, 4)):
        return
    if name not in stamp_names:
        stamp_names.append(name)
    s(f's_mem{"real" if OPT["rt"] else ""}time s[{sSTAMP}:{sSTAMP+1}]', tag='stamp:' + name)
    s.l[-1].kind, s.l[-1].dst = 'salu', []


def finish_stamps(items, prev):
    out = []
    for it in items:
        if it.tag and it.tag.startswith('stamp:'):
            if prev is not None:
                out.append(Ins(f'v_writelane_b32 v{vST}, s{sSTAMP}, {stamp_names.index(prev)}'))
            prev = it.tag[6:]
        out.append(it)
    items[:] = out
    return prev


def retry(s, branch, exit_branch, body):
    k = nlab[0]
    nlab[0] += 1
    s(f'{branch} Lretry{k}')
    s(f'Lback{k}:')
    body = '\n'.join('    ' + l.strip() for l in body.strip().split('\n'))
    outline.append(f'''Lretry{k}:
    s_mov_b32 s{sCNT}, 0x40000
Lloop{k}:
    s_sleep {OPT['slp']}
{body}
    {exit_branch} Lback{k}
    s_sub_u32 s{sCNT}, s{sCNT}, 1
    s_cbranch_scc0 Lloop{k}
    s_branch Lback{k}
''')


def cat(groups):
    s = Seq()
    for g in groups:
        s.add(g)
    return s


def chunks(seq, n):
    return [Seq().add(seq.l[i:i + n]) for i in range(0, len(seq), n)]


def bar(*tags):
    s = Seq()
    if tags:
        s.wait(*tags)
    s('s_barrier')
    return s


def nonce_issue():
    return Seq()(f'global_load_dword v{vNON}, v{vZ}, {ptr(P_DBG)} sc1')


def nonce_check():
    s = Seq()
    s(f'v_readfirstlane_b32 s{sNON}, v{vNON}')
    s(f's_cmp_eq_u32 s{sNON}, 0')
    retry(s, 's_cbranch_scc1', 's_cbranch_scc0', f'''
global_load_dword v{vNON}, v{vZ}, {ptr(P_DBG)} sc1
s_waitcnt vmcnt(0)
v_readfirstlane_b32 s{sNON}, v{vNON}
s_nop 3
s_cmp_eq_u32 s{sNON}, 0''')
    s(f's_mov_b32 s{sNON1}, s{sNON}')
    return s


def flag_set(s, soff):
    if OPT['vf'] & 1:
        s(f'buffer_store_dword v{vNON}, v{vZ}, {srd(SWS)}, s{soff} offen sc1')
    else:
        s(f's_atomic_swap s{sNON}, {ptr(P_WS)}, s{soff}')


def spoll_issue(n, soff):
    return Seq()(f's_load_dwordx{8 if n <= 8 else 16} s[{sF}:{sF + (7 if n <= 8 else 15)}], {ptr(P_WS)}, s{soff} glc')


def spoll_check(n, soff):
    l = []
    for k in range(0, n - 1, 2):
        l.append(f's_xor_b64 s[{sF+k}:{sF+k+1}], s[{sF+k}:{sF+k+1}], s[{sNON}:{sNON1}]')
    if n % 2:
        l.append(f's_xor_b32 s{sF+n-1}, s{sF+n-1}, s{sNON}')
        l.append(f's_or_b32 s{sF}, s{sF}, s{sF+n-1}')
    for k in range(2, n - 1, 2):
        l.append(f's_or_b64 s[{sF}:{sF+1}], s[{sF}:{sF+1}], s[{sF+k}:{sF+k+1}]')
    g = [Seq()(x) for x in l]
    retry(g[-1], 's_cbranch_scc1', 's_cbranch_scc0', '\n'.join([spoll_issue(n, soff).l[0].text, 's_waitcnt lgkmcnt(0)'] + l))
    return g


pro = Seq()
pro('s_cmp_ge_u32 s2, 0x100\ns_cbranch_scc1 Lend')
if OPT['stamps']:
    pro(f'''
s_memrealtime s[{sSTAMP}:{sSTAMP+1}]
s_waitcnt lgkmcnt(0)
s_add_u32 s{sT0}, s{sSTAMP}, 0x500
s_and_b32 s{sT0}, s{sT0}, 0xfffffc00
Lsync:
s_memrealtime s[{sSTAMP}:{sSTAMP+1}]
s_waitcnt lgkmcnt(0)
s_sub_u32 s{sT1}, s{sSTAMP}, s{sT0}
s_cmp_lt_i32 s{sT1}, 0
s_cbranch_scc1 Lsync
v_mov_b32 v{vST}, 0
v_writelane_b32 v{vST}, s{sSTAMP}, 62''')


def delay(s, which):
    if OPT['dly'] not in which:
        return
    cond = {1: 's_cmp_ge_u32 s2, 224', 3: 's_cmp_eq_u32 s2, 0'}.get(OPT['dly'], f's_and_b32 s{sCNT}, s2, 15\ns_cmp_eq_u32 s{sCNT}, 5')
    s(f'''
{cond}
s_cbranch_scc0 Lback_nodly
s_mov_b32 s{sCNT}, 200
Lback_dly:
s_sleep 2
s_sub_u32 s{sCNT}, s{sCNT}, 1
s_cbranch_scc0 Lback_dly
Lback_nodly:''')


delay(pro, (1, 2, 3))
stamp(pro, 'start')
pro(f'''
s_load_dwordx2 s[{SX}:{SX+1}], s[0:1], 0
s_load_dwordx2 s[{SW1}:{SW1+1}], s[0:1], 64
s_load_dwordx16 s[4:19], s[0:1], 0
s_load_dwordx16 s[20:35], s[0:1], 64
s_getpc_b64 s[{sT2}:{sT3}]
Lpc:
s_cmp_ge_u32 s2, 224
s_cbranch_scc1 Lspare
''')


def pro_body(s):
    s(f'''
v_lshrrev_b32 v{t}, 6, v{vTID}
v_and_b32 v{vL}, 63, v{vTID}
v_readfirstlane_b32 s{sWV}, v{t}
v_mov_b32 v{vZ}, 0
s_and_b32 s{sXCD}, s2, 7
s_lshr_b32 s{sJ}, s2, 3
s_lshl2_add_u32 s{sT0}, s{sJ}, s{sWV}
s_mul_i32 s{sT0}, s{sT0}, 384
v_and_b32 v{t+1}, 3, v{vL}
v_lshl_add_u32 v{t+1}, v{t+1}, 7, s{sT0}
v_min_u32 v{t+1}, Lcode_end-Lpc-4, v{t+1}
global_load_dword v{vPF}, v{t+1}, s[{sT2}:{sT3}]
s_lshl_b32 s{sT0}, s2, 9
v_lshl_add_u32 v{vPo}, v{vTID}, 1, s{sT0}
s_lshl_b32 s{sCNT}, s2, 2
v_lshlrev_b32 v{vL16}, 4, v{vL}
v_and_b32 v{vN}, 15, v{vL}
v_lshrrev_b32 v{vG}, 4, v{vL}
s_mov_b32 s{SX+2}, 0x200000
s_mov_b32 s{SX+3}, 0x20000
s_mov_b32 s{SW1+2}, {512*3584}
s_mov_b32 s{SW1+3}, 0x20000
s_lshl_b32 s{sM}, s{sWV}, 12
s_lshl_b32 s{sP4}, s{sWV}, 13
s_lshl_b32 s{sT5}, s{sWV}, 11
s_and_b32 s{sBH}, s{sWV}, 1
s_lshr_b32 s{sT0}, s{sXCD}, 1
s_and_b32 s{sT1}, s{sJ}, 7
s_lshl3_add_u32 s{sUo}, s{sT0}, s{sT1}
s_and_b32 s{sT0}, s{sXCD}, 1
s_lshr_b32 s{sT1}, s{sJ}, 3
s_lshl2_add_u32 s{sFU}, s{sT0}, s{sT1}
s_lshl2_add_u32 s{sUt}, s{sUo}, s{sWV}
s_lshl_b32 s{sUt}, s{sUt}, 7
s_add_u32 s{sUt}, s{sUt}, s{sFU}
s_lshl_b32 s{sUt}, s{sUt}, 7
s_lshl_b32 s{sT0}, s{sWV}, 1
v_and_b32 v{t+2}, 7, v{vL}
v_xor_b32 v{t+2}, s{sT0}, v{t+2}
v_lshrrev_b32 v{t+3}, 3, v{vL}
v_lshlrev_b32 v{t+3}, 10, v{t+3}
v_lshl_add_u32 v{vFa}, v{t+2}, 4, v{t+3}
v_xor_b32 v{vGa}, 16, v{vFa}
v_add_u32 v{vGa}, 7168, v{vGa}
''')


def ut_loads(lds):
    s = Seq()
    for i in range(2):
        s(f'buffer_load_dwordx4 v{(vFa, vGa)[i]}, {srd(SX)}, s{sUt} offen offset:{1024*i} lds', tag='utl',
          m0=f's_add_u32 m0, s{sT5}, {lds}')
    return s


def ut_setup(lds):
    s = Seq()
    s(f'''
v_and_b32 v{t}, 7, v{vL}
v_lshrrev_b32 v{t+1}, 5, v{vL}
v_lshl_add_u32 v{t+1}, s{sWV}, 1, v{t+1}
v_xor_b32 v{t+1}, v{t+1}, v{t}
v_lshlrev_b32 v{t+1}, 4, v{t+1}
v_lshl_add_u32 v{t+1}, v{t}, 10, v{t+1}
v_bfe_u32 v{t+2}, v{vL}, 3, 2
v_lshl_add_u32 v{t+1}, v{t+2}, 2, v{t+1}
v_add_u32 v{vUz}, {lds}, v{t+1}
v_lshrrev_b32 v{t+1}, 3, v{vL}
v_lshlrev_b32 v{t+1}, 13, v{t+1}
v_lshl_add_u32 v{vUz+1}, v{t}, 4, v{t+1}
s_lshl2_add_u32 s{sT0}, s{sFU}, s{sWV}
s_lshl_b32 s{sT0}, s{sT0}, 9
s_lshl_b32 s{sFU}, s{sFU}, 5
s_add_u32 s{sFU}, s{sFU}, s{sUo}
s_lshl_b32 s{sFU}, s{sFU}, 4
s_add_u32 s{sFU}, s{sFU}, {FU}
s_add_u32 s{sUo}, s{sUo}, s{sT0}
s_lshl_b32 s{sUo}, s{sUo}, 7
s_add_u32 s{sUo}, s{sUo}, {WS_UT}
s_add_u32 s{sUt}, s{sUo}, 4096
s_mov_b32 s{sSEL0}, 0x05040100
s_mov_b32 s{sSEL1}, 0x07060302
''')
    return s


def ut_work(r):
    a, b = bar('utl'), Seq()
    for k in range(4):
        a(f'ds_read2_b32 {vr(r+2*k,2)}, v{vUz} offset0:{64*k} offset1:{64*k+32}')
    for c in range(2):
        for k in range(4):
            b(f'v_perm_b32 v{r+8+4*c+k}, v{r+2*k+1}, v{r+2*k}, s{sSEL0+c}')
    for c in range(2):
        b(f's_nop 0' if OPT['nost'] else f'buffer_store_dwordx4 {vr(r+8+4*c,4)}, v{vUz+1}, {srd(SWS)}, s{(sUo, sUt)[c]} offen sc1', tag='utst')
    return a, b


def fu_flag():
    k = nlab[0]
    nlab[0] += 1
    s = Seq()(f'''
s_cmp_lg_u32 s{sWV}, 0
s_cbranch_scc1 Lback{k}
{f'buffer_store_dword v{vNON}, v{vZ}, {srd(SWS)}, s{sFU} offen sc1' if OPT['vf'] & 2 else f's_atomic_swap s{sNON}, {ptr(P_WS)}, s{sFU}'}
Lback{k}:''')
    s.l[2].vm = False
    return s


def param_loads(s):
    for i, p in enumerate((P_LA, P_AI, P_CR, P_CI)):
        s(f'global_load_ushort v{vPAR+i}, v{vPo}, {ptr(p)}')


def scalar_params(s):
    s(f's_load_dword s{sDT}, {ptr(P_DT)}, s{sCNT}')
    s(f's_load_dword s{sDS}, {ptr(P_DS)}, s{sCNT}')


def setup_a():
    s = Seq()
    for b, p, n in ((SW2, P_W2, 1792 * 1024), (SWS, P_WS, WS_SIZE), (SOUT, P_OUT, 0x200000)):
        s(f'''
s_mov_b64 s[{b}:{b+1}], s[{p}:{p+1}]
s_mov_b32 s{b+2}, {n}
s_mov_b32 s{b+3}, 0x20000''')
    s(f'''
s_lshl2_add_u32 s{sT1}, s2, s{sWV}
s_mul_i32 s{sT1}, s{sT1}, 1792
v_lshlrev_b32 v{t+7}, 7, v{vN}
s_lshl2_add_u32 s{sT2}, s{sJ}, s{sWV}
''')
    if OPT['c3x']:
        assert not OPT['tlb']
        s(f'''
s_lshr_b32 s{sT3}, s{sXCD}, 1
s_lshl_b32 s{sT3}, s{sT3}, 7
s_add_u32 s{sT3}, s{sT3}, s{sT2}
s_lshl_b32 s{sT3}, s{sT3}, 12
v_and_b32 v{t+6}, 3, v{vL}
v_lshlrev_b32 v{t+6}, 10, v{t+6}''')
    if OPT['tlb'] == 1:
        s(f'''
v_min_u32 v{t+6}, 8, v{vL}
v_lshlrev_b32 v{t+6}, 21, v{t+6}
v_or_b32 v{t+6}, 0x100000, v{t+6}''')
    if OPT['tlb'] == 2:
        s(f'''
s_lshl_b32 s{sT3}, s{sT2}, 7
s_add_u32 s{sT3}, s{sT3}, s{sXCD}
s_lshl_b32 s{sT4}, s{sT3}, 7
s_lshl_b32 s{sT3}, s{sT3}, 10
v_and_b32 v{t+6}, 1, v{vL}
v_lshl_add_u32 v{t+6}, v{t+6}, 16, s{sT3}''')
    s(f'''
s_mul_i32 s{sT2}, s{sT2}, {14*1024}
v_min_u32 v{vAo}, 13, v{vL}
v_lshlrev_b32 v{vAo}, 10, v{vAo}''')
    if OPT['c3x']:
        s(f'buffer_load_dword v{vPF}, v{t+6}, {srd(SX)}, s{sT3} offen offset:384')
    if OPT['c3']:
        s(f'buffer_load_dword v{vPF}, v{vAo}, {srd(SW2)}, s{sT2} offen offset:384')
    if OPT['t1']:
        s(f'buffer_load_dword v{vPF}, v{t+7}, {srd(SW1)}, s{sT1} offen')
    if OPT['touch']:
        s(f'buffer_load_dword v{vPF}, v{t+7}, {srd(SW2)}, s{sT1} offen')
    if OPT['tlb']:
        s(f'buffer_load_dword v{vPF}, v{t+6}, {srd(SWS)}, 0 offen sc1')
    if OPT['tlb'] == 2:
        s(f'buffer_load_dword v{vPF}, v{vZ}, {srd(SOUT)}, s{sT4} offen sc1')
    return s


vGA = V.alloc(9, 1)
vTA = V.alloc(5, 1)
vRR = V.alloc()
vEa = V.alloc(3, 1)


def setup_k():
    s = Seq()
    s(f'''
v_mul_u32_u24 v{t}, 272, v{vN}
v_lshl_add_u32 v{t}, v{vG}, 4, v{t}
v_add_u32 v{vRR}, s{sP4}, v{t}
s_add_u32 s{sT1}, s{sP4}, {O_T}
v_mov_b32 v{vEa+2}, s{sT1}
v_lshlrev_b32 v{vEa}, 4, v{vTID}
v_bfe_u32 v{t}, v{vL}, 2, 2
v_bfe_u32 v{t+1}, v{vL}, 2, 1
v_lshlrev_b32 v{t}, 13, v{t}
v_lshl_add_u32 v{t}, v{t+1}, 7, v{t}
v_and_b32 v{t+1}, 3, v{vL}
v_lshl_add_u32 v{vEa+1}, v{t+1}, 4, v{t}
v_mov_b32 v{vZ2}, 0
v_mov_b32 v{vZ2+1}, 0
v_mov_b32 v{vZ2+2}, 0
v_mov_b32 v{vZ2+3}, 0
v_lshrrev_b32 v{t}, 1, v{vG}
v_and_b32 v{t+1}, 1, v{vG}
v_mul_u32_u24 v{t+1}, 400, v{t+1}
v_lshl_add_u32 v{t+1}, v{t}, 4, v{t+1}
v_add_u32 v{t+1}, v{t+1}, v{vN}
v_lshl_add_u32 v{vTA}, v{t+1}, 2, s{sT1}
v_add_u32 v{vTA+1}, 800, v{vTA}
v_sub_u32 v{t+1}, 2, v{t}
v_lshlrev_b32 v{t+1}, v{t+1}, v{vN}
v_lshrrev_b32 v{t+2}, 3, v{t+1}
v_and_b32 v{t+1}, 7, v{t+1}
v_mul_u32_u24 v{t+1}, 100, v{t+1}
v_lshl_add_u32 v{t+2}, v{vG}, 3, v{t+2}
v_add3_u32 v{t+1}, v{t+1}, v{t+2}, 32
v_lshl_add_u32 v{vTA+2}, v{t+1}, 2, s{sT1}
v_mul_u32_u24 v{t}, 784, v{t}
v_sub_u32 v{t}, 800, v{t}
v_add_u32 v{vTA+3}, v{vTA+2}, v{t}
v_and_b32 v{t}, 7, v{vN}
v_mul_u32_u24 v{t}, 100, v{t}
v_lshrrev_b32 v{t+1}, 3, v{vN}
v_lshl_add_u32 v{t+1}, v{vG}, 3, v{t+1}
v_add3_u32 v{t}, v{t}, v{t+1}, 64
v_lshl_add_u32 v{vTA+4}, v{t}, 2, s{sT1}
''')
    return s


def setup_g():
    s = Seq()
    s(f'''
v_lshlrev_b32 v{t+4}, 3, v{vTID}
s_movk_i32 s{sT3}, 128
''')
    for i in range(9):
        g = vGA + i
        s(f'v_sub_u32 v{g}, {2047 - i}, v{t+4}')
        if i == 8:
            s(f'v_max_i32 v{t+5}, 0, v{g}')
            s(f'v_cvt_f32_u32 v{t+5}, v{t+5}')
        else:
            s(f'v_cvt_f32_u32 v{t+5}, v{g}')
        s(f'''
v_cvt_pk_bf16_f32 v{t+5}, v{t+5}, v{vZ}
v_add_u32 v{t+5}, {128 - 0x4300}, v{t+5}
v_med3_i32 v{g}, v{t+5}, v{g}, s{sT3}
v_and_b32 v{t+5}, 7, v{g}
v_ashrrev_i32 v{g}, 3, v{g}
v_mul_u32_u24 v{t+5}, 400, v{t+5}
v_lshl_add_u32 v{g}, v{g}, 2, v{t+5}''')
    return s


def setup_b():
    s = Seq()
    s(f'''
s_mul_i32 s{sW2l}, s{sWV}, {448*1024}
s_lshl_b32 s{sT0}, s{sNB}, 7
s_add_u32 s{sW2l}, s{sW2l}, s{sT0}
s_sub_u32 s{sW2l}, s{sW2l}, 32768
s_lshr_b32 s{sT0}, s{sWV}, 1
s_lshl1_add_u32 s{sCH}, s2, s{sT0}
v_lshlrev_b32 v{t+2}, 1, v{vG}
v_and_b32 v{t+3}, 7, v{vL}
v_xor_b32 v{t+2}, v{t+2}, v{t+3}
v_lshrrev_b32 v{t+3}, 3, v{vL}
v_lshlrev_b32 v{t+3}, 10, v{t+3}
v_lshl_add_u32 v{vW2s}, v{t+2}, 4, v{t+3}
v_add_u32 v{vW2s+1}, {7168*1}, v{vW2s}
v_add_u32 v{vW2s+2}, {7168*2}, v{vW2s}
v_add_u32 v{vW2s+3}, {7168*3}, v{vW2s}
v_lshrrev_b32 v{t+2}, 2, v{vL}
v_lshlrev_b32 v{t+2}, 7, v{t+2}
v_and_b32 v{t+3}, 3, v{vL}
v_lshl_add_u32 v{t+2}, v{t+3}, 3, v{t+2}
v_bfe_u32 v{t+3}, v{vL}, 3, 2
v_lshl_add_u32 v{t+2}, v{t+3}, 5, v{t+2}
s_add_u32 s{sT0}, s{sM}, {L_E}
v_add_u32 v{vTr}, s{sT0}, v{t+2}
s_sub_u32 s{sT0}, s{sM}, {L_E - L_U}
''')
    for j in range(4):
        if j:
            s(f'v_xor_b32 v{vTr+j}, {32*j}, v{vTr}')
        s(f'v_add_u32 v{vTr+4+j}, s{sT0}, v{vTr+j}')
    s(f'''
v_and_b32 v{t+4}, 1, v{vL}
v_lshrrev_b32 v{t+5}, 1, v{vN}
s_and_b32 s{sT0}, s{sWV}, 2
s_lshl_b32 s{sT0}, s{sT0}, 13
s_lshl_b32 s{sT2}, s{sBH}, 8
s_sub_u32 s{sT0}, s{sT0}, s{sT2}
s_add_u32 s{sT1}, s{sT0}, {56 + 256}
v_mul_u32_u24 v{vFa}, {PART + 128}, v{t+4}
v_lshl_add_u32 v{vFa}, v{vG}, 4, v{vFa}
v_lshlrev_b32 v{t+6}, 3, v{t+5}
v_sub_u32 v{vFa}, v{vFa}, v{t+6}
v_add_u32 v{vFa}, s{sT1}, v{vFa}
s_add_u32 s{sT1}, s{sT0}, {L_U + 512 - 192}
v_mul_u32_u24 v{vGa}, {PART + 32}, v{t+4}
v_lshl_add_u32 v{vGa}, v{vG}, 4, v{vGa}
v_lshl_add_u32 v{vGa}, v{t+5}, 6, v{vGa}
v_add_u32 v{vGa}, s{sT1}, v{vGa}
s_lshr_b32 s{sFUp}, s2, 5
s_lshl_b32 s{sFUp}, s{sFUp}, 9
s_add_u32 s{sFUp}, s{sFUp}, {FU}
v_and_b32 v{vPA}, 31, v{vL}
v_lshlrev_b32 v{vPA}, 4, v{vPA}
s_lshl_b32 s{sT0}, s{sCH}, 12
s_lshl_b32 s{sT1}, s{sBH}, 2
s_sub_u32 s{sT0}, s{sT0}, s{sT1}
s_add_u32 s{sUs}, s{sT0}, {WS_UT}
s_lshl_b32 s{sT1}, s{sBH}, 5
s_add_u32 s{sUm}, s{sP4}, s{sT1}
v_lshl_add_u32 v{vUz}, v{vL}, 3, s{sUm}
s_lshl2_add_u32 s{sT0}, s{sBH}, s{sUm}
v_mov_b32 v{vUz+1}, s{sT0}
''')
    return s


def setup_c():
    s = Seq()
    a, b = t + 4, t + 5
    s(f'''
s_lshl2_add_u32 s{sT3}, s{sTB2}, s{sWV}
s_lshl_b32 s{sFHp}, s{sT3}, 7
s_add_u32 s{sGs}, s{sFHp}, {WS_G}
s_lshl_b32 s{sFHp}, s{sFHp}, {3 if OPT['fhl'] else 0}
s_add_u32 s{sFHp}, s{sFHp}, {FH}
s_lshl_b32 s{sT2}, s{sNB}, 7
v_lshrrev_b32 v{vBa}, 2, v{vPA}
v_add_u32 v{vBa}, s{sT2}, v{vBa}
v_lshlrev_b32 v{vGo}, 3, v{vN}
v_min_u32 v{vPA}, 6, v{vL}
v_lshlrev_b32 v{vPA}, {FHS}, v{vPA}
s_lshl_b32 s{sO0}, s{sT3}, 14
s_add_u32 s{sO0}, s{sO0}, s{sT2}
v_add_u32 v{vL16+1}, 4096, v{vL16}
v_add_u32 v{vL16+2}, 8192, v{vL16}
v_add_u32 v{vL16+3}, 12288, v{vL16}
s_lshl4_add_u32 s{sT3}, s{sTB2}, s{sWV}
s_mul_i32 s{sT3}, s{sT3}, {14*1024}
s_add_u32 s{sT3}, s{sT3}, {WS_H}''')
    for sg in range(4):
        if sg < 3:
            s(f's_add_u32 s{sT2}, s{sWV}, {sg + 1}\ns_and_b32 s{sT2}, s{sT2}, 3')
        s(f's_mul_i32 s{sT2}, s{sT2 if sg < 3 else sWV}, {56*1024}\ns_add_u32 s{sH+sg}, s{sT2}, s{sT3}')
    s(f'''
v_xor_b32 v{a}, v{vL}, v{vG}
s_add_u32 s{sT2}, s{sM}, {L_E + 2*16384}
v_lshl_add_u32 v{vRa}, v{a}, 4, s{sT2}
v_and_b32 v{a}, 3, v{vL}
v_bfe_u32 v{b}, v{vL}, 2, 3
v_lshlrev_b32 v{b}, 1, v{b}
v_xor_b32 v{b}, v{b}, v{a}
v_lshl_add_u32 v{b}, v{a}, 4, v{b}
v_lshrrev_b32 v{a}, 5, v{vL}
v_lshl_add_u32 v{b}, v{a}, 6, v{b}
s_and_b32 s{sT2}, s{sWV}, 2
s_lshl2_add_u32 s{sT2}, s{sBH}, s{sT2}
s_lshl_b32 s{sT2}, s{sT2}, 12
s_add_u32 s{sT2}, s{sT2}, {L_E + 2*16384}
v_lshl_add_u32 v{vRa+1}, v{b}, 4, s{sT2}
v_xor_b32 v{vRa+2}, 16, v{vRa+1}
v_and_b32 v{a}, 0x380, v{vL16}
v_add_u32 v{vAo}, v{vL16}, v{a}
s_lshl1_add_u32 s{sAT}, s{sCH}, s{sBH}
s_lshl_b32 s{sAT}, s{sAT}, 12
s_add_u32 s{sAT}, s{sAT}, {WS_AT}
''')
    return s


def setup_e():
    s = Seq()
    a, b, c = t + 4, t + 5, t + 6
    s(f'''
s_add_u32 s{sT2}, s{sM}, {L_E}
v_add_u32 v{vPW}, s{sT2}, v{vL16}
s_lshl2_add_u32 s{sT0}, s{sNB}, s{sWV}
s_lshl_b32 s{sT0}, s{sT0}, 9
s_add_u32 s{sT0}, s{sT0}, s{sTB2}
s_lshl_b32 s{sT0}, s{sT0}, 8
s_add_u32 s{sAs}, s{sT0}, {WS_AT}
s_add_u32 s{sAs+1}, s{sAs}, 32768
s_add_u32 s{sAs+2}, s{sAs}, 65536
s_add_u32 s{sAs+3}, s{sAs}, 98304
v_lshlrev_b32 v{a}, 13, v{vG}
v_lshl_add_u32 v{vAs}, v{vN}, 4, v{a}''')
    for sg in range(3):
        s(f'''
s_sub_u32 s{sT0}, s{sM}, {4096 * (sg + 1)}
s_and_b32 s{sT0}, s{sT0}, 0x3000
s_add_u32 s{sT0}, s{sT0}, {L_E + 16384*sg}
v_add_u32 v{t+sg}, s{sT0}, v{vL16}''')
    s(f'''
v_bfe_u32 v{a}, v{vL}, 1, 2
v_lshrrev_b32 v{b}, 5, v{vL}
v_xor_b32 v{a}, v{a}, v{b}
v_lshlrev_b32 v{a}, 5, v{a}
v_lshl_add_u32 v{a}, v{vG}, 7, v{a}
v_and_b32 v{b}, 1, v{vL}
v_lshl_add_u32 v{a}, v{b}, 4, v{a}
v_and_b32 v{b}, 8, v{vL}
s_add_u32 s{sT2}, s{sM}, {L_E + 3*16384}
v_add3_u32 v{vAd}, v{a}, v{b}, s{sT2}
v_xor_b32 v{vAd+1}, 64, v{vAd}
v_and_b32 v{b}, 7, v{vL}
v_lshrrev_b32 v{c}, 3, v{vL}
v_lshlrev_b32 v{vOa}, 10, v{c}
v_lshl_add_u32 v{vOa}, v{b}, 4, v{vOa}
v_xor_b32 v{a}, v{vL}, v{c}
s_add_u32 s{sT2}, s{sM}, {L_E + 4*16384}
v_lshl_add_u32 v{vOr}, v{a}, 4, s{sT2}
v_lshrrev_b32 v{a}, 1, v{vG}
v_xor_b32 v{a}, v{a}, v{b}
v_lshlrev_b32 v{a}, 4, v{a}
v_lshl_add_u32 v{a}, v{vN}, 7, v{a}
v_and_b32 v{b}, 1, v{vG}
v_lshl_add_u32 v{a}, v{b}, 3, v{a}
v_add_u32 v{vOw}, s{sT2}, v{a}
v_xor_b32 v{vOw+1}, 32, v{vOw}
v_xor_b32 v{vOw+2}, 64, v{vOw}
v_xor_b32 v{vOw+3}, 96, v{vOw}
s_lshl_b32 s{sT0}, s{sWV}, 5
s_sub_u32 s{sT2}, {3*16384}, s{sM}
v_xor_b32 v{a}, s{sT0}, v{vTr}
v_add_u32 v{vAr}, s{sT2}, v{a}
s_add_u32 s{sO1}, s{sO0}, 8192
''')
    return s


def kgen(pkC, za, npb=40):
    s = Seq()
    live = {}
    vb = V.alloc(36, 2)
    pb = V.alloc(npb, 2)
    VV, VP, VZ = Regs('v', vb, vb + 36), Regs('v', pb, pb + 32), Regs('v', za, za + 32)
    pool = lambda nm: VP if nm[0] == 'p' else VZ if (nm[0] == 'z' and nm not in ('z128', 'z256', 'z512')) else VV

    def A(name, n=1):
        live[name] = (pool(name).alloc(n), n)
        return live[name][0]

    def F(*names):
        for nm in names:
            pool(nm).release(*live.pop(nm))

    P, canon, extra = {}, [], {}

    def cut(name):
        nonlocal s
        canon.extend(s.l)
        P[name], s = s, Seq()

    la, ai, cr, ci, ld, dsk = [vPAR + i for i in range(6)]
    LOG2E, LOG2E_LO, LN2 = 0x3fb8aa3b, 0x32a5705f, 0x3f317218
    s(f'''
s_lshr_b32 s{sT0}, s{sWV}, 1
s_lshl_b32 s{sT0}, s{sT0}, 4
s_lshr_b32 s{sDT}, s{sDT}, s{sT0}
s_lshr_b32 s{sDS}, s{sDS}, s{sT0}
v_lshlrev_b32 v{ld}, 16, s{sDT}
v_lshlrev_b32 v{dsk}, 16, s{sDS}
s_mov_b32 s{sT0}, {LOG2E:#x}
v_lshlrev_b32 v{la}, 16, v{la}''')
    for k, x in enumerate((la, ld)):
        s(f'v_mul_f32 v{t+2*k}, s{sT0}, v{x}')
    acc_ = (((1, ld),) if OPT['fe'] else ((0, la), (1, ld)))
    for k, x in acc_:
        s(f'v_fma_f32 v{t+2*k+1}, v{x}, s{sT0}, -v{t+2*k}')
    for k, x in enumerate((la, ld)):
        s(f'v_exp_f32 v{t+2*k}, v{t+2*k}')
    for k, x in acc_:
        s(f'v_fmamk_f32 v{t+2*k+1}, v{x}, {LOG2E_LO:#x}, v{t+2*k+1}')
    for k, x in acc_:
        s(f'v_mul_f32 v{t+2*k+1}, {LN2:#x}, v{t+2*k+1}')
    for k, x in acc_:
        s(f'v_fma_f32 v{t+2*k}, v{t+2*k}, v{t+2*k+1}, v{t+2*k}')
    for x in (ai, cr, ci):
        s(f'v_lshlrev_b32 v{x}, 16, v{x}')
    s(f'''
v_cvt_pk_bf16_f32 v{t}, v{t}, v{t+2}
v_and_b32 v{ld}, 0xffff0000, v{t}
v_lshlrev_b32 v{la}, 16, v{t}
''')
    val = lambda nm: live[nm][0]
    A('c0', 2)
    s(f'''
v_mul_f32 v{la}, v{la}, v{ld}
v_mul_f32 v{ai}, v{ai}, v{ld}
v_add_f32 v{ld}, v{ld}, v{ld}
v_mul_f32 v{la}, {f32(-1.4426950408889634)}, v{la}
v_mul_f32 v{ai}, 0.15915494, v{ai}
v_mul_f32 v{val('c0')}, v{cr}, v{ld}
v_mul_f32 v{val('c0')+1}, v{ci}, v{ld}
''')
    zs = (('z8', 8.0), ('z1', 1.0), ('z128', 128.0))
    for k, (nm, p) in enumerate(zs):
        A(nm, 2)
        s(f'v_mul_f32 v{t+2*k}, {f32(p)}, v{la}')
        s(f'v_mul_f32 v{t+2*k+1}, {f32(p)}, v{ai}')
    for k, (nm, p) in enumerate(zs):
        s(f'v_fract_f32 v{t+2*k+1}, v{t+2*k+1}')
        s(f'v_exp_f32 v{t+2*k}, v{t+2*k}')
    for k, (nm, p) in enumerate(zs):
        s(f'v_cos_f32 v{val(nm)}, v{t+2*k+1}')
        s(f'v_sin_f32 v{val(nm)+1}, v{t+2*k+1}')
    for k, (nm, p) in enumerate(zs):
        s(f'v_pk_mul_f32 {vr(val(nm),2)}, {vr(val(nm),2)}, {vr(t+2*k,2)} op_sel_hi:[1,0]')
    fr, acc = 160, 224
    s(f'''
s_lshl_b32 s{sT0}, s{sBH}, 6
s_sub_u32 s{sT0}, 64, s{sT0}
v_cmp_eq_u32 vcc, s{sT0}, v{vL}
v_accvgpr_write_b32 a{acc+1}, 0
v_accvgpr_write_b32 a{acc+2}, 0
v_cndmask_b32 v{dsk}, 0, v{dsk}, vcc
v_accvgpr_write_b32 a{acc+3}, 0
v_accvgpr_write_b32 a{acc}, v{dsk}
''')
    mode = {'pk': True}

    def pack(nm):
        p = A('p' + nm)
        s(f'v_cvt_pk_bf16_f32 v{p}, v{val(nm)}, {"-" if nm[0] == "z" else ""}v{val(nm)+1}')

    def mp(lst):
        for d, a, b in lst:
            A(d, 2)
        if mode['pk']:
            for d, a, b in lst:
                s(f'v_pk_mul_f32 {vr(val(d),2)}, {vr(val(a),2)}, {vr(val(b),2)} op_sel_hi:[1,0]')
            for d, a, b in lst:
                s(f'v_pk_fma_f32 {vr(val(d),2)}, {vr(val(a),2)}, {vr(val(b),2)}, {vr(val(d),2)} op_sel:[1,1,0] op_sel_hi:[0,1,1] neg_lo:[1,0,0]')
        else:
            for d, a, b in lst:
                s(f'v_mul_f32 v{val(d)}, v{val(a)}, v{val(b)}')
                s(f'v_mul_f32 v{val(d)+1}, v{val(a)+1}, v{val(b)}')
                s(f'v_fma_f32 v{val(d)}, -v{val(a)+1}, v{val(b)+1}, v{val(d)}')
                s(f'v_fmac_f32 v{val(d)+1}, v{val(a)}, v{val(b)+1}')
        for d, _, _ in lst:
            if d not in ('z256', 'z512'):
                pack(d)

    s(f'v_mov_b32 v{A("pz0")}, 0x3f80')
    pack('z8')
    pack('c0')
    lo_rounds = [[('z16', 'z8', 'z8'), ('z256', 'z128', 'z128')],
                 [('z24', 'z16', 'z8'), ('z32', 'z16', 'z16')],
                 [('z40', 'z8', 'z32'), ('z48', 'z16', 'z32')],
                 [('z56', 'z24', 'z32'), ('z64', 'z32', 'z32')],
                 [('z72', 'z40', 'z32'), ('z80', 'z48', 'z32')],
                 [('z88', 'z56', 'z32'), ('z96', 'z64', 'z32')],
                 [('z104', 'z72', 'z32'), ('z112', 'z80', 'z32'), ('z120', 'z88', 'z32')]]
    def wr(row, names):
        for k, nm in enumerate(names):
            s(f'ds_write_addtid_b32 v{val("p" + nm)} offset:{272*(row+k)}', m0=f's_mov_b32 m0, s{sP4}')
            extra[id(s.l[-1])] = ([f'row{row+k}'], [])

    def rd(tile):
        for ks in range(4):
            s(f'ds_read_b128 {ar(fr+16*tile+4*ks,4)}, v{vRR} offset:{(O_T if tile == 3 else 0) + 64*ks}')
            extra[id(s.l[-1])] = ([], [f'row{r + (16 if tile == 3 else 0)}' for r in range(16)])

    for r, lst in enumerate(lo_rounds):
        mp(lst + [(f'c{r+1}', f'c{r}', 'z1')])
        F(*{2: ['z8', 'z16'], 3: ['z24'], 4: ['z40', 'z48'], 5: ['z56', 'z64', 'z96']}.get(r, []))
    F('z1', 'z32', 'z72', 'z80', 'z88', 'z104', 'z112', 'z120')
    cut('A')
    wr(0, [f'z{8*b}' for b in range(16)])
    cut('wl')
    rd(0)
    cut('rl')
    mp([(f'c{128+o}', f'c{o}', 'z128') for o in range(4)])
    F('c1', 'c3', 'c129', 'c131')
    mp([(f'c{128+o}', f'c{o}', 'z128') for o in range(4, 8)])
    F('z128', 'c5', 'c7', 'c133', 'c135')
    cut('v0')
    F(*[f'pz{8*b}' for b in range(16)])
    t0 = [f'c{h}' for h in list(range(8)) + list(range(128, 136))]
    wr(0, t0)
    cut('w0')
    rd(1)
    cut('r0')
    mp([(f'c{256+o}', f'c{o}', 'z256') for o in (0, 2, 4, 6)])
    F('c0', 'c2', 'c4', 'c6', 'c258', 'c262')
    mp([(f'c{384+o}', f'c{128+o}', 'z256') for o in (0, 2, 4, 6)] + [('z512', 'z256', 'z256')])
    F('c128', 'c130', 'c132', 'c134', 'c386', 'c390')
    mp([(f'c{h+256}', f'c{h}', 'z256') for h in (256, 260, 384, 388)])
    mp([(f'c{h+512}', f'c{h}', 'z512') for h in (256, 260, 384, 388)])
    F('z256', 'c516', 'c644', 'c256', 'c260', 'c384', 'c388', 'c772', 'c900')
    cut('v1')
    wr(0, [f'c{h}' for h in (256, 258, 260, 262, 384, 386, 388, 390, 512, 516, 640, 644, 768, 772, 896, 900)])
    cut('w1')
    rd(2)
    cut('r1')
    F(*['p' + x for x in t0])
    mp([(f'c{h+512}', f'c{h}', 'z512') for h in (512, 640, 768, 896)])
    F('c512', 'c640', 'c768', 'c896')
    mp([(f'c{h+512}', f'c{h}', 'z512') for h in (1024, 1152, 1280, 1408)])
    F('c1024', 'c1152', 'c1280', 'c1408')
    mp([('c2048', 'c1536', 'z512')])
    cut('v2')
    wr(16, [f'c{1024 + 128*k}' for k in range(9)])
    cut('w2')
    rd(3)
    cut('r2')
    for k in range(3):
        for ks in range(4):
            c = ar(acc + 4 * k, 4)
            s(f'v_mfma_f32_16x16x32_bf16 {c}, {ar(fr+16*(k+1)+4*ks,4)}, {ar(fr+4*ks,4)}, {c if (ks or k == 0) else 0}')
    cut('mf')
    s(f'ds_write_b32 v{vEa+2}, v{vZ} offset:{699*4}')
    for k in range(6):
        o0, o1 = (0, 100) if k < 4 else (4 * (k - 4), 4 * (k - 4) + 2)
        s(f'ds_write2_b32 v{vTA+min(k,4)}, a{acc+2*k}, a{acc+2*k+1} offset0:{o0} offset1:{o1}')
    for k, it in enumerate(s.l):
        extra[id(it)] = ([f'row{25+k}'], [])
    cut('wt')
    gv, ov = vb, pb
    for i in range(9):
        for p in range(2):
            s(f'ds_read2st64_b32 {vr(gv+4*i+2*p,2)}, v{vGA+i} offset0:{17 + 32*p} offset1:{17 + 32*(2+p)}')
    cut('rc')
    for i in range(9):
        if pkC:
            s(f'v_pk_add_f32 {vr(gv+4*i,2)}, {vr(gv+4*i,2)}, {vr(gv+4*i+2,2)}')
        else:
            s(f'v_add_f32 v{gv+4*i}, v{gv+4*i}, v{gv+4*i+2}')
            s(f'v_add_f32 v{gv+4*i+1}, v{gv+4*i+1}, v{gv+4*i+3}')
    for c in range(2):
        for o in (1, 0):
            for k in range(4):
                a = gv + 4 * (2 * k + (1 - o)) + c
                s(f'v_cvt_pk_bf16_f32 v{ov+8*c+4*o+k}, v{a}, v{a+4}')
    cut('vc')
    for c in range(2):
        for o in (1, 0):
            s(f'ds_write_b128 v{vEa}, {vr(ov+8*c+4*o,4)} offset:{(2*c+o)*PART + 128*o}')
    s(f'ds_write_b128 v{vEa+1}, {vr(vZ2,4)} offset:4096')
    s(f'ds_write_b64 v{vUz}, {vr(vZ2,2)} offset:{L_U}')
    cut('wc')
    P['vb'], P['pb'] = vb, pb
    checks.append((canon, extra))
    return P


W2E = [2, 'A', 'B', 3, 0, 4, 1, 5, 2, 3, 0, 4, 1, 5]
W2DEP = {8: 0, 9: 3, 10: 4, 11: 5, 12: 6, 13: 7}


def w2_dma(ks):
    g = []
    e = W2E[ks]
    m0 = f's_add_u32 m0, s{sP4}, {L_U + 4096*"AB".index(e)}' if e in ('A', 'B') else f's_add_u32 m0, s{sM}, {L_E + 16384*e}'
    for i in range(4):
        s = Seq()
        if i == 0:
            if ks in W2DEP:
                s.wait(f'tr{W2DEP[ks]}')
            s(f's_add_u32 s{sW2l}, s{sW2l}, 32768')
        if OPT['skipw'] and ks >= 7:
            s('s_nop 0', tag=f'w2d{ks}')
        else:
            s(f'buffer_load_dwordx4 v{vW2s+i}, {srd(SW2)}, s{sW2l} offen offset:{1024*i} lds', tag=f'w2d{ks}', m0=m0)
        g.append(s)
    return g


def w2_tr(ks):
    g = []
    e = W2E[ks]
    win, off = (1, 4096 * 'AB'.index(e)) if e in ('A', 'B') else (e // 4, 16384 * (e % 4))
    for j in range(4):
        for hh in range(2):
            s = Seq()
            if j == 0 and hh == 0:
                s.wait(f'w2d{ks}')
            s(f'ds_read_b64_tr_b16 {ar(16*ks+4*j+2*hh,2)}, v{vTr+4*win+j} offset:{off + 2048*hh}', tag=f'tr{ks}')
            g.append(s)
    return g


def w2_window():
    return Seq()('\n'.join(f'v_add_u32 v{vTr+4+j}, 65536, v{vTr+j}' for j in range(4)))


def u_poll_issue():
    return Seq()(f'buffer_load_dword v{vPF}, v{vPA}, {srd(SWS)}, s{sFUp} offen sc1')


def u_dma():
    s = Seq()
    s(f'v_cmp_ne_u32 vcc, s{sNON}, v{vPF}')
    retry(s, 's_cbranch_vccnz', 's_cbranch_vccz', f'''
buffer_load_dword v{vPF}, v{vPA}, {srd(SWS)}, s{sFUp} offen sc1
s_waitcnt vmcnt(0)
v_cmp_ne_u32 vcc, s{sNON}, v{vPF}''')
    s.wait('tr2')
    for i in range(4):
        s(f'buffer_load_dwordx4 v{vL16}, {srd(SWS)}, s{sUs} offen offset:{1024*i} sc1 lds', tag='udma', m0=f's_add_u32 m0, s{sUm}, {L_U + 512}')
    return s


main = Seq()
vXr = V.alloc(2, 1)
vWr = V.alloc(4, 1)
vACC = V.alloc(64, 2)
vFR = V.alloc(32, 2)
aFR = 96
if OPT['ni']:
    main(f's_cmp_lg_u32 s2, 0\ns_cbranch_scc1 Lback_clk\ns_memrealtime s[{sHst}:{sHst2}]\nLback_clk:')
pro_body(main)
main(f'''
s_mul_i32 s{sT0}, s{sJ}, 9363
s_lshr_b32 s{sT0}, s{sT0}, 16
s_mul_i32 s{sT1}, s{sT0}, 7
s_sub_u32 s{sT1}, s{sJ}, s{sT1}
s_lshl2_add_u32 s{sTB2}, s{sXCD}, s{sT0}
s_cmp_ge_u32 s{sT1}, 3
s_addc_u32 s{sNB}, s{sT1}, 0
s_lshr_b32 s{sT2}, s{sXCD}, 1
s_and_b32 s{sT3}, s{sXCD}, 1
s_lshl2_add_u32 s{sT0}, s{sT2}, s{sT0}
s_lshl1_add_u32 s{sKC}, s{sT3}, s{sT2}
s_mul_i32 s{sT3}, s{sT3}, 7
s_add_u32 s{sT1}, s{sT1}, s{sT3}
s_and_b32 s{sXb}, s{sT0}, {(0, 0, 1, 3)[OPT['rot']]}
s_lshl1_add_u32 s{sKC}, s{sKC}, s{sXb}
s_lshl_b32 s{sKC}, s{sKC}, 3
s_and_b32 s{sKC}, s{sKC}, {63 if OPT['rot'] else 0}
s_lshr_b32 s{sT3}, s{sWV}, 1
s_lshl1_add_u32 s{sTB1}, s{sT0}, s{sBH}
s_lshl1_add_u32 s{sCB1}, s{sT1}, s{sT3}
s_lshl2_add_u32 s{sXb}, s{sT0}, s{sWV}
s_lshl_b32 s{sXb}, s{sXb}, 15
s_mul_i32 s{sWb}, s{sWV}, {16*3584}
s_lshl_b32 s{sT1}, s{sT1}, 8
s_add_u32 s{sWb}, s{sWb}, s{sT1}
v_and_b32 v{t+1}, 7, v{vL}
v_xor_b32 v{t}, v{vG}, v{t+1}
v_lshrrev_b32 v{t+1}, 3, v{vL}
v_lshlrev_b32 v{t+1}, 10, v{t+1}
v_lshl_add_u32 v{vXs}, v{t}, 4, v{t+1}
v_xor_b32 v{t}, 64, v{vXs}
v_add_u32 v{vXs+1}, 7168, v{t}
v_add_u32 v{vXs+2}, {2*7168}, v{vXs}
v_add_u32 v{vXs+3}, {3*7168}, v{t}
v_lshlrev_b32 v{t}, 2, v{vG}
v_xor_b32 v{t}, v{t}, v{vN}
v_mul_u32_u24 v{t+1}, 3584, v{vG}
v_lshl_add_u32 v{vWs}, v{t}, 4, v{t+1}
''')
main(f'''
v_add_u32 v{vWs+1}, {4*3584 - 1024}, v{vWs}
v_xor_b32 v{t}, 2, v{t}
v_lshl_add_u32 v{t}, v{t}, 4, v{t+1}
v_add_u32 v{vWs+2}, {(4*3584 - 1024)*2}, v{t}
v_add_u32 v{vWs+3}, {(4*3584 - 1024)*3}, v{t}''')


def stage_loads(st):
    g = []
    last = 0 if OPT['wf'] else 1
    for isw in (1 - last, last):
        for i in range(4):
            s = Seq()
            if i == 0:
                if isw:
                    s(f's_mul_i32 s{sWk}, s{sKC}, {8*3584}')
                    s(f's_add_u32 s{sWk}, s{sWk}, s{sWb}')
                else:
                    s(f's_lshl4_add_u32 s{sXk}, s{sKC}, s{sXb}')
            m0 = f's_add_u32 m0, s{sM}, {(L_W if isw else L_X) + 16384*(st % 4)}'
            if isw:
                s(f'buffer_load_dwordx4 v{vWs+i}, {srd(SW1)}, s{sWk} offen offset:{1024*i} lds', tag=f'st{st}', m0=m0)
            else:
                s(f'buffer_load_dwordx4 v{vXs+i}, {srd(SX)}, s{sXk} offen offset:{1024*i} lds', tag=f'st{st}', m0=m0)
            if isw == last and i == 1:
                s(f's_add_u32 s{sKC}, s{sKC}, 8')
            if isw == last and i == 2:
                s(f's_and_b32 s{sKC}, s{sKC}, 63')
            g.append(s)
    return g


LS = [g for st in range(8) for g in stage_loads(st)]
if OPT['pf']:
    pl0 = Seq()('s_waitcnt lgkmcnt(0)')
    param_loads(pl0)
    scalar_params(pl0)
    k_ = 1 + max(k for k, it in enumerate(main.l) if f's{sCNT}' in it.dst) + OPT['pf'] - 1
    main.l[k_:k_] = pl0.l
HOIST = len(main)
main(f's_or_b32 s{sT4}, s2, s{sWV}')
if not OPT['pf']:
    main('s_waitcnt lgkmcnt(0)')
stamp(main, 'karg')
if OPT['ni']:
    main(f'''
s_or_b32 s{sHst}, s{sHst}, 1
s_cmp_lg_u32 s{sT4}, 0
s_cbranch_scc1 Lback_nonce
{f'v_mov_b32 v{vNON}, s{sHst}' if OPT['vf'] & 4 else ''}
{f'global_store_dword v{vZ}, v{vNON}, {ptr(P_DBG)} sc1' if OPT['vf'] & 4 else f's_atomic_swap s{sHst}, {ptr(P_DBG)}, 0'}
Lback_nonce:''')
    main.l[-2].vm = False
else:
    main(f'''
s_cmp_eq_u32 s{sT4}, 0
s_cbranch_scc1 Lnonce
Lnonce_back:''')
    outline.append(f'''Lnonce:
    s_memrealtime s[{sHst}:{sHst2}]
    s_waitcnt lgkmcnt(0)
    s_or_b32 s{sHst}, s{sHst}, 1
    {f'v_mov_b32 v{vNON}, s{sHst}' if OPT['vf'] & 4 else 's_nop 0'}
    {f'global_store_dword v{vZ}, v{vNON}, {ptr(P_DBG)} sc1' if OPT['vf'] & 4 else f's_atomic_swap s{sHst}, {ptr(P_DBG)}, 0'}
    s_branch Lnonce_back
''')
L_UT = L_W + 3 * 16384
if not OPT['pf']:
    param_loads(main)
main.add(ut_loads(L_UT))
if not OPT['pf']:
    scalar_params(main)
NE, NK = OPT['early'], OPT['nk']
su = Seq()
su(f'''
v_lshrrev_b32 v{t+1}, 1, v{vN}
v_xor_b32 v{t+1}, v{t+1}, v{vG}
s_lshl_b32 s{sT0}, s{sBH}, 13
s_add_u32 s{sT0}, s{sT0}, {L_X}
v_lshl_add_u32 v{t}, v{vN}, 7, s{sT0}
v_lshl_add_u32 v{vXr}, v{t+1}, 4, v{t}
v_xor_b32 v{vXr+1}, 64, v{vXr}
v_bfe_u32 v{t}, v{vL}, 2, 2
v_lshl_add_u32 v{t+1}, v{vG}, 3, v{t}
v_lshlrev_b32 v{t+1}, 8, v{t+1}
v_and_b32 v{t+2}, 3, v{vL}
v_lshl_add_u32 v{t+1}, v{t+2}, 3, v{t+1}
v_add_u32 v{t+1}, {L_W}, v{t+1}
v_and_b32 v{t+2}, 1, v{vG}
v_lshl_add_u32 v{t}, v{t}, 1, v{t+2}
s_and_b32 s{sT0}, s{sWV}, 2
s_lshl_b32 s{sT0}, s{sT0}, 1
v_xor_b32 v{t}, s{sT0}, v{t}
v_lshl_add_u32 v{vWr}, v{t}, 5, v{t+1}
v_xor_b32 v{vWr+1}, 32, v{vWr}
v_xor_b32 v{vWr+2}, 64, v{vWr}
v_xor_b32 v{vWr+3}, 96, v{vWr}
''')
sk = setup_k()
su.add(sk.l[:3] if OPT['kf'] else sk.l)
sa = setup_a()
ntouch = OPT['touch'] + OPT['tlb'] + OPT['c3'] + OPT['t1'] + OPT['c3x']
su.add(setup_g())
su.add(ut_setup(L_UT))
sb_all = setup_b()
SBE = (0, 15, 31)[OPT['sbe']]
assert f'v{vW2s+3}' in sb_all.l[14].dst and f'v{vTr+7}' in sb_all.l[30].dst
su.add(sb_all.l[:SBE])
su.add(sa.l[:len(sa) - ntouch])
assert OPT['pw'] <= 100
main.l[HOIST:HOIST] = su.l[:OPT['pw']]
su.l = su.l[OPT['pw']:]
if OPT['bd'] < 0:
    main.add(cat(LS[:4]))
    main.add(sprinkle(su, LS[4:NE], 0, 12 * (NE - 4)))
else:
    main.add(sprinkle(su, LS[:NE], OPT['bd'], min(len(su), OPT['bd'] + OPT['bs'] * NE)))
if OPT['iw'] and OPT['iwp'] == 0:
    main(';IWARM main')
stamp(main, 'setup')
TL = OPT['tl']
K = kgen(TL > 0, vACC)
vTS = K['pb'] + 16


def kgen_seq(K, f=()):
    s = Seq()
    wl, w0, w1 = chunks(K['wl'], 4), chunks(K['w0'], 4), chunks(K['w1'], 4)
    v0, v1, v2 = K['v0'].l, K['v1'].l, K['v2'].l
    s.add(K['A']).add(wl[0]).add(wl[1]).add(v0[:6]).add(wl[2]).add(wl[3]).add(v0[6:20]).add(K['rl']).add(v0[20:])
    s.add(w0[0]).add(v1[:8]).add(w0[1]).add(v1[8:16]).add(w0[2]).add(v1[16:24]).add(w0[3]).add(v1[24:40])
    s.add(K['r0']).add(v1[40:])
    s.add(w1[0]).add(v2[:8]).add(w1[1]).add(v2[8:16]).add(w1[2]).add(v2[16:24]).add(w1[3]).add(v2[24:])
    s.add(list(f)[:2]).add(K['w2'])
    mf, wt = K['mf'].l, K['wt'].l
    f = list(f)
    s.add(mf[:4]).add(f[13:25]).add(K['r1']).add(K['r2']).add(f[25:]).add(mf[4:]).add(f[2:13]).add(wt)
    return s


ka = kgen_seq(K, sk.l[3:] if OPT['kf'] else ())
ua, ub = ut_work(vFR)
tch = sa.l[len(sa) - ntouch:] if ntouch else []
UA = OPT['ua']
ka.l[UA + 60:UA + 60] = nonce_issue().l
ka.l[UA + 40:UA + 40] = ub.l[-1:]
ka.l[UA + 24:UA + 24] = ub.l[:-1]
ka.l[UA:UA] = (Seq()(';IWARM main').l if OPT['iwp'] == 1 else []) + ua.l
for k, x in enumerate(tch):
    pos = OPT['te'] + 10 * (len(tch) - k) if OPT['te'] else UA - 12 * (k + 1)
    ka.l[pos:pos] = [x]
if OPT['stamps'] == 3:
    for pos, nm in ((len(ka) - OPT['res'], 'kC'), (170, 'kB'), (60, 'kA'), (8, 'bar')):
        x = Seq()
        stamp(x, nm, 3)
        ka.l[pos:pos] = x.l
    stamp_names[-4:] = stamp_names[:-5:-1]
wt_late = []
if OPT['wtl']:
    wt_late, ka.l = ka.l[-7:], ka.l[:-7]
PRE0 = Seq()
if OPT['pb']:
    ka.l[OPT['pb']:OPT['pb']] = [PRE0]
NM = max(OPT['nm'], NE)
ka = sprinkle(ka, LS[NM:NK], len(ka) - OPT['res'], len(ka) - (0 if OPT['wtl'] else 7))
main.add(sprinkle(ka, LS[NE:NM], 9, 9 + OPT['nms'] * (NM - NE)))
stamp(main, 'kgenA')


def g1_reads(st, ks):
    o = 16384 * (st % 4)
    b = aFR + 32 * ks
    A = [[f'ds_read_b64_tr_b16 {ar(b+4*k+2*hh,2)}, v{vWr+k} offset:{o + ks*8192 + hh*1024}' for hh in range(2)] for k in range(4)]
    B = [f'ds_read_b128 {ar(b+16+4*k,4)}, v{vXr+ks} offset:{o + k*2048}' for k in range(4)]
    return A[0] + B[::-1] + A[1] + A[2] + A[3]


SNAKE = [(ft, tt if ft % 2 == 0 else 3 - tt) for ft in range(4) for tt in range(4)]


def g1_mfma(st, ks):
    b = aFR + 32 * ks
    r = []
    for ft, tt in SNAKE:
        a = vr(vACC + 16 * tt + 4 * ft, 4)
        r.append(f'v_mfma_f32_16x16x32_bf16 {a}, {ar(b+4*ft,4)}, {ar(b+16+4*tt,4)}, {0 if (st == 0 and ks == 0) else a}')
    return r


pc_addr = Seq()
pc_addr(f'''
v_lshl_add_u32 v{t}, v{vN}, 4, s{sP4}
s_lshl_b32 s{sT0}, s{sCB1}, 10
s_add_u32 s{sT0}, s{sT0}, {WS_FP}
s_lshl_b32 s{sT1}, s{sTB1}, 10
s_add_u32 s{sT4}, s{sT1}, {WS_TS - 2048}
s_add_u32 s{sT1}, s{sT1}, {WS_TP - 1024}''')
pc_m0 = f's_add_u32 m0, s{sP4}, {O_T}'
pc_ld = [f'buffer_load_dwordx4 v{vL16}, {srd(SWS)}, s{(sT0, sT1, sT4)[w]} offen offset:{1024*w} sc1 lds' for w in range(3)]
pcr = [vFR + 4 * k for k in range(8)] + [vTS + 4 * k for k in range(4)]
pc_rd = [f'ds_read_b128 {vr(r,4)}, v{t} offset:{O_T + 256*k}' for k, r in enumerate(pcr)]
pc_cmp = [f'v_xor_b32 v{r+3}, s{sNON}, v{r+3}' for r in pcr]
pc_cmp += [f'v_or3_b32 v{t+1}, v{pcr[0]+3}, v{pcr[1]+3}, v{pcr[2]+3}']
pc_cmp += [f'v_or3_b32 v{t+1}, v{t+1}, v{pcr[k]+3}, v{pcr[min(k+1, 11)]+3}' for k in range(3, 12, 2)]
pc_cmp += [f'v_cmp_ne_u32 vcc, 0, v{t+1}']
pc_chk = [Seq()(x) for x in pc_cmp]
retry(pc_chk[-1], 's_cbranch_vccnz', 's_cbranch_vccz',
      '\n'.join([f's_mov_b32 s{sXk}, m0', pc_m0, 's_nop 0'] + pc_ld + ['s_waitcnt vmcnt(0)'] + pc_rd
                + [f's_mov_b32 m0, s{sXk}', 's_waitcnt lgkmcnt(0)'] + pc_cmp))
sHs = (sHst, sHst2, sXb, sWb)
hadr = Seq()
hadr(f'''
s_mul_i32 s{sHst}, s{sTB1}, {4*56}
s_lshl1_add_u32 s{sHst}, s{sCB1}, s{sHst}
s_lshl_b32 s{sHst}, s{sHst}, 10
s_add_u32 s{sHst}, s{sHst}, {WS_H}
s_add_u32 s{sHst2}, s{sHst}, {56*1024}
s_add_u32 s{sXb}, s{sHst}, {2*56*1024}
s_add_u32 s{sWb}, s{sHst}, {3*56*1024}
s_mul_i32 s{sT2}, s{sCB1}, 9363
s_lshr_b32 s{sT2}, s{sT2}, 16
s_mul_i32 s{sT3}, s{sT2}, 7
s_sub_u32 s{sT3}, s{sCB1}, s{sT3}
s_lshl2_add_u32 s{sFH}, s{sTB1}, s{sT2}
s_lshl_b32 s{sFH}, s{sFH}, {10 if OPT['fhl'] else 7}
s_lshl_b32 s{sT3}, s{sT3}, {FHS}
s_add_u32 s{sFH}, s{sT3}, s{sFH}
s_add_u32 s{sFH}, s{sFH}, {FH}
''')
assert HS == 1

G = Gaps([x for st in range(8) for ks in range(2) for x in g1_mfma(st, ks)] +
         [f'v_mfma_f32_16x16x32_bf16 {vr(vACC+16*tt+4*ft,4)}, {vr(vFR+4*ft,4)}, {vr(vFR+16+4*tt,4)}, {vr(vACC+16*tt+4*ft,4)}'
          for tt in range(4) for ft in range(4)], cap=8, maxlds=1)
BG = 19
for st in range(8):
    b = 32 * st
    G.put(b + BG, bar(f'rd{st}', *([f'st{st+1}', 'utst'] if st < 7 else [])))
    for k, x in enumerate(g1_reads(st, 1)):
        G.put(b + k, Seq()(x, tag=f'rd{st}'))
    if st < 7:
        for k, x in enumerate(g1_reads(st + 1, 0)):
            G.put(b + BG + 1 + k, x)
    for g in (3, 7, 15, 31):
        G.reserve(b + g, 4)
LG = sorted((21, 25, 29, 1, 5, 9, 13, 17, 23, 11, 27)[:OPT['lst']])
lg = [g for g in range(272) if g % 32 in LG]
for i in range(NK, 64):
    while lg[0] <= 32 * (i // 8 - 4) + BG:
        lg.pop(0)
    last_ld = lg.pop(0)
    assert last_ld < 32 * (i // 8 - 1) + BG
    assert last_ld > BG or i < 28 - 4 * OPT['wf']
    G.put(last_ld, LS[i])
if TL:
    for st in (1, 2):
        G.put(32 * st + 13, f'ds_read_b32 v{vPF}, v{vZ}')
else:
    for k, g_ in enumerate(singles(K['rc'])):
        G.put(32 * (1 + k // 6) + 12 + k % 6, g_)
if OPT['iwp'] == 3:
    G.put(BG - 1, ';IWARM main')
G.put(BG + 1, nonce_check())
G.put(BG + 3, fu_flag())
lg = [g for g in range(max(last_ld + 1, 32 * 4 + BG + 1), 272) if (g % 7 in (1, 4) if OPT['lq'] == 7 else g % OPT['lq'] == 1)]
wat = {}
NGL = OPT['ngl']
for ks in (0, 'p', 1, 2, 'u', 3, 4, 5, 6, 7)[:8 + NGL]:
    grp = [Seq()(x, tag='pcd', m0=pc_m0) for x in pc_ld] if ks == 'p' else [u_poll_issue()] if ks == 'u' else w2_dma(ks)
    while lg[0] <= {1: 32 * 5 + BG, 4: 32 * 6 + BG, 6: 32 * 7 + BG, 'p': OPT['pcg']}.get(ks, 0):
        lg.pop(0)
    for g_ in grp:
        wat[ks] = lg.pop(0)
        G.put(wat[ks], g_)
print('late loads', wat)
G.fill(w2_tr(0), 204, 212)
pr = [Seq()(x) for x in pc_rd]
pr[0] = Seq().wait('pcd').add(pr[0])
G.fill(pr, 236, 248)
G.fill(w2_tr(1) + w2_tr(2), 248, 266)
G.put(268, w2_window())
G.fill(pc_chk, 243, 255)
p = G.spread(singles(Seq().add(sb_all.l[SBE:])), 24, 128)
p = G.spread(singles(pc_addr) + ([] if TL else singles(K['vc'])), 128, 200)
assert p[len(pc_addr) - 1] < wat['p'] - 9
p2 = G.spread(singles(hadr), 200, 236)
print('gemm1 over', G.over(), 'last load gap', last_ld, p[-1], p2[-1])
if OPT['iwp'] == 2:
    PRE0(';IWARM main')
PRE0.add(bar('st0'))
for x in g1_reads(0, 0):
    PRE0(x)
if OPT['pb']:
    k_ = main.l.index(PRE0)
    main.l[k_:k_ + 1] = PRE0.l
    assert not any('addtid' in it.mn for it in main.l[:k_])
else:
    main.add(PRE0)
stamp(main, 'b0', 5)
if not TL:
    main.add(wt_late)
for st in range(8):
    if OPT['stamps'] == 5 and st in (0, 1, 6, 7):
        for lo, hi in ((0, 1), (1, 10), (10, 19), (19, 21), (21, 32)):
            main.add(G.emit(32 * st + lo, 32 * st + hi))
            if hi < 32:
                stamp(main, f's{st}_{hi}', 5)
    else:
        main.add(G.emit(32 * st, 32 * st + 32))
    stamp(main, f'g1s{st}', 1 if st in (3, 7) else 2)
R2 = OPT['r2']
main.add(G.emit(256, 260 if R2 else None))
r2q = [G.emit(g, g + 1) for g in range(260, 272)] if R2 else []
assert not R2 or OPT['gs0'] >= 66 * (6 // R2)
delay(main, (4,))
q = vTS + 16
gx = {k: [] for k in range(8)}
wc = singles(K['wc'])
if TL:
    vc, wl_ = K['vc'].l, K['wc'].l
    gx[TL] += [Seq().add(wt_late).add(wl_[4:])]
    gx[min(TL + 1, 7)] += [bar('*lds'), K['rc']]
    gx[min(TL + 2, 7)] += [Seq().add(vc[:13]).add(wl_[:1]).add(vc[13:17]).add(wl_[1:2]).add(vc[17:21]).add(wl_[2:3]).add(vc[21:]).add(wl_[3:4])]
else:
    gx[6] += wc[:OPT['wc6']]
    gx[7] += wc[OPT['wc6']:]
ud = u_dma()
gl_ = [Seq().add(ud.l[:-3])] + singles(Seq().add(ud.l[-3:])) + [g for k in range(6 + NGL, 6 + OPT['ng']) for g in w2_dma(k)]
pre_gelu, main = main, Seq()
for ti in range(4):
    P = vTS + 4 * ti
    for hh in range(2):
        a = vACC + 16 * ti + 8 * hh
        for k in range(4):
            main(f'v_pk_mul_f32 {vr(q+2*k,2)}, {vr(a+2*k,2)}, {vr(a+2*k,2)}')
        for k in range(4):
            main(f'v_pk_fma_f32 {vr(q+2*k,2)}, {vr(q+2*k,2)}, {vr(P,2)}, {vr(P,2)} op_sel:[0,1,0] op_sel_hi:[1,1,0]')
        for k in range(4):
            main(f'v_pk_mul_f32 {vr(q+2*k,2)}, {vr(q+2*k,2)}, {vr(a+2*k,2)}')
        for k in range(8):
            if r2q and k < R2:
                main.add(r2q.pop(0))
            main(f'v_exp_f32 v{q+k}, v{q+k}')
        for k in range(4):
            main(f'v_pk_fma_f32 {vr(q+2*k,2)}, {vr(q+2*k,2)}, {vr(P+2,2)}, {vr(P+2,2)} op_sel_hi:[1,0,0]')
        for k in range(8):
            if r2q and k < R2:
                main.add(r2q.pop(0))
            main(f'v_rcp_f32 v{q+k}, v{q+k}')
        for k in range(4):
            main(f'v_pk_mul_f32 {vr(q+2*k,2)}, {vr(q+2*k,2)}, {vr(a+2*k,2)}')
        for k in range(4):
            main(f'v_cvt_pk_bf16_f32 v{a+k}, v{q+2*k}, v{q+2*k+1}')
        main(f'buffer_store_dwordx4 {vr(a,4)}, v{vL16}, {srd(SWS)}, s{sHs[ti]} offen offset:{1024*hh} sc1', tag='hst')
        main.add(cat(gx[2 * ti + hh]))
        stamp(main, f'ge{2*ti+hh}', 3)
main = pre_gelu.add(sprinkle(main, gl_, OPT['gs0'], OPT['gs0'] + OPT['gsp'] * len(gl_)))
stamp(main, 'gelu')
for b, n in ((vXr, 2), (vWr, 4), (vACC, 64), (vFR, 32), (K['vb'], 36), (K['pb'], 40)):
    V.release(b, n)

sp = Seq()
sp('Lspare:')
pro_body(sp)
vS = vXs
vB1 = vXs + 6
L_SX, L_SW, L_SG = 32768, 98304, 16384
sp(f'''
s_sub_u32 s{sT4}, s{sJ}, 28
s_lshl2_add_u32 s{sTB1}, s{sXCD}, s{sT4}
s_lshl2_add_u32 s{sXb}, s{sTB1}, s{sWV}
s_lshl_b32 s{sXb}, s{sXb}, 14
s_lshl_b32 s{sT1}, s{sWV}, 2
v_and_b32 v{t}, 31, v{vL}
v_xor_b32 v{t}, s{sT1}, v{t}
v_lshrrev_b32 v{t+1}, 5, v{vL}
v_lshlrev_b32 v{t+1}, 10, v{t+1}
v_lshl_add_u32 v{vS}, v{t}, 4, v{t+1}
v_xor_b32 v{vS+1}, 32, v{vS}
s_waitcnt lgkmcnt(0)
''')
stamp(sp, 'karg')
scalar_params(sp)
wl, xl = [], []
for i in range(4):
    s = Seq()
    s(f's_add_u32 s{sWb}, s{sWb}, {32*3584}')
    for r in range(4):
        s(f'buffer_load_dwordx4 v{vS+2+r}, {srd(SW1)}, s{sWb} offen offset:{1024*r} lds', tag='spw', m0=f's_lshl2_add_u32 m0, s{sM}, {L_SW + 4096*i}')
    wl.append(s)
xs = []
for h in range(2):
    for i in range(8):
        s = Seq()
        s(f's_add_u32 s{sXk}, s{sXb}, {512*h + 2048*i - 1024*(i%4)}')
        s(f'buffer_load_dwordx4 v{vS + i//4}, {srd(SX)}, s{sXk} offen offset:{1024*(i%4)} lds', tag=f'spx{h}',
          m0=f's_add_u32 m0, s{sP4}, {L_SX + 32768*h + 4096*(i//4)}')
        xs.append(s)
L_ST = 16384 + 8192
sp.add(ut_loads(L_ST))
param_loads(sp)
sp.add(cat(xs[:2]))
sp_head, sp = sp, Seq()
vSa = V.alloc(10, 1)
o = V.alloc(8, 2)
vF1 = V.alloc(48, 2)
vD = V.alloc(16, 2)
vONE = V.alloc(4, 2)
vTOK = t + 7
sp(f'''
s_lshr_b32 s{sT1}, s{sXCD}, 1
s_lshl2_add_u32 s{sT0}, s{sT1}, s{sT4}
s_min_u32 s{sT0}, s{sT0}, 13
s_and_b32 s{sT1}, s{sXCD}, 1
s_mul_i32 s{sT1}, s{sT1}, 14
s_add_u32 s{sCB1}, s{sT0}, s{sT1}
s_lshl_b32 s{sT2}, s{sCB1}, 7
s_lshl_b32 s{sT0}, s{sWV}, 5
s_add_u32 s{sT0}, s{sT0}, s{sT2}
v_lshl_add_u32 v{vB1}, v{vN}, 1, s{sT0}
v_lshlrev_b32 v{t}, 1, v{vG}
v_and_b32 v{t+1}, 7, v{vL}
v_xor_b32 v{t}, v{t}, v{t+1}
v_lshrrev_b32 v{t+1}, 3, v{vL}
v_mul_u32_u24 v{t+1}, 3584, v{t+1}
v_lshl_add_u32 v{vS+2}, v{t}, 4, v{t+1}
v_add_u32 v{vS+3}, {(8*3584-1024)*1}, v{vS+2}
v_add_u32 v{vS+4}, {(8*3584-1024)*2}, v{vS+2}
v_add_u32 v{vS+5}, {(8*3584-1024)*3}, v{vS+2}
s_mul_i32 s{sWb}, s{sWV}, {128*3584}
s_add_u32 s{sWb}, s{sWb}, s{sT2}
s_sub_u32 s{sWb}, s{sWb}, {32*3584}
s_lshl2_add_u32 s{sFH}, s{sTB1}, s{sWV}
s_lshl_b32 s{sFH}, s{sFH}, 7
s_add_u32 s{sFH}, s{sFH}, {WS_SIZE if OPT['vf'] & 1 else FDUMMY}
s_mov_b32 s{sTB2}, s{sTB1}
s_mov_b32 s{sNB}, 3
v_and_b32 v{t}, 7, v{vN}
v_lshrrev_b32 v{t+1}, 3, v{vN}
v_lshl_add_u32 v{t+1}, v{t}, 3, v{t+1}
s_lshl_b32 s{sT0}, s{sWV}, 1
v_add_u32 v{vTOK}, s{sT0}, v{t+1}
v_lshlrev_b32 v{t}, 1, v{t}
v_xor_b32 v{t}, v{t}, v{vG}
v_lshlrev_b32 v{t+1}, 9, v{vTOK}
v_add_u32 v{t+1}, {L_SX}, v{t+1}
v_lshlrev_b32 v{vSa+4}, 4, v{vG}
v_add_u32 v{vSa+4}, {L_SG}, v{vSa+4}
''')
for k in range(4):
    sp(f'v_xor_b32 v{vSa+k}, {4*k}, v{t}')
    sp(f'v_lshl_add_u32 v{vSa+k}, v{vSa+k}, 4, v{t+1}')
    sp(f'v_mov_b32 v{vONE+k}, 0x3f803f80')
sp(f'''
v_lshrrev_b32 v{t}, 2, v{vL}
v_bfe_u32 v{t+1}, v{vL}, 3, 2
v_xor_b32 v{t+1}, s{sWV}, v{t+1}
v_lshlrev_b32 v{t}, 7, v{t}
v_lshl_add_u32 v{t}, v{t+1}, 5, v{t}
v_and_b32 v{t+1}, 3, v{vL}
v_lshl_add_u32 v{t}, v{t+1}, 3, v{t}
v_add_u32 v{vSa+5}, {L_SW}, v{t}
v_lshrrev_b32 v{t}, 2, v{vN}
v_cmp_eq_u32 vcc, v{t}, v{vG}
v_lshlrev_b32 v{t}, 4, v{vTOK}
v_mov_b32 v{t+4}, 0x7ff00000
v_cndmask_b32 v{vSa+9}, v{t+4}, v{t}, vcc
s_lshl_b32 s{sT0}, s{sTB1}, 10
s_add_u32 s{sHst2}, s{sT0}, {WS_TS}
s_add_u32 s{sHst}, s{sT0}, {WS_TP}
''')
sa = setup_a()
sp.add(sa.l[:9])
sp.add(ut_setup(L_ST))
sp.add(setup_k())
sp = sp_head.add(sprinkle(sp, xs[2:9], 0, 100))
K = kgen(True, vF1, 32)
ua, ub = ut_work(vF1 + 32)
rest = cat(wl)
rest(f'global_load_ushort v{vB1}, v{vB1}, {ptr(P_B1)}')
rest(f'global_load_lds_dwordx4 v{vL16}, {ptr(P_GW)}', tag='spw', m0=f's_mov_b32 m0, {L_SG}')
rest = singles(rest)
sp.add(ua)
sp.add(sprinkle(cat([K['A'], setup_g()]), xs[9:] + [nonce_issue()] + rest[:10], 0, 215))
if OPT['iw']:
    sp(';IWARM spare')
sp.add(bar('spx1'))
stamp(sp, 'setup')
aX = 64
Gs = Gaps([f'v_mfma_f32_16x16x32_bf16 {vr(vD+4*k,4)}, {a}, {ar(aX+4*s_,4)}, {vr(vD+4*k,4) if s_ else 0}'
           for s_ in range(16) for k, a in enumerate((ar(aX + 4 * s_, 4), vr(vONE, 4)))], cap=8, maxlds=1)
rds = [Seq()(f'ds_read_b128 {ar(aX+4*s_,4)}, v{vSa+s_%4} offset:{32768*(s_//8) + 256*((s_//4)%2)}') for s_ in range(16)]
sp.add(cat(rds[:5]))
Gs.fill(rds[5:], 0, 32)
Gs.fill(rest[10:], 0, 32, step=2)
sp.add(Gs.emit())
sp.add(ub)
sp.add(nonce_check())
C0 = -2.0 * math.sqrt(2.0 / math.pi) * math.log2(math.e)
C1 = C0 * 0.044715
sp(f'''
v_and_b32 v{t}, 1, v{vL}
v_cmp_eq_u32 vcc, 1, v{t}
v_and_b32 v{t}, 2, v{vL}
v_cmp_eq_u32 s[{sT0}:{sT1}], 2, v{t}
v_cndmask_b32 v{vD}, v{vD}, v{vD+1}, vcc
v_cndmask_b32 v{vD+2}, v{vD+2}, v{vD+3}, vcc
v_cndmask_b32 v{vD}, v{vD}, v{vD+2}, s[{sT0}:{sT1}]
v_mul_f32 v{vD+4}, {f32(1/512)}, v{vD+4}
v_mul_f32 v{vD}, {f32(1/512)}, v{vD}
v_fma_f32 v{vD}, -v{vD+4}, v{vD+4}, v{vD}
v_mul_f32 v{vD+4}, 0x3e800000, v{vD+4}
v_cvt_pk_bf16_f32 v{o}, -v{vD+4}, -v{vD+4}
v_max_f32 v{vD}, 0, v{vD}
v_add_f32 v{vD}, {f32(1e-5)}, v{vD}
v_and_b32 v{vD+6}, 0xffff0000, v{o}
v_sqrt_f32 v{o+6}, v{vD}
v_rsq_f32 v{vD+1}, v{vD}
v_add_f32 v{vD+6}, v{vD+6}, v{vD+4}
v_mul_f32 v{o+4}, {f32(C0)}, v{vD+1}
v_mul_f32 v{vD+2}, v{vD+1}, v{vD+1}
v_mul_f32 v{o+5}, {f32(C1)}, v{vD+1}
v_mul_f32 v{o+5}, v{o+5}, v{vD+2}
v_mul_f32 v{vD+7}, 0x3e800000, v{o+6}
v_cvt_pk_bf16_f32 v{vD+5}, v{vD+7}, v{vD+7}
v_and_b32 v{vD+5}, 0xffff0000, v{vD+5}
v_sub_f32 v{vD+7}, v{vD+7}, v{vD+5}
v_cvt_pk_bf16_f32 v{o+1}, -v{vD+6}, v{vD+5}
v_cvt_pk_bf16_f32 v{o+2}, v{vD+7}, v{vZ}
v_mov_b32 v{o+3}, s{sNON}
v_mov_b32 v{o+7}, s{sNON}
buffer_store_dwordx4 {vr(o,4)}, v{vSa+9}, {srd(SWS)}, s{sHst} offen sc1
buffer_store_dwordx4 {vr(o+4,4)}, v{vSa+9}, {srd(SWS)}, s{sHst2} offen sc1
''')
stamp(sp, 'kgenA')
tsp = Seq()(f'''
s_lshl2_add_u32 s{sT0}, s{sTB1}, s{sWV}
s_mul_i32 s{sT0}, s{sT0}, {112*128}
s_add_u32 s{sT1}, s{sT0}, {56*128}
v_min_u32 v{t}, 55, v{vL}
v_lshlrev_b32 v{t}, 7, v{t}
buffer_load_dword v{vPF}, v{t}, {srd(SW2)}, s{sT0} offen
buffer_load_dword v{vPF}, v{t}, {srd(SW2)}, s{sT1} offen''')
sp.add(sa.l[9:])
if OPT['tsp'] == 1:
    sp.add(tsp)
sp.add(bar('spw'))
Gs = Gaps([f'v_mfma_f32_16x16x32_bf16 {vr(vD+12,4)}, {vr(vONE,4)}, {ar(4*s_,4)}, {vr(vD+12,4) if s_ else 0}' for s_ in range(16)], cap=8)
rdw = [Seq()(f'ds_read_b64_tr_b16 {ar(2*s_,2)}, v{vSa+5} offset:{2048*s_}') for s_ in range(32)]
rdw += [Seq()(f'ds_read_b128 {ar(128+4*s_,4)}, v{vSa+4} offset:{64*s_}') for s_ in range(16)]
sp.add(cat(rdw[:16]))
Gs.fill(rdw[16:], 0, 16)
sp.add(Gs.emit())
sp(f'''
v_cmp_gt_u32 vcc, 16, v{vL}
v_mov_b32 v{t+2}, 0x7ff00000
s_lshl2_add_u32 s{sT0}, s{sCB1}, s{sWV}
s_lshl_b32 s{sT0}, s{sT0}, 8
s_add_u32 s{sT0}, s{sT0}, {WS_FP}
v_cndmask_b32 v{t}, v{t+2}, v{vL16}, vcc
v_mov_b32 v{o+2}, v{vB1}
v_cvt_pk_bf16_f32 v{o+1}, v{vD+12}, v{vZ}
v_lshlrev_b32 v{t+3}, 16, v{o+1}
v_lshl_or_b32 v{o+1}, v{vB1}, 16, v{o+1}
v_sub_f32 v{t+4}, v{vD+12}, v{t+3}
v_cvt_pk_bf16_f32 v{o}, v{t+3}, v{t+4}
buffer_store_dwordx4 {vr(o,4)}, v{t}, {srd(SWS)}, s{sT0} offen sc1
''')
stamp(sp, 'g1s3')
if OPT['tsp'] == 2:
    sp.add(tsp)
gate = Seq()
for s_ in range(16):
    gate(f'v_mfma_f32_16x16x32_bf16 {vr(vD+8,4)}, {ar(128+4*s_,4)}, {ar(aX+4*s_,4)}, {vr(vD+8,4) if s_ else 0}')
sp.add(gate)
sp(f'''
s_lshl_b32 s{sT2}, s{sTB1}, 9
s_add_u32 s{sT2}, s{sT2}, {WS_G}
v_lshrrev_b32 v{t+1}, 1, v{vSa+9}
v_mul_f32 v{vD+8}, {f32(-math.log2(math.e))}, v{vD+8}
v_exp_f32 v{vD+8}, v{vD+8}
v_add_f32 v{vD+8}, 1.0, v{vD+8}
v_rcp_f32 v{o+6}, v{vD+8}
buffer_store_dwordx2 {vr(o+6,2)}, v{t+1}, {srd(SWS)}, s{sT2} offen sc1
''')
SPG = len(sp)
sp.add(bar('utst'))
sp.add(fu_flag())
if OPT['dly'] == 6:
    gst = sp.l.pop(SPG - 1)
    delay(sp, (6,))
    sp.l.append(gst)
if OPT['c3s']:
    sp(f'''
s_and_b32 s{sT0}, s{sJ}, 3
s_lshl2_add_u32 s{sT0}, s{sT0}, s{sWV}
s_mul_i32 s{sT0}, s{sT0}, {112*1024}
s_add_u32 s{sT1}, s{sT0}, {56*1024}
v_min_u32 v{t}, 55, v{vL}
v_lshlrev_b32 v{t}, 10, v{t}
buffer_load_dword v{vPF}, v{t}, {srd(SW2)}, s{sT0} offen offset:384
buffer_load_dword v{vPF}, v{t}, {srd(SW2)}, s{sT1} offen offset:384''')
sp.add(setup_b())
ks_ = Seq().add(kgen_seq(K).l[len(K['A']):])
sp.add(ks_)
sp.add(cat(w2_dma(0)))
sp.add(bar('*lds'))
stamp(sp, 'g1s7')
sp.add(K['rc'])
sp.add(cat(w2_dma(1)))
sp.add(K['vc'])
sp.add(K['wc'].l[:5])
sp.add(cat([g for k in range(2, 6) for g in w2_dma(k)]))
sp.add(u_poll_issue())
sp.add(cat(w2_tr(0) + w2_tr(1) + w2_tr(2)))
sp.add(K['wc'].l[5:])
sp.add(w2_window())
sp.add(u_dma())
sp.add(cat([g for k in range(6, 6 + OPT['ng']) for g in w2_dma(k)]))
sp.wait('udma')
stamp(sp, 'gelu')
sp('s_branch Ljoin')
for b, n in ((vF1, 48), (vD, 16), (vONE, 4), (vSa, 10), (o, 8), (K['vb'], 36), (K['pb'], 32),
             (vGA, 9), (vTA, 5), (vRR, 1), (vEa, 3)):
    V.release(b, n)

com = Seq()
com('Ljoin:')
vB2 = V.alloc(8, 2)
vGt = V.alloc(2, 2)
vH0 = V.alloc(56, 2)
vCF = V.alloc(128, 2)
vH = (vH0, vCF)
aC = 224
com.wait('udma')
com(f'ds_write_b32 v{vUz+1}, v{vZ} offset:{L_U + 508}')
com.add(bar('*lds'))
stamp(com, 'cv0')


def cv_reads(bb):
    b = vCF + 64 * (bb & 1)
    r = []
    for a in range(8):
        for hh in range(2):
            r.append(f'ds_read_b64 {vr(b+4*a+2*hh,2)}, v{vFa} offset:{64*(59-8*a-bb) + 8*hh}')
        r.append(f'ds_read_b128 {vr(b+32+4*a,4)}, v{vGa} offset:{512*a + 64*(3-bb)}')
    return r


def cv_mfma(bb):
    b = vCF + 64 * (bb & 1)
    r, first = [], set()
    key = (lambda x: (x[0] + x[1], x[0])) if bb == 3 else (lambda x: (max(x), x[0] - x[1])) if OPT['cord'] else (lambda x: (max(x), x[0] + x[1], x[0]))
    order = sorted(((a, d) for a in range(8) for d in range(8 - a)), key=key)
    for a, d in order:
        c = aC + 4 * (a + d)
        cc = '0' if (bb == 0 and a + d not in first) else ar(c, 4)
        first.add(a + d)
        r.append(f'v_mfma_f32_16x16x32_bf16 {ar(c,4)}, {vr(b+4*a,4)}, {vr(b+32+4*d,4)}, {cc}')
    return r


def h_load(L):
    sg, ks = divmod(L, 14)
    if HS == 1:
        return Seq()(f'buffer_load_dwordx4 {vr(vH[sg&1]+4*ks,4)}, v{vL16+ks//4}, {srd(SWS)}, s{sH+sg} offen offset:{1024*(ks%4)} sc1', tag=f'h{L}')
    s = Seq()(f'buffer_load_dwordx4 {vr(vH[sg&1]+4*ks,4)}, v{vL16+1+(ks%6)//2}, {srd(SWS)}, s{sH+sg} offen offset:{2048*(ks%2)} sc1')
    if ks % 6 == 5:
        s(f's_add_u32 s{sH+sg}, s{sH+sg}, 12288')
    return s


hflag = Seq()
hflag.wait('hst?')
flag_set(hflag, sFH)
small = Seq()
g_ld = f'buffer_load_dwordx2 {vr(vGt,2)}, v{vGo}, {srd(SWS)}, s{sGs} offen sc1'
small(g_ld)
small(f'global_load_lds_dword v{vBa}, {ptr(P_B2)}', tag='b2d', m0=f's_add_u32 m0, s{sP4}, 7680')

C = Gaps([x for bb in range(4) for x in cv_mfma(bb)], cap=8, maxlds=1)
need = 3 * [[0, 1, 4, 9, 16, 24, 30, 34]] + [[0, 1, 3, 6, 10, 15, 21, 28]]
LEAD = OPT['lead']
cr = [(36 * bb + need[bb][a] - LEAD, x) for bb in range(4) for a in range(8) for x in cv_reads(bb)[3 * a: 3 * a + 3]]
nxt_free, prelude, placed = 143, [], []
for dl, x in reversed(cr):
    g = min(dl, nxt_free)
    if g < 0:
        prelude.insert(0, x)
    else:
        placed.append((g, x))
        nxt_free = g - 1
for g, x in placed:
    C.put(g, x)
for bb in range(4):
    for a in range(8):
        if 36 * bb + need[bb][a] > 0:
            C.reserve(36 * bb + need[bb][a] - 1, 4)
CT = OPT['ct']
assert CT >= 9
DS = OPT['ds']
g0, dma_end = 0, OPT['d00'] - DS
dma_at = {k: -46 for k in range(6 + OPT['ng'])}
for k in range(6 + OPT['ng'], 9):
    dma_end = dma_at[k] = C.fill(w2_dma(k), dma_end + DS, dma_end + 5 * DS, step=DS)[-1]
for k in range(3, CT + 1):
    g0 = max(g0, dma_at[k] + 44)
    p = C.fill(w2_tr(k), g0, min(g0 + OPT['tw'], 144))
    g0 = p[-1] + 1
    if k == 9:
        tr9 = p[-1]
    if k < 8:
        d0 = max(p[-1] + 6, dma_end + DS)
        dma_end = dma_at[k + 6] = C.fill(w2_dma(k + 6), d0, min(d0 + 4 * DS, 144), step=DS)[-1]
print('w2 dma gaps', dma_at, 'last tr', g0)
red = [Seq()(f'ds_write_b128 v{vRa}, {ar(aC+4*c,4)} offset:{16384*(c//4) + 1024*(c%4)}') for c in range(8)]
for c, g in enumerate((129, 131, 133, 135, 137, 139, 142)):
    assert g > tr9 and g >= 108 + (c + 1) * (c + 2) // 2 + 4
    C.put(g, red[c])
if OPT['smg'] < 144:
    C.fill(singles(small), OPT['smg'], OPT['smg'] + 14, step=2)
C.put(OPT['hfg'], hflag)
if OPT['vp']:
    hld = f'buffer_load_dword v{vPF}, v{vPA}, {srd(SWS)}, s{sFHp} offen sc1'
    C.put(OPT['hpg'], hld)
    hc = [Seq()(f'v_cmp_ne_u32 vcc, s{sNON}, v{vPF}')]
    retry(hc[0], 's_cbranch_vccnz', 's_cbranch_vccz', '\n'.join([hld, 's_waitcnt vmcnt(0)', hc[0].l[0].text]))
else:
    C.put(OPT['hpg'], spoll_issue(7, sFHp))
    hc = spoll_check(7, sFHp)
if OPT['nochk']:
    hc[-1].l[-2] = Ins('s_nop 0')
p = C.fill(hc, OPT['hcg'], OPT['hcg'] + 8)
g0 = max(p[-1], dma_end) + 1
NC = min(14, (144 - g0) // OPT['hs'])
C.fill([h_load(L) for L in range(NC)], g0, 144, step=OPT['hs'])
print('h loads in conv', NC)
sc = singles(setup_c())
C.spread(sc[:11], 30, min(OPT['smg'], OPT['hpg']))
C.spread(sc[11:], min(OPT['smg'], OPT['hpg']), g0)
print('conv over', C.over(), C.load if OPT['stamps'] == 4 else '')
for x in prelude:
    com(x)
for g in range(0, 144, 12):
    com.add(C.emit(g, g + 12))
    if g < 132:
        stamp(com, f'c{g+12}', 4)
stamp(com, 'cv1')
NH0 = NC + OPT['nb4']
hl1 = [h_load(L) for L in range(NC, NH0)]
RSH = OPT['rsh']
q = vCF + 72 if RSH else vCF + 56
tagm = [Seq()(f'v_mov_b32 v{q+32+4*k+d}, s{sNON}') for k in range(4) for d in (2, 3)]
rr = [Seq()(f'ds_read_b128 {vr(q+16*si+8*e+4*p,4)}, v{vRa+1+e} offset:{2048*si + 4096*p}')
      for si in range(2) for e in range(2) for p in range(2)]
rv = Seq()
for si in range(2):
    b = q + 16 * si
    for e in range(2):
        for k in range(2):
            if RSH:
                rv(f'v_add_f32 v{b+8*e+2*k}, v{b+8*e+2*k}, v{b+8*e+4+2*k}\nv_add_f32 v{b+8*e+2*k+1}, v{b+8*e+2*k+1}, v{b+8*e+5+2*k}')
            else:
                rv(f'v_pk_add_f32 {vr(b+8*e+2*k,2)}, {vr(b+8*e+2*k,2)}, {vr(b+8*e+4+2*k,2)}')
    for k in range(2):
        o = q + 32 + 8 * si + 4 * k
        rv(f'v_cvt_pk_bf16_f32 v{o}, v{b+8+2*k}, v{b+8+2*k+1}')
        rv(f'v_cvt_pk_bf16_f32 v{o+1}, v{b+2*k}, v{b+2*k+1}')
if RSH:
    com.add(cat(hl1))
else:
    com.add(cat(tagm))
    com.add(red[7])
    com.add(cat(hl1[:3]))
    com.add(bar('*lds'))
    com.add(cat(rr))
    com.add(cat(hl1[3:6]))
    com.add(rv)
    com.add(cat(hl1[6:]))
LATE = OPT['asg'] > 60
apark = [Seq()(f'v_accvgpr_write_b32 a{224+k}, v{q+32+k}') for k in range(16)]
ast = [Seq()(f'buffer_store_dwordx4 {ar(224+8*si+4*k,4) if LATE else vr(q+32+8*si+4*k,4)}, v{vAo}, {srd(SWS)}, s{sAT} offen offset:{2048*si + 128*k} sc1', tag='atst')
       for si in range(2) for k in range(2)]
delay(com, (5,))
if OPT['asg'] < 0:
    com.add(cat(ast))
stamp(com, 'cv2')

vA2, vP, vAa = vCF + 56, vCF + 88, vCF + 120
vPR = t
aL = vA2 + 16
a_ld = [f'buffer_load_dwordx4 {vr(vH0+4*i,4)}, v{vAs}, {srd(SWS)}, s{sAs+i} offen sc1' for i in range(4)]
a_cmp = [f'v_xor_b32 v{vH0+4*i+2}, s{sNON}, v{vH0+4*i+2}' for i in range(4)]
a_cmp += [f'v_or3_b32 v{vH0+3}, v{vH0+2}, v{vH0+6}, v{vH0+10}', f'v_or_b32 v{vH0+3}, v{vH0+3}, v{vH0+14}',
          f'v_cmp_ne_u32 vcc, 0, v{vH0+3}']
a_chk = [Seq()(x) for x in a_cmp]
retry(a_chk[-1], 's_cbranch_vccnz', 's_cbranch_vccz', '\n'.join(a_ld + ['s_waitcnt vmcnt(0)'] + a_cmp))
a_wr = [Seq()(f'ds_write_b64 v{vAd+i%2}, {vr(vH0+4*i,2)} offset:{512*i}', tag='awr') for i in range(4)]


g_chk = Seq()(f'v_cmp_ne_u32 vcc, s{sNON}, v{vGt+1}')
retry(g_chk, 's_cbranch_vccnz', 's_cbranch_vccz', '\n'.join([g_ld, 's_waitcnt vmcnt(0)', g_chk.l[0].text]))


def part_write(sg):
    return [Seq()(f'ds_write_b128 v{vPW}, {vr(vA2+16*(sg&1)+4*j,4)} offset:{16384*sg + 1024*j}', tag=f'pw{sg}') for j in range(4)]


def part_read(sg, dst):
    return [Seq()(f'ds_read_b128 {vr(dst+4*j,4)}, v{vPR+sg} offset:{1024*j}') for j in range(4)]


def unpack(dst, src):
    return [Seq()(f'v_and_b32 v{dst+k}, 0xffff0000, v{src+k//2}' if k % 2 else f'v_lshlrev_b32 v{dst+k}, 16, v{src+k//2}')
            for k in range(16)]


M = Gaps([f'v_mfma_f32_16x16x32_bf16 {vr(vA2+16*(sg&1)+4*j,4)}, {ar(16*ks+4*j,4)}, {vr(vH[sg&1]+4*ks,4)}, '
          f'{vr(vA2+16*(sg&1)+4*j,4) if (ks or sg == 3) else 0}'
          for sg in range(4) for ks in range(14) for j in range(4)], cap=8, maxlds=1)
HD = OPT['hd']
for g in range(3, 223, 4):
    L = (g + 1) // 4
    if not OPT['w2s']:
        M.reserve(g, 4)
    elif L % 2 == 0:
        M.put(g, Seq().wait(f'h{L+1}'))
nl = NH0
for step in range(56):
    a0 = max(OPT['asg'], 0) // 4
    for k in range(0 if a0 <= step < a0 + OPT['pause'] else 2 if step % OPT['cu'] == 0 else 1):
        if nl < 56 and nl <= step + HD:
            M.put(4 * step + 2 * k, h_load(nl))
            nl += 1
if RSH:
    RB = OPT['rb']
    red[7].l[0].tag = 'red7'
    M.put(2, red[7])
    M.put(RB, bar('red7'))
    M.fill(rr, RB + 1, RB + 10)
    M.spread(tagm, 0, RB + 8)
    p = M.spread(singles(rv), RB + 10, OPT['asg'])
if OPT['asg'] >= 0:
    M.fill(ast, OPT['asg'], OPT['asg'] + 12, step=2)
M.fill([g for k in range(CT + 1, 14) for g in w2_tr(k)], OPT['rb'] + 10 if RSH else 0, 4 * CT + 2)
se = singles(setup_e())
M.spread(se[:2] + [Seq()(f'v_lshl_add_u32 v{vBa}, v{vG}, 3, s{sP4}')], 0, 40)
b2r = [Seq()(f'ds_read_b64 {vr(vB2+2*j,2)}, v{vBa} offset:{7680 + 32*j}') for j in range(4)]
b2r[0] = Seq().wait('b2d').add(b2r[0])
M.fill(b2r, 44, 56)
M.spread(se[2:], 40, 112)
M.fill([g_chk, Seq()(f'v_sub_f32 v{vGt+1}, 1.0, v{vGt}')]
       + (apark if LATE else []) + unpack(vP, vB2), 64, 116)
for i, x in enumerate(a_ld):
    assert OPT['alg'] + OPT['als'] * i >= 116 + 4 * i
    M.put(OPT['alg'] + OPT['als'] * i, x)
for sg in range(3):
    for j, g_ in enumerate(part_write(sg)):
        M.put(56 * (sg + 1) + 5 + (4 if sg == 0 else 3) * j, g_)
M.put(112 + 21, bar('pw1'))
M.fill(part_read(0, vP + 16) + part_read(1, aL), 112 + 22, 112 + 32)
M.fill([Seq()(f'v_add_f32 v{vP+k}, v{vP+k}, v{vP+16+k}') for k in range(16)]
       + [Seq()(f'v_add_f32 v{aL+k}, v{aL+k}, v{vP+k}') for k in range(16)], 112 + 34, 167)
AF = OPT['afg']
p = M.fill(a_chk + a_wr, OPT['acg'], AF - 1)
M.put(AF, bar('pw2', 'awr'))
M.fill([Seq()(f'ds_read_b64_tr_b16 {vr(vAa+2*j,2)}, v{vAr} offset:{4096*j}') for j in range(4)] + part_read(2, vP), AF + 1, min(AF + 7, 223))
M.fill(unpack(vP + 16, vAa) + [Seq()(f'v_mul_f32 v{vP+16+k}, v{vGt}, v{vP+16+k}') for k in range(16)]
       + [Seq()(f'v_fma_f32 v{vP+k}, v{vP+k}, v{vGt+1}, v{vP+16+k}') for k in range(16)], min(AF + 8, 223), 224)
print('gemm2 over', M.over())
for sg in range(4):
    for g in range(56 * sg, 56 * sg + 56, 14):
        com.add(M.emit(g, g + 14))
        if (g + 14) % 56:
            stamp(com, f'm{g+14}', 4)
    stamp(com, f'g2s{sg}')
for j in range(4):
    for i in range(0, 4, 2):
        k = 4 * j + i
        com(f'v_pk_fma_f32 {vr(vP+k,2)}, {vr(aL+k,2)}, {vr(vGt,2)}, {vr(vP+k,2)} op_sel:[0,1,0] op_sel_hi:[1,1,1]')
for j in range(4):
    com(f'v_cvt_pk_bf16_f32 v{vAa+2*j}, v{vP+4*j}, v{vP+4*j+1}')
    com(f'v_cvt_pk_bf16_f32 v{vAa+2*j+1}, v{vP+4*j+2}, v{vP+4*j+3}')
for j in range(4):
    com(f'ds_write_b64 v{vOw+j}, {vr(vAa+2*j,2)}')
for r in range(2):
    com(f'ds_read_b128 {vr(vP+16+4*r,4)}, v{vOr} offset:{1024*r}')
for r in range(2):
    com(f'buffer_store_dwordx4 {vr(vP+16+4*r,4)}, v{vOa}, {srd(SOUT)}, s{sO0+r} offen' + ('', ' sc1', ' nt', ' sc0 sc1')[OPT['osc']])
if OPT['stamps']:
    if not OPT['nw']:
        com.wait('*vm')
    stamp(com, 'end')
    com('s_waitcnt lgkmcnt(0)')
    stamp(com, 'x')
    com(f'''
s_waitcnt lgkmcnt(0)
s_memrealtime s[{sSTAMP}:{sSTAMP+1}]
v_writelane_b32 v{vST}, s{sSTAMP}, 63
s_getreg_b32 s{sT0}, hwreg(HW_REG_XCC_ID)
v_writelane_b32 v{vST}, s{sT0}, 61
s_getreg_b32 s{sT0}, hwreg(HW_REG_HW_ID)
v_writelane_b32 v{vST}, s{sT0}, 60
s_lshl2_add_u32 s{sT0}, s2, s{sWV}
s_lshl_b32 s{sT0}, s{sT0}, 8
s_add_u32 s{sT0}, s{sT0}, {WS_ST}
v_lshlrev_b32 v{t}, 2, v{vL}
buffer_store_dword v{vST}, v{t}, {srd(SWS)}, s{sT0} offen''' + ('', ' sc1', ' nt', ' sc0 sc1')[OPT['osc']])
if PROBE is not None:
    com.wait('*vm')
    stamp(com, 'end')
    role = PROBE.split(':')[1]
    com(f'''
s_waitcnt lgkmcnt(0)
s_cmp_ge_u32 s2, 224
{'s_cbranch_scc1 Lend' if role == 'm' else 's_cbranch_scc0 Lend' if role == 's' else 's_nop 0'}
v_readfirstlane_b32 s{sT1}, v{vST}
{dict(n=f's_sub_u32 s{sT0}, s{sSTAMP}, s{sNON}', r=f's_sub_u32 s{sT0}, s{sNON}, s{sT1}', s=f's_sub_u32 s{sT0}, s{sSTAMP}, s{sT1}')[PROBE.split(':')[2]]}
s_max_i32 s{sT0}, s{sT0}, 0
s_min_i32 s{sT0}, s{sT0}, 0x2000
s_lshl_b32 s{sT0}, s{sT0}, 2
s_memrealtime s[{sT2}:{sT3}]
s_waitcnt lgkmcnt(0)
s_add_u32 s{sT0}, s{sT0}, s{sT2}
Lprobe:
s_memrealtime s[{sT2}:{sT3}]
s_waitcnt lgkmcnt(0)
s_sub_u32 s{sT1}, s{sT2}, s{sT0}
s_cmp_lt_i32 s{sT1}, 0
s_cbranch_scc1 Lprobe''')
com('Lend:')
com('s_endpgm')

check_order(checks[0][0], main.l, checks[0][1])
check_order(pc_addr.l + cat(pr).l + cat(pc_chk).l, main.l)
check_order(checks[1][0], sp.l, checks[1][1])
for x in (main, sp, com):
    insert_m0(x.l)
if OPT['stamps']:
    p0 = finish_stamps(pro.l, None)
    p1 = finish_stamps(main.l, p0)
    assert p1 == finish_stamps(sp.l, p0)
    finish_stamps(com.l, p1)
    stamp_names.remove('x')
paths = (pro.l + main.l + com.l, pro.l + sp.l + com.l)
for p in paths:
    resolve_waits(p)
for p in paths:
    resolve_waits(p)
for p in paths:
    fix_hazards(p)

ref = open('gated_mix__ssm_conv_s4d__mixer_channel_mlp__prompt.s.ref').read().split('\n')
head = [l for l in ref if l.startswith(';') and '@launch' not in l]
txt = '\n'.join(head) + f'\n; @launch grid=(256,1,1) block=(256,1,1) lds={LDS_SIZE}\n'
txt += ''';
;   every workgroup : transposes a 64x64 tile of u into ws; evaluates the S4D kernel of its 2 channels at the 641 distinct
;   workgroups <224 : GEMM1 128x128 on raw x (LayerNorm applied as a rank-2 update + per-token scale), tanh-GELU, h -> ws
;   every workgroup : causal convolution of its 2 channels as block-Toeplitz MFMAs, a -> ws;
; the stores completed; the tag is unique per launch and is published through d_debug.  All waits are bounded.
'''
txt += f'''.amdgcn_target "amdgcn-amd-amdhsa--gfx950"
.text
.p2align 12
.fill {((4096 - 768 + 256 * OPT['eo']) % 4096) // 4}, 4, 0xbf810000      ; the entry then starts a 4 KB page (instruction prefetch stops at page ends)
.globl {NAME}
.p2align 8
.type {NAME},@function
{NAME}:
'''
txt += render(pro.l) + render(main.l) + render(com.l) + ''.join(outline) + '.p2align 12\n' + render(sp.l)
txt += f'''Lcode_end:
    s_endpgm
.section .rodata,"a"
.p2align 6
.amdhsa_kernel {NAME}
  .amdhsa_next_free_vgpr 512
  .amdhsa_next_free_sgpr 102
  .amdhsa_accum_offset 256
  .amdhsa_group_segment_fixed_size 0
  .amdhsa_kernarg_size 128
  .amdhsa_user_sgpr_count 2
  .amdhsa_user_sgpr_kernarg_segment_ptr 1
  .amdhsa_system_sgpr_workgroup_id_x 1
.end_amdhsa_kernel
'''


def with_page_stubs(txt):
    import subprocess, re, os
    tmp = os.environ.get('PGTMP', '_pg')
    disp = {}
    for role in ('main', 'spare'):
        disp[role] = [f's_mov_b32 s0, {int(role == "spare")}', 's_mov_b64 exec, 0'] + [x for w in range(3) for x in (f's_cmp_eq_u32 s{sWV}, {w}', f's_cbranch_scc1 @{role}{w}')]
        disp[role] += [f's_branch @{role}3']
    disp['main'] += ['Liw_ret:', 's_cmp_eq_u32 s0, 1', 's_cbranch_scc1 Liw_ret_spare', 's_mov_b64 exec, -1']
    disp['spare'] += ['Liw_ret_spare:', 's_mov_b64 exec, -1']
    lines = []
    for l in txt.split('\n'):
        if ';IWARM' in l:
            lines += [x if x.endswith(':') else '    ' + x for x in disp[l.split()[1]]]
        else:
            lines.append(l)
    open(tmp + '.s', 'w').write(re.sub(r'@(main|spare)\d', 'Lend', '\n'.join(lines)))
    subprocess.run(['clang', '-x', 'assembler', '-target', 'amdgcn-amd-amdhsa', '-mcpu=gfx950', '-c',
                    tmp + '.s', '-o', tmp + '.o'], check=True)
    dis = subprocess.run(['llvm-objdump', '-d', '-z', '--mcpu=gfx950', tmp + '.o'], capture_output=True, text=True).stdout
    dis = dis[dis.index(f'<{NAME}>:'):]
    cut = dis.index('<Lspare>:')
    size = lambda part: [4 * len(m.group(1).split()) for m in re.finditer(r'// [0-9A-F]+: ([0-9A-F ]+)', part)]
    isins = lambda l: l.startswith('    ') and not l.strip().startswith((';', '.'))
    out, pages = [], {'main': [], 'com': [], 'spare': []}
    sec, sizes, addr, seen = None, None, 0, set()
    szl, it_ = {}, None
    for k, l in enumerate(lines):
        if l == f'{NAME}:':
            it_ = iter(size(dis[:cut]))
        if l == 'Lend:' or l == 'Lcode_end:':
            it_ = None
        if l == 'Lspare:':
            it_ = iter(size(dis[cut:]))
        if it_ and isins(l):
            szl[k] = next(it_)
    small, nfix = [], [0, 0]
    for k, l in enumerate(lines):
        if l == f'{NAME}:':
            sec, sizes, addr = 'main', iter(size(dis[:cut])), 256 * OPT['eo']
        if l == 'Ljoin:':
            sec = 'com'
        if l == 'Lend:':
            sec = None
        if l == 'Lspare:':
            sec, sizes, addr = 'spare', iter(size(dis[cut:])), 0
        if l == 'Lcode_end:':
            sec = None
        if sec and isins(l):
            if addr >= 4096:
                addr -= 4096
                if sec == 'com' or sec in seen:
                    nm = f'Lpg{sum(map(len, pages.values()))}'
                    pages[sec].append(nm)
                    out += [nm + ':', f'    s_cbranch_execz @next{nm}']
                    addr += 4
                    small.append(len(out) - 1)
            sz = next(sizes)
            if sz == 8 and addr % 8 == 4 and OPT['al']:
                wide = [i for i in small if re.match(r'\s+v_(?!readfirstlane|nop)\w+ ', out[i]) and '_e64' not in out[i]]
                run = []
                for kk in range(k, len(lines)):
                    if szl.get(kk, 8) == 4:
                        break
                    if kk in szl:
                        run.append(lines[kk])
                nm_ = sum('mfma' in x for x in run)
                failed = False
                if wide and not any(i > wide[-1] and 'execz' in out[i] for i in small):
                    out[wide[-1]] = re.sub(r'^(\s+v_\w+)', r'\1_e64', out[wide[-1]])
                    nfix[0] += 1
                elif OPT['al'] >= 2 and len(run) >= (OPT['alm'] if nm_ else OPT['alr']):
                    out.append('    s_nop 0')
                    nfix[1] += 1
                else:
                    failed = True
                if not failed:
                    addr += 4
            addr += sz
            if sz == 4:
                small.append(len(out))
            else:
                small = []
        out.append(l)
        if l.strip() == 's_mov_b64 exec, -1':
            seen.add(sec)
    txt = '\n'.join(out)
    nxt = {p: 'Liw_ret' for p in pages['com'] + pages['main']}
    nxt.update({p: 'Liw_ret_spare' for p in pages['spare']})
    for role in ('main', 'spare'):
        own, com_ = list(pages[role]), list(pages['com'])
        while len(own) + len(com_) > 4:
            k = len(own) + len(com_) - 5
            nxt[own[k]] = com_.pop()
        heads = own + com_
        for w in range(4):
            txt = txt.replace(f'@{role}{w}', heads[w] if w < len(heads) else ('Liw_ret' if role == 'main' else 'Liw_ret_spare'))
    for p, n_ in nxt.items():
        txt = txt.replace(f'@next{p}\n', n_ + '\n')
    print('pages', pages, 'aligned', nfix)
    return txt


if OPT['iw']:
    txt = with_page_stubs(txt)
open(sys.argv[1], 'w').write(txt)
if OPT['stamps']:
    open(sys.argv[1] + '.stamps', 'w').write(' '.join(stamp_names))
print('vgpr high water', V.hw, 'instr', [sum(1 for i in p.l if i.kind != 'meta') for p in (pro, main, com, sp)],
      'nops', sum(i.pre for p in (pro, main, com) for i in p.l))
```
